```python
import torch

def _softmax(x, axis=-1):
    return torch.softmax(x, dim=axis)
def _gelu(x):
    return torch.nn.functional.gelu(x, approximate="tanh")
def _silu(x):
    return torch.nn.functional.silu(x)
def _sigmoid(x):
    return torch.sigmoid(x)
def _layernorm(x, axis=-1, eps=1e-5):
    m = x.mean(dim=axis, keepdim=True)
    v = x.var(dim=axis, keepdim=True, unbiased=False)
    return (x - m) / torch.sqrt(v + eps)
def _scatter_add(tgt, idx, src, axis=0):
    return tgt.clone().index_add_(axis, idx, src)
def _segment_sum(src, seg, n):
    out = torch.zeros((n,) + src.shape[1:], dtype=src.dtype)
    return out.index_add_(0, seg, src)
def _pad(x, pw):
    flat = tuple(v for pair in reversed(pw) for v in pair)
    return torch.nn.functional.pad(x, flat)

kernel_name = 'sequential_preLN__gqa_block_cached__glu_gated_glu__decode'

def setup_inputs():

    _w = (lambda a: (lambda t: t.to(torch.bfloat16) if t.is_floating_point() else t)(torch.as_tensor(a)))
    def _A_setup():
        B, Sq, D = 1, 1, 512
        Hq, Hkv, Sk, Dh = 32, 8, 32768, 128
        assert Hq % Hkv == 0, (Hq, Hkv)
        return {
            "x": _w((lambda *s: torch.randn(*s, dtype=torch.bfloat16) * 0.05)(B, Sq, D)),
            "k_cache": _w((lambda *s: torch.randn(*s, dtype=torch.bfloat16) * 3.2)(B, Hkv, Sk, Dh)),
            "v_cache": _w((lambda *s: torch.randn(*s, dtype=torch.bfloat16) * 0.4)(B, Hkv, Sk, Dh)),
            "wq": _w((lambda *s: torch.randn(*s, dtype=torch.bfloat16) * 3.2)(D, Hq * Dh) * (D ** -0.5)),
            "wo": _w((lambda *s: torch.randn(*s, dtype=torch.bfloat16) * 0.4)(Hq * Dh, D) * ((Hq * Dh) ** -0.5)),
        }
    _A_in = _A_setup()

    def _B_setup():
        B, S, D, F = 1, 1, 512, 1792
        return {
            "x": _w((lambda *s: torch.randn(*s, dtype=torch.bfloat16) * 0.05)(B, S, D)),
            "w_gate": _w((lambda *s: torch.randn(*s, dtype=torch.bfloat16) * 0.05)(D, F)),
            "w_up": _w((lambda *s: torch.randn(*s, dtype=torch.bfloat16) * 0.05)(D, F)),
            "w_down": _w((lambda *s: torch.randn(*s, dtype=torch.bfloat16) * 0.05)(F, D)),
        }
    _B_in = _B_setup()

    return {
        "A_x": _A_in["x"],
        "A_k_cache": _A_in["k_cache"],
        "A_v_cache": _A_in["v_cache"],
        "A_wq": _A_in["wq"],
        "A_wo": _A_in["wo"],
        "B_x": _B_in["x"],
        "B_w_gate": _B_in["w_gate"],
        "B_w_up": _B_in["w_up"],
        "B_w_down": _B_in["w_down"],
    }

def reference(A_x, A_k_cache, A_v_cache, A_wq, A_wo, B_x, B_w_gate, B_w_up, B_w_down):
    def _A_ref(x, k_cache, v_cache, wq, wo):
        B, Sq, D = x.shape
        Hq, Dh = 32, 128
        Hkv = k_cache.shape[1]
        rep = Hq // Hkv
        q = (lambda x, *d: x.permute(*d))((x @ wq).reshape(B, Sq, Hq, Dh), 0, 2, 1, 3)
        k = (lambda x, n, axis: torch.repeat_interleave(x, n, dim=axis))(k_cache, rep, axis=1)
        v = (lambda x, n, axis: torch.repeat_interleave(x, n, dim=axis))(v_cache, rep, axis=1)
        scores = torch.einsum("bhqd,bhkd->bhqk", q, k) * (Dh ** -0.5)
        p = _softmax(scores, axis=-1)
        o = torch.einsum("bhqk,bhkd->bhqd", p, v)
        return (lambda x, *d: x.permute(*d))(o, 0, 2, 1, 3).reshape(B, Sq, Hq * Dh) @ wo

    def _B_ref(x, w_gate, w_up, w_down):
        g = torch.einsum("bsd,df->bsf", x, w_gate)
        u = torch.einsum("bsd,df->bsf", x, w_up)
        h = _sigmoid(g) * u
        return torch.einsum("bsf,fd->bsd", h, w_down)

    x = A_x
    h = x + _A_ref(_layernorm(x, axis=-1), A_k_cache, A_v_cache, A_wq, A_wo)
    h2 = h + _B_ref(_layernorm(h, axis=-1), B_w_gate, B_w_up, B_w_down)
    return h2
```

```python
import re
TRANS = ("v_exp_", "v_log_", "v_rcp_", "v_rsq_", "v_sqrt_", "v_sin_", "v_cos_")
def regs_of(tok):
    tok = tok.strip()
    neg = tok.lstrip("-")
    if neg.startswith("abs(") : neg = neg[4:-1]
    if neg.startswith("|"): neg = neg.strip("|")
    m = re.fullmatch(r"([vsa])(\d+)", neg)
    if m: return {(m.group(1), int(m.group(2)))}
    m = re.fullmatch(r"([vsa])\[(\d+):(\d+)\]", neg)
    if m: return {(m.group(1), i) for i in range(int(m.group(2)), int(m.group(3))+1)}
    if neg == "vcc": return {("s", 106), ("s", 107)}
    if neg == "vcc_lo": return {("s", 106)}
    if neg == "vcc_hi": return {("s", 107)}
    if neg == "exec": return {("s", 126), ("s", 127)}
    if neg == "exec_lo": return {("s", 126)}
    if neg == "exec_hi": return {("s", 127)}
    if neg == "m0": return {("s", 124)}
    return set()
class I:
    def __init__(self, text):
        self.text = text
        t = text.split(";")[0].strip()
        self.label = None; self.is_ins = False
        self.cls = None; self.wr = set(); self.rd = set()
        self.srcA = self.srcB = self.srcC = set(); self.passes = 0
        self.dpp = False; self.perm = False; self.trans = False; self.states = 1
        self.target = None; self.uncond = False; self.ends = False
        self.store_data = set(); self.wide_store = False; self.ldsdma = False; self.lanesel = set(); self.rdlane = set()
        self.sread_vmem = set()
        if not t: return
        if t.endswith(":"): self.label = t[:-1]; return
        if t.startswith("."): return
        self.is_ins = True
        parts = t.split(None, 1); mn = parts[0]; self.mn = mn
        rest = parts[1] if len(parts) > 1 else ""
        ops = []; depth = 0; cur = ""
        for ch in rest:
            if ch == "[" or ch == "(": depth += 1
            if ch == "]" or ch == ")": depth -= 1
            if ch == "," and depth == 0: ops.append(cur.strip()); cur = ""
            else: cur += ch
        if cur.strip(): ops.append(cur.strip())
        mods = ""
        if ops:
            last = ops[-1].split(None, 1)
            ops[-1] = last[0]
            mods = last[1] if len(last) > 1 else ""
        self.ops = ops; self.mods = mods
        R = [regs_of(o) for o in ops]
        U = lambda l: set().union(*l) if l else set()
        if mn == "s_nop": self.cls = "nop"; self.states = int(ops[0], 0) + 1; return
        if mn.startswith("v_mfma"):
            self.cls = "mfma"; self.wr = R[0]; self.srcA, self.srcB, self.srcC = R[1], R[2], R[3]
            self.rd = R[1] | R[2] | R[3]
            if "32x32" in mn: self.passes = 8
            elif "16x16" in mn: self.passes = 4
            else: self.passes = 2
            assert "bf16" in mn or "f16" in mn
            return
        if mn.startswith("v_"):
            self.cls = "valu"
            self.trans = mn.startswith(TRANS)
            self.dpp = "_dpp" in mn or "row_" in mods or "quad_perm" in mods
            if mn.startswith("v_permlane"):
                self.perm = True; self.wr = R[0] | R[1]; self.rd = R[0] | R[1]; return
            if mn.startswith(("v_add_co", "v_sub_co", "v_addc_co", "v_subb_co")):
                self.wr = R[0] | R[1]; self.rd = U(R[2:]); return
            self.wr = R[0]; self.rd = U(R[1:])
            if mn.startswith(("v_fmac", "v_pk_fmac", "v_writelane", "v_dot2c")): self.rd |= R[0]
            if self.dpp: self.rd |= R[0]
            if mn.startswith(("v_readlane", "v_readfirstlane")): self.rdlane = R[1]
            if mn.startswith(("v_readlane", "v_writelane")): self.lanesel = R[2]
            assert not mn.startswith("v_cmpx")
            return
        if mn.startswith(("buffer_", "global_")):
            self.cls = "vmem"
            self.ldsdma = " lds" in (" " + mods) or "_lds_" in mn
            allr = U(R)
            self.sread_vmem = {r for r in allr if r[0] == "s"}
            if "_load" in mn and not self.ldsdma:
                self.wr = R[0]; self.rd = U(R[1:])
            elif "_load" in mn:
                self.rd = allr
            else:
                self.rd = allr
                d = R[0] if mn.startswith("buffer_") else R[1]
                self.store_data = d
                self.wide_store = mn.endswith(("x3", "x4"))
                if "atomic" in mn and "sc0" in mods: self.wr = d
            return
        if mn.startswith("ds_"):
            self.cls = "ds"
            if mn.startswith(("ds_read", "ds_bpermute", "ds_permute", "ds_swizzle")) or "_rtn" in mn:
                self.wr = R[0]; self.rd = U(R[1:])
            else: self.rd = U(R)
            return
        if mn.startswith("s_"):
            self.cls = "salu"
            if mn in ("s_branch",) or mn.startswith("s_cbranch"):
                self.target = ops[0]; self.uncond = mn == "s_branch"; return
            if mn == "s_endpgm": self.ends = True; return
            if mn.startswith(("s_cmp", "s_bitcmp", "s_waitcnt", "s_barrier", "s_sleep", "s_setprio")):
                self.rd = U(R); return
            self.wr = R[0] if R else set(); self.rd = U(R[1:])
            if "saveexec" in mn: self.wr = self.wr | regs_of("exec")
            return
        raise ValueError("unknown instruction: " + t)
V = lambda s: {r for r in s if r[0] in "va"}
S = lambda s: {r for r in s if r[0] == "s"}
def need(p, c):
    n = 0
    if p.cls == "valu":
        pv = V(p.wr); ps = S(p.wr)
        if c.cls == "mfma" and pv & c.rd: n = max(n, 2)
        if c.cls == "valu":
            if c.dpp and pv & c.rd: n = max(n, 2)
            if c.perm and pv & c.rd: n = max(n, 2)
            if p.trans and not c.trans and pv & c.rd: n = max(n, 1)
            if p.trans and c.trans and pv & c.rd: n = max(n, 1)
            if ps & c.rd: n = max(n, 2)
            if ps & c.lanesel: n = max(n, 4)
            if pv & c.rdlane: n = max(n, 1)
        if c.cls == "vmem" and ps & c.sread_vmem: n = max(n, 5)
        if c.cls == "salu" and ps & c.rd: n = max(n, 1)
    if p.cls == "mfma":
        idx = {2: 0, 4: 1, 8: 2}[p.passes]
        if c.cls == "mfma":
            if p.wr & (c.srcA | c.srcB): n = max(n, [5, 8, 12][idx])
            if p.wr & c.srcC:
                if p.wr == c.srcC and p.passes == c.passes: n = max(n, [2, 0, 0][idx])
                else: n = max(n, [4, 6, 10][idx])
            elif p.wr & c.wr: n = max(n, [5, 8, 12][idx])
        elif c.cls in ("valu", "vmem", "ds"):
            if p.wr & (c.rd | c.wr): n = max(n, [5, 8, 12][idx])
            if c.cls == "valu" and p.srcC & c.wr: n = max(n, [1, 3, 7][idx])
    if p.cls == "vmem" and p.wide_store:
        if c.cls in ("valu", "mfma") and p.store_data & c.wr: n = max(n, 2)
        elif p.store_data & c.wr: n = max(n, 1)
    if p.cls == "salu" and ("s", 124) in p.wr and c.cls == "vmem" and c.ldsdma: n = max(n, 1)
    return n
def fix(lines, verbose=False):
    ins = [I(l) for l in lines]
    total = 0
    def maps():
        labels = {x.label: i for i, x in enumerate(ins) if x.label}
        jumps = {}
        for i, x in enumerate(ins):
            if x.target is not None: jumps.setdefault(labels[x.target], []).append(i)
        return jumps
    while True:
        jumps = maps()
        changed = False
        i = 0
        while i < len(ins):
            c = ins[i]
            if c.is_ins and c.cls != "nop":
                worst = 0
                stack = [(i, 0)]; seen = set()
                while stack:
                    pos, dist = stack.pop()
                    preds = []
                    if pos > 0:
                        q = ins[pos-1]
                        if not (q.is_ins and (q.uncond or q.ends)): preds.append(pos-1)
                    if ins[pos].label: preds += jumps.get(pos, [])
                    for q in preds:
                        x = ins[q]
                        if (q, dist) in seen: continue
                        seen.add((q, dist))
                        if x.is_ins:
                            worst = max(worst, need(x, c) - dist)
                            d2 = dist + x.states
                        else: d2 = dist
                        if d2 < 13: stack.append((q, d2))
                if worst > 0:
                    ins.insert(i, I(f"    s_nop {worst-1}")); total += worst
                    if verbose: print("nop", worst, "before", c.text)
                    changed = True
                    jumps = maps()
                    i += 1
            i += 1
        if not changed: break
    return [x.text for x in ins], total
```

```python
import sys
import hazard

KN = "sequential_preLN__gqa_block_cached__glu_gated_glu__decode_kernel"

Q_OFF = 0x0
ST_OFF = 0x2000
Y_OFF = 0x10000
Z_OFF = 0x20000
OP_OFF = 0x40000
WS_SIZE = 0xC0000
STAMP_OFF = 0x100000
NG = 56
WQ = 0
WO = 16384
WG = 32768
WU = 65536
WD = 98304
ACC = 131072
XN = ACC + 8192
QV = XN + 1024
HV = QV + 1024
ZR = HV + 1024
HH = ZR + 8 * 64
OV = ZR + 1536
STL = OV + 256
ML = STL + 128
LDS_SIZE = ML + 128

LOG2E = "0x3fb8aa3b"
SCALE = "0x3db504f3"
EPS = "0x3727c5ac"
INV512 = "0x3b000000"
HIMASK = "0xffff0000"
SPIN_MAX = 100000


def vr(a, n=1):
    return f"v{a}" if n == 1 else f"v[{a}:{a+n-1}]"


def sr(a, n=1):
    return f"s{a}" if n == 1 else f"s[{a}:{a+n-1}]"


class Gen:
    def __init__(self, D=5, RING=48, N2=100, pol="nt", wpol="nt", stamps=False, gpace=2, gsplit=(16, 10, 6),
                 outpol="", pvrate=4, prefetch_code=True):
        self.L = []
        self.D, self.RING, self.N2, self.pol, self.wpol = D, RING, N2, pol, wpol
        self.stamps = stamps
        self.gpace, self.gsplit, self.outpol, self.pvrate = gpace, gsplit, outpol, pvrate
        self.prefetch_code = prefetch_code
        self.uid = 0

    def A(self, s):
        for l in s.split("\n"):
            l = l.strip()
            if not l:
                continue
            self.L.append(l if l.endswith(":") else "    " + l)

    def lab(self, p):
        self.uid += 1
        return f"L_{p}_{self.uid}"

    def stamp(self, k):
        if self.stamps:
            self.A(f"s_memrealtime s[98:99]\ns_waitcnt lgkmcnt(0)\ns_mov_b32 s{80+k}, s98")

    def stamp_store(self, role, n):
        if not self.stamps:
            return
        A = self.A
        A("s_mov_b64 exec, 1")
        A(f"s_lshl_b32 s6, s2, 9\ns_add_u32 s6, s6, {STAMP_OFF + role*64}")
        A("v_mov_b32 v1, 0")
        for k in range(n):
            A(f"v_mov_b32 v3, s{80+k}")
            A(f"buffer_store_dword v3, v1, s[16:19], s6 offen offset:{4*k}")
        A("s_mov_b64 exec, -1")

    def allred(self, op, regs, tmps, rors=(8, 4, 2, 1)):
        A = self.A
        for n in rors:
            for r in regs:
                if n == "x2":
                    A(f"{op}_dpp v{r}, v{r}, v{r} quad_perm:[2,3,0,1] row_mask:0xf bank_mask:0xf")
                else:
                    A(f"{op}_dpp v{r}, v{r}, v{r} row_ror:{n} row_mask:0xf bank_mask:0xf")
        for sw in ("v_permlane16_swap_b32", "v_permlane32_swap_b32"):
            for r, t in zip(regs, tmps):
                A(f"v_mov_b32 v{t}, v{r}")
            for r, t in zip(regs, tmps):
                A(f"{sw} v{r}, v{t}")
            for r, t in zip(regs, tmps):
                A(f"{op} v{r}, v{r}, v{t}")

    def spin_guard(self, cnt, out):
        self.A(f"s_add_u32 s{cnt}, s{cnt}, 1\ns_cmp_gt_u32 s{cnt}, {SPIN_MAX}\ns_cbranch_scc1 {out}")

    def entry(self):
        A = self.A
        A("s_load_dwordx2 s[8:9], s[0:1], 8")
        A("s_load_dwordx2 s[12:13], s[0:1], 16")
        A("s_load_dwordx2 s[16:17], s[0:1], 88")
        A("s_cmp_ge_u32 s2, 256")
        A("s_cbranch_scc1 L_end")
        A("v_readfirstlane_b32 s3, v0")
        A("s_and_b32 s4, s2, 7")
        A("s_lshr_b32 s5, s2, 3")
        A("v_and_b32 v0, 63, v0")
        A("s_lshr_b32 s3, s3, 6")
        A(f"s_mov_b32 s18, {0x200000 if self.stamps else WS_SIZE}")
        A("s_mov_b32 s19, 0x20000")
        A("s_cmp_ge_u32 s3, 4")
        A("s_cbranch_scc1 L_helper")

    def streamer(self):
        A = self.A
        D, RING, N2 = self.D, self.RING, self.N2
        R0 = 256 - 4 * RING
        assert R0 >= 60
        S0, D0, X0, X1, VM, VL, VF, VT, VT2 = 8, 24, 40, 41, 42, 43, 44, 45, 46
        ACC0, ACC1 = 48, 52
        TLO, THI = 32, 33
        slot = lambda n: R0 + 4 * (n % RING)
        A("s_mov_b32 s10, 0x4000000\ns_mov_b32 s11, 0x20000\ns_mov_b32 s14, 0x4000000\ns_mov_b32 s15, 0x20000")
        A("v_bfe_u32 v1, v0, 2, 2\nv_lshlrev_b32 v1, 8, v1\nv_and_b32 v3, 3, v0\nv_lshl_add_u32 v1, v3, 4, v1")
        A("v_lshrrev_b32 v3, 4, v0\nv_lshl_add_u32 v1, v3, 6, v1\nv_lshlrev_b32 v2, 4, v0")
        A("s_lshl_b32 s56, s4, 23\ns_lshl_b32 s57, s5, 18\ns_add_u32 s56, s56, s57\ns_lshl_b32 s57, s3, 12\ns_add_u32 s56, s56, s57")
        A("s_mov_b32 s57, s56")
        A("s_waitcnt lgkmcnt(0)")
        self.stamp(0)

        def load(n):
            if n >= D:
                A(f"s_waitcnt vmcnt({D-1})")
            j = n % 4
            if n < 64:
                A(f"buffer_load_dwordx4 {vr(slot(n),4)}, v1, s[8:11], s56 offen offset:{j*1024} {self.pol}")
                if j == 3:
                    A("s_add_u32 s56, s56, 16384")
            else:
                A(f"buffer_load_dwordx4 {vr(slot(n),4)}, v2, s[12:15], s57 offen offset:{j*1024} {self.pol}")
                if j == 3:
                    A("s_add_u32 s57, s57, 16384")

        for n in range(RING):
            load(n)
        self.stamp(1)
        A("s_barrier")
        self.stamp(2)
        A(f"v_add_u32 v3, {QV}, v2")
        A("ds_read_b128 v[4:7], v3")
        A(f"s_mov_b32 s58, {SCALE}\ns_mov_b32 s59, {LOG2E}\ns_mov_b32 s60, {HIMASK}")
        A("s_waitcnt lgkmcnt(0)")

        def qk(i):
            for j in range(4):
                A(f"v_mfma_f32_16x16x32_bf16 {vr(D0+4*j,4)}, {vr(slot(4*i+j),4)}, v[4:7], 0")
            d = lambda j, b: D0 + 4 * j + b
            dp = lambda dst, s0, s1, ror, bm: A(f"v_add_f32_dpp v{dst}, v{s0}, v{s1} row_ror:{ror} row_mask:0xf bank_mask:{bm:#x}")
            dp(X0, d(0, 1), d(0, 0), 12, 1)
            dp(X1, d(2, 1), d(2, 0), 12, 1)
            A("s_nop 0")
            dp(X0, d(1, 0), d(1, 1), 4, 2)
            dp(X1, d(3, 0), d(3, 1), 4, 2)
            A("s_nop 0")
            dp(X0, d(0, 3), d(0, 2), 12, 4)
            dp(X1, d(2, 3), d(2, 2), 12, 4)
            A("s_nop 0")
            dp(X0, d(1, 2), d(1, 3), 4, 8)
            dp(X1, d(3, 2), d(3, 3), 4, 8)
            dp(S0 + i, X0, X0, 8, 3)
            dp(S0 + i, X1, X1, 8, 12)

        def rnd(i):
            a, b = S0 + i, S0 + i + 1
            A(f"v_cvt_pk_bf16_f32 v{VT}, v{a}, v{b}")
            A(f"v_lshlrev_b32 v{a}, 16, v{VT}\nv_and_b32 v{b}, s60, v{VT}")
            A(f"v_mul_f32 v{a}, s58, v{a}\nv_mul_f32 v{b}, s58, v{b}")
            A(f"v_cvt_pk_bf16_f32 v{VT}, v{a}, v{b}")
            A(f"v_lshlrev_b32 v{a}, 16, v{VT}\nv_and_b32 v{b}, s60, v{VT}")
            if i == 0:
                A(f"v_max_f32 v{VM}, v{a}, v{b}")
            else:
                A(f"v_max3_f32 v{VM}, v{VM}, v{a}, v{b}")

        def sm_max():
            self.allred("v_max_f32", [VM], [VT], rors=(4, 8))
            A(f"v_mul_f32 v{VT2}, s59, v{VM}")

        def sm_exp(lo, hi):
            for i in range(lo, hi):
                A(f"v_fma_f32 v{S0+i}, v{S0+i}, s59, -v{VT2}")
            for i in range(lo, hi):
                A(f"v_exp_f32 v{S0+i}, v{S0+i}")
            for i in range(lo, hi, 2):
                if i == 0:
                    A(f"v_add_f32 v{VL}, v{S0}, v{S0+1}")
                else:
                    A(f"v_add_f32 v{VT}, v{S0+i}, v{S0+i+1}\nv_add_f32 v{VL}, v{VL}, v{VT}")

        def sm_sum():
            self.allred("v_add_f32", [VL], [VT], rors=(4, 8))
            A(f"v_and_b32 v3, 3, v0\nv_lshlrev_b32 v3, 4, v3")
            A(f"s_lshl_b32 s6, s3, 2\ns_add_u32 s6, s6, {STL}")
            A(f"v_add_u32 v3, s6, v3")
            A("s_mov_b64 exec, 15")
            A(f"ds_write_b32 v3, v{VM}\nds_write_b32 v3, v{VL} offset:64")
            A("s_mov_b64 exec, -1")
            for r in list(range(24, 32)) + list(range(ACC0, ACC0 + 8)):
                A(f"v_mov_b32 v{r}, 0")
            A("s_waitcnt lgkmcnt(0)")
            self.stamp(3)
            A("s_barrier")

        items = []
        for i in range(16):
            items.append((4 * i + 3, (lambda i=i: qk(i)), 2, ("qk", i)))
            if i % 2 == 1:
                items.append((-1, (lambda i=i: rnd(i - 1)), 0.5, None))
        items += [(-1, sm_max, 1, None), (-1, lambda: sm_exp(0, 8), 2, None), (-1, lambda: sm_exp(8, 16), 2, None),
                  (-1, sm_sum, 2, None)]
        done_qk = -1
        pos = 0
        landed = RING - 1 - D
        for n in range(RING, N2 + 1):
            prev = n - RING
            if prev < 64:
                while done_qk < prev // 4:
                    need, emit, cost, tag = items[pos]
                    assert need <= landed, (n, need, landed)
                    emit(); pos += 1
                    if tag: done_qk = tag[1]
            load(n)
            landed = n - D
            budget = 4
            while pos < len(items) and budget > 0 and items[pos][0] <= landed:
                need, emit, cost, tag = items[pos]
                emit(); pos += 1; budget -= cost
                if tag: done_qk = tag[1]
        assert pos == len(items), "K phase not finished before N2"
        assert N2 - RING < 64
        self.stamp(4)
        A("s_barrier")
        self.stamp(5)
        A(f"v_and_b32 v3, 3, v0\nv_lshlrev_b32 v3, 3, v3\nv_add_u32 v3, {ML}, v3")
        A(f"ds_read_b64 {vr(VT2,2)}, v3")
        A("s_waitcnt lgkmcnt(0)")
        A(f"v_sub_f32 v{VF}, v{VM}, v{VT2}\nv_mul_f32 v{VF}, s59, v{VF}\nv_exp_f32 v{VF}, v{VF}\nv_mul_f32 v{VF}, v{VF}, v{VT2+1}")
        A(f"s_lshl_b32 s6, s3, 11\ns_add_u32 s6, s6, {ACC}\nv_add_u32 v3, s6, v2")
        A(f"s_lshl_b32 s6, s3, 10\ns_add_u32 s6, s6, {ACC}\nv_add_u32 v56, s6, v2")
        A(f"s_lshl_b32 s61, s4, 16\ns_lshl_b32 s7, s5, 11\ns_add_u32 s61, s61, s7\ns_lshl_b32 s7, s3, 10\ns_add_u32 s61, s61, s7\ns_add_u32 s61, s61, {OP_OFF}")

        def tcalc(i):
            A(f"v_mul_f32 v{VT}, v{S0+i}, v{VF}")
            A(f"v_cvt_pk_bf16_f32 v{TLO}, v{VT}, 0\nv_cvt_pk_bf16_f32 v{THI}, 0, v{VT}")

        def mv(dst, src, dbank, j):
            rot = 4 * ((dbank - j) & 3)
            ctl = f"row_ror:{rot}" if rot else "quad_perm:[0,1,2,3]"
            A(f"v_mov_b32_dpp v{dst}, v{src} {ctl} row_mask:0xf bank_mask:{1<<dbank:#x}")

        abuf = lambda t: 24 + 2 * (t % 4)

        def prep(u):
            t0, t1 = 2 * u, 2 * u + 1
            for t in (t0, t1):
                mv(abuf(t), TLO, 0, t % 4)
                mv(abuf(t) + 1, TLO, 2, t % 4)
            for t in (t0, t1):
                mv(abuf(t), THI, 1, t % 4)
                mv(abuf(t) + 1, THI, 3, t % 4)

        def pv(t):
            s = slot(64 + t)
            A(f"v_mfma_f32_16x16x16_bf16 {vr(ACC0,4)}, {vr(abuf(t),2)}, {vr(s,2)}, {vr(ACC0,4)}")
            A(f"v_mfma_f32_16x16x16_bf16 {vr(ACC1,4)}, {vr(abuf(t),2)}, {vr(s+2,2)}, {vr(ACC1,4)}")

        items = []
        for i in range(16):
            items.append((-1, (lambda i=i: tcalc(i)), 0, None))
            for u in (2 * i, 2 * i + 1):
                items.append((-1, (lambda u=u: prep(u)), 0, None))
                for t in (2 * u, 2 * u + 1):
                    items.append((64 + t, (lambda t=t: pv(t)), 1, t))
        pos = 0
        done_pv = -1
        for n in range(N2 + 1, 128):
            prev = n - RING - 64
            while prev >= 0 and done_pv < prev:
                need, emit, cost, tag = items[pos]
                assert need <= landed
                emit(); pos += 1
                if tag is not None: done_pv = tag
            load(n)
            landed = n - D
            budget = self.pvrate
            while pos < len(items) and items[pos][0] <= landed and (budget > 0 or items[pos][2] == 0):
                need, emit, cost, tag = items[pos]
                emit(); pos += 1; budget -= cost
                if tag is not None: done_pv = tag
        while pos < len(items):
            need, emit, cost, tag = items[pos]
            if need > landed:
                A(f"s_waitcnt vmcnt({127-need})")
                landed = need
            emit(); pos += 1
        A(f"ds_write_b128 v3, {vr(ACC0,4)}\nds_write_b128 v3, {vr(ACC1,4)} offset:1024")
        A("s_cmp_ge_u32 s3, 2")
        A("s_waitcnt lgkmcnt(0)")
        A("s_barrier")
        A("s_cbranch_scc1 L_stream_exit")
        for sw in range(4):
            A(f"ds_read_b128 {vr(8+4*sw,4)}, v56 offset:{sw*2048}")
        A("s_waitcnt lgkmcnt(2)")
        A("v_pk_add_f32 v[8:9], v[8:9], v[12:13]\nv_pk_add_f32 v[10:11], v[10:11], v[14:15]")
        A("s_waitcnt lgkmcnt(0)")
        A("v_pk_add_f32 v[16:17], v[16:17], v[20:21]\nv_pk_add_f32 v[18:19], v[18:19], v[22:23]")
        A("v_pk_add_f32 v[8:9], v[8:9], v[16:17]\nv_pk_add_f32 v[10:11], v[10:11], v[18:19]")
        A("buffer_store_dwordx4 v[8:11], v2, s[16:19], s61 offen sc1")
        A("L_stream_exit:")
        if self.stamps:
            self.stamp(6)
            A("s_cmp_lg_u32 s3, 0\ns_cbranch_scc1 L_end")
            self.stamp_store(0, 7)
        A("s_endpgm")

    def helper(self):
        A = self.A
        wp = self.wpol
        A("L_helper:")
        A("s_load_dwordx2 s[20:21], s[0:1], 0")
        A("s_load_dwordx2 s[24:25], s[0:1], 24")
        A("s_load_dwordx2 s[48:49], s[0:1], 80")
        A("s_load_dwordx2 s[28:29], s[0:1], 32")
        A("s_sub_u32 s3, s3, 4")
        A("s_mov_b32 s22, 1024\ns_mov_b32 s23, 0x20000\ns_mov_b32 s26, 0x400000\ns_mov_b32 s27, 0x20000")
        A("s_mov_b32 s50, 256\ns_mov_b32 s51, 0x20000\ns_mov_b32 s30, 0x400000\ns_mov_b32 s31, 0x20000")
        A("v_lshlrev_b32 v2, 4, v0")
        A(f"s_mov_b32 s59, {LOG2E}\ns_mov_b32 s60, {HIMASK}")
        A("s_mul_i32 s61, s4, 7\ns_add_u32 s61, s61, s5")
        A("s_lshr_b32 s62, s5, 3\ns_and_b32 s63, s5, 7")
        A("s_waitcnt lgkmcnt(0)")
        A("s_load_dwordx2 s[32:33], s[0:1], 48")
        A("s_load_dwordx2 s[36:37], s[0:1], 56")
        A("s_load_dwordx2 s[40:41], s[0:1], 64")
        A("s_load_dwordx2 s[44:45], s[0:1], 72")
        A("s_mov_b32 s34, 0x1c0000\ns_mov_b32 s35, 0x20000\ns_mov_b32 s38, 0x1c0000\ns_mov_b32 s39, 0x20000")
        A("s_mov_b32 s42, 0x1c0000\ns_mov_b32 s43, 0x20000\ns_mov_b32 s46, 1024\ns_mov_b32 s47, 0x20000")
        A(f"s_add_u32 s52, s16, {Z_OFF}\ns_addc_u32 s53, s17, 0\ns_mov_b32 s54, {NG*2048}\ns_mov_b32 s55, 0x20000")
        A("s_cmp_lg_u32 s3, 0")
        A("s_cbranch_scc1 L_h123")
        self.h0()
        A("s_branch L_hjoin")
        self.h123()
        A("L_hjoin:")
        self.tail()

    def h0(self):
        A = self.A
        wp = self.wpol
        self.stamp(0)
        A("v_mov_b32 v8, -1\nv_mov_b32 v9, -1\nv_mov_b32 v10, -1\nv_mov_b32 v11, -1")
        A(f"s_lshl_b32 s6, s4, 5\ns_add_u32 s6, s6, s5")
        A(f"s_lshl_b32 s7, s6, 11\ns_add_u32 s7, s7, {OP_OFF}")
        A("buffer_store_dwordx4 v[8:11], v2, s[16:19], s7 offen sc1")
        A("buffer_store_dwordx4 v[8:11], v2, s[16:19], s7 offen offset:1024 sc1")
        A(f"s_lshl_b32 s7, s61, 11\ns_add_u32 s7, s7, {Z_OFF}\ns_cmp_lt_u32 s5, 7\ns_cselect_b32 s7, s7, 0x400000")
        A("buffer_store_dwordx4 v[8:11], v2, s[16:19], s7 offen sc1")
        A("buffer_store_dwordx4 v[8:11], v2, s[16:19], s7 offen offset:1024 sc1")
        A(f"s_lshl_b32 s64, s6, 5\ns_add_u32 s64, s64, {ST_OFF}")
        A("s_mov_b64 exec, 3")
        A("buffer_store_dwordx4 v[8:11], v2, s[16:19], s64 offen sc1")
        A(f"s_lshl_b32 s7, s4, 2\ns_add_u32 s7, s7, s62\ns_lshl_b32 s7, s7, 11\ns_lshl_b32 s6, s63, 8\ns_add_u32 s7, s7, s6\ns_add_u32 s7, s7, {Y_OFF}")
        A("s_mov_b64 exec, 0xffff")
        A("buffer_store_dwordx4 v[8:11], v2, s[16:19], s7 offen sc1")
        A("s_mov_b64 exec, -1")
        A("buffer_load_dwordx4 v[4:7], v2, s[20:23], 0 offen")
        A("v_lshrrev_b32 v3, 1, v0\nv_lshlrev_b32 v3, 13, v3\nv_and_b32 v1, 1, v0\nv_lshl_add_u32 v3, v1, 4, v3")
        A("s_lshl_b32 s6, s4, 10\ns_lshl_b32 s7, s5, 5\ns_add_u32 s58, s6, s7")
        A("s_mov_b32 s6, s58")
        for t in range(16):
            A(f"s_mov_b32 m0, {WQ + t*1024}")
            A(f"buffer_load_dwordx4 v3, s[24:27], s6 offen {wp} lds")
            if t < 15:
                A("s_add_u32 s6, s6, 0x40000")
        A("s_waitcnt vmcnt(16)")
        for k in range(4):
            A(f"v_lshlrev_b32 v{12+2*k}, 16, v{4+k}\nv_and_b32 v{13+2*k}, s60, v{4+k}")
        A("v_add_f32 v20, v12, v13\nv_add_f32 v21, v14, v15\nv_add_f32 v22, v16, v17\nv_add_f32 v23, v18, v19")
        A("v_add_f32 v20, v20, v21\nv_add_f32 v22, v22, v23\nv_add_f32 v20, v20, v22")
        self.allred("v_add_f32", [20], [21])
        A(f"v_mul_f32 v20, {INV512}, v20")
        for k in range(8):
            A(f"v_sub_f32 v{24+k}, v{12+k}, v20")
        A("v_mul_f32 v22, v24, v24")
        for k in range(1, 8):
            A(f"v_fmac_f32 v22, v{24+k}, v{24+k}")
        self.allred("v_add_f32", [22], [21])
        A(f"v_mul_f32 v22, {INV512}, v22")
        self.ln_scalars(20, 22, 21)
        for k in range(4):
            a, b = 12 + 2 * k, 13 + 2 * k
            A(f"v_sub_f32 v{a}, v{a}, v20\nv_sub_f32 v{b}, v{b}, v20")
            A(f"v_cvt_pk_bf16_f32 v21, v{a}, v{b}")
            A(f"v_lshlrev_b32 v{a}, 16, v21\nv_and_b32 v{b}, s60, v21")
            A(f"v_mul_f32 v{a}, v{a}, v22\nv_mul_f32 v{b}, v{b}, v22")
            A(f"v_cvt_pk_bf16_f32 v{4+k}, v{a}, v{b}")
        A(f"v_add_u32 v1, {XN}, v2")
        A("ds_write_b128 v1, v[4:7]")
        A("v_lshrrev_b32 v12, 4, v0\nv_bfe_u32 v13, v0, 2, 2\nv_and_b32 v14, 3, v0")
        A("v_lshl_add_u32 v15, v12, 3, v13\nv_lshlrev_b32 v15, 5, v15\nv_lshl_add_u32 v15, v14, 3, v15")
        A(f"v_lshlrev_b32 v16, 4, v12\nv_add_u32 v16, {XN}, v16")
        A("s_waitcnt vmcnt(0) lgkmcnt(0)")
        self.stamp(1)
        for b in range(4):
            base = 64 + 32 * (b % 2)
            for mm in range(4):
                m = 4 * b + mm
                A(f"ds_read_b64_tr_b16 {vr(base+8*mm,2)}, v15 offset:{WQ + m*1024}")
                A(f"ds_read_b64_tr_b16 {vr(base+8*mm+2,2)}, v15 offset:{WQ + m*1024 + 128}")
                A(f"ds_read_b128 {vr(base+8*mm+4,4)}, v16 offset:{m*64}")
            A("s_waitcnt lgkmcnt(0)")
            for mm in range(4):
                c = "0" if (b == 0 and mm == 0) else "v[20:23]"
                A(f"v_mfma_f32_16x16x32_bf16 v[20:23], {vr(base+8*mm,4)}, {vr(base+8*mm+4,4)}, {c}")
        A("v_lshlrev_b32 v1, 3, v12")
        A("v_cvt_pk_bf16_f32 v24, v20, v21\nv_cvt_pk_bf16_f32 v25, v22, v23")
        A("s_mov_b32 exec_lo, 0x00010001\ns_mov_b32 exec_hi, 0x00010001")
        A(f"buffer_store_dwordx2 v[24:25], v1, s[16:19], s58 offen offset:{Q_OFF} sc1")
        A("s_mov_b64 exec, 1")
        A("v_mov_b32 v1, 0\nv_mov_b32 v4, 1")
        A("s_lshl_b32 s6, s4, 5")
        A("s_waitcnt vmcnt(0)")
        A("buffer_atomic_add v4, v1, s[48:51], s6 offen sc1")
        self.stamp(2)
        lp, out = self.lab("qpoll"), self.lab("qok")
        A("s_mov_b32 s7, 0")
        A(f"{lp}:")
        A("buffer_load_dword v4, v1, s[48:51], s6 offen sc1")
        self.spin_guard(7, out)
        A("s_waitcnt vmcnt(0)")
        A("v_cmp_eq_u32 vcc, 32, v4")
        A(f"s_cbranch_vccnz {out}")
        A("s_sleep 2")
        A(f"s_branch {lp}")
        A(f"{out}:")
        A("s_mov_b64 exec, -1")
        self.stamp(3)
        A("v_lshlrev_b32 v1, 8, v14\nv_lshl_add_u32 v1, v12, 6, v1\nv_lshl_add_u32 v1, v13, 4, v1")
        A("s_lshl_b32 s6, s4, 10")
        A(f"buffer_load_dwordx4 v[4:7], v1, s[16:19], s6 offen offset:{Q_OFF} sc1")
        A(f"v_add_u32 v1, {QV}, v2")
        A("s_waitcnt vmcnt(0)")
        A("ds_write_b128 v1, v[4:7]")
        A("s_waitcnt lgkmcnt(0)")
        self.stamp(4)
        A("s_barrier")
        A("v_lshrrev_b32 v3, 3, v0\nv_lshlrev_b32 v3, 13, v3\nv_and_b32 v1, 7, v0\nv_lshl_add_u32 v3, v1, 4, v3")
        A("s_lshl_b32 s58, s4, 19\ns_lshl_b32 s6, s62, 11\ns_add_u32 s58, s58, s6\ns_lshl_b32 s6, s63, 7\ns_add_u32 s58, s58, s6")
        k = 0
        for m in range(4):
            for kg in range(4):
                if k >= 4:
                    A("s_waitcnt vmcnt(3)")
                A(f"s_add_u32 s6, s58, {(kg*128 + 64*(m&1) + (m>>1))*1024}")
                A(f"s_mov_b32 m0, {WO + (m*4+kg)*1024}")
                A(f"buffer_load_dwordx4 v3, s[28:31], s6 offen {wp} lds")
                k += 1
        A(f"v_and_b32 v1, 3, v0\nv_lshlrev_b32 v4, 4, v1\nv_add_u32 v4, {STL}, v4\nv_lshlrev_b32 v1, 3, v1")
        A("s_barrier")
        A("ds_read_b128 v[8:11], v4\nds_read_b128 v[12:15], v4 offset:64")
        A("s_waitcnt lgkmcnt(0)")
        A("v_max3_f32 v16, v8, v9, v10\nv_max_f32 v16, v16, v11")
        for k in range(4):
            A(f"v_sub_f32 v{8+k}, v{8+k}, v16")
        for k in range(4):
            A(f"v_mul_f32 v{8+k}, s59, v{8+k}")
        for k in range(4):
            A(f"v_exp_f32 v{8+k}, v{8+k}")
        A("v_mul_f32 v17, v8, v12\nv_fmac_f32 v17, v9, v13\nv_fmac_f32 v17, v10, v14\nv_fmac_f32 v17, v11, v15")
        A("s_mov_b64 exec, 15")
        A("buffer_store_dwordx2 v[16:17], v1, s[16:19], s64 offen sc1")
        A("s_mov_b64 exec, -1")
        A(f"s_lshl_b32 s6, s4, 10\ns_add_u32 s6, s6, {ST_OFF}")
        lp, out = self.lab("spoll"), self.lab("sok")
        A("s_mov_b32 s7, 0")
        A(f"{lp}:")
        A("buffer_load_dwordx4 v[8:11], v2, s[16:19], s6 offen sc1")
        self.spin_guard(7, out)
        A("s_waitcnt vmcnt(0)")
        A("v_cmp_u_f32 vcc, v8, v9\nv_cmp_u_f32 s[66:67], v10, v11")
        A("s_or_b64 vcc, vcc, s[66:67]")
        A(f"s_cbranch_scc0 {out}")
        A("s_sleep 2")
        A(f"s_branch {lp}")
        A(f"{out}:")
        A("s_waitcnt vmcnt(0)")
        self.stamp(5)
        A("v_and_b32 v1, 7, v0\nv_lshlrev_b32 v1, 5, v1")
        A("buffer_load_dword v4, v1, s[48:51], 0 offen sc1")
        A("v_mov_b32 v12, v8\nv_mov_b32 v13, v10")
        self.allred("v_max_f32", [12, 13], [14, 15], rors=("x2", 4, 8))
        A("v_sub_f32 v8, v8, v12\nv_sub_f32 v10, v10, v13\nv_mul_f32 v8, s59, v8\nv_mul_f32 v10, s59, v10")
        A("v_exp_f32 v8, v8\nv_exp_f32 v10, v10")
        A("v_mul_f32 v9, v8, v9\nv_mul_f32 v11, v10, v11")
        self.allred("v_add_f32", [9, 11], [14, 15], rors=("x2", 4, 8))
        A("v_rcp_f32 v9, v9\nv_rcp_f32 v11, v11\nv_mov_b32 v8, v12\nv_mov_b32 v10, v13")
        A(f"v_add_u32 v5, {ML}, v2")
        A("s_mov_b64 exec, 3")
        A("ds_write_b128 v5, v[8:11]")
        A("s_mov_b64 exec, -1")
        lp, out, chk = self.lab("cpoll"), self.lab("cok"), self.lab("cchk")
        A("s_mov_b32 s7, 0")
        A(f"s_branch {chk}")
        A(f"{lp}:")
        A("s_sleep 2")
        A("buffer_load_dword v4, v1, s[48:51], 0 offen sc1")
        self.spin_guard(7, out)
        A(f"{chk}:")
        A("s_waitcnt vmcnt(0)")
        A("v_cmp_ne_u32 vcc, 32, v4")
        A(f"s_cbranch_vccnz {lp}")
        A(f"{out}:")
        A("s_waitcnt vmcnt(0) lgkmcnt(0)")
        self.stamp(6)

    def ln_scalars(self, mean, var, t):
        A = self.A
        A(f"v_cvt_pk_bf16_f32 v{t}, v{mean}, v{var}")
        A(f"v_lshlrev_b32 v{mean}, 16, v{t}\nv_and_b32 v{var}, s60, v{t}")
        A(f"v_add_f32 v{var}, {EPS}, v{var}")
        A(f"v_cvt_pk_bf16_f32 v{t}, v{var}, v{var}\nv_and_b32 v{var}, s60, v{t}")
        A(f"v_sqrt_f32 v{var}, v{var}")
        A(f"v_cvt_pk_bf16_f32 v{t}, v{var}, v{var}\nv_and_b32 v{var}, s60, v{t}")
        A(f"v_rcp_f32 v{var}, v{var}")

    def h123(self):
        A = self.A
        wp = self.wpol
        A("L_h123:")
        if self.prefetch_code:
            sk = self.lab("nopf")
            A(f"s_cmp_lg_u32 s3, 1\ns_cbranch_scc1 {sk}")
            A("s_getpc_b64 s[6:7]")
            A("L_pc_anchor:")
            A(f"s_sub_u32 s6, s6, L_pc_anchor-{KN}\ns_subb_u32 s7, s7, 0")
            A("v_lshlrev_b32 v1, 7, v0")
            A(f"v_min_u32 v4, L_code_end-{KN}-4, v1")
            A("global_load_dword v8, v4, s[6:7]")
            A(f"v_add_u32 v1, 8192, v1\nv_min_u32 v4, L_code_end-{KN}-4, v1")
            A("global_load_dword v9, v4, s[6:7]")
            A(f"v_add_u32 v1, 8192, v1\nv_min_u32 v4, L_code_end-{KN}-4, v1")
            A("global_load_dword v10, v4, s[6:7]")
            A(f"{sk}:")
        A("v_mov_b32 v4, 0\nv_mov_b32 v5, 0\nv_mov_b32 v6, 0\nv_mov_b32 v7, 0")
        A(f"v_add_u32 v1, {ZR}, v2")
        A("ds_write_b128 v1, v[4:7]\nds_write_b128 v1, v[4:7] offset:512")
        A("s_waitcnt lgkmcnt(0)")
        A("s_cmp_eq_u32 s3, 1\ns_cselect_b32 s68, s32, s36\ns_cselect_b32 s69, s33, s37")
        A("s_cmp_eq_u32 s3, 3\ns_cselect_b32 s68, s40, s68\ns_cselect_b32 s69, s41, s69")
        A("s_mov_b32 s70, 0x1c0000\ns_mov_b32 s71, 0x20000")
        A("s_mov_b32 s6, 57344\ns_cselect_b32 s72, 1024, s6")
        A("s_lshl_b32 s6, s61, 15\ns_lshl_b32 s7, s61, 6\ns_cmp_eq_u32 s3, 3\ns_cselect_b32 s73, s6, s7")
        A("s_lshl_b32 s74, s3, 15")
        A("s_movk_i32 s6, 3584")
        A("v_lshrrev_b32 v3, 2, v0\nv_mul_lo_u32 v3, v3, s6\nv_and_b32 v1, 3, v0\nv_lshl_add_u32 v3, v1, 4, v3")
        A("s_cmp_eq_u32 s3, 3\ns_cselect_b64 vcc, -1, 0")
        A("v_cndmask_b32 v3, v3, v2, vcc")
        for part, n in enumerate(self.gsplit):
            sk, lp = self.lab("gskip"), self.lab("gloop")
            if n:
                A(f"s_cmp_ge_u32 s5, 7\ns_cbranch_scc1 {sk}")
                A(f"s_mov_b32 s7, {n}")
                A(f"{lp}:")
                A(f"s_waitcnt vmcnt({self.gpace-1})")
                A("s_mov_b32 m0, s74")
                A("s_add_u32 s74, s74, 1024")
                A(f"buffer_load_dwordx4 v3, s[68:71], s73 offen {wp} lds")
                A("s_add_u32 s73, s73, s72")
                A(f"s_sub_u32 s7, s7, 1\ns_cmp_lg_u32 s7, 0\ns_cbranch_scc1 {lp}")
                A(f"{sk}:")
            if part < 2:
                A("s_barrier")
        A("s_waitcnt vmcnt(0)")

    def tail(self):
        A = self.A
        WOA, GB, WDA, P2, P1 = 16, 32, 96, 128, 192
        SUM, OB = 208, 212
        vH1, vH2, vOVw, vOVr, vYs, vHVw, vHVr, vHVs, vHHw, vHHr, vZs, vH3, vFo, vFh, vX0, vX1, CS = range(228, 245)
        A("s_barrier")
        A("v_lshrrev_b32 v12, 4, v0\nv_bfe_u32 v13, v0, 2, 2\nv_and_b32 v14, 3, v0")
        A("v_lshl_add_u32 v15, v12, 3, v13")
        A(f"v_lshlrev_b32 v1, 7, v15\nv_lshl_add_u32 v1, v14, 3, v1\ns_lshl_b32 s6, s3, 5\nv_add_u32 v1, s6, v1")
        for m in range(4):
            A(f"ds_read_b64_tr_b16 {vr(WOA+4*m,2)}, v1 offset:{WO + m*4096}")
            A(f"ds_read_b64_tr_b16 {vr(WOA+4*m+2,2)}, v1 offset:{WO + m*4096 + 512}")
        A(f"v_lshrrev_b32 v4, 3, v0\nv_lshlrev_b32 v4, 11, v4\nv_and_b32 v5, 7, v0\nv_lshl_add_u32 v{vH1}, v5, 4, v4")
        A(f"s_lshl_b32 s64, s4, 16\ns_lshl_b32 s6, s62, 9\ns_add_u32 s64, s64, s6\ns_lshl_b32 s6, s3, 7\ns_add_u32 s64, s64, s6\ns_add_u32 s64, s64, {OP_OFF}")
        A("s_add_u32 s65, s64, 0x4000\ns_add_u32 s66, s64, 0x8000\ns_add_u32 s67, s64, 0xc000")
        A(f"s_lshl_b32 s6, s3, 6\ns_add_u32 s6, s6, {OV}")
        A(f"v_lshlrev_b32 v4, 4, v12\nv_lshl_add_u32 v5, v5, 1, v4\nv_add_u32 v{vOVw}, s6, v5")
        A(f"v_add_u32 v{vOVr}, {OV}, v4\nv_mov_b32 v{vYs}, v4")
        A(f"s_lshl_b32 s58, s4, 2\ns_add_u32 s58, s58, s62\ns_lshl_b32 s58, s58, 11\ns_lshl_b32 s6, s63, 8\ns_add_u32 s58, s58, s6")
        A(f"s_lshl_b32 s6, s3, 6\ns_add_u32 s58, s58, s6\ns_add_u32 s58, s58, {Y_OFF}")
        A(f"v_lshrrev_b32 v4, 5, v0\nv_and_b32 v5, 31, v0")
        A(f"v_lshlrev_b32 v6, 11, v4\nv_lshl_add_u32 v{vH2}, v5, 4, v6")
        A(f"v_lshlrev_b32 v6, 3, v5\nv_lshl_add_u32 v6, v4, 2, v6\ns_lshl_b32 s6, s3, 8\nv_add_u32 v6, s6, v6")
        A(f"buffer_load_dword v7, v6, s[20:23], 0 offen")
        A(f"buffer_load_dword v1, v6, s[44:47], 0 offen")
        A(f"v_add_u32 v{vHVw}, {HV}, v6")
        A(f"v_lshlrev_b32 v4, 4, v12\nv_add_u32 v{vHVr}, {HV}, v4\nv_add_u32 v{vHVs}, {HV}, v2")
        A(f"v_and_b32 v5, 15, v0")
        A(f"s_lshl_b32 s6, s3, 4\ns_add_u32 s6, s6, {HH}\nv_lshl_add_u32 v{vHHw}, v5, 1, s6")
        A(f"v_lshl_add_u32 v6, v5, 6, v4\nv_mov_b32 v{vZs}, v6")
        A(f"v_add_u32 v6, {ZR+64}, v6\nv_cmp_gt_u32 vcc, 8, v5\nv_mov_b32 v{vHHr}, {ZR+16*64}\nv_cndmask_b32 v{vHHr}, v{vHHr}, v6, vcc")
        A(f"v_lshlrev_b32 v{vH3}, 11, v0")
        A(f"s_lshl_b32 s75, s4, 2\ns_add_u32 s75, s75, s5\ns_lshl_b32 s75, s75, 2\ns_add_u32 s75, s75, s3")
        A(f"s_lshl_b32 s6, s75, 3\nv_lshl_add_u32 v{vFo}, v12, 1, s6\nv_add_u32 v{vFh}, {HV}, v{vFo}")
        A("s_lshl_b32 s75, s75, 4")
        A(f"s_lshl_b32 s76, s61, 11\ns_lshl_b32 s6, s3, 9\ns_add_u32 s76, s76, s6\ns_add_u32 s76, s76, {Z_OFF}")
        A(f"s_add_u32 s77, s6, {Y_OFF}")
        A("s_waitcnt vmcnt(0) lgkmcnt(0)")
        A(f"v_lshlrev_b32 v{vX0}, 16, v7\nv_and_b32 v{vX1}, s60, v7")
        A("s_cmp_ge_u32 s5, 7\ns_cbranch_scc1 L_notg1")
        A(f"v_lshlrev_b32 v1, 6, v15\nv_and_b32 v4, 1, v14\nv_lshl_add_u32 v1, v4, 3, v1\nv_lshrrev_b32 v4, 1, v14\nv_lshl_add_u32 v1, v4, 15, v1")
        A(f"s_lshl_b32 s6, s3, 4\ns_add_u32 s6, s6, {WG}\nv_add_u32 v1, s6, v1")
        for half in range(4):
            for m in range(4 * half, 4 * half + 4):
                A(f"ds_read_b64_tr_b16 {vr(GB+4*m,2)}, v1 offset:{m*2048}")
                A(f"ds_read_b64_tr_b16 {vr(GB+4*m+2,2)}, v1 offset:{m*2048 + 256}")
            A("s_waitcnt lgkmcnt(0)")
        A(f"v_lshlrev_b32 v1, 10, v15\nv_lshl_add_u32 v1, v14, 3, v1\ns_lshl_b32 s6, s3, 8\ns_add_u32 s6, s6, {WD}\nv_add_u32 v1, s6, v1")
        for half in range(2):
            for c8 in range(4 * half, 4 * half + 4):
                A(f"ds_read_b64_tr_b16 {vr(WDA+4*c8,2)}, v1 offset:{c8*32}")
                A(f"ds_read_b64_tr_b16 {vr(WDA+4*c8+2,2)}, v1 offset:{c8*32 + 4096}")
            A("s_waitcnt lgkmcnt(0)")
        A("v_mov_b32 v4, 0x3f803f80\nv_mov_b32 v5, v4\nv_mov_b32 v6, v4\nv_mov_b32 v7, v4")
        for m in range(16):
            A(f"v_mfma_f32_16x16x32_bf16 v[8:11], v[4:7], {vr(GB+4*m,4)}, {'0' if m == 0 else 'v[8:11]'}")
        A(f"v_mov_b32 v{CS}, v8")
        A("L_notg1:")
        self.stamp(7)
        A("s_barrier")
        self.stamp(8)

        def h2load(t):
            A(f"s_add_u32 s6, s77, {t*4096}")
            A(f"buffer_load_dwordx4 {vr(P2+4*t,4)}, v{vH2}, s[16:19], s6 offen sc1")

        A("s_cmp_ge_u32 s5, 7\ns_cbranch_scc1 L_notg2")
        for t in range(16):
            h2load(t)
        A("L_notg2:")
        for t in range(4):
            A(f"buffer_load_dwordx4 {vr(P1+4*t,4)}, v{vH1}, s[16:19], s{64+t} offen sc1")
        lp, out = self.lab("h1"), self.lab("h1ok")
        A("s_mov_b32 s7, 0")
        A(f"{lp}:")
        A("s_waitcnt vmcnt(0)")
        for k in (0, 2):
            A(f"v_pk_add_f32 {vr(SUM+k,2)}, {vr(P1+k,2)}, {vr(P1+4+k,2)}")
        for k in (0, 2):
            A(f"v_pk_add_f32 {vr(OB+k,2)}, {vr(P1+8+k,2)}, {vr(P1+12+k,2)}")
        for k in (0, 2):
            A(f"v_pk_add_f32 {vr(SUM+k,2)}, {vr(SUM+k,2)}, {vr(OB+k,2)}")
        A(f"v_cmp_u_f32 vcc, v{SUM}, v{SUM+1}\nv_cmp_u_f32 s[78:79], v{SUM+2}, v{SUM+3}")
        A("s_or_b64 vcc, vcc, s[78:79]")
        A(f"s_cbranch_scc0 {out}")
        self.spin_guard(7, out)
        for t in range(4):
            sk = self.lab("h1s")
            A(f"v_cmp_u_f32 vcc, v{P1+4*t}, v{P1+4*t+1}\nv_cmp_u_f32 s[78:79], v{P1+4*t+2}, v{P1+4*t+3}")
            A("s_or_b64 exec, vcc, s[78:79]")
            A(f"s_cbranch_execz {sk}")
            A(f"buffer_load_dwordx4 {vr(P1+4*t,4)}, v{vH1}, s[16:19], s{64+t} offen sc1")
            A(f"{sk}:")
            A("s_mov_b64 exec, -1")
        A(f"s_branch {lp}")
        A(f"{out}:")
        self.stamp(9)
        A(f"v_permlane32_swap_b32 v{SUM}, v{SUM+2}\nv_permlane32_swap_b32 v{SUM+1}, v{SUM+3}")
        A(f"v_add_f32 v{SUM}, v{SUM}, v{SUM+2}\nv_add_f32 v{SUM+1}, v{SUM+1}, v{SUM+3}")
        A(f"v_permlane16_swap_b32 v{SUM}, v{SUM+1}")
        A(f"v_add_f32 v{SUM}, v{SUM}, v{SUM+1}")
        A(f"v_add_f32_dpp v{SUM}, v{SUM}, v{SUM} row_ror:8 row_mask:0xf bank_mask:0xf")
        A(f"v_cvt_pk_bf16_f32 v{SUM}, v{SUM}, v{SUM}")
        A(f"ds_write_b16 v{vOVw}, v{SUM}")
        A("s_waitcnt lgkmcnt(0)")
        A("s_barrier")
        for m in range(4):
            A(f"ds_read_b128 {vr(OB+4*m,4)}, v{vOVr} offset:{m*64}")
        for m in range(4):
            A(f"s_waitcnt lgkmcnt({3-m})")
            A(f"v_mfma_f32_16x16x32_bf16 v[8:11], {vr(WOA+4*m,4)}, {vr(OB+4*m,4)}, {'0' if m == 0 else 'v[8:11]'}")
        A("s_mov_b32 exec_lo, 0x00010001\ns_mov_b32 exec_hi, 0x00010001")
        A("s_cmp_ge_u32 s5, 7")
        A(f"buffer_store_dwordx4 v[8:11], v{vYs}, s[16:19], s58 offen sc1")
        A("s_mov_b64 exec, -1")
        if self.stamps:
            self.stamp(10)
            sk = self.lab("st")
            A(f"s_cmp_lt_u32 s5, 7\ns_cbranch_scc1 {sk}")
            A("s_cmp_lg_u32 s3, 0\ns_cbranch_scc1 L_end")
            self.stamp_store(1, 11)
            A("s_endpgm")
            A(f"{sk}:")
        else:
            A("s_cbranch_scc1 L_end")
        lp, out = self.lab("h2"), self.lab("h2ok")
        A("s_mov_b32 s7, 0\ns_mov_b32 s62, 0")
        A(f"v_mov_b32 v{SUM}, 0\nv_mov_b32 v{SUM+1}, 0\nv_mov_b32 v{SUM+2}, 0\nv_mov_b32 v{SUM+3}, 0")
        A(f"{lp}:")
        for gq in range(8):
            sk, re = self.lab("h2s"), self.lab("h2r")
            a, b = P2 + 8 * gq, P2 + 8 * gq + 4
            A(f"s_bitcmp1_b32 s62, {gq}\ns_cbranch_scc1 {sk}")
            A(f"v_pk_add_f32 v[4:5], {vr(a,2)}, {vr(b,2)}\nv_pk_add_f32 v[6:7], {vr(a+2,2)}, {vr(b+2,2)}")
            A("v_cmp_u_f32 vcc, v4, v5\nv_cmp_u_f32 s[78:79], v6, v7")
            A("s_or_b64 vcc, vcc, s[78:79]")
            A(f"s_cbranch_scc1 {re}")
            A(f"v_pk_add_f32 {vr(SUM,2)}, {vr(SUM,2)}, v[4:5]\nv_pk_add_f32 {vr(SUM+2,2)}, {vr(SUM+2,2)}, v[6:7]")
            A(f"s_bitset1_b32 s62, {gq}")
            A(f"s_branch {sk}")
            A(f"{re}:")
            h2load(2 * gq)
            h2load(2 * gq + 1)
            A(f"{sk}:")
        A(f"s_cmp_eq_u32 s62, 0xff\ns_cbranch_scc1 {out}")
        self.spin_guard(7, out)
        A("s_waitcnt vmcnt(0)")
        A(f"s_branch {lp}")
        A(f"{out}:")
        self.stamp(11)
        A(f"v_permlane32_swap_b32 v{SUM}, v{SUM+2}\nv_permlane32_swap_b32 v{SUM+1}, v{SUM+3}")
        A(f"v_add_f32 v{SUM}, v{SUM}, v{SUM+2}\nv_add_f32 v{SUM+1}, v{SUM+1}, v{SUM+3}")
        A(f"v_cvt_pk_bf16_f32 v4, v{SUM}, v{SUM+1}")
        A(f"v_lshlrev_b32 v5, 16, v4\nv_and_b32 v6, s60, v4")
        A(f"v_add_f32 v5, v{vX0}, v5\nv_add_f32 v6, v{vX1}, v6")
        A(f"v_cvt_pk_bf16_f32 v4, v5, v6")
        A(f"ds_write_b32 v{vHVw}, v4")
        A("s_waitcnt lgkmcnt(0)")
        A("s_barrier")
        A(f"ds_read_b128 v[4:7], v{vHVs}")
        for m in range(14):
            A(f"ds_read_b128 {vr(P2+4*m,4)}, v{vHVr} offset:{m*64}")
        T = 192
        st = []
        for k in range(4):
            st += [f"v_lshlrev_b32 v{T+2*k}, 16, v{4+k}", f"v_and_b32 v{T+2*k+1}, s60, v{4+k}"]
        st += [f"v_readfirstlane_b32 s6, v{T}"]
        st += [f"v_subrev_f32 v{T+k}, s6, v{T+k}" for k in range(7, -1, -1)]
        st += [f"v_add_f32 v{T+8}, v{T}, v{T+1}", f"v_mul_f32 v{T+9}, v{T}, v{T}"]
        for k in range(1, 8):
            if k >= 2:
                st += [f"v_add_f32 v{T+8}, v{T+8}, v{T+k}"]
            st += [f"v_fmac_f32 v{T+9}, v{T+k}, v{T+k}"]
        save = self.L
        self.L = []
        self.allred("v_add_f32", [T + 8, T + 9], [T + 10, T + 11])
        A(f"v_mul_f32 v{T+8}, {INV512}, v{T+8}\nv_mul_f32 v{T+9}, {INV512}, v{T+9}")
        A(f"v_fma_f32 v{T+9}, -v{T+8}, v{T+8}, v{T+9}\nv_add_f32 v{T+8}, s6, v{T+8}\nv_max_f32 v{T+9}, 0, v{T+9}")
        self.ln_scalars(T + 8, T + 9, T + 10)
        st += [x.strip() for x in self.L]
        self.L = save
        per = -(-len(st) // 16)
        for m in range(16):
            if m == 0:
                A("s_waitcnt lgkmcnt(13)")
            else:
                A(f"s_waitcnt lgkmcnt({15-m})")
            A(f"v_mfma_f32_16x16x32_bf16 v[8:11], {vr(P2+4*m,4)}, {vr(GB+4*m,4)}, {'0' if m == 0 else 'v[8:11]'}")
            if m == 0:
                for m2 in (14, 15):
                    A(f"ds_read_b128 {vr(P2+4*m2,4)}, v{vHVr} offset:{m2*64}")
            for x in st[m * per:(m + 1) * per]:
                A(x)
        A(f"ds_read_u16 v12, v{vFh}")
        A(f"v_fma_f32 v4, -v{T+8}, v{CS}, v8\nv_mul_f32 v4, v4, v{T+9}")
        A("v_cvt_pk_bf16_f32 v4, v4, v4\nv_and_b32 v4, s60, v4")
        A("v_mul_f32 v5, s59, v4\nv_exp_f32 v5, -v5")
        A("v_mov_b32_dpp v6, v4 row_ror:8 row_mask:0xf bank_mask:0xf")
        A("v_add_f32 v5, 1.0, v5\nv_rcp_f32 v5, v5")
        A("v_cvt_pk_bf16_f32 v5, v5, v5\nv_and_b32 v5, s60, v5")
        A("v_mul_f32 v5, v5, v6\nv_cvt_pk_bf16_f32 v5, v5, v5")
        A("s_mov_b64 exec, 0xff")
        A(f"ds_write_b16 v{vHHw}, v5")
        A("s_mov_b64 exec, -1")
        A("s_waitcnt lgkmcnt(0)")
        A("s_barrier")
        for c8 in range(8):
            A(f"ds_read_b128 {vr(P1+4*c8,4)}, v{vHHr} offset:{(7-c8)*64}")
        for c8 in range(8):
            A(f"s_waitcnt lgkmcnt({7-c8})")
            A(f"v_mfma_f32_16x16x32_bf16 v[8:11], {vr(WDA+4*c8,4)}, {vr(P1+4*c8,4)}, {'0' if c8 == 0 else 'v[8:11]'}")
        A("s_mov_b32 exec_lo, 0x00ff00ff\ns_mov_b32 exec_hi, 0x00ff00ff")
        A("s_cmp_ge_u32 s5, 4")
        A(f"buffer_store_dwordx4 v[8:11], v{vZs}, s[16:19], s76 offen sc1")
        A("s_mov_b64 exec, -1")
        if self.stamps:
            self.stamp(12)
            sk = self.lab("st")
            A(f"s_cmp_lt_u32 s5, 4\ns_cbranch_scc1 {sk}")
            A("s_cmp_lg_u32 s3, 0\ns_cbranch_scc1 L_end")
            self.stamp_store(1, 13)
            A("s_endpgm")
            A(f"{sk}:")
        else:
            A("s_cbranch_scc1 L_end")
        lp, out = self.lab("h3"), self.lab("h3ok")
        A("s_mov_b32 s7, 0")
        A("v_lshlrev_b32 v12, 16, v12")
        A(f"{lp}:")
        A(f"buffer_load_dwordx4 v[4:7], v{vH3}, s[52:55], s75 offen sc1")
        self.spin_guard(7, out)
        A("s_waitcnt vmcnt(0)")
        A("v_cmp_u_f32 vcc, v4, v5\nv_cmp_u_f32 s[78:79], v6, v7")
        A("s_or_b64 vcc, vcc, s[78:79]")
        A(f"s_cbranch_scc1 {lp}")
        A(f"{out}:")
        A("s_waitcnt vmcnt(0)")
        self.stamp(13)
        A("v_permlane32_swap_b32 v4, v6\nv_permlane32_swap_b32 v5, v7")
        A("v_add_f32 v4, v4, v6\nv_add_f32 v5, v5, v7")
        A("v_permlane16_swap_b32 v4, v5")
        A("v_add_f32 v4, v4, v5")
        for n in (8, 4, 2, 1):
            A(f"v_add_f32_dpp v4, v4, v4 row_ror:{n} row_mask:0xf bank_mask:0xf")
        A("v_cvt_pk_bf16_f32 v4, v4, v4\nv_and_b32 v4, s60, v4")
        A("v_add_f32 v4, v12, v4\nv_cvt_pk_bf16_f32 v4, v4, v4")
        A("s_mov_b32 exec_lo, 0x00010001\ns_mov_b32 exec_hi, 0x00010001")
        A(f"buffer_store_short v4, v{vFo}, s[44:47], 0 offen {self.outpol}")
        if self.stamps:
            A("s_mov_b64 exec, -1")
            A("s_waitcnt vmcnt(0)")
            self.stamp(14)
            A("s_cmp_lg_u32 s3, 0\ns_cbranch_scc1 L_end")
            self.stamp_store(1, 15)

    def build(self):
        self.entry()
        self.streamer()
        self.helper()
        self.A("L_end:\ns_endpgm\nL_code_end:")
        body, nn = hazard.fix(self.L)
        head = open("cdna_kernels/" + KN[:-7] + ".s.ref").read().split("; Override launch")[0]
        out = head
        out += f"; @launch grid=(256,1,1) block=(512,1,1) lds={LDS_SIZE}\n"
        out += '.amdgcn_target "amdgcn-amd-amdhsa--gfx950"\n.text\n'
        out += f".globl {KN}\n.p2align 8\n.type {KN},@function\n{KN}:\n"
        out += "\n".join(body) + "\n"
        out += f""".section .rodata,"a"
.p2align 6
.amdhsa_kernel {KN}
  .amdhsa_next_free_vgpr 256
  .amdhsa_next_free_sgpr 102
  .amdhsa_accum_offset 256
  .amdhsa_group_segment_fixed_size 0
  .amdhsa_kernarg_size 96
  .amdhsa_user_sgpr_count 2
  .amdhsa_user_sgpr_kernarg_segment_ptr 1
  .amdhsa_system_sgpr_workgroup_id_x 1
.end_amdhsa_kernel
"""
        return out


def gen(**kw):
    return Gen(**kw).build()


if __name__ == "__main__":
    kw = eval("dict(" + (sys.argv[2] if len(sys.argv) > 2 else "") + ")")
    open(sys.argv[1], "w").write(gen(**kw))
```

```python
import sys
import hazard

KN = "sequential_preLN__gqa_block_cached__glu_gated_glu__decode_kernel"

Q_OFF = 0x0
ST_OFF = 0x2000
Y_OFF = 0x10000
Z_OFF = 0x20000
OP_OFF = 0x40000
QP_OFF = 0xC0000
WS_SIZE = 0xD0000
STAMP_OFF = 0x100000
NG = 56
WQ = 0
WO = 16384
WG = 32768
WU = 65536
WD = 98304
ACC = 131072
XN = ACC + 8192
QV = XN + 1024
HV = QV + 1024
ZR = HV + 1024
HH = ZR + 8 * 64
OV = ZR + 1536
STL = OV + 256
ML = STL + 128
FL = ML + 64
F_Q, F_ST, F_W, F_EARLY, F_MID, F_A, F_CLR, F_GL = 0, 4, 8, 12, 16, 20, 24, 28
WT = ML + 128
LDS_SIZE = ML + 128 + 512

LOG2E = "0x3fb8aa3b"
SCALE = "0x3db504f3"
EPS = "0x3727c5ac"
INV512 = "0x3b000000"
HIMASK = "0xffff0000"
SPIN_MAX = 100000


def vr(a, n=1):
    return f"v{a}" if n == 1 else f"v[{a}:{a+n-1}]"


def sr(a, n=1):
    return f"s{a}" if n == 1 else f"s[{a}:{a+n-1}]"


class Gen:
    def __init__(self, D=5, DN=None, DG=None, RING=48, NTN=68, NTG=52, pol="nt", wpol="nt", qpol=None, gpol=None,
                 stamps=0, gpace=2, grot=0, outpol="", pvrate=3, kbudget=3, prefetch_code=True, dbg=(), slp=8,
                 n_early=28, mid_back=26, a_back=1, acnt=4, stdelay=3):
        self.L = []
        self.uid = 0
        self.RING, self.NTN, self.NTG, self.pol, self.wpol = RING, NTN, NTG, pol, wpol
        assert NTG + 3 * NTN == 256
        self.DN = tuple(DN) if DN else ((0, D),)
        self.DG = tuple(DG) if DG else self.DN
        self.qpol = wpol if qpol is None else qpol
        self.gpol = wpol if gpol is None else gpol
        self.stamps, self.gpace, self.grot, self.outpol = stamps, gpace, grot, outpol
        self.pvrate, self.kbudget, self.prefetch_code, self.dbg, self.slp = pvrate, kbudget, prefetch_code, dbg, slp
        self.n_early, self.mid_back, self.a_back, self.acnt, self.stdelay = n_early, mid_back, a_back, acnt, stdelay

    def A(self, s):
        for l in s.split("\n"):
            l = l.strip()
            if not l:
                continue
            self.L.append(l if l.endswith(":") else "    " + l)

    def lab(self, p):
        self.uid += 1
        return f"L_{p}_{self.uid}"

    def stamp(self, k):
        if self.stamps:
            self.A(f"s_memrealtime s[98:99]\ns_waitcnt lgkmcnt(0)\ns_mov_b32 s{80+k}, s98")

    def stamp_store(self, role, n):
        if not self.stamps:
            return
        A = self.A
        A("s_mov_b64 exec, 1")
        A(f"s_lshl_b32 s6, s2, 9\ns_add_u32 s6, s6, {STAMP_OFF + role*64}")
        A("v_mov_b32 v1, 0")
        for k in range(n):
            A(f"v_mov_b32 v3, s{80+k}")
            A(f"buffer_store_dword v3, v1, s[16:19], s6 offen offset:{4*k}")
        A("s_mov_b64 exec, -1")

    def allred(self, op, regs, tmps, rors=(8, 4, 2, 1)):
        A = self.A
        for n in rors:
            for r in regs:
                if n == "x2":
                    A(f"{op}_dpp v{r}, v{r}, v{r} quad_perm:[2,3,0,1] row_mask:0xf bank_mask:0xf")
                else:
                    A(f"{op}_dpp v{r}, v{r}, v{r} row_ror:{n} row_mask:0xf bank_mask:0xf")
        for sw in ("v_permlane16_swap_b32", "v_permlane32_swap_b32"):
            for r, t in zip(regs, tmps):
                A(f"v_mov_b32 v{t}, v{r}")
            for r, t in zip(regs, tmps):
                A(f"{sw} v{r}, v{t}")
            for r, t in zip(regs, tmps):
                A(f"{op} v{r}, v{r}, v{t}")

    def flag_add(self, vaddr, vone, off):
        self.A(f"s_mov_b64 exec, 1\nds_add_u32 v{vaddr}, v{vone} offset:{off}\ns_mov_b64 exec, -1")

    def flag_wait(self, vaddr, vt, off, val, slp=2):
        lp, out = self.lab("fw"), self.lab("fwok")
        self.A("s_mov_b32 s7, 0")
        self.A(f"{lp}:")
        self.A(f"ds_read_b32 v{vt}, v{vaddr} offset:{off}")
        self.A(f"s_add_u32 s7, s7, 1\ns_cmp_gt_u32 s7, {SPIN_MAX*8}\ns_cbranch_scc1 {out}")
        self.A("s_waitcnt lgkmcnt(0)")
        self.A(f"v_cmp_le_u32 vcc, {val}, v{vt}")
        self.A(f"s_cbranch_vccnz {out}")
        self.A(f"s_sleep {slp}")
        self.A(f"s_branch {lp}")
        self.A(f"{out}:")
        self.A("s_waitcnt lgkmcnt(0)")

    def spin_guard(self, cnt, out):
        self.A(f"s_add_u32 s{cnt}, s{cnt}, 1\ns_cmp_gt_u32 s{cnt}, {SPIN_MAX if not [x for x in self.dbg if x.startswith('no')] else 12}\ns_cbranch_scc1 {out}")

    def entry(self):
        A = self.A
        A("s_load_dwordx2 s[8:9], s[0:1], 8")
        A("s_load_dwordx2 s[12:13], s[0:1], 16")
        A("s_load_dwordx2 s[16:17], s[0:1], 88")
        A("s_cmp_ge_u32 s2, 256")
        A("s_cbranch_scc1 L_end")
        A("v_readfirstlane_b32 s3, v0")
        A("s_and_b32 s4, s2, 7")
        A("s_lshr_b32 s5, s2, 3")
        A("v_and_b32 v0, 63, v0")
        A("s_lshr_b32 s3, s3, 6")
        A(f"s_mov_b32 s18, {0x200000 if self.stamps else WS_SIZE}")
        A("s_mov_b32 s19, 0x20000")
        A("s_cmp_ge_u32 s3, 4")
        A("s_cbranch_scc1 L_helper")

    def streamer(self):
        A = self.A
        A("s_mov_b32 s10, 0x4000000\ns_mov_b32 s11, 0x20000\ns_mov_b32 s14, 0x4000000\ns_mov_b32 s15, 0x20000")
        A("v_bfe_u32 v1, v0, 2, 2\nv_lshlrev_b32 v1, 8, v1\nv_and_b32 v3, 3, v0\nv_lshl_add_u32 v1, v3, 4, v1")
        A("v_lshrrev_b32 v3, 4, v0\nv_lshl_add_u32 v1, v3, 6, v1\nv_lshlrev_b32 v2, 4, v0")
        A("s_lshl_b32 s56, s4, 23\ns_lshl_b32 s57, s3, 12\ns_add_u32 s56, s56, s57")
        two = self.DG != self.DN or self.NTG != self.NTN
        if two:
            A("s_cmp_lt_u32 s5, 8\ns_cbranch_scc1 L_stream_g")
        A(f"s_mul_i32 s57, s5, {self.NTN*4096}\ns_add_u32 s56, s56, s57\ns_sub_u32 s56, s56, {8*(self.NTN-self.NTG)*4096}")
        self.stream_body(self.DN, self.NTN)
        if two:
            A("L_stream_g:")
            A(f"s_mul_i32 s57, s5, {self.NTG*4096}\ns_add_u32 s56, s56, s57")
            self.stream_body(self.DG, self.NTG)

    def stream_body(self, sched, NT):
        A = self.A
        RING = self.RING
        R0 = 256 - 4 * RING
        assert R0 >= 64
        NB = -(-NT // 4)
        rem = NT % 4
        NL = 2 * NT
        S0, VFL, VONE, VFG, D0, X0, X1, VM, VL, VF, VT, VT2, VRD, M4 = 8, 25, 26, 27, 28, 44, 45, 46, 47, 48, 49, 50, 51, 52
        ACC0, ACC1 = 56, 60
        AB, TLO, THI = 28, 36, 37
        assert NB <= 17
        slot = lambda n: R0 + 4 * (n % RING)
        A("s_mov_b32 s57, s56")
        if rem:
            A(f"s_mul_i32 s62, s3, {(4-rem)*1024}\ns_sub_u32 s62, 16384, s62")
        A("s_waitcnt lgkmcnt(0)")

        def depth(n):
            d = sched[0][1]
            for n0, dd in sched:
                if n >= (n0 if n0 >= 0 else NL + n0):
                    d = dd
            return d
        st = {"landed": -1}
        self.stamp(0)

        def load(n):
            d = depth(n)
            if n - d > st["landed"]:
                A(f"s_waitcnt vmcnt({d-1})")
                st["landed"] = n - d
            t = n % NT
            j = t % 4
            va, srd, so = ("v1", "s[8:11]", "s56") if n < NT else ("v2", "s[12:15]", "s57")
            A(f"buffer_load_dwordx4 {vr(slot(n),4)}, {va}, {srd}, {so} offen offset:{j*1024} {self.pol}")
            if j == 3 and t + 1 < NT:
                A(f"s_add_u32 {so}, {so}, {'s62' if (rem and t + 1 == 4*(NB-1)) else 16384}")
            if n == depth(0) - 1:
                A(f"v_mov_b32 v{VFL}, {FL}\nv_mov_b32 v{VONE}, 1")
                A(f"s_mov_b32 s58, {SCALE}\ns_mov_b32 s59, {LOG2E}\ns_mov_b32 s60, {HIMASK}")
                A(f"v_and_b32 v3, 3, v0\nv_lshlrev_b32 v3, 8, v3\nv_bfe_u32 v4, v0, 2, 2\nv_lshl_add_u32 v3, v4, 4, v3")
                A(f"v_lshrrev_b32 v4, 4, v0\nv_lshl_add_u32 v3, v4, 6, v3\nv_add_u32 v3, {QV}, v3")
                A("s_barrier")
            if n == self.n_early:
                self.flag_add(VFL, VONE, F_EARLY)
            if n == NL - self.mid_back:
                self.flag_add(VFL, VONE, F_MID)
            if n == NL - self.a_back:
                self.flag_add(VFL, VONE, F_A)

        def flagged_read(off, val, read):
            lp, out = self.lab("sf"), self.lab("sfok")
            A("s_mov_b32 s7, 0")
            A(f"{lp}:")
            A(f"ds_read_b32 v{VFG}, v{VFL} offset:{off}")
            A(read)
            A(f"s_add_u32 s7, s7, 1\ns_cmp_gt_u32 s7, {SPIN_MAX*8}\ns_cbranch_scc1 {out}")
            A("s_waitcnt lgkmcnt(0)")
            A(f"v_cmp_gt_u32 vcc, {val}, v{VFG}")
            A(f"s_cbranch_vccnz {lp}")
            A(f"{out}:")
            A("s_waitcnt lgkmcnt(0)")

        def qsync():
            if self.stamps > 1: self.stamp(1)
            flagged_read(F_Q, 1, "ds_read_b128 v[4:7], v3")
            if self.stamps > 1: self.stamp(2)

        def qk(i):
            nt = rem if (rem and i == NB - 1) else 4
            for j in range(nt):
                A(f"v_mfma_f32_16x16x32_bf16 {vr(D0+4*j,4)}, {vr(slot(4*i+j),4)}, v[4:7], 0")
            d = lambda j, b: D0 + 4 * j + b
            dp = lambda dst, s0, s1, ror, bm: A(f"v_add_f32_dpp v{dst}, v{s0}, v{s1} row_ror:{ror} row_mask:0xf bank_mask:{bm:#x}")
            dp(X0, d(0, 1), d(0, 0), 12, 1)
            dp(X1, d(2, 1), d(2, 0), 12, 1)
            dp(X0, d(1, 0), d(1, 1), 4, 2)
            dp(X1, d(3, 0), d(3, 1), 4, 2)
            dp(X0, d(0, 3), d(0, 2), 12, 4)
            dp(X1, d(2, 3), d(2, 2), 12, 4)
            dp(X0, d(1, 2), d(1, 3), 4, 8)
            dp(X1, d(3, 2), d(3, 3), 4, 8)
            dp(S0 + i, X0, X0, 8, 3)
            dp(S0 + i, X1, X1, 8, 12)
            if nt < 4:
                A(f"v_mov_b32 v{VT}, 0xff800000")
                A(f"v_mov_b32_dpp v{S0+i}, v{VT} quad_perm:[0,1,2,3] row_mask:0xf bank_mask:{(0xf << nt) & 0xf:#x}")

        def rnd(i):
            a, b = S0 + i, S0 + min(i + 1, NB - 1)
            A(f"v_cvt_pk_bf16_f32 v{VT}, v{a}, v{b}")
            if a != b: A(f"v_lshlrev_b32 v{a}, 16, v{VT}")
            A(f"v_and_b32 v{b}, s60, v{VT}")
            if a != b: A(f"v_mul_f32 v{a}, s58, v{a}")
            A(f"v_mul_f32 v{b}, s58, v{b}")
            A(f"v_cvt_pk_bf16_f32 v{VT}, v{a}, v{b}")
            if a != b: A(f"v_lshlrev_b32 v{a}, 16, v{VT}")
            A(f"v_and_b32 v{b}, s60, v{VT}")
            if i == 0:
                A(f"v_max_f32 v{VM}, v{a}, v{b}")
            else:
                A(f"v_max3_f32 v{VM}, v{VM}, v{a}, v{b}")

        def sm_max():
            self.allred("v_max_f32", [VM], [VT], rors=(4, 8))
            A(f"v_mul_f32 v{VT2}, s59, v{VM}")

        def sm_exp(lo, hi):
            for i in range(lo, hi):
                A(f"v_fma_f32 v{S0+i}, v{S0+i}, s59, -v{VT2}")
            for i in range(lo, hi):
                A(f"v_exp_f32 v{S0+i}, v{S0+i}")
            for i in range(lo, hi):
                if i == 1:
                    A(f"v_add_f32 v{VL}, v{S0}, v{S0+1}")
                elif i > 1:
                    A(f"v_add_f32 v{VL}, v{VL}, v{S0+i}")

        def sm_sum():
            self.allred("v_add_f32", [VL], [VT], rors=(4, 8))
            A(f"v_and_b32 v3, 3, v0\nv_lshlrev_b32 v3, 4, v3\nv_add_u32 v3, {STL}, v3")
            A(f"s_lshl_b32 s6, s3, 2\nv_add_u32 v4, s6, v3")
            A("s_mov_b64 exec, 15")
            A(f"ds_write_b32 v4, v{VM}\nds_write_b32 v4, v{VL} offset:64")
            self.flag_add(VFL, VONE, F_ST)
            if self.stamps > 1: self.stamp(3)

        def pv_setup():
            for r in list(range(AB, AB + 8)) + list(range(ACC0, ACC0 + 8)):
                A(f"v_mov_b32 v{r}, 0")
            A(f"s_lshl_b32 s6, s3, 10\ns_add_u32 s6, s6, {ACC}\nv_add_u32 v{VRD}, s6, v2")
            A(f"s_lshl_b32 s61, s4, 16\ns_lshl_b32 s7, s5, 11\ns_add_u32 s61, s61, s7\ns_lshl_b32 s7, s3, 10\ns_add_u32 s61, s61, s7\ns_add_u32 s61, s61, {OP_OFF}")

        def msync():
            if self.stamps > 1: self.stamp(4)
            flagged_read(F_ST, 4, f"ds_read_b128 {vr(M4,4)}, v3")
            if self.stamps > 1: self.stamp(5)
            A(f"v_max3_f32 v{VF}, v{M4}, v{M4+1}, v{M4+2}\nv_max_f32 v{VF}, v{VF}, v{M4+3}")
            A(f"v_sub_f32 v{VF}, v{VM}, v{VF}\nv_mul_f32 v{VF}, s59, v{VF}\nv_exp_f32 v{VF}, v{VF}")
            A(f"s_lshl_b32 s6, s3, 11\ns_add_u32 s6, s6, {ACC}\nv_add_u32 v3, s6, v2")

        def tcalc(i):
            A(f"v_mul_f32 v{VT}, v{S0+i}, v{VF}")
            A(f"v_cvt_pk_bf16_f32 v{TLO}, v{VT}, 0\nv_cvt_pk_bf16_f32 v{THI}, 0, v{VT}")

        def mv(dst, src, dbank, j):
            rot = 4 * ((dbank - j) & 3)
            ctl = f"row_ror:{rot}" if rot else "quad_perm:[0,1,2,3]"
            A(f"v_mov_b32_dpp v{dst}, v{src} {ctl} row_mask:0xf bank_mask:{1<<dbank:#x}")

        abuf = lambda t: AB + 2 * (t % 4)

        def prep(ts):
            for t in ts:
                mv(abuf(t), TLO, 0, t % 4)
                mv(abuf(t) + 1, TLO, 2, t % 4)
            for t in ts:
                mv(abuf(t), THI, 1, t % 4)
                mv(abuf(t) + 1, THI, 3, t % 4)

        def pv(t):
            s = slot(NT + t)
            A(f"v_mfma_f32_16x16x16_bf16 {vr(ACC0,4)}, {vr(abuf(t),2)}, {vr(s,2)}, {vr(ACC0,4)}")
            A(f"v_mfma_f32_16x16x16_bf16 {vr(ACC1,4)}, {vr(abuf(t),2)}, {vr(s+2,2)}, {vr(ACC1,4)}")

        KB = float(self.kbudget)
        items = [(RING - 1 - depth(RING - 1), qsync, 0.5, -1, 0)]
        for i in range(NB):
            last = min(4 * i + 3, NT - 1)
            items.append((last, (lambda i=i: qk(i)), 2, last, 0))
            if i % 2 == 1 or i == NB - 1:
                items.append((-1, (lambda i=i: rnd(i - (i % 2))), 0.5, -1, 0))
        h = NB // 2
        items += [(-1, sm_max, 1.5, -1, 0), (-1, lambda: sm_exp(0, h), 2, -1, 0), (-1, lambda: sm_exp(h, NB), 2, -1, 0),
                  (-1, sm_sum, 2, -1, 0), (-1, pv_setup, 2, -1, 0), (-1, msync, 1, -1, self.stdelay)]
        for i in range(NB):
            items.append((-1, (lambda i=i: tcalc(i)), 0, -1, 0))
            for u in (2 * i, 2 * i + 1):
                ts = [t for t in (2 * u, 2 * u + 1) if t < NT]
                if not ts: continue
                items.append((-1, (lambda ts=ts: prep(ts)), 0, -1, 0))
                for t in ts:
                    items.append((NT + t, (lambda t=t: pv(t)), KB / self.pvrate, NT + t, 0))
        pos = 0
        freed = -1
        lastn = 0
        for n in range(NL):
            while n - RING > freed:
                need, emit, cost, fr, dl = items[pos]
                assert need <= st["landed"], (n, need)
                emit(); pos += 1; freed = max(freed, fr); lastn = n
            load(n)
            budget = KB
            while pos < len(items) and items[pos][0] <= st["landed"] and (budget > 0 or items[pos][2] == 0) and n >= lastn + items[pos][4]:
                need, emit, cost, fr, dl = items[pos]
                emit(); pos += 1; budget -= cost; freed = max(freed, fr); lastn = n
        while pos < len(items):
            need, emit, cost, fr, dl = items[pos]
            if need > st["landed"]:
                A(f"s_waitcnt vmcnt({NL-1-need})")
                st["landed"] = need
            emit(); pos += 1
        ex = self.lab("sexit")
        A("s_cmp_ge_u32 s3, 2")
        A(f"ds_write_b128 v3, {vr(ACC0,4)}\nds_write_b128 v3, {vr(ACC1,4)} offset:1024")
        A("s_waitcnt lgkmcnt(0)")
        A("s_barrier")
        A(f"s_cbranch_scc1 {ex}")
        for sw in range(4):
            A(f"ds_read_b128 {vr(8+4*sw,4)}, v{VRD} offset:{sw*2048}")
        A("s_waitcnt lgkmcnt(2)")
        A("v_pk_add_f32 v[8:9], v[8:9], v[12:13]\nv_pk_add_f32 v[10:11], v[10:11], v[14:15]")
        A("s_waitcnt lgkmcnt(0)")
        A("v_pk_add_f32 v[16:17], v[16:17], v[20:21]\nv_pk_add_f32 v[18:19], v[18:19], v[22:23]")
        A("v_pk_add_f32 v[8:9], v[8:9], v[16:17]\nv_pk_add_f32 v[10:11], v[10:11], v[18:19]")
        A("buffer_store_dwordx4 v[8:11], v2, s[16:19], s61 offen sc1")
        A(f"{ex}:")
        if self.stamps:
            self.stamp(6)
            A("s_cmp_lg_u32 s3, 0\ns_cbranch_scc1 L_end")
            self.stamp_store(0, 7)
        A("s_endpgm")

    def helper(self):
        A = self.A
        wp = self.wpol
        A("L_helper:")
        A("s_load_dwordx2 s[20:21], s[0:1], 0")
        A("s_load_dwordx2 s[24:25], s[0:1], 24")
        A("s_load_dwordx2 s[48:49], s[0:1], 80")
        A("s_load_dwordx2 s[28:29], s[0:1], 32")
        A("s_sub_u32 s3, s3, 4")
        A("s_mov_b32 s22, 1024\ns_mov_b32 s23, 0x20000\ns_mov_b32 s26, 0x400000\ns_mov_b32 s27, 0x20000")
        A("s_mov_b32 s50, 256\ns_mov_b32 s51, 0x20000\ns_mov_b32 s30, 0x400000\ns_mov_b32 s31, 0x20000")
        A("v_lshlrev_b32 v2, 4, v0")
        A(f"s_mov_b32 s59, {LOG2E}\ns_mov_b32 s60, {HIMASK}")
        A("s_mul_i32 s61, s4, 7\ns_add_u32 s61, s61, s5")
        A("s_lshr_b32 s62, s5, 3\ns_and_b32 s63, s5, 7")
        A("s_waitcnt lgkmcnt(0)")
        A("s_load_dwordx2 s[32:33], s[0:1], 48")
        A("s_load_dwordx2 s[36:37], s[0:1], 56")
        A("s_load_dwordx2 s[40:41], s[0:1], 64")
        A("s_load_dwordx2 s[44:45], s[0:1], 72")
        A("s_mov_b32 s34, 0x1c0000\ns_mov_b32 s35, 0x20000\ns_mov_b32 s38, 0x1c0000\ns_mov_b32 s39, 0x20000")
        A("s_mov_b32 s42, 0x1c0000\ns_mov_b32 s43, 0x20000\ns_mov_b32 s46, 1024\ns_mov_b32 s47, 0x20000")
        A(f"s_add_u32 s52, s16, {Z_OFF}\ns_addc_u32 s53, s17, 0\ns_mov_b32 s54, {NG*2048}\ns_mov_b32 s55, 0x20000")
        A(f"s_lshl_b32 s6, s4, 5\ns_add_u32 s6, s6, s5\ns_lshl_b32 s64, s6, 5\ns_add_u32 s64, s64, {ST_OFF}")
        A(f"s_lshl_b32 s66, s6, 11\ns_add_u32 s66, s66, {OP_OFF}")
        A(f"s_lshl_b32 s7, s4, 2\ns_add_u32 s7, s7, s62\ns_lshl_b32 s7, s7, 11\ns_lshl_b32 s6, s63, 8\ns_add_u32 s58, s7, s6")
        A(f"s_add_u32 s67, s58, {Y_OFF}\ns_add_u32 s58, s58, {QP_OFF}\ns_lshl_b32 s65, s4, 5")
        self.VFL = 245
        A(f"v_mov_b32 v{self.VFL}, {FL}")
        A("s_cmp_lg_u32 s3, 0")
        A("s_cbranch_scc1 L_h123")
        self.h0()
        A("s_branch L_hjoin")
        self.h123()
        A("L_hjoin:")
        self.tail()

    def h0(self):
        A = self.A
        self.stamp(0)
        A("buffer_load_dwordx4 v[4:7], v2, s[20:23], 0 offen")
        A("v_lshrrev_b32 v3, 3, v0\nv_lshlrev_b32 v3, 13, v3\nv_and_b32 v1, 7, v0\nv_lshl_add_u32 v3, v1, 4, v3")
        A("s_lshl_b32 s6, s62, 20\ns_lshl_b32 s7, s4, 10\ns_add_u32 s6, s6, s7\ns_lshl_b32 s7, s63, 7\ns_add_u32 s6, s6, s7")
        for t in range(16):
            A(f"s_mov_b32 m0, {WQ + t*1024}")
            if "nowq" not in self.dbg: A(f"buffer_load_dwordx4 v3, s[24:27], s6 offen {self.qpol} lds")
            if t < 15:
                A("s_add_u32 s6, s6, 0x10000")
            if t == 3:
                A("s_barrier")
        A("s_waitcnt vmcnt(16)" if "nowq" not in self.dbg else "s_waitcnt vmcnt(0)")
        for k in range(4):
            A(f"v_lshlrev_b32 v{12+2*k}, 16, v{4+k}\nv_and_b32 v{13+2*k}, s60, v{4+k}")
        A("v_add_f32 v20, v12, v13\nv_add_f32 v21, v14, v15\nv_add_f32 v22, v16, v17\nv_add_f32 v23, v18, v19")
        A("v_add_f32 v20, v20, v21\nv_add_f32 v22, v22, v23\nv_add_f32 v20, v20, v22")
        self.allred("v_add_f32", [20], [21])
        A(f"v_mul_f32 v20, {INV512}, v20")
        for k in range(8):
            A(f"v_sub_f32 v{24+k}, v{12+k}, v20")
        A("v_mul_f32 v22, v24, v24")
        for k in range(1, 8):
            A(f"v_fmac_f32 v22, v{24+k}, v{24+k}")
        self.allred("v_add_f32", [22], [21])
        A(f"v_mul_f32 v22, {INV512}, v22")
        self.ln_scalars(20, 22, 21)
        for k in range(4):
            a, b = 12 + 2 * k, 13 + 2 * k
            A(f"v_sub_f32 v{a}, v{a}, v20\nv_sub_f32 v{b}, v{b}, v20")
            A(f"v_cvt_pk_bf16_f32 v21, v{a}, v{b}")
            A(f"v_lshlrev_b32 v{a}, 16, v21\nv_and_b32 v{b}, s60, v21")
            A(f"v_mul_f32 v{a}, v{a}, v22\nv_mul_f32 v{b}, v{b}, v22")
            A(f"v_cvt_pk_bf16_f32 v{4+k}, v{a}, v{b}")
        A(f"v_add_u32 v1, {XN}, v2")
        A("ds_write_b128 v1, v[4:7]")
        A("v_lshrrev_b32 v12, 4, v0\nv_bfe_u32 v13, v0, 2, 2\nv_and_b32 v14, 3, v0")
        A("v_lshl_add_u32 v15, v12, 3, v13\nv_lshlrev_b32 v15, 7, v15\nv_lshl_add_u32 v15, v14, 3, v15")
        A(f"s_lshl_b32 s6, s62, 8\ns_add_u32 s6, s6, {XN}\nv_lshlrev_b32 v17, 4, v12\nv_add_u32 v16, s6, v17")
        A("s_waitcnt lgkmcnt(0)")
        for m in range(4):
            A(f"ds_read_b128 {vr(128+4*m,4)}, v16 offset:{m*64}")
        A("s_waitcnt vmcnt(0)")
        self.stamp(1)
        for m in range(4):
            base = 64 + 16 * m
            for ct in range(4):
                A(f"ds_read_b64_tr_b16 {vr(base+4*ct,2)}, v15 offset:{WQ + m*4096 + ct*32}")
                A(f"ds_read_b64_tr_b16 {vr(base+4*ct+2,2)}, v15 offset:{WQ + m*4096 + ct*32 + 512}")
            A("s_waitcnt lgkmcnt(0)")
            for ct in range(4):
                c = "0" if m == 0 else vr(32 + 4 * ct, 4)
                A(f"v_mfma_f32_16x16x32_bf16 {vr(32+4*ct,4)}, {vr(base+4*ct,4)}, {vr(128+4*m,4)}, {c}")
        self.flag_wait(self.VFL, 4, F_CLR, 1, slp=1)
        A("s_mov_b32 exec_lo, 0x00010001\ns_mov_b32 exec_hi, 0x00010001")
        for ct in range(4):
            A(f"buffer_store_dwordx4 {vr(32+4*ct,4)}, v17, s[16:19], s58 offen offset:{ct*64} sc1")
        A("s_mov_b64 exec, -1")
        self.stamp(2)
        A("v_mov_b32 v1, 0")
        self.flag_wait(self.VFL, 4, F_EARLY, 1)
        self.cnt_wait("s65", "v1")
        self.stamp(3)
        A(f"s_lshl_b32 s6, s4, 13\ns_add_u32 s6, s6, {QP_OFF}\ns_add_u32 s66, s6, 4096")
        lp, out = self.lab("qpoll"), self.lab("qok")
        A("s_mov_b32 s7, 0")
        A(f"{lp}:")
        for rb in range(4):
            for hf in range(2):
                A(f"buffer_load_dwordx4 {vr(64+8*rb+4*hf,4)}, v2, s[16:19], {'s6' if rb < 2 else 's66'} offen offset:{(rb&1)*2048+hf*1024} sc1")
        self.spin_guard(7, out)
        A("s_waitcnt vmcnt(0)")
        for k in range(0, 8, 2):
            A(f"v_pk_add_f32 {vr(64+k,2)}, {vr(64+k,2)}, {vr(72+k,2)}\nv_pk_add_f32 {vr(80+k,2)}, {vr(80+k,2)}, {vr(88+k,2)}")
        for k in range(0, 8, 2):
            A(f"v_pk_add_f32 {vr(64+k,2)}, {vr(64+k,2)}, {vr(80+k,2)}")
        A("v_cmp_u_f32 vcc, v64, v65\nv_cmp_u_f32 s[68:69], v66, v67\nv_cmp_u_f32 s[70:71], v68, v69\nv_cmp_u_f32 s[72:73], v70, v71")
        A("s_or_b64 vcc, vcc, s[68:69]\ns_or_b64 s[70:71], s[70:71], s[72:73]\ns_or_b64 vcc, vcc, s[70:71]")
        if "noqpoll" in self.dbg: A(f"s_branch {out}")
        A(f"s_cbranch_scc0 {out}")
        A(f"s_sleep {self.slp}")
        A(f"s_branch {lp}")
        A(f"{out}:")
        A("s_waitcnt vmcnt(0)")
        A("v_cvt_pk_bf16_f32 v4, v64, v65\nv_cvt_pk_bf16_f32 v5, v66, v67\nv_cvt_pk_bf16_f32 v6, v68, v69\nv_cvt_pk_bf16_f32 v7, v70, v71")
        A(f"v_lshlrev_b32 v1, 3, v0\nv_add_u32 v1, {QV}, v1\nv_mov_b32 v8, 1")
        A("ds_write_b64 v1, v[4:5]\nds_write_b64 v1, v[6:7] offset:512")
        self.flag_add(self.VFL, 8, F_Q)
        self.stamp(4)
        A(f"v_and_b32 v1, 3, v0\nv_lshlrev_b32 v5, 4, v1\nv_add_u32 v5, {STL}, v5\nv_lshlrev_b32 v1, 3, v1")
        self.flag_wait(self.VFL, 4, F_ST, 4, slp=4)
        A("ds_read_b128 v[8:11], v5\nds_read_b128 v[12:15], v5 offset:64")
        A("s_waitcnt lgkmcnt(0)")
        A("v_max3_f32 v16, v8, v9, v10\nv_max_f32 v16, v16, v11")
        for k in range(4):
            A(f"v_sub_f32 v{8+k}, v{8+k}, v16")
        for k in range(4):
            A(f"v_mul_f32 v{8+k}, s59, v{8+k}")
        for k in range(4):
            A(f"v_exp_f32 v{8+k}, v{8+k}")
        A("v_mul_f32 v17, v8, v12\nv_fmac_f32 v17, v9, v13\nv_fmac_f32 v17, v10, v14\nv_fmac_f32 v17, v11, v15")
        A("s_mov_b64 exec, 15")
        A("buffer_store_dwordx2 v[16:17], v1, s[16:19], s64 offen sc1")
        A("s_mov_b64 exec, -1")
        self.stamp(5)

    def split_weights(self):
        A = self.A
        self.flag_wait(self.VFL, 4, F_MID, 1, slp=4)
        A("v_and_b32 v1, 7, v0\nv_lshlrev_b32 v1, 5, v1")
        self.cnt_wait("0", "v1")
        A(f"s_lshl_b32 s6, s4, 10\ns_add_u32 s6, s6, {ST_OFF}")
        lp, out = self.lab("spoll"), self.lab("sok")
        A("s_mov_b32 s7, 0")
        A(f"{lp}:")
        A("buffer_load_dwordx4 v[8:11], v2, s[16:19], s6 offen sc1")
        self.spin_guard(7, out)
        A("s_waitcnt vmcnt(0)")
        A("v_cmp_u_f32 vcc, v8, v9\nv_cmp_u_f32 s[78:79], v10, v11")
        A("s_or_b64 vcc, vcc, s[78:79]")
        A(f"s_cbranch_scc0 {out}")
        A(f"s_sleep {self.slp}")
        A(f"s_branch {lp}")
        A(f"{out}:")
        A("s_waitcnt vmcnt(0)")
        A("v_mov_b32 v4, v8\nv_mov_b32 v5, v10")
        self.allred("v_max_f32", [4, 5], [6, 7], rors=("x2", 4, 8))
        A("v_sub_f32 v8, v8, v4\nv_sub_f32 v10, v10, v5\nv_mul_f32 v8, s59, v8\nv_mul_f32 v10, s59, v10")
        A("v_exp_f32 v8, v8\nv_exp_f32 v10, v10")
        A("v_mul_f32 v9, v8, v9\nv_mul_f32 v11, v10, v11")
        self.allred("v_add_f32", [9, 11], [6, 7], rors=("x2", 4, 8))
        A("v_rcp_f32 v9, v9\nv_rcp_f32 v11, v11")
        A(f"v_lshlrev_b32 v5, 3, v0\nv_add_u32 v5, {WT}, v5\nv_mov_b32 v4, 1")
        A("v_mul_f32 v8, v8, v9\nv_mul_f32 v9, v10, v11")
        A("ds_write_b64 v5, v[8:9]")
        self.flag_add(self.VFL, 4, F_W)
        self.stamp(6)

    def cnt_wait(self, soff, voff):
        A = self.A
        lp, out = self.lab("cpoll"), self.lab("cok")
        A("s_mov_b32 s7, 0")
        if "noatomic" in self.dbg: A(f"s_branch {out}")
        A(f"{lp}:")
        A(f"buffer_load_dword v4, {voff}, s[48:51], {soff} offen sc1")
        self.spin_guard(7, out)
        A("s_waitcnt vmcnt(0)")
        A("v_cmp_gt_u32 vcc, 32, v4")
        A(f"s_cbranch_vccz {out}")
        A(f"s_sleep {self.slp}")
        A(f"s_branch {lp}")
        A(f"{out}:")
        A("s_waitcnt vmcnt(0)")

    def ln_scalars(self, mean, var, t):
        A = self.A
        A(f"v_cvt_pk_bf16_f32 v{t}, v{mean}, v{var}")
        A(f"v_lshlrev_b32 v{mean}, 16, v{t}\nv_and_b32 v{var}, s60, v{t}")
        A(f"v_add_f32 v{var}, {EPS}, v{var}")
        A(f"v_cvt_pk_bf16_f32 v{t}, v{var}, v{var}\nv_and_b32 v{var}, s60, v{t}")
        A(f"v_sqrt_f32 v{var}, v{var}")
        A(f"v_cvt_pk_bf16_f32 v{t}, v{var}, v{var}\nv_and_b32 v{var}, s60, v{t}")
        A(f"v_rcp_f32 v{var}, v{var}")

    def h123(self):
        A = self.A
        A("L_h123:")
        l2, l3, dn = self.lab("h2"), self.lab("h3"), self.lab("hd")
        A("v_mov_b32 v4, 0\nv_mov_b32 v5, 0\nv_mov_b32 v6, 0\nv_mov_b32 v7, 0")
        A(f"s_cmp_eq_u32 s3, 2\ns_cbranch_scc1 {l2}\ns_cmp_eq_u32 s3, 3\ns_cbranch_scc1 {l3}")
        A("v_mov_b32 v8, -1\nv_mov_b32 v9, -1\nv_mov_b32 v10, -1\nv_mov_b32 v11, -1")
        mark = len(self.L)
        A("buffer_store_dwordx4 v[8:11], v2, s[16:19], s66 offen sc1")
        A("buffer_store_dwordx4 v[8:11], v2, s[16:19], s66 offen offset:1024 sc1")
        A(f"s_lshl_b32 s7, s61, 11\ns_add_u32 s7, s7, {Z_OFF}\ns_cmp_lt_u32 s5, 7\ns_cselect_b32 s7, s7, 0x400000")
        A("buffer_store_dwordx4 v[8:11], v2, s[16:19], s7 offen sc1")
        A("buffer_store_dwordx4 v[8:11], v2, s[16:19], s7 offen offset:1024 sc1")
        A("s_mov_b64 exec, 3")
        A("buffer_store_dwordx4 v[8:11], v2, s[16:19], s64 offen sc1")
        A("s_mov_b64 exec, 0xffff")
        A("buffer_store_dwordx4 v[8:11], v2, s[16:19], s67 offen sc1")
        A("buffer_store_dwordx4 v[8:11], v2, s[16:19], s58 offen sc1")
        A("s_mov_b64 exec, -1")
        if "noclear" in self.dbg:
            self.L = self.L[:mark] + [x for x in self.L[mark:] if "buffer_store" not in x]
        if "clrpol" in self.dbg:
            self.L = self.L[:mark] + [x.replace(" sc1", " sc1 nt") for x in self.L[mark:]]
        A("v_mov_b32 v5, 1")
        A("s_barrier")
        A("s_waitcnt vmcnt(0)")
        A("s_mov_b64 exec, 1")
        if "noatomic" not in self.dbg: A("buffer_atomic_add v5, v4, s[48:51], s65 offen sc1")
        self.flag_add(self.VFL, 5, F_CLR)
        A(f"s_branch {dn}")
        A(f"{l2}:")
        A(f"ds_write_b128 v{self.VFL}, v[4:7]\nds_write_b128 v{self.VFL}, v[4:7] offset:16\nds_write_b128 v{self.VFL}, v[4:7] offset:32")
        A("s_waitcnt lgkmcnt(0)")
        A("s_barrier")
        if self.prefetch_code:
            A("s_getpc_b64 s[6:7]")
            A("L_pc_anchor:")
            A(f"s_sub_u32 s6, s6, L_pc_anchor-{KN}\ns_subb_u32 s7, s7, 0")
            A("s_lshl_b32 s68, s5, 10\nv_lshl_add_u32 v1, v0, 6, s68")
            A(f"v_min_u32 v4, L_code_end-{KN}-4, v1")
            A("s_mov_b64 exec, 0xffff")
            A(f"global_load_dword v8, v4, s[6:7]")
            A("s_mov_b64 exec, -1")
        A(f"s_branch {dn}")
        A(f"{l3}:")
        A(f"v_add_u32 v1, {ZR}, v2")
        A("ds_write_b128 v1, v[4:7]\nds_write_b128 v1, v[4:7] offset:512")
        A("s_barrier")
        A(f"{dn}:")
        A("s_waitcnt vmcnt(0) lgkmcnt(0)")
        if True:
            sk, lp = self.lab("gskip"), self.lab("gloop")
            A(f"s_cmp_ge_u32 s5, 7\ns_cbranch_scc1 {sk}")
            if "nog" in self.dbg:
                A("v_mov_b32 v5, 1")
                self.flag_add(self.VFL, 5, F_GL)
                A(f"s_branch {sk}")
            A("s_cmp_eq_u32 s3, 1\ns_cselect_b32 s68, s32, s36\ns_cselect_b32 s69, s33, s37")
            A("s_cmp_eq_u32 s3, 3\ns_cselect_b32 s68, s40, s68\ns_cselect_b32 s69, s41, s69")
            A("s_mov_b32 s70, 0x1c0000\ns_mov_b32 s71, 0x20000")
            A("s_mov_b32 s6, 57344\ns_cselect_b32 s72, 1024, s6")
            A("s_lshl_b32 s6, s61, 15\ns_lshl_b32 s7, s61, 6\ns_cmp_eq_u32 s3, 3\ns_cselect_b32 s73, s6, s7")
            A("s_lshl_b32 s74, s3, 15")
            A("s_movk_i32 s6, 3584")
            A("v_lshrrev_b32 v3, 2, v0\nv_mul_lo_u32 v3, v3, s6\nv_and_b32 v1, 3, v0\nv_lshl_add_u32 v3, v1, 4, v3")
            A("s_cmp_eq_u32 s3, 3\ns_cselect_b64 vcc, -1, 0")
            A("v_cndmask_b32 v3, v3, v2, vcc")
            if self.grot:
                A(f"s_and_b32 s78, s61, 1\ns_mul_i32 s78, s78, {self.grot}")
                A("s_mul_i32 s6, s78, s72\ns_add_u32 s73, s73, s6\ns_lshl_b32 s6, s78, 10\ns_add_u32 s74, s74, s6")
            A(f"s_mov_b32 s7, 32")
            A(f"{lp}:")
            A(f"s_waitcnt vmcnt({self.gpace-1})")
            A("s_mov_b32 m0, s74")
            A("s_add_u32 s74, s74, 1024")
            A(f"buffer_load_dwordx4 v3, s[68:71], s73 offen {self.gpol} lds")
            A("s_add_u32 s73, s73, s72")
            if self.grot:
                nw = self.lab("nowrap")
                A(f"s_add_u32 s78, s78, 1\ns_cmp_lg_u32 s78, 32\ns_cbranch_scc1 {nw}")
                A("s_lshl_b32 s6, s72, 5\ns_sub_u32 s73, s73, s6\ns_sub_u32 s74, s74, 0x8000")
                A(f"{nw}:")
            A(f"s_sub_u32 s7, s7, 1\ns_cmp_lg_u32 s7, 0\ns_cbranch_scc1 {lp}")
            A("v_mov_b32 v5, 1\ns_waitcnt vmcnt(0)")
            self.flag_add(self.VFL, 5, F_GL)
            A(f"{sk}:")

    def tail(self):
        A = self.A
        WOA, GB, WDA, P2, P1 = 16, 32, 96, 128, 192
        WTR, SUM, OB = 208, 224, 192
        vH1, vH2, vOVw, vOVr, vYs, vHVw, vHVr, vHVs, vHHw, vHHr, vZs, vH3, vFo, vFh, vX0, vX1, CS = range(228, 245)
        A("v_lshrrev_b32 v12, 4, v0\nv_bfe_u32 v13, v0, 2, 2\nv_and_b32 v14, 3, v0")
        A("v_lshl_add_u32 v15, v12, 3, v13")
        A(f"v_lshrrev_b32 v4, 3, v0\nv_lshlrev_b32 v4, 11, v4\nv_and_b32 v5, 7, v0\nv_lshl_add_u32 v{vH1}, v5, 4, v4")
        A(f"s_lshl_b32 s64, s4, 16\ns_lshl_b32 s6, s62, 9\ns_add_u32 s64, s64, s6\ns_lshl_b32 s6, s3, 7\ns_add_u32 s64, s64, s6\ns_add_u32 s64, s64, {OP_OFF}")
        A("s_add_u32 s65, s64, 0x4000\ns_add_u32 s66, s64, 0x8000\ns_add_u32 s67, s64, 0xc000")
        A(f"s_lshl_b32 s6, s3, 6\ns_add_u32 s6, s6, {OV}")
        A(f"v_lshlrev_b32 v4, 4, v12\nv_lshl_add_u32 v5, v5, 1, v4\nv_add_u32 v{vOVw}, s6, v5")
        A(f"v_add_u32 v{vOVr}, {OV}, v4\nv_mov_b32 v{vYs}, v4")
        A(f"s_lshl_b32 s58, s4, 2\ns_add_u32 s58, s58, s62\ns_lshl_b32 s58, s58, 11\ns_lshl_b32 s6, s63, 8\ns_add_u32 s58, s58, s6")
        A(f"s_lshl_b32 s6, s3, 6\ns_add_u32 s58, s58, s6\ns_add_u32 s58, s58, {Y_OFF}")
        A(f"v_lshrrev_b32 v4, 5, v0\nv_and_b32 v5, 31, v0")
        A(f"v_lshlrev_b32 v6, 11, v4\nv_lshl_add_u32 v{vH2}, v5, 4, v6")
        A(f"v_lshlrev_b32 v6, 3, v5\nv_lshl_add_u32 v6, v4, 2, v6\ns_lshl_b32 s6, s3, 8\nv_add_u32 v6, s6, v6")
        A(f"buffer_load_dword v7, v6, s[20:23], 0 offen")
        A(f"buffer_load_dword v1, v6, s[44:47], 0 offen")
        A(f"v_add_u32 v{vHVw}, {HV}, v6")
        A(f"v_lshlrev_b32 v4, 4, v12\nv_add_u32 v{vHVr}, {HV}, v4\nv_add_u32 v{vHVs}, {HV}, v2")
        A(f"v_and_b32 v5, 15, v0")
        A(f"s_lshl_b32 s6, s3, 4\ns_add_u32 s6, s6, {HH}\nv_lshl_add_u32 v{vHHw}, v5, 1, s6")
        A(f"v_lshl_add_u32 v6, v5, 6, v4\nv_mov_b32 v{vZs}, v6")
        A(f"v_add_u32 v6, {ZR+64}, v6\nv_cmp_gt_u32 vcc, 8, v5\nv_mov_b32 v{vHHr}, {ZR+16*64}\nv_cndmask_b32 v{vHHr}, v{vHHr}, v6, vcc")
        A(f"v_lshlrev_b32 v{vH3}, 11, v0")
        A(f"s_lshl_b32 s75, s4, 2\ns_add_u32 s75, s75, s5\ns_lshl_b32 s75, s75, 2\ns_add_u32 s75, s75, s3")
        A(f"s_lshl_b32 s6, s75, 3\nv_lshl_add_u32 v{vFo}, v12, 1, s6\nv_add_u32 v{vFh}, {HV}, v{vFo}")
        A("s_lshl_b32 s75, s75, 4")
        A(f"s_lshl_b32 s76, s61, 11\ns_lshl_b32 s6, s3, 9\ns_add_u32 s76, s76, s6\ns_add_u32 s76, s76, {Z_OFF}")
        A(f"s_add_u32 s77, s6, {Y_OFF}")
        A("s_waitcnt vmcnt(0) lgkmcnt(0)")
        A(f"v_lshlrev_b32 v{vX0}, 16, v7\nv_and_b32 v{vX1}, s60, v7")
        A("s_cmp_ge_u32 s5, 7\ns_cbranch_scc1 L_notg1")
        self.flag_wait(self.VFL, 4, F_GL, 3, slp=4)
        A(f"v_lshlrev_b32 v1, 6, v15\nv_and_b32 v4, 1, v14\nv_lshl_add_u32 v1, v4, 3, v1\nv_lshrrev_b32 v4, 1, v14\nv_lshl_add_u32 v1, v4, 15, v1")
        A(f"s_lshl_b32 s6, s3, 4\ns_add_u32 s6, s6, {WG}\nv_add_u32 v1, s6, v1")
        for half in range(4):
            for m in range(4 * half, 4 * half + 4):
                A(f"ds_read_b64_tr_b16 {vr(GB+4*m,2)}, v1 offset:{m*2048}")
                A(f"ds_read_b64_tr_b16 {vr(GB+4*m+2,2)}, v1 offset:{m*2048 + 256}")
            A("s_waitcnt lgkmcnt(0)")
        A(f"v_lshlrev_b32 v1, 10, v15\nv_lshl_add_u32 v1, v14, 3, v1\ns_lshl_b32 s6, s3, 8\ns_add_u32 s6, s6, {WD}\nv_add_u32 v1, s6, v1")
        for half in range(2):
            for c8 in range(4 * half, 4 * half + 4):
                A(f"ds_read_b64_tr_b16 {vr(WDA+4*c8,2)}, v1 offset:{c8*32}")
                A(f"ds_read_b64_tr_b16 {vr(WDA+4*c8+2,2)}, v1 offset:{c8*32 + 4096}")
            A("s_waitcnt lgkmcnt(0)")
        A("v_mov_b32 v4, 0x3f803f80\nv_mov_b32 v5, v4\nv_mov_b32 v6, v4\nv_mov_b32 v7, v4")
        for m in range(16):
            A(f"v_mfma_f32_16x16x32_bf16 v[8:11], v[4:7], {vr(GB+4*m,4)}, {'0' if m == 0 else 'v[8:11]'}")
        A(f"v_mov_b32 v{CS}, v8")
        A("L_notg1:")
        if self.stamps: self.stamp(15)
        A("s_cmp_lg_u32 s3, 0\ns_cbranch_scc1 L_nosw")
        self.split_weights()
        A("L_nosw:")
        A("v_lshrrev_b32 v4, 3, v0\nv_lshlrev_b32 v3, 13, v4\nv_and_b32 v4, 2, v4\nv_and_b32 v1, 7, v0\nv_xor_b32 v1, v1, v4\nv_lshl_add_u32 v3, v1, 4, v3")
        A("v_xor_b32 v8, 64, v3")
        A("s_lshl_b32 s68, s4, 19\ns_lshl_b32 s6, s62, 11\ns_add_u32 s68, s68, s6\ns_lshl_b32 s6, s63, 7\ns_add_u32 s68, s68, s6")
        A("s_and_b32 s6, s3, 1\ns_lshl_b32 s6, s6, 16\ns_add_u32 s68, s68, s6\ns_lshr_b32 s6, s3, 1\ns_lshl_b32 s6, s6, 10\ns_add_u32 s68, s68, s6")
        A(f"s_lshl_b32 s69, s3, 12\ns_add_u32 s69, s69, {WO}")
        A("v_lshrrev_b32 v4, 1, v13\nv_and_b32 v5, 1, v12\nv_lshl_add_u32 v4, v5, 1, v4\nv_xor_b32 v4, s3, v4")
        A("v_lshlrev_b32 v1, 7, v15\nv_lshl_add_u32 v1, v14, 3, v1\nv_lshl_add_u32 v1, v4, 5, v1")
        A(f"v_lshrrev_b32 v9, 3, v0\nv_lshlrev_b32 v9, 4, v9\nv_add_u32 v9, {WT}, v9")
        self.flag_wait(self.VFL, 4, F_A, self.acnt, slp=1)
        self.stamp(7)
        for kg in range(4):
            A(f"s_add_u32 m0, s69, {kg*1024}\ns_add_u32 s6, s68, {kg*128*1024}")
            A(f"buffer_load_dwordx4 {'v8' if kg & 1 else 'v3'}, s[28:31], s6 offen {self.wpol} lds")
        A("s_barrier")
        self.stamp(8)
        self.flag_wait(self.VFL, 4, F_W, 1, slp=1)
        for t in range(4):
            A(f"ds_read_b128 {vr(WTR+4*t,4)}, v9 offset:{t*128}")
        A("s_waitcnt vmcnt(0)")
        A("s_barrier")
        for m in range(4):
            A(f"ds_read_b64_tr_b16 {vr(WOA+4*m,2)}, v1 offset:{WO + m*4096}")
            A(f"ds_read_b64_tr_b16 {vr(WOA+4*m+2,2)}, v1 offset:{WO + m*4096 + 512}")

        def h2load(t):
            A(f"s_add_u32 s6, s77, {t*4096}")
            A(f"buffer_load_dwordx4 {vr(P2+4*t,4)}, v{vH2}, s[16:19], s6 offen sc1")

        A("s_cmp_ge_u32 s5, 7\ns_cbranch_scc1 L_notg2")
        for t in range(16):
            h2load(t)
        A("L_notg2:")
        for t in range(4):
            A(f"buffer_load_dwordx4 {vr(P1+4*t,4)}, v{vH1}, s[16:19], s{64+t} offen sc1")
        lp, out = self.lab("h1"), self.lab("h1ok")
        A("s_mov_b32 s7, 0")
        A("s_waitcnt lgkmcnt(0)")
        A(f"{lp}:")
        A("s_waitcnt vmcnt(0)")
        for t in range(4):
            for k in (0, 2):
                if t == 0:
                    A(f"v_pk_mul_f32 {vr(SUM+k,2)}, {vr(P1+k,2)}, {vr(WTR+k,2)}")
                else:
                    A(f"v_pk_fma_f32 {vr(SUM+k,2)}, {vr(P1+4*t+k,2)}, {vr(WTR+4*t+k,2)}, {vr(SUM+k,2)}")
        A(f"v_cmp_u_f32 vcc, v{SUM}, v{SUM+1}\nv_cmp_u_f32 s[78:79], v{SUM+2}, v{SUM+3}")
        A("s_or_b64 vcc, vcc, s[78:79]")
        A(f"s_cbranch_scc0 {out}")
        self.spin_guard(7, out)
        for t in range(4):
            sk = self.lab("h1s")
            A(f"v_cmp_u_f32 vcc, v{P1+4*t}, v{P1+4*t+1}\nv_cmp_u_f32 s[78:79], v{P1+4*t+2}, v{P1+4*t+3}")
            A("s_or_b64 exec, vcc, s[78:79]")
            A(f"s_cbranch_execz {sk}")
            A(f"buffer_load_dwordx4 {vr(P1+4*t,4)}, v{vH1}, s[16:19], s{64+t} offen sc1")
            A(f"{sk}:")
            A("s_mov_b64 exec, -1")
        A(f"s_branch {lp}")
        A(f"{out}:")
        self.stamp(9)
        A(f"v_permlane32_swap_b32 v{SUM}, v{SUM+2}\nv_permlane32_swap_b32 v{SUM+1}, v{SUM+3}")
        A(f"v_add_f32 v{SUM}, v{SUM}, v{SUM+2}\nv_add_f32 v{SUM+1}, v{SUM+1}, v{SUM+3}")
        A(f"v_permlane16_swap_b32 v{SUM}, v{SUM+1}")
        A(f"v_add_f32 v{SUM}, v{SUM}, v{SUM+1}")
        A(f"v_add_f32_dpp v{SUM}, v{SUM}, v{SUM} row_ror:8 row_mask:0xf bank_mask:0xf")
        A(f"v_cvt_pk_bf16_f32 v{SUM}, v{SUM}, v{SUM}")
        A(f"ds_write_b16 v{vOVw}, v{SUM}")
        A("s_waitcnt lgkmcnt(0)")
        A("s_barrier")
        for m in range(4):
            A(f"ds_read_b128 {vr(OB+4*m,4)}, v{vOVr} offset:{m*64}")
        for m in range(4):
            A(f"s_waitcnt lgkmcnt({3-m})")
            A(f"v_mfma_f32_16x16x32_bf16 v[8:11], {vr(WOA+4*m,4)}, {vr(OB+4*m,4)}, {'0' if m == 0 else 'v[8:11]'}")
        A("s_mov_b32 exec_lo, 0x00010001\ns_mov_b32 exec_hi, 0x00010001")
        A("s_cmp_ge_u32 s5, 7")
        A(f"buffer_store_dwordx4 v[8:11], v{vYs}, s[16:19], s58 offen sc1")
        A("s_mov_b64 exec, -1")
        if self.stamps:
            self.stamp(10)
            sk = self.lab("st")
            A(f"s_cmp_lt_u32 s5, 7\ns_cbranch_scc1 {sk}")
            A("s_cmp_lg_u32 s3, 0\ns_cbranch_scc1 L_end")
            self.stamp_store(1, 16)
            A("s_endpgm")
            A(f"{sk}:")
        else:
            A("s_cbranch_scc1 L_end")
        lp, out = self.lab("h2"), self.lab("h2ok")
        A("s_mov_b32 s7, 0\ns_mov_b32 s62, 0")
        A(f"v_mov_b32 v{SUM}, 0\nv_mov_b32 v{SUM+1}, 0\nv_mov_b32 v{SUM+2}, 0\nv_mov_b32 v{SUM+3}, 0")
        A(f"{lp}:")
        for gq in range(8):
            sk, re = self.lab("h2s"), self.lab("h2r")
            a, b = P2 + 8 * gq, P2 + 8 * gq + 4
            A(f"s_bitcmp1_b32 s62, {gq}\ns_cbranch_scc1 {sk}")
            A(f"v_pk_add_f32 v[4:5], {vr(a,2)}, {vr(b,2)}\nv_pk_add_f32 v[6:7], {vr(a+2,2)}, {vr(b+2,2)}")
            A("v_cmp_u_f32 vcc, v4, v5\nv_cmp_u_f32 s[78:79], v6, v7")
            A("s_or_b64 vcc, vcc, s[78:79]")
            A(f"s_cbranch_scc1 {re}")
            A(f"v_pk_add_f32 {vr(SUM,2)}, {vr(SUM,2)}, v[4:5]\nv_pk_add_f32 {vr(SUM+2,2)}, {vr(SUM+2,2)}, v[6:7]")
            A(f"s_bitset1_b32 s62, {gq}")
            A(f"s_branch {sk}")
            A(f"{re}:")
            h2load(2 * gq)
            h2load(2 * gq + 1)
            A(f"{sk}:")
        A(f"s_cmp_eq_u32 s62, 0xff\ns_cbranch_scc1 {out}")
        self.spin_guard(7, out)
        A("s_waitcnt vmcnt(0)")
        A(f"s_branch {lp}")
        A(f"{out}:")
        self.stamp(11)
        A(f"v_permlane32_swap_b32 v{SUM}, v{SUM+2}\nv_permlane32_swap_b32 v{SUM+1}, v{SUM+3}")
        A(f"v_add_f32 v{SUM}, v{SUM}, v{SUM+2}\nv_add_f32 v{SUM+1}, v{SUM+1}, v{SUM+3}")
        A(f"v_cvt_pk_bf16_f32 v4, v{SUM}, v{SUM+1}")
        A(f"v_lshlrev_b32 v5, 16, v4\nv_and_b32 v6, s60, v4")
        A(f"v_add_f32 v5, v{vX0}, v5\nv_add_f32 v6, v{vX1}, v6")
        A(f"v_cvt_pk_bf16_f32 v4, v5, v6")
        A(f"ds_write_b32 v{vHVw}, v4")
        A("s_waitcnt lgkmcnt(0)")
        A("s_barrier")
        A(f"ds_read_b128 v[4:7], v{vHVs}")
        for m in range(14):
            A(f"ds_read_b128 {vr(P2+4*m,4)}, v{vHVr} offset:{m*64}")
        T = 192
        st = []
        for k in range(4):
            st += [f"v_lshlrev_b32 v{T+2*k}, 16, v{4+k}", f"v_and_b32 v{T+2*k+1}, s60, v{4+k}"]
        st += [f"v_readfirstlane_b32 s6, v{T}"]
        st += [f"v_subrev_f32 v{T+k}, s6, v{T+k}" for k in range(7, -1, -1)]
        st += [f"v_add_f32 v{T+8}, v{T}, v{T+1}", f"v_mul_f32 v{T+9}, v{T}, v{T}"]
        for k in range(1, 8):
            if k >= 2:
                st += [f"v_add_f32 v{T+8}, v{T+8}, v{T+k}"]
            st += [f"v_fmac_f32 v{T+9}, v{T+k}, v{T+k}"]
        save = self.L
        self.L = []
        self.allred("v_add_f32", [T + 8, T + 9], [T + 10, T + 11])
        A(f"v_mul_f32 v{T+8}, {INV512}, v{T+8}\nv_mul_f32 v{T+9}, {INV512}, v{T+9}")
        A(f"v_fma_f32 v{T+9}, -v{T+8}, v{T+8}, v{T+9}\nv_add_f32 v{T+8}, s6, v{T+8}\nv_max_f32 v{T+9}, 0, v{T+9}")
        self.ln_scalars(T + 8, T + 9, T + 10)
        st += [x.strip() for x in self.L]
        self.L = save
        per = -(-len(st) // 16)
        for m in range(16):
            if m == 0:
                A("s_waitcnt lgkmcnt(13)")
            else:
                A(f"s_waitcnt lgkmcnt({15-m})")
            A(f"v_mfma_f32_16x16x32_bf16 v[8:11], {vr(P2+4*m,4)}, {vr(GB+4*m,4)}, {'0' if m == 0 else 'v[8:11]'}")
            if m == 0:
                for m2 in (14, 15):
                    A(f"ds_read_b128 {vr(P2+4*m2,4)}, v{vHVr} offset:{m2*64}")
            for x in st[m * per:(m + 1) * per]:
                A(x)
        A(f"ds_read_u16 v12, v{vFh}")
        A(f"v_fma_f32 v4, -v{T+8}, v{CS}, v8\nv_mul_f32 v4, v4, v{T+9}")
        A("v_cvt_pk_bf16_f32 v4, v4, v4\nv_and_b32 v4, s60, v4")
        A("v_mul_f32 v5, s59, v4\nv_exp_f32 v5, -v5")
        A("v_mov_b32_dpp v6, v4 row_ror:8 row_mask:0xf bank_mask:0xf")
        A("v_add_f32 v5, 1.0, v5\nv_rcp_f32 v5, v5")
        A("v_cvt_pk_bf16_f32 v5, v5, v5\nv_and_b32 v5, s60, v5")
        A("v_mul_f32 v5, v5, v6\nv_cvt_pk_bf16_f32 v5, v5, v5")
        A("s_mov_b64 exec, 0xff")
        A(f"ds_write_b16 v{vHHw}, v5")
        A("s_mov_b64 exec, -1")
        A("s_waitcnt lgkmcnt(0)")
        A("s_barrier")
        for c8 in range(8):
            A(f"ds_read_b128 {vr(P1+4*c8,4)}, v{vHHr} offset:{(7-c8)*64}")
        for c8 in range(8):
            A(f"s_waitcnt lgkmcnt({7-c8})")
            A(f"v_mfma_f32_16x16x32_bf16 v[8:11], {vr(WDA+4*c8,4)}, {vr(P1+4*c8,4)}, {'0' if c8 == 0 else 'v[8:11]'}")
        A("s_mov_b32 exec_lo, 0x00ff00ff\ns_mov_b32 exec_hi, 0x00ff00ff")
        A("s_cmp_ge_u32 s5, 4")
        A(f"buffer_store_dwordx4 v[8:11], v{vZs}, s[16:19], s76 offen sc1")
        A("s_mov_b64 exec, -1")
        if self.stamps:
            self.stamp(12)
            sk = self.lab("st")
            A(f"s_cmp_lt_u32 s5, 4\ns_cbranch_scc1 {sk}")
            A("s_cmp_lg_u32 s3, 0\ns_cbranch_scc1 L_end")
            self.stamp_store(1, 16)
            A("s_endpgm")
            A(f"{sk}:")
        else:
            A("s_cbranch_scc1 L_end")
        lp, out = self.lab("h3"), self.lab("h3ok")
        A("s_mov_b32 s7, 0")
        A("v_lshlrev_b32 v12, 16, v12")
        A(f"{lp}:")
        A(f"buffer_load_dwordx4 v[4:7], v{vH3}, s[52:55], s75 offen sc1")
        self.spin_guard(7, out)
        A("s_waitcnt vmcnt(0)")
        A("v_cmp_u_f32 vcc, v4, v5\nv_cmp_u_f32 s[78:79], v6, v7")
        A("s_or_b64 vcc, vcc, s[78:79]")
        A(f"s_cbranch_scc1 {lp}")
        A(f"{out}:")
        A("s_waitcnt vmcnt(0)")
        self.stamp(13)
        A("v_permlane32_swap_b32 v4, v6\nv_permlane32_swap_b32 v5, v7")
        A("v_add_f32 v4, v4, v6\nv_add_f32 v5, v5, v7")
        A("v_permlane16_swap_b32 v4, v5")
        A("v_add_f32 v4, v4, v5")
        for n in (8, 4, 2, 1):
            A(f"v_add_f32_dpp v4, v4, v4 row_ror:{n} row_mask:0xf bank_mask:0xf")
        A("v_cvt_pk_bf16_f32 v4, v4, v4\nv_and_b32 v4, s60, v4")
        A("v_add_f32 v4, v12, v4\nv_cvt_pk_bf16_f32 v4, v4, v4")
        A("s_mov_b32 exec_lo, 0x00010001\ns_mov_b32 exec_hi, 0x00010001")
        A(f"buffer_store_short v4, v{vFo}, s[44:47], 0 offen {self.outpol}")
        if self.stamps:
            A("s_mov_b64 exec, -1")
            A("s_waitcnt vmcnt(0)")
            self.stamp(14)
            A("s_cmp_lg_u32 s3, 0\ns_cbranch_scc1 L_end")
            self.stamp_store(1, 16)

    def build(self):
        self.entry()
        self.streamer()
        self.helper()
        self.A("L_end:\ns_endpgm\nL_code_end:")
        body, nn = hazard.fix(self.L)
        head = open("cdna_kernels/" + KN[:-7] + ".s.ref").read().split("; Override launch")[0]
        out = head
        out += f"; @launch grid=(256,1,1) block=(512,1,1) lds={LDS_SIZE}\n"
        out += '.amdgcn_target "amdgcn-amd-amdhsa--gfx950"\n.text\n'
        out += f".globl {KN}\n.p2align 8\n.type {KN},@function\n{KN}:\n"
        out += "\n".join(body) + "\n"
        out += f""".section .rodata,"a"
.p2align 6
.amdhsa_kernel {KN}
  .amdhsa_next_free_vgpr 256
  .amdhsa_next_free_sgpr 102
  .amdhsa_accum_offset 256
  .amdhsa_group_segment_fixed_size 0
  .amdhsa_kernarg_size 96
  .amdhsa_user_sgpr_count 2
  .amdhsa_user_sgpr_kernarg_segment_ptr 1
  .amdhsa_system_sgpr_workgroup_id_x 1
.end_amdhsa_kernel
"""
        return out


def gen(**kw):
    return Gen(**kw).build()


if __name__ == "__main__":
    kw = eval("dict(" + (sys.argv[2] if len(sys.argv) > 2 else "") + ")")
    open(sys.argv[1], "w").write(gen(**kw))
```

```python
import sys
import hazard

KN = "sequential_preLN__gqa_block_cached__glu_gated_glu__decode_kernel"

Q_OFF = 0x0
ST_OFF = 0x2000
Y_OFF = 0x10000
Z_OFF = 0x20000
OP_OFF = 0x40000
QP_OFF = 0xC0000
WS_SIZE = 0xD0000
STAMP_OFF = 0x100000
NG = 56
WQ = 0
WO = 16384
WG = 32768
WU = 65536
WD = 98304
ACC = 131072
XN = ACC + 8192
QV = XN + 1024
HV = QV + 1024
ZR = HV + 1024
HH = ZR + 8 * 64
OV = ZR + 1536
STL = OV + 256
ML = STL + 128
FL = ML + 64
F_Q, F_ST, F_W, F_EARLY, F_MID, F_A, F_CLR, F_GL = 0, 4, 8, 12, 16, 20, 24, 28
WT = ML + 128
LDS_SIZE = ML + 128 + 512

LOG2E = "0x3fb8aa3b"
SCALE = "0x3db504f3"
EPS = "0x3727c5ac"
INV512 = "0x3b000000"
HIMASK = "0xffff0000"
SPIN_MAX = 100000


def vr(a, n=1):
    return f"v{a}" if n == 1 else f"v[{a}:{a+n-1}]"


def sr(a, n=1):
    return f"s{a}" if n == 1 else f"s[{a}:{a+n-1}]"


class Gen:
    def __init__(self, D=5, DN=None, DG=None, RING=48, NTN=68, NTG=52, pol="nt", wpol="nt", qpol=None, gpol=None,
                 stamps=0, gpace=2, grot=0, outpol="", pvrate=3, kbudget=3, prefetch_code=True, dbg=(), slp=8,
                 probe=None, n_early=28, mid_back=26, a_back=1, acnt=4, stdelay=3):
        self.L = []
        self.uid = 0
        self.RING, self.NTN, self.NTG, self.pol, self.wpol = RING, NTN, NTG, pol, wpol
        assert NTG + 3 * NTN == 256
        self.DN = tuple(DN) if DN else ((0, D),)
        self.DG = tuple(DG) if DG else self.DN
        self.qpol = wpol if qpol is None else qpol
        self.gpol = wpol if gpol is None else gpol
        self.stamps, self.gpace, self.grot, self.outpol = stamps, gpace, grot, outpol
        self.pvrate, self.kbudget, self.prefetch_code, self.dbg, self.slp = pvrate, kbudget, prefetch_code, dbg, slp
        self.probe = probe
        self.n_early, self.mid_back, self.a_back, self.acnt, self.stdelay = n_early, mid_back, a_back, acnt, stdelay

    def A(self, s):
        for l in s.split("\n"):
            l = l.strip()
            if not l:
                continue
            self.L.append(l if l.endswith(":") else "    " + l)

    def lab(self, p):
        self.uid += 1
        return f"L_{p}_{self.uid}"

    def stamp(self, k):
        if self.stamps:
            self.A(f"s_memrealtime s[98:99]\ns_waitcnt lgkmcnt(0)\ns_mov_b32 s{80+k}, s98")

    def stamp_store(self, role, n):
        if not self.stamps:
            return
        A = self.A
        A("s_mov_b64 exec, 1")
        A(f"s_lshl_b32 s6, s2, 9\ns_add_u32 s6, s6, {STAMP_OFF + role*64}")
        A("v_mov_b32 v1, 0")
        for k in range(n):
            A(f"v_mov_b32 v3, s{80+k}")
            A(f"buffer_store_dword v3, v1, s[16:19], s6 offen offset:{4*k}")
        A("s_mov_b64 exec, -1")

    def allred(self, op, regs, tmps, rors=(8, 4, 2, 1)):
        A = self.A
        for n in rors:
            for r in regs:
                if n == "x2":
                    A(f"{op}_dpp v{r}, v{r}, v{r} quad_perm:[2,3,0,1] row_mask:0xf bank_mask:0xf")
                else:
                    A(f"{op}_dpp v{r}, v{r}, v{r} row_ror:{n} row_mask:0xf bank_mask:0xf")
        for sw in ("v_permlane16_swap_b32", "v_permlane32_swap_b32"):
            for r, t in zip(regs, tmps):
                A(f"v_mov_b32 v{t}, v{r}")
            for r, t in zip(regs, tmps):
                A(f"{sw} v{r}, v{t}")
            for r, t in zip(regs, tmps):
                A(f"{op} v{r}, v{r}, v{t}")

    def flag_add(self, vaddr, vone, off):
        self.A(f"s_mov_b64 exec, 1\nds_add_u32 v{vaddr}, v{vone} offset:{off}\ns_mov_b64 exec, -1")

    def flag_wait(self, vaddr, vt, off, val, slp=2):
        lp, out = self.lab("fw"), self.lab("fwok")
        self.A("s_mov_b32 s7, 0")
        self.A(f"{lp}:")
        self.A(f"ds_read_b32 v{vt}, v{vaddr} offset:{off}")
        self.A(f"s_add_u32 s7, s7, 1\ns_cmp_gt_u32 s7, {SPIN_MAX*8}\ns_cbranch_scc1 {out}")
        self.A("s_waitcnt lgkmcnt(0)")
        self.A(f"v_cmp_le_u32 vcc, {val}, v{vt}")
        self.A(f"s_cbranch_vccnz {out}")
        self.A(f"s_sleep {slp}")
        self.A(f"s_branch {lp}")
        self.A(f"{out}:")
        self.A("s_waitcnt lgkmcnt(0)")

    def probe_mark(self, name, off, invert=False):
        if not self.probe or (name != "t0" and name != self.probe):
            return
        A = self.A
        A("s_memrealtime s[96:97]\ns_waitcnt lgkmcnt(0)")
        if invert: A("s_not_b32 s96, s96")
        A(f"s_mov_b64 exec, 1\nv_mov_b32 v250, s96\nv_mov_b32 v251, 0")
        A(f"buffer_atomic_umax v250, v251, s[48:51], 0 offen offset:{off} sc1")
        A("s_mov_b64 exec, -1")

    def spin_guard(self, cnt, out):
        self.A(f"s_add_u32 s{cnt}, s{cnt}, 1\ns_cmp_gt_u32 s{cnt}, {SPIN_MAX if not [x for x in self.dbg if x.startswith('no')] else 12}\ns_cbranch_scc1 {out}")

    def entry(self):
        A = self.A
        A("s_load_dwordx2 s[8:9], s[0:1], 8")
        A("s_load_dwordx2 s[12:13], s[0:1], 16")
        A("s_load_dwordx2 s[16:17], s[0:1], 88")
        A("s_cmp_ge_u32 s2, 256")
        A("s_cbranch_scc1 L_end")
        A("v_readfirstlane_b32 s3, v0")
        A("s_and_b32 s4, s2, 7")
        A("s_lshr_b32 s5, s2, 3")
        A("v_and_b32 v0, 63, v0")
        A("s_lshr_b32 s3, s3, 6")
        A(f"s_mov_b32 s18, {0x200000 if self.stamps else WS_SIZE}")
        A("s_mov_b32 s19, 0x20000")
        A("s_cmp_ge_u32 s3, 4")
        A("s_cbranch_scc1 L_helper")

    def streamer(self):
        A = self.A
        A("s_mov_b32 s10, 0x4000000\ns_mov_b32 s11, 0x20000\ns_mov_b32 s14, 0x4000000\ns_mov_b32 s15, 0x20000")
        A("v_bfe_u32 v1, v0, 2, 2\nv_lshlrev_b32 v1, 8, v1\nv_and_b32 v3, 3, v0\nv_lshl_add_u32 v1, v3, 4, v1")
        A("v_lshrrev_b32 v3, 4, v0\nv_lshl_add_u32 v1, v3, 6, v1\nv_lshlrev_b32 v2, 4, v0")
        A("s_lshl_b32 s56, s4, 23\ns_lshl_b32 s57, s3, 12\ns_add_u32 s56, s56, s57")
        two = self.DG != self.DN or self.NTG != self.NTN
        if two:
            A("s_cmp_lt_u32 s5, 8\ns_cbranch_scc1 L_stream_g")
        A(f"s_mul_i32 s57, s5, {self.NTN*4096}\ns_add_u32 s56, s56, s57\ns_sub_u32 s56, s56, {8*(self.NTN-self.NTG)*4096}")
        self.stream_body(self.DN, self.NTN)
        if two:
            A("L_stream_g:")
            A(f"s_mul_i32 s57, s5, {self.NTG*4096}\ns_add_u32 s56, s56, s57")
            self.stream_body(self.DG, self.NTG)

    def stream_body(self, sched, NT):
        A = self.A
        RING = self.RING
        R0 = 256 - 4 * RING
        assert R0 >= 64
        NB = -(-NT // 4)
        rem = NT % 4
        NL = 2 * NT
        S0, VFL, VONE, VFG, D0, X0, X1, VM, VL, VF, VT, VT2, VRD, M4 = 8, 25, 26, 27, 28, 44, 45, 46, 47, 48, 49, 50, 51, 52
        ACC0, ACC1 = 56, 60
        AB, TLO, THI = 28, 36, 37
        assert NB <= 17
        slot = lambda n: R0 + 4 * (n % RING)
        A("s_mov_b32 s57, s56")
        if rem:
            A(f"s_mul_i32 s62, s3, {(4-rem)*1024}\ns_sub_u32 s62, 16384, s62")
        A("s_waitcnt lgkmcnt(0)")

        def depth(n):
            d = sched[0][1]
            for n0, dd in sched:
                if n >= (n0 if n0 >= 0 else NL + n0):
                    d = dd
            return d
        st = {"landed": -1}
        self.stamp(0)

        def load(n):
            d = depth(n)
            if n - d > st["landed"]:
                A(f"s_waitcnt vmcnt({d-1})")
                st["landed"] = n - d
            t = n % NT
            j = t % 4
            va, srd, so = ("v1", "s[8:11]", "s56") if n < NT else ("v2", "s[12:15]", "s57")
            A(f"buffer_load_dwordx4 {vr(slot(n),4)}, {va}, {srd}, {so} offen offset:{j*1024} {self.pol}")
            if j == 3 and t + 1 < NT:
                A(f"s_add_u32 {so}, {so}, {'s62' if (rem and t + 1 == 4*(NB-1)) else 16384}")
            if n == depth(0) - 1:
                A(f"v_mov_b32 v{VFL}, {FL}\nv_mov_b32 v{VONE}, 1")
                A(f"s_mov_b32 s58, {SCALE}\ns_mov_b32 s59, {LOG2E}\ns_mov_b32 s60, {HIMASK}")
                A(f"v_and_b32 v3, 3, v0\nv_lshlrev_b32 v3, 8, v3\nv_bfe_u32 v4, v0, 2, 2\nv_lshl_add_u32 v3, v4, 4, v3")
                A(f"v_lshrrev_b32 v4, 4, v0\nv_lshl_add_u32 v3, v4, 6, v3\nv_add_u32 v3, {QV}, v3")
                A("s_barrier")
            if n == self.n_early:
                self.flag_add(VFL, VONE, F_EARLY)
            if n == NL - self.mid_back:
                self.flag_add(VFL, VONE, F_MID)
            if n == NL - self.a_back:
                self.flag_add(VFL, VONE, F_A)

        def flagged_read(off, val, read):
            lp, out = self.lab("sf"), self.lab("sfok")
            A("s_mov_b32 s7, 0")
            A(f"{lp}:")
            A(f"ds_read_b32 v{VFG}, v{VFL} offset:{off}")
            A(read)
            A(f"s_add_u32 s7, s7, 1\ns_cmp_gt_u32 s7, {SPIN_MAX*8}\ns_cbranch_scc1 {out}")
            A("s_waitcnt lgkmcnt(0)")
            A(f"v_cmp_gt_u32 vcc, {val}, v{VFG}")
            A(f"s_cbranch_vccnz {lp}")
            A(f"{out}:")
            A("s_waitcnt lgkmcnt(0)")

        def qsync():
            if self.stamps > 1: self.stamp(1)
            flagged_read(F_Q, 1, "ds_read_b128 v[4:7], v3")
            if self.stamps > 1: self.stamp(2)

        def qk(i):
            nt = rem if (rem and i == NB - 1) else 4
            for j in range(nt):
                A(f"v_mfma_f32_16x16x32_bf16 {vr(D0+4*j,4)}, {vr(slot(4*i+j),4)}, v[4:7], 0")
            d = lambda j, b: D0 + 4 * j + b
            dp = lambda dst, s0, s1, ror, bm: A(f"v_add_f32_dpp v{dst}, v{s0}, v{s1} row_ror:{ror} row_mask:0xf bank_mask:{bm:#x}")
            dp(X0, d(0, 1), d(0, 0), 12, 1)
            dp(X1, d(2, 1), d(2, 0), 12, 1)
            dp(X0, d(1, 0), d(1, 1), 4, 2)
            dp(X1, d(3, 0), d(3, 1), 4, 2)
            dp(X0, d(0, 3), d(0, 2), 12, 4)
            dp(X1, d(2, 3), d(2, 2), 12, 4)
            dp(X0, d(1, 2), d(1, 3), 4, 8)
            dp(X1, d(3, 2), d(3, 3), 4, 8)
            dp(S0 + i, X0, X0, 8, 3)
            dp(S0 + i, X1, X1, 8, 12)
            if nt < 4:
                A(f"v_mov_b32 v{VT}, 0xff800000")
                A(f"v_mov_b32_dpp v{S0+i}, v{VT} quad_perm:[0,1,2,3] row_mask:0xf bank_mask:{(0xf << nt) & 0xf:#x}")

        def rnd(i):
            a, b = S0 + i, S0 + min(i + 1, NB - 1)
            A(f"v_cvt_pk_bf16_f32 v{VT}, v{a}, v{b}")
            if a != b: A(f"v_lshlrev_b32 v{a}, 16, v{VT}")
            A(f"v_and_b32 v{b}, s60, v{VT}")
            if a != b: A(f"v_mul_f32 v{a}, s58, v{a}")
            A(f"v_mul_f32 v{b}, s58, v{b}")
            A(f"v_cvt_pk_bf16_f32 v{VT}, v{a}, v{b}")
            if a != b: A(f"v_lshlrev_b32 v{a}, 16, v{VT}")
            A(f"v_and_b32 v{b}, s60, v{VT}")
            if i == 0:
                A(f"v_max_f32 v{VM}, v{a}, v{b}")
            else:
                A(f"v_max3_f32 v{VM}, v{VM}, v{a}, v{b}")

        def sm_max():
            self.allred("v_max_f32", [VM], [VT], rors=(4, 8))
            A(f"v_mul_f32 v{VT2}, s59, v{VM}")

        def sm_exp(lo, hi):
            for i in range(lo, hi):
                A(f"v_fma_f32 v{S0+i}, v{S0+i}, s59, -v{VT2}")
            for i in range(lo, hi):
                A(f"v_exp_f32 v{S0+i}, v{S0+i}")
            for i in range(lo, hi):
                if i == 1:
                    A(f"v_add_f32 v{VL}, v{S0}, v{S0+1}")
                elif i > 1:
                    A(f"v_add_f32 v{VL}, v{VL}, v{S0+i}")

        def sm_sum():
            self.allred("v_add_f32", [VL], [VT], rors=(4, 8))
            A(f"v_and_b32 v3, 3, v0\nv_lshlrev_b32 v3, 4, v3\nv_add_u32 v3, {STL}, v3")
            A(f"s_lshl_b32 s6, s3, 2\nv_add_u32 v4, s6, v3")
            A("s_mov_b64 exec, 15")
            A(f"ds_write_b32 v4, v{VM}\nds_write_b32 v4, v{VL} offset:64")
            self.flag_add(VFL, VONE, F_ST)
            if self.stamps > 1: self.stamp(3)

        def pv_setup():
            for r in list(range(AB, AB + 8)) + list(range(ACC0, ACC0 + 8)):
                A(f"v_mov_b32 v{r}, 0")
            A(f"s_lshl_b32 s6, s3, 10\ns_add_u32 s6, s6, {ACC}\nv_add_u32 v{VRD}, s6, v2")
            A(f"s_lshl_b32 s61, s4, 16\ns_lshl_b32 s7, s5, 11\ns_add_u32 s61, s61, s7\ns_lshl_b32 s7, s3, 10\ns_add_u32 s61, s61, s7\ns_add_u32 s61, s61, {OP_OFF}")

        def msync():
            if self.stamps > 1: self.stamp(4)
            flagged_read(F_ST, 4, f"ds_read_b128 {vr(M4,4)}, v3")
            if self.stamps > 1: self.stamp(5)
            A(f"v_max3_f32 v{VF}, v{M4}, v{M4+1}, v{M4+2}\nv_max_f32 v{VF}, v{VF}, v{M4+3}")
            A(f"v_sub_f32 v{VF}, v{VM}, v{VF}\nv_mul_f32 v{VF}, s59, v{VF}\nv_exp_f32 v{VF}, v{VF}")
            A(f"s_lshl_b32 s6, s3, 11\ns_add_u32 s6, s6, {ACC}\nv_add_u32 v3, s6, v2")

        def tcalc(i):
            A(f"v_mul_f32 v{VT}, v{S0+i}, v{VF}")
            A(f"v_cvt_pk_bf16_f32 v{TLO}, v{VT}, 0\nv_cvt_pk_bf16_f32 v{THI}, 0, v{VT}")

        def mv(dst, src, dbank, j):
            rot = 4 * ((dbank - j) & 3)
            ctl = f"row_ror:{rot}" if rot else "quad_perm:[0,1,2,3]"
            A(f"v_mov_b32_dpp v{dst}, v{src} {ctl} row_mask:0xf bank_mask:{1<<dbank:#x}")

        abuf = lambda t: AB + 2 * (t % 4)

        def prep(ts):
            for t in ts:
                mv(abuf(t), TLO, 0, t % 4)
                mv(abuf(t) + 1, TLO, 2, t % 4)
            for t in ts:
                mv(abuf(t), THI, 1, t % 4)
                mv(abuf(t) + 1, THI, 3, t % 4)

        def pv(t):
            s = slot(NT + t)
            A(f"v_mfma_f32_16x16x16_bf16 {vr(ACC0,4)}, {vr(abuf(t),2)}, {vr(s,2)}, {vr(ACC0,4)}")
            A(f"v_mfma_f32_16x16x16_bf16 {vr(ACC1,4)}, {vr(abuf(t),2)}, {vr(s+2,2)}, {vr(ACC1,4)}")

        KB = float(self.kbudget)
        items = [(RING - 1 - depth(RING - 1), qsync, 0.5, -1, 0)]
        for i in range(NB):
            last = min(4 * i + 3, NT - 1)
            items.append((last, (lambda i=i: qk(i)), 2, last, 0))
            if i % 2 == 1 or i == NB - 1:
                items.append((-1, (lambda i=i: rnd(i - (i % 2))), 0.5, -1, 0))
        h = NB // 2
        items += [(-1, sm_max, 1.5, -1, 0), (-1, lambda: sm_exp(0, h), 2, -1, 0), (-1, lambda: sm_exp(h, NB), 2, -1, 0),
                  (-1, sm_sum, 2, -1, 0), (-1, pv_setup, 2, -1, 0), (-1, msync, 1, -1, self.stdelay)]
        for i in range(NB):
            items.append((-1, (lambda i=i: tcalc(i)), 0, -1, 0))
            for u in (2 * i, 2 * i + 1):
                ts = [t for t in (2 * u, 2 * u + 1) if t < NT]
                if not ts: continue
                items.append((-1, (lambda ts=ts: prep(ts)), 0, -1, 0))
                for t in ts:
                    items.append((NT + t, (lambda t=t: pv(t)), KB / self.pvrate, NT + t, 0))
        pos = 0
        freed = -1
        lastn = 0
        for n in range(NL):
            while n - RING > freed:
                need, emit, cost, fr, dl = items[pos]
                assert need <= st["landed"], (n, need)
                emit(); pos += 1; freed = max(freed, fr); lastn = n
            load(n)
            budget = KB
            while pos < len(items) and items[pos][0] <= st["landed"] and (budget > 0 or items[pos][2] == 0) and n >= lastn + items[pos][4]:
                need, emit, cost, fr, dl = items[pos]
                emit(); pos += 1; budget -= cost; freed = max(freed, fr); lastn = n
        while pos < len(items):
            need, emit, cost, fr, dl = items[pos]
            if need > st["landed"]:
                A(f"s_waitcnt vmcnt({NL-1-need})")
                st["landed"] = need
            emit(); pos += 1
        ex = self.lab("sexit")
        A("s_cmp_ge_u32 s3, 2")
        A(f"ds_write_b128 v3, {vr(ACC0,4)}\nds_write_b128 v3, {vr(ACC1,4)} offset:1024")
        A("s_waitcnt lgkmcnt(0)")
        A("s_barrier")
        A(f"s_cbranch_scc1 {ex}")
        for sw in range(4):
            A(f"ds_read_b128 {vr(8+4*sw,4)}, v{VRD} offset:{sw*2048}")
        A("s_waitcnt lgkmcnt(2)")
        A("v_pk_add_f32 v[8:9], v[8:9], v[12:13]\nv_pk_add_f32 v[10:11], v[10:11], v[14:15]")
        A("s_waitcnt lgkmcnt(0)")
        A("v_pk_add_f32 v[16:17], v[16:17], v[20:21]\nv_pk_add_f32 v[18:19], v[18:19], v[22:23]")
        A("v_pk_add_f32 v[8:9], v[8:9], v[16:17]\nv_pk_add_f32 v[10:11], v[10:11], v[18:19]")
        A("buffer_store_dwordx4 v[8:11], v2, s[16:19], s61 offen sc1")
        A(f"{ex}:")
        if self.stamps:
            self.stamp(6)
            A("s_cmp_lg_u32 s3, 0\ns_cbranch_scc1 L_end")
            self.stamp_store(0, 7)
        A("s_endpgm")

    def helper(self):
        A = self.A
        wp = self.wpol
        A("L_helper:")
        A("s_load_dwordx2 s[20:21], s[0:1], 0")
        A("s_load_dwordx2 s[24:25], s[0:1], 24")
        A("s_load_dwordx2 s[48:49], s[0:1], 80")
        A("s_load_dwordx2 s[28:29], s[0:1], 32")
        A("s_sub_u32 s3, s3, 4")
        A("s_mov_b32 s22, 1024\ns_mov_b32 s23, 0x20000\ns_mov_b32 s26, 0x400000\ns_mov_b32 s27, 0x20000")
        A("s_mov_b32 s50, 256\ns_mov_b32 s51, 0x20000\ns_mov_b32 s30, 0x400000\ns_mov_b32 s31, 0x20000")
        A("v_lshlrev_b32 v2, 4, v0")
        A(f"s_mov_b32 s59, {LOG2E}\ns_mov_b32 s60, {HIMASK}")
        A("s_mul_i32 s61, s4, 7\ns_add_u32 s61, s61, s5")
        A("s_lshr_b32 s62, s5, 3\ns_and_b32 s63, s5, 7")
        A("s_waitcnt lgkmcnt(0)")
        A("s_load_dwordx2 s[32:33], s[0:1], 48")
        A("s_load_dwordx2 s[36:37], s[0:1], 56")
        A("s_load_dwordx2 s[40:41], s[0:1], 64")
        A("s_load_dwordx2 s[44:45], s[0:1], 72")
        A("s_mov_b32 s34, 0x1c0000\ns_mov_b32 s35, 0x20000\ns_mov_b32 s38, 0x1c0000\ns_mov_b32 s39, 0x20000")
        A("s_mov_b32 s42, 0x1c0000\ns_mov_b32 s43, 0x20000\ns_mov_b32 s46, 1024\ns_mov_b32 s47, 0x20000")
        A(f"s_add_u32 s52, s16, {Z_OFF}\ns_addc_u32 s53, s17, 0\ns_mov_b32 s54, {NG*2048}\ns_mov_b32 s55, 0x20000")
        A(f"s_lshl_b32 s6, s4, 5\ns_add_u32 s6, s6, s5\ns_lshl_b32 s64, s6, 5\ns_add_u32 s64, s64, {ST_OFF}")
        A(f"s_lshl_b32 s66, s6, 11\ns_add_u32 s66, s66, {OP_OFF}")
        A(f"s_lshl_b32 s7, s4, 2\ns_add_u32 s7, s7, s62\ns_lshl_b32 s7, s7, 11\ns_lshl_b32 s6, s63, 8\ns_add_u32 s58, s7, s6")
        A(f"s_add_u32 s67, s58, {Y_OFF}\ns_add_u32 s58, s58, {QP_OFF}\ns_lshl_b32 s65, s4, 5")
        self.VFL = 245
        A(f"v_mov_b32 v{self.VFL}, {FL}")
        A("s_cmp_lg_u32 s3, 0")
        A("s_cbranch_scc1 L_h123")
        self.h0()
        A("s_branch L_hjoin")
        self.h123()
        A("L_hjoin:")
        self.tail()

    def h0(self):
        A = self.A
        self.stamp(0)
        A("buffer_load_dwordx4 v[4:7], v2, s[20:23], 0 offen")
        A("v_lshrrev_b32 v3, 3, v0\nv_lshlrev_b32 v3, 13, v3\nv_and_b32 v1, 7, v0\nv_lshl_add_u32 v3, v1, 4, v3")
        A("s_lshl_b32 s6, s62, 20\ns_lshl_b32 s7, s4, 10\ns_add_u32 s6, s6, s7\ns_lshl_b32 s7, s63, 7\ns_add_u32 s6, s6, s7")
        for t in range(16):
            A(f"s_mov_b32 m0, {WQ + t*1024}")
            if "nowq" not in self.dbg: A(f"buffer_load_dwordx4 v3, s[24:27], s6 offen {self.qpol} lds")
            if t < 15:
                A("s_add_u32 s6, s6, 0x10000")
            if t == 3:
                A("s_barrier")
        A("s_waitcnt vmcnt(16)" if "nowq" not in self.dbg else "s_waitcnt vmcnt(0)")
        for k in range(4):
            A(f"v_lshlrev_b32 v{12+2*k}, 16, v{4+k}\nv_and_b32 v{13+2*k}, s60, v{4+k}")
        A("v_add_f32 v20, v12, v13\nv_add_f32 v21, v14, v15\nv_add_f32 v22, v16, v17\nv_add_f32 v23, v18, v19")
        A("v_add_f32 v20, v20, v21\nv_add_f32 v22, v22, v23\nv_add_f32 v20, v20, v22")
        self.allred("v_add_f32", [20], [21])
        A(f"v_mul_f32 v20, {INV512}, v20")
        for k in range(8):
            A(f"v_sub_f32 v{24+k}, v{12+k}, v20")
        A("v_mul_f32 v22, v24, v24")
        for k in range(1, 8):
            A(f"v_fmac_f32 v22, v{24+k}, v{24+k}")
        self.allred("v_add_f32", [22], [21])
        A(f"v_mul_f32 v22, {INV512}, v22")
        self.ln_scalars(20, 22, 21)
        for k in range(4):
            a, b = 12 + 2 * k, 13 + 2 * k
            A(f"v_sub_f32 v{a}, v{a}, v20\nv_sub_f32 v{b}, v{b}, v20")
            A(f"v_cvt_pk_bf16_f32 v21, v{a}, v{b}")
            A(f"v_lshlrev_b32 v{a}, 16, v21\nv_and_b32 v{b}, s60, v21")
            A(f"v_mul_f32 v{a}, v{a}, v22\nv_mul_f32 v{b}, v{b}, v22")
            A(f"v_cvt_pk_bf16_f32 v{4+k}, v{a}, v{b}")
        A(f"v_add_u32 v1, {XN}, v2")
        A("ds_write_b128 v1, v[4:7]")
        A("v_lshrrev_b32 v12, 4, v0\nv_bfe_u32 v13, v0, 2, 2\nv_and_b32 v14, 3, v0")
        A("v_lshl_add_u32 v15, v12, 3, v13\nv_lshlrev_b32 v15, 7, v15\nv_lshl_add_u32 v15, v14, 3, v15")
        A(f"s_lshl_b32 s6, s62, 8\ns_add_u32 s6, s6, {XN}\nv_lshlrev_b32 v17, 4, v12\nv_add_u32 v16, s6, v17")
        A("s_waitcnt lgkmcnt(0)")
        for m in range(4):
            A(f"ds_read_b128 {vr(128+4*m,4)}, v16 offset:{m*64}")
        A("s_waitcnt vmcnt(0)")
        self.stamp(1)
        for m in range(4):
            base = 64 + 16 * m
            for ct in range(4):
                A(f"ds_read_b64_tr_b16 {vr(base+4*ct,2)}, v15 offset:{WQ + m*4096 + ct*32}")
                A(f"ds_read_b64_tr_b16 {vr(base+4*ct+2,2)}, v15 offset:{WQ + m*4096 + ct*32 + 512}")
            A("s_waitcnt lgkmcnt(0)")
            for ct in range(4):
                c = "0" if m == 0 else vr(32 + 4 * ct, 4)
                A(f"v_mfma_f32_16x16x32_bf16 {vr(32+4*ct,4)}, {vr(base+4*ct,4)}, {vr(128+4*m,4)}, {c}")
        self.flag_wait(self.VFL, 4, F_CLR, 1, slp=1)
        A("s_mov_b32 exec_lo, 0x00010001\ns_mov_b32 exec_hi, 0x00010001")
        for ct in range(4):
            A(f"buffer_store_dwordx4 {vr(32+4*ct,4)}, v17, s[16:19], s58 offen offset:{ct*64} sc1")
        A("s_mov_b64 exec, -1")
        self.stamp(2)
        A("v_mov_b32 v1, 0")
        self.flag_wait(self.VFL, 4, F_EARLY, 1)
        self.cnt_wait("s65", "v1")
        self.stamp(3)
        A(f"s_lshl_b32 s6, s4, 13\ns_add_u32 s6, s6, {QP_OFF}\ns_add_u32 s66, s6, 4096")
        lp, out = self.lab("qpoll"), self.lab("qok")
        A("s_mov_b32 s7, 0")
        A(f"{lp}:")
        for rb in range(4):
            for hf in range(2):
                A(f"buffer_load_dwordx4 {vr(64+8*rb+4*hf,4)}, v2, s[16:19], {'s6' if rb < 2 else 's66'} offen offset:{(rb&1)*2048+hf*1024} sc1")
        self.spin_guard(7, out)
        A("s_waitcnt vmcnt(0)")
        for k in range(0, 8, 2):
            A(f"v_pk_add_f32 {vr(64+k,2)}, {vr(64+k,2)}, {vr(72+k,2)}\nv_pk_add_f32 {vr(80+k,2)}, {vr(80+k,2)}, {vr(88+k,2)}")
        for k in range(0, 8, 2):
            A(f"v_pk_add_f32 {vr(64+k,2)}, {vr(64+k,2)}, {vr(80+k,2)}")
        A("v_cmp_u_f32 vcc, v64, v65\nv_cmp_u_f32 s[68:69], v66, v67\nv_cmp_u_f32 s[70:71], v68, v69\nv_cmp_u_f32 s[72:73], v70, v71")
        A("s_or_b64 vcc, vcc, s[68:69]\ns_or_b64 s[70:71], s[70:71], s[72:73]\ns_or_b64 vcc, vcc, s[70:71]")
        if "noqpoll" in self.dbg: A(f"s_branch {out}")
        A(f"s_cbranch_scc0 {out}")
        A(f"s_sleep {self.slp}")
        A(f"s_branch {lp}")
        A(f"{out}:")
        A("s_waitcnt vmcnt(0)")
        A("v_cvt_pk_bf16_f32 v4, v64, v65\nv_cvt_pk_bf16_f32 v5, v66, v67\nv_cvt_pk_bf16_f32 v6, v68, v69\nv_cvt_pk_bf16_f32 v7, v70, v71")
        A(f"v_lshlrev_b32 v1, 3, v0\nv_add_u32 v1, {QV}, v1\nv_mov_b32 v8, 1")
        A("ds_write_b64 v1, v[4:5]\nds_write_b64 v1, v[6:7] offset:512")
        self.flag_add(self.VFL, 8, F_Q)
        self.probe_mark("q", 8)
        self.stamp(4)
        A(f"v_and_b32 v1, 3, v0\nv_lshlrev_b32 v5, 4, v1\nv_add_u32 v5, {STL}, v5\nv_lshlrev_b32 v1, 3, v1")
        self.flag_wait(self.VFL, 4, F_ST, 4, slp=4)
        A("ds_read_b128 v[8:11], v5\nds_read_b128 v[12:15], v5 offset:64")
        A("s_waitcnt lgkmcnt(0)")
        A("v_max3_f32 v16, v8, v9, v10\nv_max_f32 v16, v16, v11")
        for k in range(4):
            A(f"v_sub_f32 v{8+k}, v{8+k}, v16")
        for k in range(4):
            A(f"v_mul_f32 v{8+k}, s59, v{8+k}")
        for k in range(4):
            A(f"v_exp_f32 v{8+k}, v{8+k}")
        A("v_mul_f32 v17, v8, v12\nv_fmac_f32 v17, v9, v13\nv_fmac_f32 v17, v10, v14\nv_fmac_f32 v17, v11, v15")
        A("s_mov_b64 exec, 15")
        A("buffer_store_dwordx2 v[16:17], v1, s[16:19], s64 offen sc1")
        A("s_mov_b64 exec, -1")
        self.stamp(5)

    def split_weights(self):
        A = self.A
        self.flag_wait(self.VFL, 4, F_MID, 1, slp=4)
        A("v_and_b32 v1, 7, v0\nv_lshlrev_b32 v1, 5, v1")
        self.cnt_wait("0", "v1")
        A(f"s_lshl_b32 s6, s4, 10\ns_add_u32 s6, s6, {ST_OFF}")
        lp, out = self.lab("spoll"), self.lab("sok")
        A("s_mov_b32 s7, 0")
        A(f"{lp}:")
        A("buffer_load_dwordx4 v[8:11], v2, s[16:19], s6 offen sc1")
        self.spin_guard(7, out)
        A("s_waitcnt vmcnt(0)")
        A("v_cmp_u_f32 vcc, v8, v9\nv_cmp_u_f32 s[78:79], v10, v11")
        A("s_or_b64 vcc, vcc, s[78:79]")
        A(f"s_cbranch_scc0 {out}")
        A(f"s_sleep {self.slp}")
        A(f"s_branch {lp}")
        A(f"{out}:")
        A("s_waitcnt vmcnt(0)")
        A("v_mov_b32 v4, v8\nv_mov_b32 v5, v10")
        self.allred("v_max_f32", [4, 5], [6, 7], rors=("x2", 4, 8))
        A("v_sub_f32 v8, v8, v4\nv_sub_f32 v10, v10, v5\nv_mul_f32 v8, s59, v8\nv_mul_f32 v10, s59, v10")
        A("v_exp_f32 v8, v8\nv_exp_f32 v10, v10")
        A("v_mul_f32 v9, v8, v9\nv_mul_f32 v11, v10, v11")
        self.allred("v_add_f32", [9, 11], [6, 7], rors=("x2", 4, 8))
        A("v_rcp_f32 v9, v9\nv_rcp_f32 v11, v11")
        A(f"v_lshlrev_b32 v5, 3, v0\nv_add_u32 v5, {WT}, v5\nv_mov_b32 v4, 1")
        A("v_mul_f32 v8, v8, v9\nv_mul_f32 v9, v10, v11")
        A("ds_write_b64 v5, v[8:9]")
        self.flag_add(self.VFL, 4, F_W)
        self.stamp(6)

    def cnt_wait(self, soff, voff):
        A = self.A
        lp, out = self.lab("cpoll"), self.lab("cok")
        A("s_mov_b32 s7, 0")
        if "noatomic" in self.dbg: A(f"s_branch {out}")
        A(f"{lp}:")
        A(f"buffer_load_dword v4, {voff}, s[48:51], {soff} offen sc1")
        self.spin_guard(7, out)
        A("s_waitcnt vmcnt(0)")
        A("v_cmp_gt_u32 vcc, 32, v4")
        A(f"s_cbranch_vccz {out}")
        A(f"s_sleep {self.slp}")
        A(f"s_branch {lp}")
        A(f"{out}:")
        A("s_waitcnt vmcnt(0)")

    def ln_scalars(self, mean, var, t):
        A = self.A
        A(f"v_cvt_pk_bf16_f32 v{t}, v{mean}, v{var}")
        A(f"v_lshlrev_b32 v{mean}, 16, v{t}\nv_and_b32 v{var}, s60, v{t}")
        A(f"v_add_f32 v{var}, {EPS}, v{var}")
        A(f"v_cvt_pk_bf16_f32 v{t}, v{var}, v{var}\nv_and_b32 v{var}, s60, v{t}")
        A(f"v_sqrt_f32 v{var}, v{var}")
        A(f"v_cvt_pk_bf16_f32 v{t}, v{var}, v{var}\nv_and_b32 v{var}, s60, v{t}")
        A(f"v_rcp_f32 v{var}, v{var}")

    def h123(self):
        A = self.A
        A("L_h123:")
        l2, l3, dn = self.lab("h2"), self.lab("h3"), self.lab("hd")
        A("v_mov_b32 v4, 0\nv_mov_b32 v5, 0\nv_mov_b32 v6, 0\nv_mov_b32 v7, 0")
        A(f"s_cmp_eq_u32 s3, 2\ns_cbranch_scc1 {l2}\ns_cmp_eq_u32 s3, 3\ns_cbranch_scc1 {l3}")
        self.probe_mark("t0", 4, invert=True)
        self.probe_mark("start", 8)
        A("v_mov_b32 v8, -1\nv_mov_b32 v9, -1\nv_mov_b32 v10, -1\nv_mov_b32 v11, -1")
        mark = len(self.L)
        A("buffer_store_dwordx4 v[8:11], v2, s[16:19], s66 offen sc1")
        A("buffer_store_dwordx4 v[8:11], v2, s[16:19], s66 offen offset:1024 sc1")
        A(f"s_lshl_b32 s7, s61, 11\ns_add_u32 s7, s7, {Z_OFF}\ns_cmp_lt_u32 s5, 7\ns_cselect_b32 s7, s7, 0x400000")
        A("buffer_store_dwordx4 v[8:11], v2, s[16:19], s7 offen sc1")
        A("buffer_store_dwordx4 v[8:11], v2, s[16:19], s7 offen offset:1024 sc1")
        A("s_mov_b64 exec, 3")
        A("buffer_store_dwordx4 v[8:11], v2, s[16:19], s64 offen sc1")
        A("s_mov_b64 exec, 0xffff")
        A("buffer_store_dwordx4 v[8:11], v2, s[16:19], s67 offen sc1")
        A("buffer_store_dwordx4 v[8:11], v2, s[16:19], s58 offen sc1")
        A("s_mov_b64 exec, -1")
        if "noclear" in self.dbg:
            self.L = self.L[:mark] + [x for x in self.L[mark:] if "buffer_store" not in x]
        if "clrpol" in self.dbg:
            self.L = self.L[:mark] + [x.replace(" sc1", " sc1 nt") for x in self.L[mark:]]
        A("v_mov_b32 v5, 1")
        A("s_barrier")
        A("s_waitcnt vmcnt(0)")
        A("s_mov_b64 exec, 1")
        if "noatomic" not in self.dbg: A("buffer_atomic_add v5, v4, s[48:51], s65 offen sc1")
        self.flag_add(self.VFL, 5, F_CLR)
        A(f"s_branch {dn}")
        A(f"{l2}:")
        A(f"ds_write_b128 v{self.VFL}, v[4:7]\nds_write_b128 v{self.VFL}, v[4:7] offset:16\nds_write_b128 v{self.VFL}, v[4:7] offset:32")
        A("s_waitcnt lgkmcnt(0)")
        A("s_barrier")
        if self.prefetch_code:
            A("s_getpc_b64 s[6:7]")
            A("L_pc_anchor:")
            A(f"s_sub_u32 s6, s6, L_pc_anchor-{KN}\ns_subb_u32 s7, s7, 0")
            A("s_lshl_b32 s68, s5, 10\nv_lshl_add_u32 v1, v0, 6, s68")
            A(f"v_min_u32 v4, L_code_end-{KN}-4, v1")
            A("s_mov_b64 exec, 0xffff")
            A(f"global_load_dword v8, v4, s[6:7]")
            A("s_mov_b64 exec, -1")
        A(f"s_branch {dn}")
        A(f"{l3}:")
        A(f"v_add_u32 v1, {ZR}, v2")
        A("ds_write_b128 v1, v[4:7]\nds_write_b128 v1, v[4:7] offset:512")
        A("s_barrier")
        A(f"{dn}:")
        A("s_waitcnt vmcnt(0) lgkmcnt(0)")
        if True:
            sk, lp = self.lab("gskip"), self.lab("gloop")
            A(f"s_cmp_ge_u32 s5, 7\ns_cbranch_scc1 {sk}")
            if "nog" in self.dbg:
                A("v_mov_b32 v5, 1")
                self.flag_add(self.VFL, 5, F_GL)
                A(f"s_branch {sk}")
            A("s_cmp_eq_u32 s3, 1\ns_cselect_b32 s68, s32, s36\ns_cselect_b32 s69, s33, s37")
            A("s_cmp_eq_u32 s3, 3\ns_cselect_b32 s68, s40, s68\ns_cselect_b32 s69, s41, s69")
            A("s_mov_b32 s70, 0x1c0000\ns_mov_b32 s71, 0x20000")
            A("s_mov_b32 s6, 57344\ns_cselect_b32 s72, 1024, s6")
            A("s_lshl_b32 s6, s61, 15\ns_lshl_b32 s7, s61, 6\ns_cmp_eq_u32 s3, 3\ns_cselect_b32 s73, s6, s7")
            A("s_lshl_b32 s74, s3, 15")
            A("s_movk_i32 s6, 3584")
            A("v_lshrrev_b32 v3, 2, v0\nv_mul_lo_u32 v3, v3, s6\nv_and_b32 v1, 3, v0\nv_lshl_add_u32 v3, v1, 4, v3")
            A("s_cmp_eq_u32 s3, 3\ns_cselect_b64 vcc, -1, 0")
            A("v_cndmask_b32 v3, v3, v2, vcc")
            if self.grot:
                A(f"s_and_b32 s78, s61, 1\ns_mul_i32 s78, s78, {self.grot}")
                A("s_mul_i32 s6, s78, s72\ns_add_u32 s73, s73, s6\ns_lshl_b32 s6, s78, 10\ns_add_u32 s74, s74, s6")
            A(f"s_mov_b32 s7, 32")
            A(f"{lp}:")
            A(f"s_waitcnt vmcnt({self.gpace-1})")
            A("s_mov_b32 m0, s74")
            A("s_add_u32 s74, s74, 1024")
            A(f"buffer_load_dwordx4 v3, s[68:71], s73 offen {self.gpol} lds")
            A("s_add_u32 s73, s73, s72")
            if self.grot:
                nw = self.lab("nowrap")
                A(f"s_add_u32 s78, s78, 1\ns_cmp_lg_u32 s78, 32\ns_cbranch_scc1 {nw}")
                A("s_lshl_b32 s6, s72, 5\ns_sub_u32 s73, s73, s6\ns_sub_u32 s74, s74, 0x8000")
                A(f"{nw}:")
            A(f"s_sub_u32 s7, s7, 1\ns_cmp_lg_u32 s7, 0\ns_cbranch_scc1 {lp}")
            A("v_mov_b32 v5, 1\ns_waitcnt vmcnt(0)")
            self.flag_add(self.VFL, 5, F_GL)
            A(f"{sk}:")

    def tail(self):
        A = self.A
        WOA, GB, WDA, P2, P1 = 16, 32, 96, 128, 192
        WTR, SUM, OB = 208, 224, 192
        vH1, vH2, vOVw, vOVr, vYs, vHVw, vHVr, vHVs, vHHw, vHHr, vZs, vH3, vFo, vFh, vX0, vX1, CS = range(228, 245)
        A("v_lshrrev_b32 v12, 4, v0\nv_bfe_u32 v13, v0, 2, 2\nv_and_b32 v14, 3, v0")
        A("v_lshl_add_u32 v15, v12, 3, v13")
        A(f"v_lshrrev_b32 v4, 3, v0\nv_lshlrev_b32 v4, 11, v4\nv_and_b32 v5, 7, v0\nv_lshl_add_u32 v{vH1}, v5, 4, v4")
        A(f"s_lshl_b32 s64, s4, 16\ns_lshl_b32 s6, s62, 9\ns_add_u32 s64, s64, s6\ns_lshl_b32 s6, s3, 7\ns_add_u32 s64, s64, s6\ns_add_u32 s64, s64, {OP_OFF}")
        A("s_add_u32 s65, s64, 0x4000\ns_add_u32 s66, s64, 0x8000\ns_add_u32 s67, s64, 0xc000")
        A(f"s_lshl_b32 s6, s3, 6\ns_add_u32 s6, s6, {OV}")
        A(f"v_lshlrev_b32 v4, 4, v12\nv_lshl_add_u32 v5, v5, 1, v4\nv_add_u32 v{vOVw}, s6, v5")
        A(f"v_add_u32 v{vOVr}, {OV}, v4\nv_mov_b32 v{vYs}, v4")
        A(f"s_lshl_b32 s58, s4, 2\ns_add_u32 s58, s58, s62\ns_lshl_b32 s58, s58, 11\ns_lshl_b32 s6, s63, 8\ns_add_u32 s58, s58, s6")
        A(f"s_lshl_b32 s6, s3, 6\ns_add_u32 s58, s58, s6\ns_add_u32 s58, s58, {Y_OFF}")
        A(f"v_lshrrev_b32 v4, 5, v0\nv_and_b32 v5, 31, v0")
        A(f"v_lshlrev_b32 v6, 11, v4\nv_lshl_add_u32 v{vH2}, v5, 4, v6")
        A(f"v_lshlrev_b32 v6, 3, v5\nv_lshl_add_u32 v6, v4, 2, v6\ns_lshl_b32 s6, s3, 8\nv_add_u32 v6, s6, v6")
        A(f"buffer_load_dword v7, v6, s[20:23], 0 offen")
        A(f"buffer_load_dword v1, v6, s[44:47], 0 offen")
        A(f"v_add_u32 v{vHVw}, {HV}, v6")
        A(f"v_lshlrev_b32 v4, 4, v12\nv_add_u32 v{vHVr}, {HV}, v4\nv_add_u32 v{vHVs}, {HV}, v2")
        A(f"v_and_b32 v5, 15, v0")
        A(f"s_lshl_b32 s6, s3, 4\ns_add_u32 s6, s6, {HH}\nv_lshl_add_u32 v{vHHw}, v5, 1, s6")
        A(f"v_lshl_add_u32 v6, v5, 6, v4\nv_mov_b32 v{vZs}, v6")
        A(f"v_add_u32 v6, {ZR+64}, v6\nv_cmp_gt_u32 vcc, 8, v5\nv_mov_b32 v{vHHr}, {ZR+16*64}\nv_cndmask_b32 v{vHHr}, v{vHHr}, v6, vcc")
        A(f"v_lshlrev_b32 v{vH3}, 11, v0")
        A(f"s_lshl_b32 s75, s4, 2\ns_add_u32 s75, s75, s5\ns_lshl_b32 s75, s75, 2\ns_add_u32 s75, s75, s3")
        A(f"s_lshl_b32 s6, s75, 3\nv_lshl_add_u32 v{vFo}, v12, 1, s6\nv_add_u32 v{vFh}, {HV}, v{vFo}")
        A("s_lshl_b32 s75, s75, 4")
        A(f"s_lshl_b32 s76, s61, 11\ns_lshl_b32 s6, s3, 9\ns_add_u32 s76, s76, s6\ns_add_u32 s76, s76, {Z_OFF}")
        A(f"s_add_u32 s77, s6, {Y_OFF}")
        A("s_waitcnt vmcnt(0) lgkmcnt(0)")
        A(f"v_lshlrev_b32 v{vX0}, 16, v7\nv_and_b32 v{vX1}, s60, v7")
        A("s_cmp_ge_u32 s5, 7\ns_cbranch_scc1 L_notg1")
        self.flag_wait(self.VFL, 4, F_GL, 3, slp=4)
        A(f"v_lshlrev_b32 v1, 6, v15\nv_and_b32 v4, 1, v14\nv_lshl_add_u32 v1, v4, 3, v1\nv_lshrrev_b32 v4, 1, v14\nv_lshl_add_u32 v1, v4, 15, v1")
        A(f"s_lshl_b32 s6, s3, 4\ns_add_u32 s6, s6, {WG}\nv_add_u32 v1, s6, v1")
        for half in range(4):
            for m in range(4 * half, 4 * half + 4):
                A(f"ds_read_b64_tr_b16 {vr(GB+4*m,2)}, v1 offset:{m*2048}")
                A(f"ds_read_b64_tr_b16 {vr(GB+4*m+2,2)}, v1 offset:{m*2048 + 256}")
            A("s_waitcnt lgkmcnt(0)")
        A(f"v_lshlrev_b32 v1, 10, v15\nv_lshl_add_u32 v1, v14, 3, v1\ns_lshl_b32 s6, s3, 8\ns_add_u32 s6, s6, {WD}\nv_add_u32 v1, s6, v1")
        for half in range(2):
            for c8 in range(4 * half, 4 * half + 4):
                A(f"ds_read_b64_tr_b16 {vr(WDA+4*c8,2)}, v1 offset:{c8*32}")
                A(f"ds_read_b64_tr_b16 {vr(WDA+4*c8+2,2)}, v1 offset:{c8*32 + 4096}")
            A("s_waitcnt lgkmcnt(0)")
        A("v_mov_b32 v4, 0x3f803f80\nv_mov_b32 v5, v4\nv_mov_b32 v6, v4\nv_mov_b32 v7, v4")
        for m in range(16):
            A(f"v_mfma_f32_16x16x32_bf16 v[8:11], v[4:7], {vr(GB+4*m,4)}, {'0' if m == 0 else 'v[8:11]'}")
        A(f"v_mov_b32 v{CS}, v8")
        A("L_notg1:")
        if self.stamps: self.stamp(15)
        A("s_cmp_lg_u32 s3, 0\ns_cbranch_scc1 L_nosw")
        self.split_weights()
        A("L_nosw:")
        A("v_lshrrev_b32 v4, 3, v0\nv_lshlrev_b32 v3, 13, v4\nv_and_b32 v4, 2, v4\nv_and_b32 v1, 7, v0\nv_xor_b32 v1, v1, v4\nv_lshl_add_u32 v3, v1, 4, v3")
        A("v_xor_b32 v8, 64, v3")
        A("s_lshl_b32 s68, s4, 19\ns_lshl_b32 s6, s62, 11\ns_add_u32 s68, s68, s6\ns_lshl_b32 s6, s63, 7\ns_add_u32 s68, s68, s6")
        A("s_and_b32 s6, s3, 1\ns_lshl_b32 s6, s6, 16\ns_add_u32 s68, s68, s6\ns_lshr_b32 s6, s3, 1\ns_lshl_b32 s6, s6, 10\ns_add_u32 s68, s68, s6")
        A(f"s_lshl_b32 s69, s3, 12\ns_add_u32 s69, s69, {WO}")
        A("v_lshrrev_b32 v4, 1, v13\nv_and_b32 v5, 1, v12\nv_lshl_add_u32 v4, v5, 1, v4\nv_xor_b32 v4, s3, v4")
        A("v_lshlrev_b32 v1, 7, v15\nv_lshl_add_u32 v1, v14, 3, v1\nv_lshl_add_u32 v1, v4, 5, v1")
        A(f"v_lshrrev_b32 v9, 3, v0\nv_lshlrev_b32 v9, 4, v9\nv_add_u32 v9, {WT}, v9")
        self.flag_wait(self.VFL, 4, F_A, self.acnt, slp=1)
        self.stamp(7)
        for kg in range(4):
            A(f"s_add_u32 m0, s69, {kg*1024}\ns_add_u32 s6, s68, {kg*128*1024}")
            A(f"buffer_load_dwordx4 {'v8' if kg & 1 else 'v3'}, s[28:31], s6 offen {self.wpol} lds")
        A("s_barrier")
        self.probe_mark("b3", 8)
        self.stamp(8)
        self.flag_wait(self.VFL, 4, F_W, 1, slp=1)
        for t in range(4):
            A(f"ds_read_b128 {vr(WTR+4*t,4)}, v9 offset:{t*128}")
        A("s_waitcnt vmcnt(0)")
        A("s_barrier")
        for m in range(4):
            A(f"ds_read_b64_tr_b16 {vr(WOA+4*m,2)}, v1 offset:{WO + m*4096}")
            A(f"ds_read_b64_tr_b16 {vr(WOA+4*m+2,2)}, v1 offset:{WO + m*4096 + 512}")

        def h2load(t):
            A(f"s_add_u32 s6, s77, {t*4096}")
            A(f"buffer_load_dwordx4 {vr(P2+4*t,4)}, v{vH2}, s[16:19], s6 offen sc1")

        A("s_cmp_ge_u32 s5, 7\ns_cbranch_scc1 L_notg2")
        for t in range(16):
            h2load(t)
        A("L_notg2:")
        for t in range(4):
            A(f"buffer_load_dwordx4 {vr(P1+4*t,4)}, v{vH1}, s[16:19], s{64+t} offen sc1")
        lp, out = self.lab("h1"), self.lab("h1ok")
        A("s_mov_b32 s7, 0")
        A("s_waitcnt lgkmcnt(0)")
        A(f"{lp}:")
        A("s_waitcnt vmcnt(0)")
        for t in range(4):
            for k in (0, 2):
                if t == 0:
                    A(f"v_pk_mul_f32 {vr(SUM+k,2)}, {vr(P1+k,2)}, {vr(WTR+k,2)}")
                else:
                    A(f"v_pk_fma_f32 {vr(SUM+k,2)}, {vr(P1+4*t+k,2)}, {vr(WTR+4*t+k,2)}, {vr(SUM+k,2)}")
        A(f"v_cmp_u_f32 vcc, v{SUM}, v{SUM+1}\nv_cmp_u_f32 s[78:79], v{SUM+2}, v{SUM+3}")
        A("s_or_b64 vcc, vcc, s[78:79]")
        A(f"s_cbranch_scc0 {out}")
        self.spin_guard(7, out)
        for t in range(4):
            sk = self.lab("h1s")
            A(f"v_cmp_u_f32 vcc, v{P1+4*t}, v{P1+4*t+1}\nv_cmp_u_f32 s[78:79], v{P1+4*t+2}, v{P1+4*t+3}")
            A("s_or_b64 exec, vcc, s[78:79]")
            A(f"s_cbranch_execz {sk}")
            A(f"buffer_load_dwordx4 {vr(P1+4*t,4)}, v{vH1}, s[16:19], s{64+t} offen sc1")
            A(f"{sk}:")
            A("s_mov_b64 exec, -1")
        A(f"s_branch {lp}")
        A(f"{out}:")
        self.stamp(9)
        A(f"v_permlane32_swap_b32 v{SUM}, v{SUM+2}\nv_permlane32_swap_b32 v{SUM+1}, v{SUM+3}")
        A(f"v_add_f32 v{SUM}, v{SUM}, v{SUM+2}\nv_add_f32 v{SUM+1}, v{SUM+1}, v{SUM+3}")
        A(f"v_permlane16_swap_b32 v{SUM}, v{SUM+1}")
        A(f"v_add_f32 v{SUM}, v{SUM}, v{SUM+1}")
        A(f"v_add_f32_dpp v{SUM}, v{SUM}, v{SUM} row_ror:8 row_mask:0xf bank_mask:0xf")
        A(f"v_cvt_pk_bf16_f32 v{SUM}, v{SUM}, v{SUM}")
        A(f"ds_write_b16 v{vOVw}, v{SUM}")
        A("s_waitcnt lgkmcnt(0)")
        A("s_barrier")
        for m in range(4):
            A(f"ds_read_b128 {vr(OB+4*m,4)}, v{vOVr} offset:{m*64}")
        for m in range(4):
            A(f"s_waitcnt lgkmcnt({3-m})")
            A(f"v_mfma_f32_16x16x32_bf16 v[8:11], {vr(WOA+4*m,4)}, {vr(OB+4*m,4)}, {'0' if m == 0 else 'v[8:11]'}")
        A("s_mov_b32 exec_lo, 0x00010001\ns_mov_b32 exec_hi, 0x00010001")
        A("s_cmp_ge_u32 s5, 7")
        A(f"buffer_store_dwordx4 v[8:11], v{vYs}, s[16:19], s58 offen sc1")
        A("s_mov_b64 exec, -1")
        if self.stamps:
            self.stamp(10)
            sk = self.lab("st")
            A(f"s_cmp_lt_u32 s5, 7\ns_cbranch_scc1 {sk}")
            A("s_cmp_lg_u32 s3, 0\ns_cbranch_scc1 L_end")
            self.stamp_store(1, 16)
            A("s_endpgm")
            A(f"{sk}:")
        else:
            A("s_cbranch_scc1 L_end")
        lp, out = self.lab("h2"), self.lab("h2ok")
        A("s_mov_b32 s7, 0\ns_mov_b32 s62, 0")
        A(f"v_mov_b32 v{SUM}, 0\nv_mov_b32 v{SUM+1}, 0\nv_mov_b32 v{SUM+2}, 0\nv_mov_b32 v{SUM+3}, 0")
        A(f"{lp}:")
        for gq in range(8):
            sk, re = self.lab("h2s"), self.lab("h2r")
            a, b = P2 + 8 * gq, P2 + 8 * gq + 4
            A(f"s_bitcmp1_b32 s62, {gq}\ns_cbranch_scc1 {sk}")
            A(f"v_pk_add_f32 v[4:5], {vr(a,2)}, {vr(b,2)}\nv_pk_add_f32 v[6:7], {vr(a+2,2)}, {vr(b+2,2)}")
            A("v_cmp_u_f32 vcc, v4, v5\nv_cmp_u_f32 s[78:79], v6, v7")
            A("s_or_b64 vcc, vcc, s[78:79]")
            A(f"s_cbranch_scc1 {re}")
            A(f"v_pk_add_f32 {vr(SUM,2)}, {vr(SUM,2)}, v[4:5]\nv_pk_add_f32 {vr(SUM+2,2)}, {vr(SUM+2,2)}, v[6:7]")
            A(f"s_bitset1_b32 s62, {gq}")
            A(f"s_branch {sk}")
            A(f"{re}:")
            h2load(2 * gq)
            h2load(2 * gq + 1)
            A(f"{sk}:")
        A(f"s_cmp_eq_u32 s62, 0xff\ns_cbranch_scc1 {out}")
        self.spin_guard(7, out)
        A("s_waitcnt vmcnt(0)")
        A(f"s_branch {lp}")
        A(f"{out}:")
        self.probe_mark("h2", 8)
        self.stamp(11)
        A(f"v_permlane32_swap_b32 v{SUM}, v{SUM+2}\nv_permlane32_swap_b32 v{SUM+1}, v{SUM+3}")
        A(f"v_add_f32 v{SUM}, v{SUM}, v{SUM+2}\nv_add_f32 v{SUM+1}, v{SUM+1}, v{SUM+3}")
        A(f"v_cvt_pk_bf16_f32 v4, v{SUM}, v{SUM+1}")
        A(f"v_lshlrev_b32 v5, 16, v4\nv_and_b32 v6, s60, v4")
        A(f"v_add_f32 v5, v{vX0}, v5\nv_add_f32 v6, v{vX1}, v6")
        A(f"v_cvt_pk_bf16_f32 v4, v5, v6")
        A(f"ds_write_b32 v{vHVw}, v4")
        A("s_waitcnt lgkmcnt(0)")
        A("s_barrier")
        A(f"ds_read_b128 v[4:7], v{vHVs}")
        for m in range(14):
            A(f"ds_read_b128 {vr(P2+4*m,4)}, v{vHVr} offset:{m*64}")
        T = 192
        st = []
        for k in range(4):
            st += [f"v_lshlrev_b32 v{T+2*k}, 16, v{4+k}", f"v_and_b32 v{T+2*k+1}, s60, v{4+k}"]
        st += [f"v_readfirstlane_b32 s6, v{T}"]
        st += [f"v_subrev_f32 v{T+k}, s6, v{T+k}" for k in range(7, -1, -1)]
        st += [f"v_add_f32 v{T+8}, v{T}, v{T+1}", f"v_mul_f32 v{T+9}, v{T}, v{T}"]
        for k in range(1, 8):
            if k >= 2:
                st += [f"v_add_f32 v{T+8}, v{T+8}, v{T+k}"]
            st += [f"v_fmac_f32 v{T+9}, v{T+k}, v{T+k}"]
        save = self.L
        self.L = []
        self.allred("v_add_f32", [T + 8, T + 9], [T + 10, T + 11])
        A(f"v_mul_f32 v{T+8}, {INV512}, v{T+8}\nv_mul_f32 v{T+9}, {INV512}, v{T+9}")
        A(f"v_fma_f32 v{T+9}, -v{T+8}, v{T+8}, v{T+9}\nv_add_f32 v{T+8}, s6, v{T+8}\nv_max_f32 v{T+9}, 0, v{T+9}")
        self.ln_scalars(T + 8, T + 9, T + 10)
        st += [x.strip() for x in self.L]
        self.L = save
        per = -(-len(st) // 16)
        for m in range(16):
            if m == 0:
                A("s_waitcnt lgkmcnt(13)")
            else:
                A(f"s_waitcnt lgkmcnt({15-m})")
            A(f"v_mfma_f32_16x16x32_bf16 v[8:11], {vr(P2+4*m,4)}, {vr(GB+4*m,4)}, {'0' if m == 0 else 'v[8:11]'}")
            if m == 0:
                for m2 in (14, 15):
                    A(f"ds_read_b128 {vr(P2+4*m2,4)}, v{vHVr} offset:{m2*64}")
            for x in st[m * per:(m + 1) * per]:
                A(x)
        A(f"ds_read_u16 v12, v{vFh}")
        A(f"v_fma_f32 v4, -v{T+8}, v{CS}, v8\nv_mul_f32 v4, v4, v{T+9}")
        A("v_cvt_pk_bf16_f32 v4, v4, v4\nv_and_b32 v4, s60, v4")
        A("v_mul_f32 v5, s59, v4\nv_exp_f32 v5, -v5")
        A("v_mov_b32_dpp v6, v4 row_ror:8 row_mask:0xf bank_mask:0xf")
        A("v_add_f32 v5, 1.0, v5\nv_rcp_f32 v5, v5")
        A("v_cvt_pk_bf16_f32 v5, v5, v5\nv_and_b32 v5, s60, v5")
        A("v_mul_f32 v5, v5, v6\nv_cvt_pk_bf16_f32 v5, v5, v5")
        A("s_mov_b64 exec, 0xff")
        A(f"ds_write_b16 v{vHHw}, v5")
        A("s_mov_b64 exec, -1")
        A("s_waitcnt lgkmcnt(0)")
        A("s_barrier")
        for c8 in range(8):
            A(f"ds_read_b128 {vr(P1+4*c8,4)}, v{vHHr} offset:{(7-c8)*64}")
        for c8 in range(8):
            A(f"s_waitcnt lgkmcnt({7-c8})")
            A(f"v_mfma_f32_16x16x32_bf16 v[8:11], {vr(WDA+4*c8,4)}, {vr(P1+4*c8,4)}, {'0' if c8 == 0 else 'v[8:11]'}")
        A("s_mov_b32 exec_lo, 0x00ff00ff\ns_mov_b32 exec_hi, 0x00ff00ff")
        A("s_cmp_ge_u32 s5, 4")
        A(f"buffer_store_dwordx4 v[8:11], v{vZs}, s[16:19], s76 offen sc1")
        A("s_mov_b64 exec, -1")
        if self.stamps:
            self.stamp(12)
            sk = self.lab("st")
            A(f"s_cmp_lt_u32 s5, 4\ns_cbranch_scc1 {sk}")
            A("s_cmp_lg_u32 s3, 0\ns_cbranch_scc1 L_end")
            self.stamp_store(1, 16)
            A("s_endpgm")
            A(f"{sk}:")
        else:
            A("s_cbranch_scc1 L_end")
        lp, out = self.lab("h3"), self.lab("h3ok")
        A("s_mov_b32 s7, 0")
        A("v_lshlrev_b32 v12, 16, v12")
        A(f"{lp}:")
        A(f"buffer_load_dwordx4 v[4:7], v{vH3}, s[52:55], s75 offen sc1")
        self.spin_guard(7, out)
        A("s_waitcnt vmcnt(0)")
        A("v_cmp_u_f32 vcc, v4, v5\nv_cmp_u_f32 s[78:79], v6, v7")
        A("s_or_b64 vcc, vcc, s[78:79]")
        A(f"s_cbranch_scc1 {lp}")
        A(f"{out}:")
        A("s_waitcnt vmcnt(0)")
        self.probe_mark("h3", 8)
        self.stamp(13)
        A("v_permlane32_swap_b32 v4, v6\nv_permlane32_swap_b32 v5, v7")
        A("v_add_f32 v4, v4, v6\nv_add_f32 v5, v5, v7")
        A("v_permlane16_swap_b32 v4, v5")
        A("v_add_f32 v4, v4, v5")
        for n in (8, 4, 2, 1):
            A(f"v_add_f32_dpp v4, v4, v4 row_ror:{n} row_mask:0xf bank_mask:0xf")
        A("v_cvt_pk_bf16_f32 v4, v4, v4\nv_and_b32 v4, s60, v4")
        A("v_add_f32 v4, v12, v4\nv_cvt_pk_bf16_f32 v4, v4, v4")
        if self.probe:
            lp = self.lab("pr")
            A("s_sleep 100\nv_mov_b32 v251, 0")
            A("buffer_load_dwordx2 v[248:249], v251, s[48:51], 0 offen offset:4 sc1\ns_waitcnt vmcnt(0)")
            A("v_readfirstlane_b32 s92, v248\nv_readfirstlane_b32 s93, v249\ns_not_b32 s92, s92")
            if self.probe == "t0": A("s_mov_b32 s93, s92")
            A("s_add_u32 s93, s93, 6000\ns_mov_b32 s7, 0")
            A(f"{lp}:\ns_memrealtime s[96:97]\ns_add_u32 s7, s7, 1\ns_cmp_gt_u32 s7, 100000\ns_cbranch_scc1 {lp}x\ns_waitcnt lgkmcnt(0)\ns_sub_u32 s6, s96, s93\ns_cmp_lt_i32 s6, 0\ns_cbranch_scc1 {lp}\n{lp}x:\ns_waitcnt lgkmcnt(0)")
        A("s_mov_b32 exec_lo, 0x00010001\ns_mov_b32 exec_hi, 0x00010001")
        A(f"buffer_store_short v4, v{vFo}, s[44:47], 0 offen {self.outpol}")
        if self.stamps:
            A("s_mov_b64 exec, -1")
            A("s_waitcnt vmcnt(0)")
            self.stamp(14)
            A("s_cmp_lg_u32 s3, 0\ns_cbranch_scc1 L_end")
            self.stamp_store(1, 16)

    def build(self):
        self.entry()
        self.streamer()
        self.helper()
        self.A("L_end:\ns_endpgm\nL_code_end:")
        body, nn = hazard.fix(self.L)
        head = open("cdna_kernels/" + KN[:-7] + ".s.ref").read().split("; Override launch")[0]
        out = head
        out += f"; @launch grid=(256,1,1) block=(512,1,1) lds={LDS_SIZE}\n"
        out += '.amdgcn_target "amdgcn-amd-amdhsa--gfx950"\n.text\n'
        out += f".globl {KN}\n.p2align 8\n.type {KN},@function\n{KN}:\n"
        out += "\n".join(body) + "\n"
        out += f""".section .rodata,"a"
.p2align 6
.amdhsa_kernel {KN}
  .amdhsa_next_free_vgpr 256
  .amdhsa_next_free_sgpr 102
  .amdhsa_accum_offset 256
  .amdhsa_group_segment_fixed_size 0
  .amdhsa_kernarg_size 96
  .amdhsa_user_sgpr_count 2
  .amdhsa_user_sgpr_kernarg_segment_ptr 1
  .amdhsa_system_sgpr_workgroup_id_x 1
.end_amdhsa_kernel
"""
        return out


def gen(**kw):
    return Gen(**kw).build()


if __name__ == "__main__":
    kw = eval("dict(" + (sys.argv[2] if len(sys.argv) > 2 else "") + ")")
    open(sys.argv[1], "w").write(gen(**kw))
```

```python
import sys
import hazard

KN = "sequential_preLN__gqa_block_cached__glu_gated_glu__decode_kernel"

Q_OFF = 0x0
ST_OFF = 0x2000
Y_OFF = 0x10000
Z_OFF = 0x20000
OP_OFF = 0x40000
QP_OFF = 0xC0000
WS_SIZE = 0xD0000
STAMP_OFF = 0x100000
NG = 56
WQ = 0
WO = 16384
WG = 32768
WU = 65536
WD = 98304
ACC = 131072
XN = ACC + 8192
QV = XN + 1024
HV = QV + 1024
ZR = HV + 1024
HH = ZR + 8 * 64
OV = ZR + 1536
STL = OV + 256
ML = STL + 128
FL = ML + 64
F_Q, F_ST, F_W, F_EARLY, F_MID, F_A, F_CLR, F_GL = 0, 4, 8, 12, 16, 20, 24, 28
WT = ML + 128
LDS_SIZE = ML + 128 + 512

LOG2E = "0x3fb8aa3b"
SCALE = "0x3db504f3"
EPS = "0x3727c5ac"
INV512 = "0x3b000000"
HIMASK = "0xffff0000"
SPIN_MAX = 100000


def vr(a, n=1):
    return f"v{a}" if n == 1 else f"v[{a}:{a+n-1}]"


def sr(a, n=1):
    return f"s{a}" if n == 1 else f"s[{a}:{a+n-1}]"


class Gen:
    def __init__(self, D=5, DN=None, DG=None, RING=48, NTN=68, NTG=52, pol="nt", wpol="nt", qpol=None, gpol=None,
                 stamps=0, gpace=2, grot=0, outpol="", pvrate=3, kbudget=3, prefetch_code=True, dbg=(), slp=8,
                 probe=None, pticks=6000, n_early=28, mid_back=26, a_back=1, acnt=4, stdelay=3):
        self.L = []
        self.uid = 0
        self.RING, self.NTN, self.NTG, self.pol, self.wpol = RING, NTN, NTG, pol, wpol
        assert NTG + 3 * NTN == 256
        self.DN = tuple(DN) if DN else ((0, D),)
        self.DG = tuple(DG) if DG else self.DN
        self.qpol = wpol if qpol is None else qpol
        self.gpol = wpol if gpol is None else gpol
        self.stamps, self.gpace, self.grot, self.outpol = stamps, gpace, grot, outpol
        self.pvrate, self.kbudget, self.prefetch_code, self.dbg, self.slp = pvrate, kbudget, prefetch_code, dbg, slp
        self.probe = probe; self.pticks = pticks
        self.n_early, self.mid_back, self.a_back, self.acnt, self.stdelay = n_early, mid_back, a_back, acnt, stdelay

    def A(self, s):
        for l in s.split("\n"):
            l = l.strip()
            if not l:
                continue
            self.L.append(l if l.endswith(":") else "    " + l)

    def lab(self, p):
        self.uid += 1
        return f"L_{p}_{self.uid}"

    def stamp(self, k):
        if self.stamps:
            self.A(f"s_memrealtime s[98:99]\ns_waitcnt lgkmcnt(0)\ns_mov_b32 s{80+k}, s98")

    def stamp_store(self, role, n):
        if not self.stamps:
            return
        A = self.A
        A("s_mov_b64 exec, 1")
        A(f"s_lshl_b32 s6, s2, 9\ns_add_u32 s6, s6, {STAMP_OFF + role*64}")
        A("v_mov_b32 v1, 0")
        for k in range(n):
            A(f"v_mov_b32 v3, s{80+k}")
            A(f"buffer_store_dword v3, v1, s[16:19], s6 offen offset:{4*k}")
        A("s_mov_b64 exec, -1")

    def allred(self, op, regs, tmps, rors=(8, 4, 2, 1)):
        A = self.A
        for n in rors:
            for r in regs:
                if n == "x2":
                    A(f"{op}_dpp v{r}, v{r}, v{r} quad_perm:[2,3,0,1] row_mask:0xf bank_mask:0xf")
                else:
                    A(f"{op}_dpp v{r}, v{r}, v{r} row_ror:{n} row_mask:0xf bank_mask:0xf")
        for sw in ("v_permlane16_swap_b32", "v_permlane32_swap_b32"):
            for r, t in zip(regs, tmps):
                A(f"v_mov_b32 v{t}, v{r}")
            for r, t in zip(regs, tmps):
                A(f"{sw} v{r}, v{t}")
            for r, t in zip(regs, tmps):
                A(f"{op} v{r}, v{r}, v{t}")

    def flag_add(self, vaddr, vone, off):
        self.A(f"s_mov_b64 exec, 1\nds_add_u32 v{vaddr}, v{vone} offset:{off}\ns_mov_b64 exec, -1")

    def flag_wait(self, vaddr, vt, off, val, slp=2):
        lp, out = self.lab("fw"), self.lab("fwok")
        self.A("s_mov_b32 s7, 0")
        self.A(f"{lp}:")
        self.A(f"ds_read_b32 v{vt}, v{vaddr} offset:{off}")
        self.A(f"s_add_u32 s7, s7, 1\ns_cmp_gt_u32 s7, {SPIN_MAX*8}\ns_cbranch_scc1 {out}")
        self.A("s_waitcnt lgkmcnt(0)")
        self.A(f"v_cmp_le_u32 vcc, {val}, v{vt}")
        self.A(f"s_cbranch_vccnz {out}")
        self.A(f"s_sleep {slp}")
        self.A(f"s_branch {lp}")
        self.A(f"{out}:")
        self.A("s_waitcnt lgkmcnt(0)")

    def probe_mark(self, name, off, invert=False):
        if not self.probe or (name != "t0" and name != self.probe):
            return
        A = self.A
        sk = self.lab("pm")
        if name == "t0": A(f"s_cmp_lg_u32 s5, 0\ns_cbranch_scc1 {sk}")
        elif name not in ("start",): A(f"s_cmp_lg_u32 s3, 0\ns_cbranch_scc1 {sk}")
        A("s_memrealtime s[96:97]\ns_waitcnt lgkmcnt(0)")
        if invert: A("s_not_b32 s96, s96")
        A(f"s_mov_b64 exec, 1\nv_mov_b32 v250, s96\nv_mov_b32 v251, 0")
        A(f"buffer_atomic_umax v250, v251, s[48:51], 0 offen offset:{off} sc1")
        A("s_mov_b64 exec, -1")
        A(f"{sk}:")

    def spin_guard(self, cnt, out):
        self.A(f"s_add_u32 s{cnt}, s{cnt}, 1\ns_cmp_gt_u32 s{cnt}, {SPIN_MAX if not [x for x in self.dbg if x.startswith('no')] else 12}\ns_cbranch_scc1 {out}")

    def entry(self):
        A = self.A
        A("s_load_dwordx2 s[8:9], s[0:1], 8")
        A("s_load_dwordx2 s[12:13], s[0:1], 16")
        A("s_load_dwordx2 s[16:17], s[0:1], 88")
        A("s_cmp_ge_u32 s2, 256")
        A("s_cbranch_scc1 L_end")
        A("v_readfirstlane_b32 s3, v0")
        A("s_and_b32 s4, s2, 7")
        A("s_lshr_b32 s5, s2, 3")
        A("v_and_b32 v0, 63, v0")
        A("s_lshr_b32 s3, s3, 6")
        A(f"s_mov_b32 s18, {0x200000 if self.stamps else WS_SIZE}")
        A("s_mov_b32 s19, 0x20000")
        A("s_cmp_ge_u32 s3, 4")
        A("s_cbranch_scc1 L_helper")

    def streamer(self):
        A = self.A
        A("s_mov_b32 s10, 0x4000000\ns_mov_b32 s11, 0x20000\ns_mov_b32 s14, 0x4000000\ns_mov_b32 s15, 0x20000")
        A("v_bfe_u32 v1, v0, 2, 2\nv_lshlrev_b32 v1, 8, v1\nv_and_b32 v3, 3, v0\nv_lshl_add_u32 v1, v3, 4, v1")
        A("v_lshrrev_b32 v3, 4, v0\nv_lshl_add_u32 v1, v3, 6, v1\nv_lshlrev_b32 v2, 4, v0")
        A("s_lshl_b32 s56, s4, 23\ns_lshl_b32 s57, s3, 12\ns_add_u32 s56, s56, s57")
        two = self.DG != self.DN or self.NTG != self.NTN
        if two:
            A("s_cmp_lt_u32 s5, 8\ns_cbranch_scc1 L_stream_g")
        A(f"s_mul_i32 s57, s5, {self.NTN*4096}\ns_add_u32 s56, s56, s57\ns_sub_u32 s56, s56, {8*(self.NTN-self.NTG)*4096}")
        self.stream_body(self.DN, self.NTN)
        if two:
            A("L_stream_g:")
            A(f"s_mul_i32 s57, s5, {self.NTG*4096}\ns_add_u32 s56, s56, s57")
            self.stream_body(self.DG, self.NTG)

    def stream_body(self, sched, NT):
        A = self.A
        RING = self.RING
        R0 = 256 - 4 * RING
        assert R0 >= 64
        NB = -(-NT // 4)
        rem = NT % 4
        NL = 2 * NT
        S0, VFL, VONE, VFG, D0, X0, X1, VM, VL, VF, VT, VT2, VRD, M4 = 8, 25, 26, 27, 28, 44, 45, 46, 47, 48, 49, 50, 51, 52
        ACC0, ACC1 = 56, 60
        AB, TLO, THI = 28, 36, 37
        assert NB <= 17
        slot = lambda n: R0 + 4 * (n % RING)
        A("s_mov_b32 s57, s56")
        if rem:
            A(f"s_mul_i32 s62, s3, {(4-rem)*1024}\ns_sub_u32 s62, 16384, s62")
        A("s_waitcnt lgkmcnt(0)")

        def depth(n):
            d = sched[0][1]
            for n0, dd in sched:
                if n >= (n0 if n0 >= 0 else NL + n0):
                    d = dd
            return d
        st = {"landed": -1}
        self.stamp(0)

        def load(n):
            d = depth(n)
            if n - d > st["landed"]:
                A(f"s_waitcnt vmcnt({d-1})")
                st["landed"] = n - d
            t = n % NT
            j = t % 4
            va, srd, so = ("v1", "s[8:11]", "s56") if n < NT else ("v2", "s[12:15]", "s57")
            A(f"buffer_load_dwordx4 {vr(slot(n),4)}, {va}, {srd}, {so} offen offset:{j*1024} {self.pol}")
            if j == 3 and t + 1 < NT:
                A(f"s_add_u32 {so}, {so}, {'s62' if (rem and t + 1 == 4*(NB-1)) else 16384}")
            if n == depth(0) - 1:
                A(f"v_mov_b32 v{VFL}, {FL}\nv_mov_b32 v{VONE}, 1")
                A(f"s_mov_b32 s58, {SCALE}\ns_mov_b32 s59, {LOG2E}\ns_mov_b32 s60, {HIMASK}")
                A(f"v_and_b32 v3, 3, v0\nv_lshlrev_b32 v3, 8, v3\nv_bfe_u32 v4, v0, 2, 2\nv_lshl_add_u32 v3, v4, 4, v3")
                A(f"v_lshrrev_b32 v4, 4, v0\nv_lshl_add_u32 v3, v4, 6, v3\nv_add_u32 v3, {QV}, v3")
                A("s_barrier")
            if n == self.n_early:
                self.flag_add(VFL, VONE, F_EARLY)
            if n == NL - self.mid_back:
                self.flag_add(VFL, VONE, F_MID)
            if n == NL - self.a_back:
                self.flag_add(VFL, VONE, F_A)

        def flagged_read(off, val, read):
            lp, out = self.lab("sf"), self.lab("sfok")
            A("s_mov_b32 s7, 0")
            A(f"{lp}:")
            A(f"ds_read_b32 v{VFG}, v{VFL} offset:{off}")
            A(read)
            A(f"s_add_u32 s7, s7, 1\ns_cmp_gt_u32 s7, {SPIN_MAX*8}\ns_cbranch_scc1 {out}")
            A("s_waitcnt lgkmcnt(0)")
            A(f"v_cmp_gt_u32 vcc, {val}, v{VFG}")
            A(f"s_cbranch_vccnz {lp}")
            A(f"{out}:")
            A("s_waitcnt lgkmcnt(0)")

        def qsync():
            if self.stamps > 1: self.stamp(1)
            flagged_read(F_Q, 1, "ds_read_b128 v[4:7], v3")
            if self.stamps > 1: self.stamp(2)

        def qk(i):
            nt = rem if (rem and i == NB - 1) else 4
            for j in range(nt):
                A(f"v_mfma_f32_16x16x32_bf16 {vr(D0+4*j,4)}, {vr(slot(4*i+j),4)}, v[4:7], 0")
            d = lambda j, b: D0 + 4 * j + b
            dp = lambda dst, s0, s1, ror, bm: A(f"v_add_f32_dpp v{dst}, v{s0}, v{s1} row_ror:{ror} row_mask:0xf bank_mask:{bm:#x}")
            dp(X0, d(0, 1), d(0, 0), 12, 1)
            dp(X1, d(2, 1), d(2, 0), 12, 1)
            dp(X0, d(1, 0), d(1, 1), 4, 2)
            dp(X1, d(3, 0), d(3, 1), 4, 2)
            dp(X0, d(0, 3), d(0, 2), 12, 4)
            dp(X1, d(2, 3), d(2, 2), 12, 4)
            dp(X0, d(1, 2), d(1, 3), 4, 8)
            dp(X1, d(3, 2), d(3, 3), 4, 8)
            dp(S0 + i, X0, X0, 8, 3)
            dp(S0 + i, X1, X1, 8, 12)
            if nt < 4:
                A(f"v_mov_b32 v{VT}, 0xff800000")
                A(f"v_mov_b32_dpp v{S0+i}, v{VT} quad_perm:[0,1,2,3] row_mask:0xf bank_mask:{(0xf << nt) & 0xf:#x}")

        def rnd(i):
            a, b = S0 + i, S0 + min(i + 1, NB - 1)
            A(f"v_cvt_pk_bf16_f32 v{VT}, v{a}, v{b}")
            if a != b: A(f"v_lshlrev_b32 v{a}, 16, v{VT}")
            A(f"v_and_b32 v{b}, s60, v{VT}")
            if a != b: A(f"v_mul_f32 v{a}, s58, v{a}")
            A(f"v_mul_f32 v{b}, s58, v{b}")
            A(f"v_cvt_pk_bf16_f32 v{VT}, v{a}, v{b}")
            if a != b: A(f"v_lshlrev_b32 v{a}, 16, v{VT}")
            A(f"v_and_b32 v{b}, s60, v{VT}")
            if i == 0:
                A(f"v_max_f32 v{VM}, v{a}, v{b}")
            else:
                A(f"v_max3_f32 v{VM}, v{VM}, v{a}, v{b}")

        def sm_max():
            self.allred("v_max_f32", [VM], [VT], rors=(4, 8))
            A(f"v_mul_f32 v{VT2}, s59, v{VM}")

        def sm_exp(lo, hi):
            for i in range(lo, hi):
                A(f"v_fma_f32 v{S0+i}, v{S0+i}, s59, -v{VT2}")
            for i in range(lo, hi):
                A(f"v_exp_f32 v{S0+i}, v{S0+i}")
            for i in range(lo, hi):
                if i == 1:
                    A(f"v_add_f32 v{VL}, v{S0}, v{S0+1}")
                elif i > 1:
                    A(f"v_add_f32 v{VL}, v{VL}, v{S0+i}")

        def sm_sum():
            self.allred("v_add_f32", [VL], [VT], rors=(4, 8))
            A(f"v_and_b32 v3, 3, v0\nv_lshlrev_b32 v3, 4, v3\nv_add_u32 v3, {STL}, v3")
            A(f"s_lshl_b32 s6, s3, 2\nv_add_u32 v4, s6, v3")
            A("s_mov_b64 exec, 15")
            A(f"ds_write_b32 v4, v{VM}\nds_write_b32 v4, v{VL} offset:64")
            self.flag_add(VFL, VONE, F_ST)
            if self.stamps > 1: self.stamp(3)

        def pv_setup():
            for r in list(range(AB, AB + 8)) + list(range(ACC0, ACC0 + 8)):
                A(f"v_mov_b32 v{r}, 0")
            A(f"s_lshl_b32 s6, s3, 10\ns_add_u32 s6, s6, {ACC}\nv_add_u32 v{VRD}, s6, v2")
            A(f"s_lshl_b32 s61, s4, 16\ns_lshl_b32 s7, s5, 11\ns_add_u32 s61, s61, s7\ns_lshl_b32 s7, s3, 10\ns_add_u32 s61, s61, s7\ns_add_u32 s61, s61, {OP_OFF}")

        def msync():
            if self.stamps > 1: self.stamp(4)
            flagged_read(F_ST, 4, f"ds_read_b128 {vr(M4,4)}, v3")
            if self.stamps > 1: self.stamp(5)
            A(f"v_max3_f32 v{VF}, v{M4}, v{M4+1}, v{M4+2}\nv_max_f32 v{VF}, v{VF}, v{M4+3}")
            A(f"v_sub_f32 v{VF}, v{VM}, v{VF}\nv_mul_f32 v{VF}, s59, v{VF}\nv_exp_f32 v{VF}, v{VF}")
            A(f"s_lshl_b32 s6, s3, 11\ns_add_u32 s6, s6, {ACC}\nv_add_u32 v3, s6, v2")

        def tcalc(i):
            A(f"v_mul_f32 v{VT}, v{S0+i}, v{VF}")
            A(f"v_cvt_pk_bf16_f32 v{TLO}, v{VT}, 0\nv_cvt_pk_bf16_f32 v{THI}, 0, v{VT}")

        def mv(dst, src, dbank, j):
            rot = 4 * ((dbank - j) & 3)
            ctl = f"row_ror:{rot}" if rot else "quad_perm:[0,1,2,3]"
            A(f"v_mov_b32_dpp v{dst}, v{src} {ctl} row_mask:0xf bank_mask:{1<<dbank:#x}")

        abuf = lambda t: AB + 2 * (t % 4)

        def prep(ts):
            for t in ts:
                mv(abuf(t), TLO, 0, t % 4)
                mv(abuf(t) + 1, TLO, 2, t % 4)
            for t in ts:
                mv(abuf(t), THI, 1, t % 4)
                mv(abuf(t) + 1, THI, 3, t % 4)

        def pv(t):
            s = slot(NT + t)
            A(f"v_mfma_f32_16x16x16_bf16 {vr(ACC0,4)}, {vr(abuf(t),2)}, {vr(s,2)}, {vr(ACC0,4)}")
            A(f"v_mfma_f32_16x16x16_bf16 {vr(ACC1,4)}, {vr(abuf(t),2)}, {vr(s+2,2)}, {vr(ACC1,4)}")

        KB = float(self.kbudget)
        items = [(RING - 1 - depth(RING - 1), qsync, 0.5, -1, 0)]
        for i in range(NB):
            last = min(4 * i + 3, NT - 1)
            items.append((last, (lambda i=i: qk(i)), 2, last, 0))
            if i % 2 == 1 or i == NB - 1:
                items.append((-1, (lambda i=i: rnd(i - (i % 2))), 0.5, -1, 0))
        h = NB // 2
        items += [(-1, sm_max, 1.5, -1, 0), (-1, lambda: sm_exp(0, h), 2, -1, 0), (-1, lambda: sm_exp(h, NB), 2, -1, 0),
                  (-1, sm_sum, 2, -1, 0), (-1, pv_setup, 2, -1, 0), (-1, msync, 1, -1, self.stdelay)]
        for i in range(NB):
            items.append((-1, (lambda i=i: tcalc(i)), 0, -1, 0))
            for u in (2 * i, 2 * i + 1):
                ts = [t for t in (2 * u, 2 * u + 1) if t < NT]
                if not ts: continue
                items.append((-1, (lambda ts=ts: prep(ts)), 0, -1, 0))
                for t in ts:
                    items.append((NT + t, (lambda t=t: pv(t)), KB / self.pvrate, NT + t, 0))
        pos = 0
        freed = -1
        lastn = 0
        for n in range(NL):
            while n - RING > freed:
                need, emit, cost, fr, dl = items[pos]
                assert need <= st["landed"], (n, need)
                emit(); pos += 1; freed = max(freed, fr); lastn = n
            load(n)
            budget = KB
            while pos < len(items) and items[pos][0] <= st["landed"] and (budget > 0 or items[pos][2] == 0) and n >= lastn + items[pos][4]:
                need, emit, cost, fr, dl = items[pos]
                emit(); pos += 1; budget -= cost; freed = max(freed, fr); lastn = n
        while pos < len(items):
            need, emit, cost, fr, dl = items[pos]
            if need > st["landed"]:
                A(f"s_waitcnt vmcnt({NL-1-need})")
                st["landed"] = need
            emit(); pos += 1
        ex = self.lab("sexit")
        A("s_cmp_ge_u32 s3, 2")
        A(f"ds_write_b128 v3, {vr(ACC0,4)}\nds_write_b128 v3, {vr(ACC1,4)} offset:1024")
        A("s_waitcnt lgkmcnt(0)")
        A("s_barrier")
        A(f"s_cbranch_scc1 {ex}")
        for sw in range(4):
            A(f"ds_read_b128 {vr(8+4*sw,4)}, v{VRD} offset:{sw*2048}")
        A("s_waitcnt lgkmcnt(2)")
        A("v_pk_add_f32 v[8:9], v[8:9], v[12:13]\nv_pk_add_f32 v[10:11], v[10:11], v[14:15]")
        A("s_waitcnt lgkmcnt(0)")
        A("v_pk_add_f32 v[16:17], v[16:17], v[20:21]\nv_pk_add_f32 v[18:19], v[18:19], v[22:23]")
        A("v_pk_add_f32 v[8:9], v[8:9], v[16:17]\nv_pk_add_f32 v[10:11], v[10:11], v[18:19]")
        A("buffer_store_dwordx4 v[8:11], v2, s[16:19], s61 offen sc1")
        A(f"{ex}:")
        if self.stamps:
            self.stamp(6)
            A("s_cmp_lg_u32 s3, 0\ns_cbranch_scc1 L_end")
            self.stamp_store(0, 7)
        A("s_endpgm")

    def helper(self):
        A = self.A
        wp = self.wpol
        A("L_helper:")
        A("s_load_dwordx2 s[20:21], s[0:1], 0")
        A("s_load_dwordx2 s[24:25], s[0:1], 24")
        A("s_load_dwordx2 s[48:49], s[0:1], 80")
        A("s_load_dwordx2 s[28:29], s[0:1], 32")
        A("s_sub_u32 s3, s3, 4")
        A("s_mov_b32 s22, 1024\ns_mov_b32 s23, 0x20000\ns_mov_b32 s26, 0x400000\ns_mov_b32 s27, 0x20000")
        A("s_mov_b32 s50, 256\ns_mov_b32 s51, 0x20000\ns_mov_b32 s30, 0x400000\ns_mov_b32 s31, 0x20000")
        A("v_lshlrev_b32 v2, 4, v0")
        A(f"s_mov_b32 s59, {LOG2E}\ns_mov_b32 s60, {HIMASK}")
        A("s_mul_i32 s61, s4, 7\ns_add_u32 s61, s61, s5")
        A("s_lshr_b32 s62, s5, 3\ns_and_b32 s63, s5, 7")
        A("s_waitcnt lgkmcnt(0)")
        A("s_load_dwordx2 s[32:33], s[0:1], 48")
        A("s_load_dwordx2 s[36:37], s[0:1], 56")
        A("s_load_dwordx2 s[40:41], s[0:1], 64")
        A("s_load_dwordx2 s[44:45], s[0:1], 72")
        A("s_mov_b32 s34, 0x1c0000\ns_mov_b32 s35, 0x20000\ns_mov_b32 s38, 0x1c0000\ns_mov_b32 s39, 0x20000")
        A("s_mov_b32 s42, 0x1c0000\ns_mov_b32 s43, 0x20000\ns_mov_b32 s46, 1024\ns_mov_b32 s47, 0x20000")
        A(f"s_add_u32 s52, s16, {Z_OFF}\ns_addc_u32 s53, s17, 0\ns_mov_b32 s54, {NG*2048}\ns_mov_b32 s55, 0x20000")
        A(f"s_lshl_b32 s6, s4, 5\ns_add_u32 s6, s6, s5\ns_lshl_b32 s64, s6, 5\ns_add_u32 s64, s64, {ST_OFF}")
        A(f"s_lshl_b32 s66, s6, 11\ns_add_u32 s66, s66, {OP_OFF}")
        A(f"s_lshl_b32 s7, s4, 2\ns_add_u32 s7, s7, s62\ns_lshl_b32 s7, s7, 11\ns_lshl_b32 s6, s63, 8\ns_add_u32 s58, s7, s6")
        A(f"s_add_u32 s67, s58, {Y_OFF}\ns_add_u32 s58, s58, {QP_OFF}\ns_lshl_b32 s65, s4, 5")
        self.VFL = 245
        A(f"v_mov_b32 v{self.VFL}, {FL}")
        A("s_cmp_lg_u32 s3, 0")
        A("s_cbranch_scc1 L_h123")
        self.h0()
        A("s_branch L_hjoin")
        self.h123()
        A("L_hjoin:")
        self.tail()

    def h0(self):
        A = self.A
        self.stamp(0)
        A("buffer_load_dwordx4 v[4:7], v2, s[20:23], 0 offen")
        A("v_lshrrev_b32 v3, 3, v0\nv_lshlrev_b32 v3, 13, v3\nv_and_b32 v1, 7, v0\nv_lshl_add_u32 v3, v1, 4, v3")
        A("s_lshl_b32 s6, s62, 20\ns_lshl_b32 s7, s4, 10\ns_add_u32 s6, s6, s7\ns_lshl_b32 s7, s63, 7\ns_add_u32 s6, s6, s7")
        for t in range(16):
            A(f"s_mov_b32 m0, {WQ + t*1024}")
            if "nowq" not in self.dbg: A(f"buffer_load_dwordx4 v3, s[24:27], s6 offen {self.qpol} lds")
            if t < 15:
                A("s_add_u32 s6, s6, 0x10000")
            if t == 3:
                A("s_barrier")
        A("s_waitcnt vmcnt(16)" if "nowq" not in self.dbg else "s_waitcnt vmcnt(0)")
        for k in range(4):
            A(f"v_lshlrev_b32 v{12+2*k}, 16, v{4+k}\nv_and_b32 v{13+2*k}, s60, v{4+k}")
        A("v_add_f32 v20, v12, v13\nv_add_f32 v21, v14, v15\nv_add_f32 v22, v16, v17\nv_add_f32 v23, v18, v19")
        A("v_add_f32 v20, v20, v21\nv_add_f32 v22, v22, v23\nv_add_f32 v20, v20, v22")
        self.allred("v_add_f32", [20], [21])
        A(f"v_mul_f32 v20, {INV512}, v20")
        for k in range(8):
            A(f"v_sub_f32 v{24+k}, v{12+k}, v20")
        A("v_mul_f32 v22, v24, v24")
        for k in range(1, 8):
            A(f"v_fmac_f32 v22, v{24+k}, v{24+k}")
        self.allred("v_add_f32", [22], [21])
        A(f"v_mul_f32 v22, {INV512}, v22")
        self.ln_scalars(20, 22, 21)
        for k in range(4):
            a, b = 12 + 2 * k, 13 + 2 * k
            A(f"v_sub_f32 v{a}, v{a}, v20\nv_sub_f32 v{b}, v{b}, v20")
            A(f"v_cvt_pk_bf16_f32 v21, v{a}, v{b}")
            A(f"v_lshlrev_b32 v{a}, 16, v21\nv_and_b32 v{b}, s60, v21")
            A(f"v_mul_f32 v{a}, v{a}, v22\nv_mul_f32 v{b}, v{b}, v22")
            A(f"v_cvt_pk_bf16_f32 v{4+k}, v{a}, v{b}")
        A(f"v_add_u32 v1, {XN}, v2")
        A("ds_write_b128 v1, v[4:7]")
        A("v_lshrrev_b32 v12, 4, v0\nv_bfe_u32 v13, v0, 2, 2\nv_and_b32 v14, 3, v0")
        A("v_lshl_add_u32 v15, v12, 3, v13\nv_lshlrev_b32 v15, 7, v15\nv_lshl_add_u32 v15, v14, 3, v15")
        A(f"s_lshl_b32 s6, s62, 8\ns_add_u32 s6, s6, {XN}\nv_lshlrev_b32 v17, 4, v12\nv_add_u32 v16, s6, v17")
        A("s_waitcnt lgkmcnt(0)")
        for m in range(4):
            A(f"ds_read_b128 {vr(128+4*m,4)}, v16 offset:{m*64}")
        A("s_waitcnt vmcnt(0)")
        self.stamp(1)
        for m in range(4):
            base = 64 + 16 * m
            for ct in range(4):
                A(f"ds_read_b64_tr_b16 {vr(base+4*ct,2)}, v15 offset:{WQ + m*4096 + ct*32}")
                A(f"ds_read_b64_tr_b16 {vr(base+4*ct+2,2)}, v15 offset:{WQ + m*4096 + ct*32 + 512}")
            A("s_waitcnt lgkmcnt(0)")
            for ct in range(4):
                c = "0" if m == 0 else vr(32 + 4 * ct, 4)
                A(f"v_mfma_f32_16x16x32_bf16 {vr(32+4*ct,4)}, {vr(base+4*ct,4)}, {vr(128+4*m,4)}, {c}")
        self.flag_wait(self.VFL, 4, F_CLR, 1, slp=1)
        A("s_mov_b32 exec_lo, 0x00010001\ns_mov_b32 exec_hi, 0x00010001")
        for ct in range(4):
            A(f"buffer_store_dwordx4 {vr(32+4*ct,4)}, v17, s[16:19], s58 offen offset:{ct*64} sc1")
        A("s_mov_b64 exec, -1")
        self.stamp(2)
        A("v_mov_b32 v1, 0")
        self.flag_wait(self.VFL, 4, F_EARLY, 1)
        self.cnt_wait("s65", "v1")
        self.stamp(3)
        A(f"s_lshl_b32 s6, s4, 13\ns_add_u32 s6, s6, {QP_OFF}\ns_add_u32 s66, s6, 4096")
        lp, out = self.lab("qpoll"), self.lab("qok")
        A("s_mov_b32 s7, 0")
        A(f"{lp}:")
        for rb in range(4):
            for hf in range(2):
                A(f"buffer_load_dwordx4 {vr(64+8*rb+4*hf,4)}, v2, s[16:19], {'s6' if rb < 2 else 's66'} offen offset:{(rb&1)*2048+hf*1024} sc1")
        self.spin_guard(7, out)
        A("s_waitcnt vmcnt(0)")
        for k in range(0, 8, 2):
            A(f"v_pk_add_f32 {vr(64+k,2)}, {vr(64+k,2)}, {vr(72+k,2)}\nv_pk_add_f32 {vr(80+k,2)}, {vr(80+k,2)}, {vr(88+k,2)}")
        for k in range(0, 8, 2):
            A(f"v_pk_add_f32 {vr(64+k,2)}, {vr(64+k,2)}, {vr(80+k,2)}")
        A("v_cmp_u_f32 vcc, v64, v65\nv_cmp_u_f32 s[68:69], v66, v67\nv_cmp_u_f32 s[70:71], v68, v69\nv_cmp_u_f32 s[72:73], v70, v71")
        A("s_or_b64 vcc, vcc, s[68:69]\ns_or_b64 s[70:71], s[70:71], s[72:73]\ns_or_b64 vcc, vcc, s[70:71]")
        if "noqpoll" in self.dbg: A(f"s_branch {out}")
        A(f"s_cbranch_scc0 {out}")
        A(f"s_sleep {self.slp}")
        A(f"s_branch {lp}")
        A(f"{out}:")
        A("s_waitcnt vmcnt(0)")
        A("v_cvt_pk_bf16_f32 v4, v64, v65\nv_cvt_pk_bf16_f32 v5, v66, v67\nv_cvt_pk_bf16_f32 v6, v68, v69\nv_cvt_pk_bf16_f32 v7, v70, v71")
        A(f"v_lshlrev_b32 v1, 3, v0\nv_add_u32 v1, {QV}, v1\nv_mov_b32 v8, 1")
        A("ds_write_b64 v1, v[4:5]\nds_write_b64 v1, v[6:7] offset:512")
        self.flag_add(self.VFL, 8, F_Q)
        self.probe_mark("q", 8)
        self.stamp(4)
        A(f"v_and_b32 v1, 3, v0\nv_lshlrev_b32 v5, 4, v1\nv_add_u32 v5, {STL}, v5\nv_lshlrev_b32 v1, 3, v1")
        self.flag_wait(self.VFL, 4, F_ST, 4, slp=4)
        A("ds_read_b128 v[8:11], v5\nds_read_b128 v[12:15], v5 offset:64")
        A("s_waitcnt lgkmcnt(0)")
        A("v_max3_f32 v16, v8, v9, v10\nv_max_f32 v16, v16, v11")
        for k in range(4):
            A(f"v_sub_f32 v{8+k}, v{8+k}, v16")
        for k in range(4):
            A(f"v_mul_f32 v{8+k}, s59, v{8+k}")
        for k in range(4):
            A(f"v_exp_f32 v{8+k}, v{8+k}")
        A("v_mul_f32 v17, v8, v12\nv_fmac_f32 v17, v9, v13\nv_fmac_f32 v17, v10, v14\nv_fmac_f32 v17, v11, v15")
        A("s_mov_b64 exec, 15")
        A("buffer_store_dwordx2 v[16:17], v1, s[16:19], s64 offen sc1")
        A("s_mov_b64 exec, -1")
        self.stamp(5)

    def split_weights(self):
        A = self.A
        self.flag_wait(self.VFL, 4, F_MID, 1, slp=4)
        A("v_and_b32 v1, 7, v0\nv_lshlrev_b32 v1, 5, v1")
        self.cnt_wait("0", "v1")
        A(f"s_lshl_b32 s6, s4, 10\ns_add_u32 s6, s6, {ST_OFF}")
        lp, out = self.lab("spoll"), self.lab("sok")
        A("s_mov_b32 s7, 0")
        A(f"{lp}:")
        A("buffer_load_dwordx4 v[8:11], v2, s[16:19], s6 offen sc1")
        self.spin_guard(7, out)
        A("s_waitcnt vmcnt(0)")
        A("v_cmp_u_f32 vcc, v8, v9\nv_cmp_u_f32 s[78:79], v10, v11")
        A("s_or_b64 vcc, vcc, s[78:79]")
        A(f"s_cbranch_scc0 {out}")
        A(f"s_sleep {self.slp}")
        A(f"s_branch {lp}")
        A(f"{out}:")
        A("s_waitcnt vmcnt(0)")
        A("v_mov_b32 v4, v8\nv_mov_b32 v5, v10")
        self.allred("v_max_f32", [4, 5], [6, 7], rors=("x2", 4, 8))
        A("v_sub_f32 v8, v8, v4\nv_sub_f32 v10, v10, v5\nv_mul_f32 v8, s59, v8\nv_mul_f32 v10, s59, v10")
        A("v_exp_f32 v8, v8\nv_exp_f32 v10, v10")
        A("v_mul_f32 v9, v8, v9\nv_mul_f32 v11, v10, v11")
        self.allred("v_add_f32", [9, 11], [6, 7], rors=("x2", 4, 8))
        A("v_rcp_f32 v9, v9\nv_rcp_f32 v11, v11")
        A(f"v_lshlrev_b32 v5, 3, v0\nv_add_u32 v5, {WT}, v5\nv_mov_b32 v4, 1")
        A("v_mul_f32 v8, v8, v9\nv_mul_f32 v9, v10, v11")
        A("ds_write_b64 v5, v[8:9]")
        self.flag_add(self.VFL, 4, F_W)
        self.stamp(6)

    def cnt_wait(self, soff, voff):
        A = self.A
        lp, out = self.lab("cpoll"), self.lab("cok")
        A("s_mov_b32 s7, 0")
        if "noatomic" in self.dbg: A(f"s_branch {out}")
        A(f"{lp}:")
        A(f"buffer_load_dword v4, {voff}, s[48:51], {soff} offen sc1")
        self.spin_guard(7, out)
        A("s_waitcnt vmcnt(0)")
        A("v_cmp_gt_u32 vcc, 32, v4")
        A(f"s_cbranch_vccz {out}")
        A(f"s_sleep {self.slp}")
        A(f"s_branch {lp}")
        A(f"{out}:")
        A("s_waitcnt vmcnt(0)")

    def ln_scalars(self, mean, var, t):
        A = self.A
        A(f"v_cvt_pk_bf16_f32 v{t}, v{mean}, v{var}")
        A(f"v_lshlrev_b32 v{mean}, 16, v{t}\nv_and_b32 v{var}, s60, v{t}")
        A(f"v_add_f32 v{var}, {EPS}, v{var}")
        A(f"v_cvt_pk_bf16_f32 v{t}, v{var}, v{var}\nv_and_b32 v{var}, s60, v{t}")
        A(f"v_sqrt_f32 v{var}, v{var}")
        A(f"v_cvt_pk_bf16_f32 v{t}, v{var}, v{var}\nv_and_b32 v{var}, s60, v{t}")
        A(f"v_rcp_f32 v{var}, v{var}")

    def h123(self):
        A = self.A
        A("L_h123:")
        l2, l3, dn = self.lab("h2"), self.lab("h3"), self.lab("hd")
        A("v_mov_b32 v4, 0\nv_mov_b32 v5, 0\nv_mov_b32 v6, 0\nv_mov_b32 v7, 0")
        A(f"s_cmp_eq_u32 s3, 2\ns_cbranch_scc1 {l2}\ns_cmp_eq_u32 s3, 3\ns_cbranch_scc1 {l3}")
        self.probe_mark("t0", 4, invert=True)
        self.probe_mark("start", 8)
        A("v_mov_b32 v8, -1\nv_mov_b32 v9, -1\nv_mov_b32 v10, -1\nv_mov_b32 v11, -1")
        mark = len(self.L)
        A("buffer_store_dwordx4 v[8:11], v2, s[16:19], s66 offen sc1")
        A("buffer_store_dwordx4 v[8:11], v2, s[16:19], s66 offen offset:1024 sc1")
        A(f"s_lshl_b32 s7, s61, 11\ns_add_u32 s7, s7, {Z_OFF}\ns_cmp_lt_u32 s5, 7\ns_cselect_b32 s7, s7, 0x400000")
        A("buffer_store_dwordx4 v[8:11], v2, s[16:19], s7 offen sc1")
        A("buffer_store_dwordx4 v[8:11], v2, s[16:19], s7 offen offset:1024 sc1")
        A("s_mov_b64 exec, 3")
        A("buffer_store_dwordx4 v[8:11], v2, s[16:19], s64 offen sc1")
        A("s_mov_b64 exec, 0xffff")
        A("buffer_store_dwordx4 v[8:11], v2, s[16:19], s67 offen sc1")
        A("buffer_store_dwordx4 v[8:11], v2, s[16:19], s58 offen sc1")
        A("s_mov_b64 exec, -1")
        if "noclear" in self.dbg:
            self.L = self.L[:mark] + [x for x in self.L[mark:] if "buffer_store" not in x]
        if "clrpol" in self.dbg:
            self.L = self.L[:mark] + [x.replace(" sc1", " sc1 nt") for x in self.L[mark:]]
        A("v_mov_b32 v5, 1")
        A("s_barrier")
        A("s_waitcnt vmcnt(0)")
        A("s_mov_b64 exec, 1")
        if "noatomic" not in self.dbg: A("buffer_atomic_add v5, v4, s[48:51], s65 offen sc1")
        self.flag_add(self.VFL, 5, F_CLR)
        A(f"s_branch {dn}")
        A(f"{l2}:")
        A(f"ds_write_b128 v{self.VFL}, v[4:7]\nds_write_b128 v{self.VFL}, v[4:7] offset:16\nds_write_b128 v{self.VFL}, v[4:7] offset:32")
        A("s_waitcnt lgkmcnt(0)")
        A("s_barrier")
        if self.prefetch_code:
            A("s_getpc_b64 s[6:7]")
            A("L_pc_anchor:")
            A(f"s_sub_u32 s6, s6, L_pc_anchor-{KN}\ns_subb_u32 s7, s7, 0")
            A("s_lshl_b32 s68, s5, 10\nv_lshl_add_u32 v1, v0, 6, s68")
            A(f"v_min_u32 v4, L_code_end-{KN}-4, v1")
            A("s_mov_b64 exec, 0xffff")
            A(f"global_load_dword v8, v4, s[6:7]")
            A("s_mov_b64 exec, -1")
        A(f"s_branch {dn}")
        A(f"{l3}:")
        A(f"v_add_u32 v1, {ZR}, v2")
        A("ds_write_b128 v1, v[4:7]\nds_write_b128 v1, v[4:7] offset:512")
        A("s_barrier")
        A(f"{dn}:")
        A("s_waitcnt vmcnt(0) lgkmcnt(0)")
        if True:
            sk, lp = self.lab("gskip"), self.lab("gloop")
            A(f"s_cmp_ge_u32 s5, 7\ns_cbranch_scc1 {sk}")
            if "nog" in self.dbg:
                A("v_mov_b32 v5, 1")
                self.flag_add(self.VFL, 5, F_GL)
                A(f"s_branch {sk}")
            A("s_cmp_eq_u32 s3, 1\ns_cselect_b32 s68, s32, s36\ns_cselect_b32 s69, s33, s37")
            A("s_cmp_eq_u32 s3, 3\ns_cselect_b32 s68, s40, s68\ns_cselect_b32 s69, s41, s69")
            A("s_mov_b32 s70, 0x1c0000\ns_mov_b32 s71, 0x20000")
            A("s_mov_b32 s6, 57344\ns_cselect_b32 s72, 1024, s6")
            A("s_lshl_b32 s6, s61, 15\ns_lshl_b32 s7, s61, 6\ns_cmp_eq_u32 s3, 3\ns_cselect_b32 s73, s6, s7")
            A("s_lshl_b32 s74, s3, 15")
            A("s_movk_i32 s6, 3584")
            A("v_lshrrev_b32 v3, 2, v0\nv_mul_lo_u32 v3, v3, s6\nv_and_b32 v1, 3, v0\nv_lshl_add_u32 v3, v1, 4, v3")
            A("s_cmp_eq_u32 s3, 3\ns_cselect_b64 vcc, -1, 0")
            A("v_cndmask_b32 v3, v3, v2, vcc")
            if self.grot:
                A(f"s_and_b32 s78, s61, 1\ns_mul_i32 s78, s78, {self.grot}")
                A("s_mul_i32 s6, s78, s72\ns_add_u32 s73, s73, s6\ns_lshl_b32 s6, s78, 10\ns_add_u32 s74, s74, s6")
            A(f"s_mov_b32 s7, 32")
            A(f"{lp}:")
            A(f"s_waitcnt vmcnt({self.gpace-1})")
            A("s_mov_b32 m0, s74")
            A("s_add_u32 s74, s74, 1024")
            A(f"buffer_load_dwordx4 v3, s[68:71], s73 offen {self.gpol} lds")
            A("s_add_u32 s73, s73, s72")
            if self.grot:
                nw = self.lab("nowrap")
                A(f"s_add_u32 s78, s78, 1\ns_cmp_lg_u32 s78, 32\ns_cbranch_scc1 {nw}")
                A("s_lshl_b32 s6, s72, 5\ns_sub_u32 s73, s73, s6\ns_sub_u32 s74, s74, 0x8000")
                A(f"{nw}:")
            A(f"s_sub_u32 s7, s7, 1\ns_cmp_lg_u32 s7, 0\ns_cbranch_scc1 {lp}")
            A("v_mov_b32 v5, 1\ns_waitcnt vmcnt(0)")
            self.flag_add(self.VFL, 5, F_GL)
            A(f"{sk}:")

    def tail(self):
        A = self.A
        WOA, GB, WDA, P2, P1 = 16, 32, 96, 128, 192
        WTR, SUM, OB = 208, 224, 192
        vH1, vH2, vOVw, vOVr, vYs, vHVw, vHVr, vHVs, vHHw, vHHr, vZs, vH3, vFo, vFh, vX0, vX1, CS = range(228, 245)
        A("v_lshrrev_b32 v12, 4, v0\nv_bfe_u32 v13, v0, 2, 2\nv_and_b32 v14, 3, v0")
        A("v_lshl_add_u32 v15, v12, 3, v13")
        A(f"v_lshrrev_b32 v4, 3, v0\nv_lshlrev_b32 v4, 11, v4\nv_and_b32 v5, 7, v0\nv_lshl_add_u32 v{vH1}, v5, 4, v4")
        A(f"s_lshl_b32 s64, s4, 16\ns_lshl_b32 s6, s62, 9\ns_add_u32 s64, s64, s6\ns_lshl_b32 s6, s3, 7\ns_add_u32 s64, s64, s6\ns_add_u32 s64, s64, {OP_OFF}")
        A("s_add_u32 s65, s64, 0x4000\ns_add_u32 s66, s64, 0x8000\ns_add_u32 s67, s64, 0xc000")
        A(f"s_lshl_b32 s6, s3, 6\ns_add_u32 s6, s6, {OV}")
        A(f"v_lshlrev_b32 v4, 4, v12\nv_lshl_add_u32 v5, v5, 1, v4\nv_add_u32 v{vOVw}, s6, v5")
        A(f"v_add_u32 v{vOVr}, {OV}, v4\nv_mov_b32 v{vYs}, v4")
        A(f"s_lshl_b32 s58, s4, 2\ns_add_u32 s58, s58, s62\ns_lshl_b32 s58, s58, 11\ns_lshl_b32 s6, s63, 8\ns_add_u32 s58, s58, s6")
        A(f"s_lshl_b32 s6, s3, 6\ns_add_u32 s58, s58, s6\ns_add_u32 s58, s58, {Y_OFF}")
        A(f"v_lshrrev_b32 v4, 5, v0\nv_and_b32 v5, 31, v0")
        A(f"v_lshlrev_b32 v6, 11, v4\nv_lshl_add_u32 v{vH2}, v5, 4, v6")
        A(f"v_lshlrev_b32 v6, 3, v5\nv_lshl_add_u32 v6, v4, 2, v6\ns_lshl_b32 s6, s3, 8\nv_add_u32 v6, s6, v6")
        A(f"buffer_load_dword v7, v6, s[20:23], 0 offen")
        A(f"buffer_load_dword v1, v6, s[44:47], 0 offen")
        A(f"v_add_u32 v{vHVw}, {HV}, v6")
        A(f"v_lshlrev_b32 v4, 4, v12\nv_add_u32 v{vHVr}, {HV}, v4\nv_add_u32 v{vHVs}, {HV}, v2")
        A(f"v_and_b32 v5, 15, v0")
        A(f"s_lshl_b32 s6, s3, 4\ns_add_u32 s6, s6, {HH}\nv_lshl_add_u32 v{vHHw}, v5, 1, s6")
        A(f"v_lshl_add_u32 v6, v5, 6, v4\nv_mov_b32 v{vZs}, v6")
        A(f"v_add_u32 v6, {ZR+64}, v6\nv_cmp_gt_u32 vcc, 8, v5\nv_mov_b32 v{vHHr}, {ZR+16*64}\nv_cndmask_b32 v{vHHr}, v{vHHr}, v6, vcc")
        A(f"v_lshlrev_b32 v{vH3}, 11, v0")
        A(f"s_lshl_b32 s75, s4, 2\ns_add_u32 s75, s75, s5\ns_lshl_b32 s75, s75, 2\ns_add_u32 s75, s75, s3")
        A(f"s_lshl_b32 s6, s75, 3\nv_lshl_add_u32 v{vFo}, v12, 1, s6\nv_add_u32 v{vFh}, {HV}, v{vFo}")
        A("s_lshl_b32 s75, s75, 4")
        A(f"s_lshl_b32 s76, s61, 11\ns_lshl_b32 s6, s3, 9\ns_add_u32 s76, s76, s6\ns_add_u32 s76, s76, {Z_OFF}")
        A(f"s_add_u32 s77, s6, {Y_OFF}")
        A("s_waitcnt vmcnt(0) lgkmcnt(0)")
        A(f"v_lshlrev_b32 v{vX0}, 16, v7\nv_and_b32 v{vX1}, s60, v7")
        A("s_cmp_ge_u32 s5, 7\ns_cbranch_scc1 L_notg1")
        self.flag_wait(self.VFL, 4, F_GL, 3, slp=4)
        A(f"v_lshlrev_b32 v1, 6, v15\nv_and_b32 v4, 1, v14\nv_lshl_add_u32 v1, v4, 3, v1\nv_lshrrev_b32 v4, 1, v14\nv_lshl_add_u32 v1, v4, 15, v1")
        A(f"s_lshl_b32 s6, s3, 4\ns_add_u32 s6, s6, {WG}\nv_add_u32 v1, s6, v1")
        for half in range(4):
            for m in range(4 * half, 4 * half + 4):
                A(f"ds_read_b64_tr_b16 {vr(GB+4*m,2)}, v1 offset:{m*2048}")
                A(f"ds_read_b64_tr_b16 {vr(GB+4*m+2,2)}, v1 offset:{m*2048 + 256}")
            A("s_waitcnt lgkmcnt(0)")
        A(f"v_lshlrev_b32 v1, 10, v15\nv_lshl_add_u32 v1, v14, 3, v1\ns_lshl_b32 s6, s3, 8\ns_add_u32 s6, s6, {WD}\nv_add_u32 v1, s6, v1")
        for half in range(2):
            for c8 in range(4 * half, 4 * half + 4):
                A(f"ds_read_b64_tr_b16 {vr(WDA+4*c8,2)}, v1 offset:{c8*32}")
                A(f"ds_read_b64_tr_b16 {vr(WDA+4*c8+2,2)}, v1 offset:{c8*32 + 4096}")
            A("s_waitcnt lgkmcnt(0)")
        A("v_mov_b32 v4, 0x3f803f80\nv_mov_b32 v5, v4\nv_mov_b32 v6, v4\nv_mov_b32 v7, v4")
        for m in range(16):
            A(f"v_mfma_f32_16x16x32_bf16 v[8:11], v[4:7], {vr(GB+4*m,4)}, {'0' if m == 0 else 'v[8:11]'}")
        A(f"v_mov_b32 v{CS}, v8")
        A("L_notg1:")
        if self.stamps: self.stamp(15)
        A("s_cmp_lg_u32 s3, 0\ns_cbranch_scc1 L_nosw")
        self.split_weights()
        A("L_nosw:")
        A("v_lshrrev_b32 v4, 3, v0\nv_lshlrev_b32 v3, 13, v4\nv_and_b32 v4, 2, v4\nv_and_b32 v1, 7, v0\nv_xor_b32 v1, v1, v4\nv_lshl_add_u32 v3, v1, 4, v3")
        A("v_xor_b32 v8, 64, v3")
        A("s_lshl_b32 s68, s4, 19\ns_lshl_b32 s6, s62, 11\ns_add_u32 s68, s68, s6\ns_lshl_b32 s6, s63, 7\ns_add_u32 s68, s68, s6")
        A("s_and_b32 s6, s3, 1\ns_lshl_b32 s6, s6, 16\ns_add_u32 s68, s68, s6\ns_lshr_b32 s6, s3, 1\ns_lshl_b32 s6, s6, 10\ns_add_u32 s68, s68, s6")
        A(f"s_lshl_b32 s69, s3, 12\ns_add_u32 s69, s69, {WO}")
        A("v_lshrrev_b32 v4, 1, v13\nv_and_b32 v5, 1, v12\nv_lshl_add_u32 v4, v5, 1, v4\nv_xor_b32 v4, s3, v4")
        A("v_lshlrev_b32 v1, 7, v15\nv_lshl_add_u32 v1, v14, 3, v1\nv_lshl_add_u32 v1, v4, 5, v1")
        A(f"v_lshrrev_b32 v9, 3, v0\nv_lshlrev_b32 v9, 4, v9\nv_add_u32 v9, {WT}, v9")
        self.flag_wait(self.VFL, 4, F_A, self.acnt, slp=1)
        self.stamp(7)
        for kg in range(4):
            A(f"s_add_u32 m0, s69, {kg*1024}\ns_add_u32 s6, s68, {kg*128*1024}")
            A(f"buffer_load_dwordx4 {'v8' if kg & 1 else 'v3'}, s[28:31], s6 offen {self.wpol} lds")
        A("s_barrier")
        self.probe_mark("b3", 8)
        self.stamp(8)
        self.flag_wait(self.VFL, 4, F_W, 1, slp=1)
        for t in range(4):
            A(f"ds_read_b128 {vr(WTR+4*t,4)}, v9 offset:{t*128}")
        A("s_waitcnt vmcnt(0)")
        A("s_barrier")
        for m in range(4):
            A(f"ds_read_b64_tr_b16 {vr(WOA+4*m,2)}, v1 offset:{WO + m*4096}")
            A(f"ds_read_b64_tr_b16 {vr(WOA+4*m+2,2)}, v1 offset:{WO + m*4096 + 512}")

        def h2load(t):
            A(f"s_add_u32 s6, s77, {t*4096}")
            A(f"buffer_load_dwordx4 {vr(P2+4*t,4)}, v{vH2}, s[16:19], s6 offen sc1")

        A("s_cmp_ge_u32 s5, 7\ns_cbranch_scc1 L_notg2")
        for t in range(16):
            h2load(t)
        A("L_notg2:")
        for t in range(4):
            A(f"buffer_load_dwordx4 {vr(P1+4*t,4)}, v{vH1}, s[16:19], s{64+t} offen sc1")
        lp, out = self.lab("h1"), self.lab("h1ok")
        A("s_mov_b32 s7, 0")
        A("s_waitcnt lgkmcnt(0)")
        A(f"{lp}:")
        A("s_waitcnt vmcnt(0)")
        for t in range(4):
            for k in (0, 2):
                if t == 0:
                    A(f"v_pk_mul_f32 {vr(SUM+k,2)}, {vr(P1+k,2)}, {vr(WTR+k,2)}")
                else:
                    A(f"v_pk_fma_f32 {vr(SUM+k,2)}, {vr(P1+4*t+k,2)}, {vr(WTR+4*t+k,2)}, {vr(SUM+k,2)}")
        A(f"v_cmp_u_f32 vcc, v{SUM}, v{SUM+1}\nv_cmp_u_f32 s[78:79], v{SUM+2}, v{SUM+3}")
        A("s_or_b64 vcc, vcc, s[78:79]")
        A(f"s_cbranch_scc0 {out}")
        self.spin_guard(7, out)
        for t in range(4):
            sk = self.lab("h1s")
            A(f"v_cmp_u_f32 vcc, v{P1+4*t}, v{P1+4*t+1}\nv_cmp_u_f32 s[78:79], v{P1+4*t+2}, v{P1+4*t+3}")
            A("s_or_b64 exec, vcc, s[78:79]")
            A(f"s_cbranch_execz {sk}")
            A(f"buffer_load_dwordx4 {vr(P1+4*t,4)}, v{vH1}, s[16:19], s{64+t} offen sc1")
            A(f"{sk}:")
            A("s_mov_b64 exec, -1")
        A(f"s_branch {lp}")
        A(f"{out}:")
        self.stamp(9)
        A(f"v_permlane32_swap_b32 v{SUM}, v{SUM+2}\nv_permlane32_swap_b32 v{SUM+1}, v{SUM+3}")
        A(f"v_add_f32 v{SUM}, v{SUM}, v{SUM+2}\nv_add_f32 v{SUM+1}, v{SUM+1}, v{SUM+3}")
        A(f"v_permlane16_swap_b32 v{SUM}, v{SUM+1}")
        A(f"v_add_f32 v{SUM}, v{SUM}, v{SUM+1}")
        A(f"v_add_f32_dpp v{SUM}, v{SUM}, v{SUM} row_ror:8 row_mask:0xf bank_mask:0xf")
        A(f"v_cvt_pk_bf16_f32 v{SUM}, v{SUM}, v{SUM}")
        A(f"ds_write_b16 v{vOVw}, v{SUM}")
        A("s_waitcnt lgkmcnt(0)")
        A("s_barrier")
        for m in range(4):
            A(f"ds_read_b128 {vr(OB+4*m,4)}, v{vOVr} offset:{m*64}")
        for m in range(4):
            A(f"s_waitcnt lgkmcnt({3-m})")
            A(f"v_mfma_f32_16x16x32_bf16 v[8:11], {vr(WOA+4*m,4)}, {vr(OB+4*m,4)}, {'0' if m == 0 else 'v[8:11]'}")
        A("s_mov_b32 exec_lo, 0x00010001\ns_mov_b32 exec_hi, 0x00010001")
        A("s_cmp_ge_u32 s5, 7")
        A(f"buffer_store_dwordx4 v[8:11], v{vYs}, s[16:19], s58 offen sc1")
        A("s_mov_b64 exec, -1")
        if self.stamps:
            self.stamp(10)
            sk = self.lab("st")
            A(f"s_cmp_lt_u32 s5, 7\ns_cbranch_scc1 {sk}")
            A("s_cmp_lg_u32 s3, 0\ns_cbranch_scc1 L_end")
            self.stamp_store(1, 16)
            A("s_endpgm")
            A(f"{sk}:")
        else:
            A("s_cbranch_scc1 L_end")
        lp, out = self.lab("h2"), self.lab("h2ok")
        A("s_mov_b32 s7, 0\ns_mov_b32 s62, 0")
        A(f"v_mov_b32 v{SUM}, 0\nv_mov_b32 v{SUM+1}, 0\nv_mov_b32 v{SUM+2}, 0\nv_mov_b32 v{SUM+3}, 0")
        A(f"{lp}:")
        for gq in range(8):
            sk, re = self.lab("h2s"), self.lab("h2r")
            a, b = P2 + 8 * gq, P2 + 8 * gq + 4
            A(f"s_bitcmp1_b32 s62, {gq}\ns_cbranch_scc1 {sk}")
            A(f"v_pk_add_f32 v[4:5], {vr(a,2)}, {vr(b,2)}\nv_pk_add_f32 v[6:7], {vr(a+2,2)}, {vr(b+2,2)}")
            A("v_cmp_u_f32 vcc, v4, v5\nv_cmp_u_f32 s[78:79], v6, v7")
            A("s_or_b64 vcc, vcc, s[78:79]")
            A(f"s_cbranch_scc1 {re}")
            A(f"v_pk_add_f32 {vr(SUM,2)}, {vr(SUM,2)}, v[4:5]\nv_pk_add_f32 {vr(SUM+2,2)}, {vr(SUM+2,2)}, v[6:7]")
            A(f"s_bitset1_b32 s62, {gq}")
            A(f"s_branch {sk}")
            A(f"{re}:")
            h2load(2 * gq)
            h2load(2 * gq + 1)
            A(f"{sk}:")
        A(f"s_cmp_eq_u32 s62, 0xff\ns_cbranch_scc1 {out}")
        self.spin_guard(7, out)
        A("s_waitcnt vmcnt(0)")
        A(f"s_branch {lp}")
        A(f"{out}:")
        self.probe_mark("h2", 8)
        self.stamp(11)
        A(f"v_permlane32_swap_b32 v{SUM}, v{SUM+2}\nv_permlane32_swap_b32 v{SUM+1}, v{SUM+3}")
        A(f"v_add_f32 v{SUM}, v{SUM}, v{SUM+2}\nv_add_f32 v{SUM+1}, v{SUM+1}, v{SUM+3}")
        A(f"v_cvt_pk_bf16_f32 v4, v{SUM}, v{SUM+1}")
        A(f"v_lshlrev_b32 v5, 16, v4\nv_and_b32 v6, s60, v4")
        A(f"v_add_f32 v5, v{vX0}, v5\nv_add_f32 v6, v{vX1}, v6")
        A(f"v_cvt_pk_bf16_f32 v4, v5, v6")
        A(f"ds_write_b32 v{vHVw}, v4")
        A("s_waitcnt lgkmcnt(0)")
        A("s_barrier")
        A(f"ds_read_b128 v[4:7], v{vHVs}")
        for m in range(14):
            A(f"ds_read_b128 {vr(P2+4*m,4)}, v{vHVr} offset:{m*64}")
        T = 192
        st = []
        for k in range(4):
            st += [f"v_lshlrev_b32 v{T+2*k}, 16, v{4+k}", f"v_and_b32 v{T+2*k+1}, s60, v{4+k}"]
        st += [f"v_readfirstlane_b32 s6, v{T}"]
        st += [f"v_subrev_f32 v{T+k}, s6, v{T+k}" for k in range(7, -1, -1)]
        st += [f"v_add_f32 v{T+8}, v{T}, v{T+1}", f"v_mul_f32 v{T+9}, v{T}, v{T}"]
        for k in range(1, 8):
            if k >= 2:
                st += [f"v_add_f32 v{T+8}, v{T+8}, v{T+k}"]
            st += [f"v_fmac_f32 v{T+9}, v{T+k}, v{T+k}"]
        save = self.L
        self.L = []
        self.allred("v_add_f32", [T + 8, T + 9], [T + 10, T + 11])
        A(f"v_mul_f32 v{T+8}, {INV512}, v{T+8}\nv_mul_f32 v{T+9}, {INV512}, v{T+9}")
        A(f"v_fma_f32 v{T+9}, -v{T+8}, v{T+8}, v{T+9}\nv_add_f32 v{T+8}, s6, v{T+8}\nv_max_f32 v{T+9}, 0, v{T+9}")
        self.ln_scalars(T + 8, T + 9, T + 10)
        st += [x.strip() for x in self.L]
        self.L = save
        per = -(-len(st) // 16)
        for m in range(16):
            if m == 0:
                A("s_waitcnt lgkmcnt(13)")
            else:
                A(f"s_waitcnt lgkmcnt({15-m})")
            A(f"v_mfma_f32_16x16x32_bf16 v[8:11], {vr(P2+4*m,4)}, {vr(GB+4*m,4)}, {'0' if m == 0 else 'v[8:11]'}")
            if m == 0:
                for m2 in (14, 15):
                    A(f"ds_read_b128 {vr(P2+4*m2,4)}, v{vHVr} offset:{m2*64}")
            for x in st[m * per:(m + 1) * per]:
                A(x)
        A(f"ds_read_u16 v12, v{vFh}")
        A(f"v_fma_f32 v4, -v{T+8}, v{CS}, v8\nv_mul_f32 v4, v4, v{T+9}")
        A("v_cvt_pk_bf16_f32 v4, v4, v4\nv_and_b32 v4, s60, v4")
        A("v_mul_f32 v5, s59, v4\nv_exp_f32 v5, -v5")
        A("v_mov_b32_dpp v6, v4 row_ror:8 row_mask:0xf bank_mask:0xf")
        A("v_add_f32 v5, 1.0, v5\nv_rcp_f32 v5, v5")
        A("v_cvt_pk_bf16_f32 v5, v5, v5\nv_and_b32 v5, s60, v5")
        A("v_mul_f32 v5, v5, v6\nv_cvt_pk_bf16_f32 v5, v5, v5")
        A("s_mov_b64 exec, 0xff")
        A(f"ds_write_b16 v{vHHw}, v5")
        A("s_mov_b64 exec, -1")
        A("s_waitcnt lgkmcnt(0)")
        A("s_barrier")
        for c8 in range(8):
            A(f"ds_read_b128 {vr(P1+4*c8,4)}, v{vHHr} offset:{(7-c8)*64}")
        for c8 in range(8):
            A(f"s_waitcnt lgkmcnt({7-c8})")
            A(f"v_mfma_f32_16x16x32_bf16 v[8:11], {vr(WDA+4*c8,4)}, {vr(P1+4*c8,4)}, {'0' if c8 == 0 else 'v[8:11]'}")
        A("s_mov_b32 exec_lo, 0x00ff00ff\ns_mov_b32 exec_hi, 0x00ff00ff")
        A("s_cmp_ge_u32 s5, 4")
        A(f"buffer_store_dwordx4 v[8:11], v{vZs}, s[16:19], s76 offen sc1")
        A("s_mov_b64 exec, -1")
        if self.stamps:
            self.stamp(12)
            sk = self.lab("st")
            A(f"s_cmp_lt_u32 s5, 4\ns_cbranch_scc1 {sk}")
            A("s_cmp_lg_u32 s3, 0\ns_cbranch_scc1 L_end")
            self.stamp_store(1, 16)
            A("s_endpgm")
            A(f"{sk}:")
        else:
            A("s_cbranch_scc1 L_end")
        lp, out = self.lab("h3"), self.lab("h3ok")
        A("s_mov_b32 s7, 0")
        A("v_lshlrev_b32 v12, 16, v12")
        A(f"{lp}:")
        A(f"buffer_load_dwordx4 v[4:7], v{vH3}, s[52:55], s75 offen sc1")
        self.spin_guard(7, out)
        A("s_waitcnt vmcnt(0)")
        A("v_cmp_u_f32 vcc, v4, v5\nv_cmp_u_f32 s[78:79], v6, v7")
        A("s_or_b64 vcc, vcc, s[78:79]")
        A(f"s_cbranch_scc1 {lp}")
        A(f"{out}:")
        A("s_waitcnt vmcnt(0)")
        self.probe_mark("h3", 8)
        self.stamp(13)
        A("v_permlane32_swap_b32 v4, v6\nv_permlane32_swap_b32 v5, v7")
        A("v_add_f32 v4, v4, v6\nv_add_f32 v5, v5, v7")
        A("v_permlane16_swap_b32 v4, v5")
        A("v_add_f32 v4, v4, v5")
        for n in (8, 4, 2, 1):
            A(f"v_add_f32_dpp v4, v4, v4 row_ror:{n} row_mask:0xf bank_mask:0xf")
        A("v_cvt_pk_bf16_f32 v4, v4, v4\nv_and_b32 v4, s60, v4")
        A("v_add_f32 v4, v12, v4\nv_cvt_pk_bf16_f32 v4, v4, v4")
        if self.probe:
            lp = self.lab("pr")
            A("s_sleep 20\nv_mov_b32 v251, 0")
            A("buffer_load_dwordx2 v[248:249], v251, s[48:51], 0 offen offset:4 sc1\ns_waitcnt vmcnt(0)")
            A("v_readfirstlane_b32 s92, v248\nv_readfirstlane_b32 s93, v249\ns_not_b32 s92, s92")
            if self.probe == "t0": A("s_mov_b32 s93, s92")
            A(f"s_add_u32 s93, s93, {self.pticks}\ns_mov_b32 s7, 0")
            A(f"{lp}:\ns_memrealtime s[96:97]\ns_add_u32 s7, s7, 1\ns_cmp_gt_u32 s7, 100000\ns_cbranch_scc1 {lp}x\ns_waitcnt lgkmcnt(0)\ns_sub_u32 s6, s96, s93\ns_cmp_lt_i32 s6, 0\ns_cbranch_scc1 {lp}\n{lp}x:\ns_waitcnt lgkmcnt(0)")
        A("s_mov_b32 exec_lo, 0x00010001\ns_mov_b32 exec_hi, 0x00010001")
        A(f"buffer_store_short v4, v{vFo}, s[44:47], 0 offen {self.outpol}")
        if self.stamps:
            A("s_mov_b64 exec, -1")
            A("s_waitcnt vmcnt(0)")
            self.stamp(14)
            A("s_cmp_lg_u32 s3, 0\ns_cbranch_scc1 L_end")
            self.stamp_store(1, 16)

    def build(self):
        self.entry()
        self.streamer()
        self.helper()
        self.A("L_end:\ns_endpgm\nL_code_end:")
        body, nn = hazard.fix(self.L)
        head = open("cdna_kernels/" + KN[:-7] + ".s.ref").read().split("; Override launch")[0]
        out = head
        out += f"; @launch grid=(256,1,1) block=(512,1,1) lds={LDS_SIZE}\n"
        out += '.amdgcn_target "amdgcn-amd-amdhsa--gfx950"\n.text\n'
        out += f".globl {KN}\n.p2align 8\n.type {KN},@function\n{KN}:\n"
        out += "\n".join(body) + "\n"
        out += f""".section .rodata,"a"
.p2align 6
.amdhsa_kernel {KN}
  .amdhsa_next_free_vgpr 256
  .amdhsa_next_free_sgpr 102
  .amdhsa_accum_offset 256
  .amdhsa_group_segment_fixed_size 0
  .amdhsa_kernarg_size 96
  .amdhsa_user_sgpr_count 2
  .amdhsa_user_sgpr_kernarg_segment_ptr 1
  .amdhsa_system_sgpr_workgroup_id_x 1
.end_amdhsa_kernel
"""
        return out


def gen(**kw):
    return Gen(**kw).build()


if __name__ == "__main__":
    kw = eval("dict(" + (sys.argv[2] if len(sys.argv) > 2 else "") + ")")
    open(sys.argv[1], "w").write(gen(**kw))
```

```python
import sys
import hazard

KN = "sequential_preLN__gqa_block_cached__glu_gated_glu__decode_kernel"

Q_OFF = 0x0
ST_OFF = 0x2000
Y_OFF = 0x10000
Z_OFF = 0x20000
OP_OFF = 0x40000
QP_OFF = 0xC0000
WS_SIZE = 0xD0000
STAMP_OFF = 0x100000
NG = 56
WQ = 0
WO = 16384
WG = 32768
WU = 65536
WD = 98304
ACC = 131072
XN = ACC + 8192
QV = XN + 1024
HV = QV + 1024
ZR = HV + 1024
HH = ZR + 8 * 64
OV = ZR + 1536
STL = OV + 256
ML = STL + 128
FL = ML + 64
F_Q, F_ST, F_W, F_EARLY, F_MID, F_A, F_CLR, F_GL = 0, 4, 8, 12, 16, 20, 24, 28
WT = ML + 128
LDS_SIZE = ML + 128 + 512

LOG2E = "0x3fb8aa3b"
SCALE = "0x3db504f3"
EPS = "0x3727c5ac"
INV512 = "0x3b000000"
HIMASK = "0xffff0000"
SPIN_MAX = 100000


def vr(a, n=1):
    return f"v{a}" if n == 1 else f"v[{a}:{a+n-1}]"


def sr(a, n=1):
    return f"s{a}" if n == 1 else f"s[{a}:{a+n-1}]"


class Gen:
    def __init__(self, D=5, DN=None, DG=None, RING=48, NTN=68, NTG=52, pol="nt", wpol="nt", qpol=None, gpol=None,
                 stamps=0, gpace=2, grot=0, outpol="", pvrate=3, kbudget=3, prefetch_code=True, dbg=(), slp=8,
                 probe=None, ps=9, pticks=6000, n_early=28, mid_back=26, a_back=1, acnt=4, stdelay=3):
        self.L = []
        self.uid = 0
        self.RING, self.NTN, self.NTG, self.pol, self.wpol = RING, NTN, NTG, pol, wpol
        assert NTG + 3 * NTN == 256
        self.DN = tuple(DN) if DN else ((0, D),)
        self.DG = tuple(DG) if DG else self.DN
        self.qpol = wpol if qpol is None else qpol
        self.gpol = wpol if gpol is None else gpol
        self.stamps, self.gpace, self.grot, self.outpol = stamps, gpace, grot, outpol
        self.pvrate, self.kbudget, self.prefetch_code, self.dbg, self.slp = pvrate, kbudget, prefetch_code, dbg, slp
        self.probe = probe; self.ps = ps; self.pticks = pticks
        self.n_early, self.mid_back, self.a_back, self.acnt, self.stdelay = n_early, mid_back, a_back, acnt, stdelay

    def A(self, s):
        for l in s.split("\n"):
            l = l.strip()
            if not l:
                continue
            self.L.append(l if l.endswith(":") else "    " + l)

    def lab(self, p):
        self.uid += 1
        return f"L_{p}_{self.uid}"

    def stamp(self, k):
        if self.stamps:
            self.A(f"s_memrealtime s[98:99]\ns_waitcnt lgkmcnt(0)\ns_mov_b32 s{80+k}, s98")

    def stamp_store(self, role, n):
        if not self.stamps:
            return
        A = self.A
        A("s_mov_b64 exec, 1")
        A(f"s_lshl_b32 s6, s2, 9\ns_add_u32 s6, s6, {STAMP_OFF + role*64}")
        A("v_mov_b32 v1, 0")
        for k in range(n):
            A(f"v_mov_b32 v3, s{80+k}")
            A(f"buffer_store_dword v3, v1, s[16:19], s6 offen offset:{4*k}")
        A("s_mov_b64 exec, -1")

    def allred(self, op, regs, tmps, rors=(8, 4, 2, 1)):
        A = self.A
        for n in rors:
            for r in regs:
                if n == "x2":
                    A(f"{op}_dpp v{r}, v{r}, v{r} quad_perm:[2,3,0,1] row_mask:0xf bank_mask:0xf")
                else:
                    A(f"{op}_dpp v{r}, v{r}, v{r} row_ror:{n} row_mask:0xf bank_mask:0xf")
        for sw in ("v_permlane16_swap_b32", "v_permlane32_swap_b32"):
            for r, t in zip(regs, tmps):
                A(f"v_mov_b32 v{t}, v{r}")
            for r, t in zip(regs, tmps):
                A(f"{sw} v{r}, v{t}")
            for r, t in zip(regs, tmps):
                A(f"{op} v{r}, v{r}, v{t}")

    def flag_add(self, vaddr, vone, off):
        self.A(f"s_mov_b64 exec, 1\nds_add_u32 v{vaddr}, v{vone} offset:{off}\ns_mov_b64 exec, -1")

    def flag_wait(self, vaddr, vt, off, val, slp=2):
        lp, out = self.lab("fw"), self.lab("fwok")
        self.A("s_mov_b32 s7, 0")
        self.A(f"{lp}:")
        self.A(f"ds_read_b32 v{vt}, v{vaddr} offset:{off}")
        self.A(f"s_add_u32 s7, s7, 1\ns_cmp_gt_u32 s7, {SPIN_MAX*8}\ns_cbranch_scc1 {out}")
        self.A("s_waitcnt lgkmcnt(0)")
        self.A(f"v_cmp_le_u32 vcc, {val}, v{vt}")
        self.A(f"s_cbranch_vccnz {out}")
        self.A(f"s_sleep {slp}")
        self.A(f"s_branch {lp}")
        self.A(f"{out}:")
        self.A("s_waitcnt lgkmcnt(0)")

    def probe_mark(self, name, off, invert=False):
        if not self.probe or (name != "t0" and name != self.probe):
            return
        A = self.A
        sk = self.lab("pm")
        if name == "t0": A(f"s_cmp_lg_u32 s5, 0\ns_cbranch_scc1 {sk}")
        elif name in ("entry", "start", "sfirst", "sland", "hx"): A(f"s_cmp_lg_u32 s5, {self.ps}\ns_cbranch_scc1 {sk}")
        else: A(f"s_cmp_lg_u32 s3, 0\ns_cbranch_scc1 {sk}")
        if name in ("t0", "entry"): A("s_mov_b32 s96, s94")
        else: A("s_memrealtime s[96:97]\ns_waitcnt lgkmcnt(0)")
        if invert: A("s_not_b32 s96, s96")
        A(f"s_mov_b64 exec, 1\nv_mov_b32 v250, s96\nv_mov_b32 v251, 0")
        A(f"buffer_atomic_umax v250, v251, s[48:51], 0 offen offset:{off} sc1")
        A("s_mov_b64 exec, -1")
        A(f"{sk}:")

    def spin_guard(self, cnt, out):
        self.A(f"s_add_u32 s{cnt}, s{cnt}, 1\ns_cmp_gt_u32 s{cnt}, {SPIN_MAX if not [x for x in self.dbg if x.startswith('no')] else 12}\ns_cbranch_scc1 {out}")

    def entry(self):
        A = self.A
        if self.probe: A("s_memrealtime s[94:95]\ns_load_dwordx2 s[48:49], s[0:1], 80\ns_mov_b32 s50, 256\ns_mov_b32 s51, 0x20000")
        A("s_load_dwordx2 s[8:9], s[0:1], 8")
        A("s_load_dwordx2 s[12:13], s[0:1], 16")
        A("s_load_dwordx2 s[16:17], s[0:1], 88")
        A("s_cmp_ge_u32 s2, 256")
        A("s_cbranch_scc1 L_end")
        A("v_readfirstlane_b32 s3, v0")
        A("s_and_b32 s4, s2, 7")
        A("s_lshr_b32 s5, s2, 3")
        A("v_and_b32 v0, 63, v0")
        A("s_lshr_b32 s3, s3, 6")
        A(f"s_mov_b32 s18, {0x200000 if self.stamps else WS_SIZE}")
        A("s_mov_b32 s19, 0x20000")
        A("s_cmp_ge_u32 s3, 4")
        A("s_cbranch_scc1 L_helper")

    def streamer(self):
        A = self.A
        A("s_mov_b32 s10, 0x4000000\ns_mov_b32 s11, 0x20000\ns_mov_b32 s14, 0x4000000\ns_mov_b32 s15, 0x20000")
        A("v_bfe_u32 v1, v0, 2, 2\nv_lshlrev_b32 v1, 8, v1\nv_and_b32 v3, 3, v0\nv_lshl_add_u32 v1, v3, 4, v1")
        A("v_lshrrev_b32 v3, 4, v0\nv_lshl_add_u32 v1, v3, 6, v1\nv_lshlrev_b32 v2, 4, v0")
        A("s_lshl_b32 s56, s4, 23\ns_lshl_b32 s57, s3, 12\ns_add_u32 s56, s56, s57")
        two = self.DG != self.DN or self.NTG != self.NTN
        if two:
            A("s_cmp_lt_u32 s5, 8\ns_cbranch_scc1 L_stream_g")
        A(f"s_mul_i32 s57, s5, {self.NTN*4096}\ns_add_u32 s56, s56, s57\ns_sub_u32 s56, s56, {8*(self.NTN-self.NTG)*4096}")
        self.stream_body(self.DN, self.NTN)
        if two:
            A("L_stream_g:")
            A(f"s_mul_i32 s57, s5, {self.NTG*4096}\ns_add_u32 s56, s56, s57")
            self.stream_body(self.DG, self.NTG)

    def stream_body(self, sched, NT):
        A = self.A
        RING = self.RING
        R0 = 256 - 4 * RING
        assert R0 >= 64
        NB = -(-NT // 4)
        rem = NT % 4
        NL = 2 * NT
        S0, VFL, VONE, VFG, D0, X0, X1, VM, VL, VF, VT, VT2, VRD, M4 = 8, 25, 26, 27, 28, 44, 45, 46, 47, 48, 49, 50, 51, 52
        ACC0, ACC1 = 56, 60
        AB, TLO, THI = 28, 36, 37
        assert NB <= 17
        slot = lambda n: R0 + 4 * (n % RING)
        A("s_mov_b32 s57, s56")
        if rem:
            A(f"s_mul_i32 s62, s3, {(4-rem)*1024}\ns_sub_u32 s62, 16384, s62")
        A("s_waitcnt lgkmcnt(0)")

        def depth(n):
            d = sched[0][1]
            for n0, dd in sched:
                if n >= (n0 if n0 >= 0 else NL + n0):
                    d = dd
            return d
        st = {"landed": -1}
        self.probe_mark("sfirst", 8)
        self.stamp(0)

        def load(n):
            d = depth(n)
            if n - d > st["landed"]:
                A(f"s_waitcnt vmcnt({d-1})")
                st["landed"] = n - d
            if n == depth(0): self.probe_mark("sland", 8)
            t = n % NT
            j = t % 4
            va, srd, so = ("v1", "s[8:11]", "s56") if n < NT else ("v2", "s[12:15]", "s57")
            A(f"buffer_load_dwordx4 {vr(slot(n),4)}, {va}, {srd}, {so} offen offset:{j*1024} {self.pol}")
            if j == 3 and t + 1 < NT:
                A(f"s_add_u32 {so}, {so}, {'s62' if (rem and t + 1 == 4*(NB-1)) else 16384}")
            if n == depth(0) - 1:
                A(f"v_mov_b32 v{VFL}, {FL}\nv_mov_b32 v{VONE}, 1")
                A(f"s_mov_b32 s58, {SCALE}\ns_mov_b32 s59, {LOG2E}\ns_mov_b32 s60, {HIMASK}")
                A(f"v_and_b32 v3, 3, v0\nv_lshlrev_b32 v3, 8, v3\nv_bfe_u32 v4, v0, 2, 2\nv_lshl_add_u32 v3, v4, 4, v3")
                A(f"v_lshrrev_b32 v4, 4, v0\nv_lshl_add_u32 v3, v4, 6, v3\nv_add_u32 v3, {QV}, v3")
                A("s_barrier")
            if n == self.n_early:
                self.flag_add(VFL, VONE, F_EARLY)
            if n == NL - self.mid_back:
                self.flag_add(VFL, VONE, F_MID)
            if n == NL - self.a_back:
                self.flag_add(VFL, VONE, F_A)

        def flagged_read(off, val, read):
            lp, out = self.lab("sf"), self.lab("sfok")
            A("s_mov_b32 s7, 0")
            A(f"{lp}:")
            A(f"ds_read_b32 v{VFG}, v{VFL} offset:{off}")
            A(read)
            A(f"s_add_u32 s7, s7, 1\ns_cmp_gt_u32 s7, {SPIN_MAX*8}\ns_cbranch_scc1 {out}")
            A("s_waitcnt lgkmcnt(0)")
            A(f"v_cmp_gt_u32 vcc, {val}, v{VFG}")
            A(f"s_cbranch_vccnz {lp}")
            A(f"{out}:")
            A("s_waitcnt lgkmcnt(0)")

        def qsync():
            if self.stamps > 1: self.stamp(1)
            flagged_read(F_Q, 1, "ds_read_b128 v[4:7], v3")
            if self.stamps > 1: self.stamp(2)

        def qk(i):
            nt = rem if (rem and i == NB - 1) else 4
            for j in range(nt):
                A(f"v_mfma_f32_16x16x32_bf16 {vr(D0+4*j,4)}, {vr(slot(4*i+j),4)}, v[4:7], 0")
            d = lambda j, b: D0 + 4 * j + b
            dp = lambda dst, s0, s1, ror, bm: A(f"v_add_f32_dpp v{dst}, v{s0}, v{s1} row_ror:{ror} row_mask:0xf bank_mask:{bm:#x}")
            dp(X0, d(0, 1), d(0, 0), 12, 1)
            dp(X1, d(2, 1), d(2, 0), 12, 1)
            dp(X0, d(1, 0), d(1, 1), 4, 2)
            dp(X1, d(3, 0), d(3, 1), 4, 2)
            dp(X0, d(0, 3), d(0, 2), 12, 4)
            dp(X1, d(2, 3), d(2, 2), 12, 4)
            dp(X0, d(1, 2), d(1, 3), 4, 8)
            dp(X1, d(3, 2), d(3, 3), 4, 8)
            dp(S0 + i, X0, X0, 8, 3)
            dp(S0 + i, X1, X1, 8, 12)
            if nt < 4:
                A(f"v_mov_b32 v{VT}, 0xff800000")
                A(f"v_mov_b32_dpp v{S0+i}, v{VT} quad_perm:[0,1,2,3] row_mask:0xf bank_mask:{(0xf << nt) & 0xf:#x}")

        def rnd(i):
            a, b = S0 + i, S0 + min(i + 1, NB - 1)
            A(f"v_cvt_pk_bf16_f32 v{VT}, v{a}, v{b}")
            if a != b: A(f"v_lshlrev_b32 v{a}, 16, v{VT}")
            A(f"v_and_b32 v{b}, s60, v{VT}")
            if a != b: A(f"v_mul_f32 v{a}, s58, v{a}")
            A(f"v_mul_f32 v{b}, s58, v{b}")
            A(f"v_cvt_pk_bf16_f32 v{VT}, v{a}, v{b}")
            if a != b: A(f"v_lshlrev_b32 v{a}, 16, v{VT}")
            A(f"v_and_b32 v{b}, s60, v{VT}")
            if i == 0:
                A(f"v_max_f32 v{VM}, v{a}, v{b}")
            else:
                A(f"v_max3_f32 v{VM}, v{VM}, v{a}, v{b}")

        def sm_max():
            self.allred("v_max_f32", [VM], [VT], rors=(4, 8))
            A(f"v_mul_f32 v{VT2}, s59, v{VM}")

        def sm_exp(lo, hi):
            for i in range(lo, hi):
                A(f"v_fma_f32 v{S0+i}, v{S0+i}, s59, -v{VT2}")
            for i in range(lo, hi):
                A(f"v_exp_f32 v{S0+i}, v{S0+i}")
            for i in range(lo, hi):
                if i == 1:
                    A(f"v_add_f32 v{VL}, v{S0}, v{S0+1}")
                elif i > 1:
                    A(f"v_add_f32 v{VL}, v{VL}, v{S0+i}")

        def sm_sum():
            self.allred("v_add_f32", [VL], [VT], rors=(4, 8))
            A(f"v_and_b32 v3, 3, v0\nv_lshlrev_b32 v3, 4, v3\nv_add_u32 v3, {STL}, v3")
            A(f"s_lshl_b32 s6, s3, 2\nv_add_u32 v4, s6, v3")
            A("s_mov_b64 exec, 15")
            A(f"ds_write_b32 v4, v{VM}\nds_write_b32 v4, v{VL} offset:64")
            self.flag_add(VFL, VONE, F_ST)
            if self.stamps > 1: self.stamp(3)

        def pv_setup():
            for r in list(range(AB, AB + 8)) + list(range(ACC0, ACC0 + 8)):
                A(f"v_mov_b32 v{r}, 0")
            A(f"s_lshl_b32 s6, s3, 10\ns_add_u32 s6, s6, {ACC}\nv_add_u32 v{VRD}, s6, v2")
            A(f"s_lshl_b32 s61, s4, 16\ns_lshl_b32 s7, s5, 11\ns_add_u32 s61, s61, s7\ns_lshl_b32 s7, s3, 10\ns_add_u32 s61, s61, s7\ns_add_u32 s61, s61, {OP_OFF}")

        def msync():
            if self.stamps > 1: self.stamp(4)
            flagged_read(F_ST, 4, f"ds_read_b128 {vr(M4,4)}, v3")
            if self.stamps > 1: self.stamp(5)
            A(f"v_max3_f32 v{VF}, v{M4}, v{M4+1}, v{M4+2}\nv_max_f32 v{VF}, v{VF}, v{M4+3}")
            A(f"v_sub_f32 v{VF}, v{VM}, v{VF}\nv_mul_f32 v{VF}, s59, v{VF}\nv_exp_f32 v{VF}, v{VF}")
            A(f"s_lshl_b32 s6, s3, 11\ns_add_u32 s6, s6, {ACC}\nv_add_u32 v3, s6, v2")

        def tcalc(i):
            A(f"v_mul_f32 v{VT}, v{S0+i}, v{VF}")
            A(f"v_cvt_pk_bf16_f32 v{TLO}, v{VT}, 0\nv_cvt_pk_bf16_f32 v{THI}, 0, v{VT}")

        def mv(dst, src, dbank, j):
            rot = 4 * ((dbank - j) & 3)
            ctl = f"row_ror:{rot}" if rot else "quad_perm:[0,1,2,3]"
            A(f"v_mov_b32_dpp v{dst}, v{src} {ctl} row_mask:0xf bank_mask:{1<<dbank:#x}")

        abuf = lambda t: AB + 2 * (t % 4)

        def prep(ts):
            for t in ts:
                mv(abuf(t), TLO, 0, t % 4)
                mv(abuf(t) + 1, TLO, 2, t % 4)
            for t in ts:
                mv(abuf(t), THI, 1, t % 4)
                mv(abuf(t) + 1, THI, 3, t % 4)

        def pv(t):
            s = slot(NT + t)
            A(f"v_mfma_f32_16x16x16_bf16 {vr(ACC0,4)}, {vr(abuf(t),2)}, {vr(s,2)}, {vr(ACC0,4)}")
            A(f"v_mfma_f32_16x16x16_bf16 {vr(ACC1,4)}, {vr(abuf(t),2)}, {vr(s+2,2)}, {vr(ACC1,4)}")

        KB = float(self.kbudget)
        items = [(RING - 1 - depth(RING - 1), qsync, 0.5, -1, 0)]
        for i in range(NB):
            last = min(4 * i + 3, NT - 1)
            items.append((last, (lambda i=i: qk(i)), 2, last, 0))
            if i % 2 == 1 or i == NB - 1:
                items.append((-1, (lambda i=i: rnd(i - (i % 2))), 0.5, -1, 0))
        h = NB // 2
        items += [(-1, sm_max, 1.5, -1, 0), (-1, lambda: sm_exp(0, h), 2, -1, 0), (-1, lambda: sm_exp(h, NB), 2, -1, 0),
                  (-1, sm_sum, 2, -1, 0), (-1, pv_setup, 2, -1, 0), (-1, msync, 1, -1, self.stdelay)]
        for i in range(NB):
            items.append((-1, (lambda i=i: tcalc(i)), 0, -1, 0))
            for u in (2 * i, 2 * i + 1):
                ts = [t for t in (2 * u, 2 * u + 1) if t < NT]
                if not ts: continue
                items.append((-1, (lambda ts=ts: prep(ts)), 0, -1, 0))
                for t in ts:
                    items.append((NT + t, (lambda t=t: pv(t)), KB / self.pvrate, NT + t, 0))
        pos = 0
        freed = -1
        lastn = 0
        for n in range(NL):
            while n - RING > freed:
                need, emit, cost, fr, dl = items[pos]
                assert need <= st["landed"], (n, need)
                emit(); pos += 1; freed = max(freed, fr); lastn = n
            load(n)
            budget = KB
            while pos < len(items) and items[pos][0] <= st["landed"] and (budget > 0 or items[pos][2] == 0) and n >= lastn + items[pos][4]:
                need, emit, cost, fr, dl = items[pos]
                emit(); pos += 1; budget -= cost; freed = max(freed, fr); lastn = n
        while pos < len(items):
            need, emit, cost, fr, dl = items[pos]
            if need > st["landed"]:
                A(f"s_waitcnt vmcnt({NL-1-need})")
                st["landed"] = need
            emit(); pos += 1
        ex = self.lab("sexit")
        A("s_cmp_ge_u32 s3, 2")
        A(f"ds_write_b128 v3, {vr(ACC0,4)}\nds_write_b128 v3, {vr(ACC1,4)} offset:1024")
        A("s_waitcnt lgkmcnt(0)")
        A("s_barrier")
        A(f"s_cbranch_scc1 {ex}")
        for sw in range(4):
            A(f"ds_read_b128 {vr(8+4*sw,4)}, v{VRD} offset:{sw*2048}")
        A("s_waitcnt lgkmcnt(2)")
        A("v_pk_add_f32 v[8:9], v[8:9], v[12:13]\nv_pk_add_f32 v[10:11], v[10:11], v[14:15]")
        A("s_waitcnt lgkmcnt(0)")
        A("v_pk_add_f32 v[16:17], v[16:17], v[20:21]\nv_pk_add_f32 v[18:19], v[18:19], v[22:23]")
        A("v_pk_add_f32 v[8:9], v[8:9], v[16:17]\nv_pk_add_f32 v[10:11], v[10:11], v[18:19]")
        A("buffer_store_dwordx4 v[8:11], v2, s[16:19], s61 offen sc1")
        A(f"{ex}:")
        if self.stamps:
            self.stamp(6)
            A("s_cmp_lg_u32 s3, 0\ns_cbranch_scc1 L_end")
            self.stamp_store(0, 7)
        A("s_endpgm")

    def helper(self):
        A = self.A
        wp = self.wpol
        A("L_helper:")
        A("s_load_dwordx2 s[20:21], s[0:1], 0")
        A("s_load_dwordx2 s[24:25], s[0:1], 24")
        A("s_load_dwordx2 s[48:49], s[0:1], 80")
        A("s_load_dwordx2 s[28:29], s[0:1], 32")
        A("s_sub_u32 s3, s3, 4")
        A("s_mov_b32 s22, 1024\ns_mov_b32 s23, 0x20000\ns_mov_b32 s26, 0x400000\ns_mov_b32 s27, 0x20000")
        A("s_mov_b32 s50, 256\ns_mov_b32 s51, 0x20000\ns_mov_b32 s30, 0x400000\ns_mov_b32 s31, 0x20000")
        A("v_lshlrev_b32 v2, 4, v0")
        A(f"s_mov_b32 s59, {LOG2E}\ns_mov_b32 s60, {HIMASK}")
        A("s_mul_i32 s61, s4, 7\ns_add_u32 s61, s61, s5")
        A("s_lshr_b32 s62, s5, 3\ns_and_b32 s63, s5, 7")
        A("s_waitcnt lgkmcnt(0)")
        A("s_load_dwordx2 s[32:33], s[0:1], 48")
        A("s_load_dwordx2 s[36:37], s[0:1], 56")
        A("s_load_dwordx2 s[40:41], s[0:1], 64")
        A("s_load_dwordx2 s[44:45], s[0:1], 72")
        A("s_mov_b32 s34, 0x1c0000\ns_mov_b32 s35, 0x20000\ns_mov_b32 s38, 0x1c0000\ns_mov_b32 s39, 0x20000")
        A("s_mov_b32 s42, 0x1c0000\ns_mov_b32 s43, 0x20000\ns_mov_b32 s46, 1024\ns_mov_b32 s47, 0x20000")
        A(f"s_add_u32 s52, s16, {Z_OFF}\ns_addc_u32 s53, s17, 0\ns_mov_b32 s54, {NG*2048}\ns_mov_b32 s55, 0x20000")
        A(f"s_lshl_b32 s6, s4, 5\ns_add_u32 s6, s6, s5\ns_lshl_b32 s64, s6, 5\ns_add_u32 s64, s64, {ST_OFF}")
        A(f"s_lshl_b32 s66, s6, 11\ns_add_u32 s66, s66, {OP_OFF}")
        A(f"s_lshl_b32 s7, s4, 2\ns_add_u32 s7, s7, s62\ns_lshl_b32 s7, s7, 11\ns_lshl_b32 s6, s63, 8\ns_add_u32 s58, s7, s6")
        A(f"s_add_u32 s67, s58, {Y_OFF}\ns_add_u32 s58, s58, {QP_OFF}\ns_lshl_b32 s65, s4, 5")
        self.VFL = 245
        A(f"v_mov_b32 v{self.VFL}, {FL}")
        A("s_cmp_lg_u32 s3, 0")
        A("s_cbranch_scc1 L_h123")
        self.h0()
        A("s_branch L_hjoin")
        self.h123()
        A("L_hjoin:")
        self.tail()

    def h0(self):
        A = self.A
        self.stamp(0)
        A("buffer_load_dwordx4 v[4:7], v2, s[20:23], 0 offen")
        A("v_lshrrev_b32 v3, 3, v0\nv_lshlrev_b32 v3, 13, v3\nv_and_b32 v1, 7, v0\nv_lshl_add_u32 v3, v1, 4, v3")
        A("s_lshl_b32 s6, s62, 20\ns_lshl_b32 s7, s4, 10\ns_add_u32 s6, s6, s7\ns_lshl_b32 s7, s63, 7\ns_add_u32 s6, s6, s7")
        for t in range(16):
            A(f"s_mov_b32 m0, {WQ + t*1024}")
            if "nowq" not in self.dbg: A(f"buffer_load_dwordx4 v3, s[24:27], s6 offen {self.qpol} lds")
            if t < 15:
                A("s_add_u32 s6, s6, 0x10000")
            if t == 3:
                A("s_barrier")
        A("s_waitcnt vmcnt(16)" if "nowq" not in self.dbg else "s_waitcnt vmcnt(0)")
        self.probe_mark("hx", 8)
        for k in range(4):
            A(f"v_lshlrev_b32 v{12+2*k}, 16, v{4+k}\nv_and_b32 v{13+2*k}, s60, v{4+k}")
        A("v_add_f32 v20, v12, v13\nv_add_f32 v21, v14, v15\nv_add_f32 v22, v16, v17\nv_add_f32 v23, v18, v19")
        A("v_add_f32 v20, v20, v21\nv_add_f32 v22, v22, v23\nv_add_f32 v20, v20, v22")
        self.allred("v_add_f32", [20], [21])
        A(f"v_mul_f32 v20, {INV512}, v20")
        for k in range(8):
            A(f"v_sub_f32 v{24+k}, v{12+k}, v20")
        A("v_mul_f32 v22, v24, v24")
        for k in range(1, 8):
            A(f"v_fmac_f32 v22, v{24+k}, v{24+k}")
        self.allred("v_add_f32", [22], [21])
        A(f"v_mul_f32 v22, {INV512}, v22")
        self.ln_scalars(20, 22, 21)
        for k in range(4):
            a, b = 12 + 2 * k, 13 + 2 * k
            A(f"v_sub_f32 v{a}, v{a}, v20\nv_sub_f32 v{b}, v{b}, v20")
            A(f"v_cvt_pk_bf16_f32 v21, v{a}, v{b}")
            A(f"v_lshlrev_b32 v{a}, 16, v21\nv_and_b32 v{b}, s60, v21")
            A(f"v_mul_f32 v{a}, v{a}, v22\nv_mul_f32 v{b}, v{b}, v22")
            A(f"v_cvt_pk_bf16_f32 v{4+k}, v{a}, v{b}")
        A(f"v_add_u32 v1, {XN}, v2")
        A("ds_write_b128 v1, v[4:7]")
        A("v_lshrrev_b32 v12, 4, v0\nv_bfe_u32 v13, v0, 2, 2\nv_and_b32 v14, 3, v0")
        A("v_lshl_add_u32 v15, v12, 3, v13\nv_lshlrev_b32 v15, 7, v15\nv_lshl_add_u32 v15, v14, 3, v15")
        A(f"s_lshl_b32 s6, s62, 8\ns_add_u32 s6, s6, {XN}\nv_lshlrev_b32 v17, 4, v12\nv_add_u32 v16, s6, v17")
        A("s_waitcnt lgkmcnt(0)")
        for m in range(4):
            A(f"ds_read_b128 {vr(128+4*m,4)}, v16 offset:{m*64}")
        A("s_waitcnt vmcnt(0)")
        self.stamp(1)
        for m in range(4):
            base = 64 + 16 * m
            for ct in range(4):
                A(f"ds_read_b64_tr_b16 {vr(base+4*ct,2)}, v15 offset:{WQ + m*4096 + ct*32}")
                A(f"ds_read_b64_tr_b16 {vr(base+4*ct+2,2)}, v15 offset:{WQ + m*4096 + ct*32 + 512}")
            A("s_waitcnt lgkmcnt(0)")
            for ct in range(4):
                c = "0" if m == 0 else vr(32 + 4 * ct, 4)
                A(f"v_mfma_f32_16x16x32_bf16 {vr(32+4*ct,4)}, {vr(base+4*ct,4)}, {vr(128+4*m,4)}, {c}")
        self.flag_wait(self.VFL, 4, F_CLR, 1, slp=1)
        A("s_mov_b32 exec_lo, 0x00010001\ns_mov_b32 exec_hi, 0x00010001")
        for ct in range(4):
            A(f"buffer_store_dwordx4 {vr(32+4*ct,4)}, v17, s[16:19], s58 offen offset:{ct*64} sc1")
        A("s_mov_b64 exec, -1")
        self.stamp(2)
        A("v_mov_b32 v1, 0")
        self.flag_wait(self.VFL, 4, F_EARLY, 1)
        self.cnt_wait("s65", "v1")
        self.stamp(3)
        A(f"s_lshl_b32 s6, s4, 13\ns_add_u32 s6, s6, {QP_OFF}\ns_add_u32 s66, s6, 4096")
        lp, out = self.lab("qpoll"), self.lab("qok")
        A("s_mov_b32 s7, 0")
        A(f"{lp}:")
        for rb in range(4):
            for hf in range(2):
                A(f"buffer_load_dwordx4 {vr(64+8*rb+4*hf,4)}, v2, s[16:19], {'s6' if rb < 2 else 's66'} offen offset:{(rb&1)*2048+hf*1024} sc1")
        self.spin_guard(7, out)
        A("s_waitcnt vmcnt(0)")
        for k in range(0, 8, 2):
            A(f"v_pk_add_f32 {vr(64+k,2)}, {vr(64+k,2)}, {vr(72+k,2)}\nv_pk_add_f32 {vr(80+k,2)}, {vr(80+k,2)}, {vr(88+k,2)}")
        for k in range(0, 8, 2):
            A(f"v_pk_add_f32 {vr(64+k,2)}, {vr(64+k,2)}, {vr(80+k,2)}")
        A("v_cmp_u_f32 vcc, v64, v65\nv_cmp_u_f32 s[68:69], v66, v67\nv_cmp_u_f32 s[70:71], v68, v69\nv_cmp_u_f32 s[72:73], v70, v71")
        A("s_or_b64 vcc, vcc, s[68:69]\ns_or_b64 s[70:71], s[70:71], s[72:73]\ns_or_b64 vcc, vcc, s[70:71]")
        if "noqpoll" in self.dbg: A(f"s_branch {out}")
        A(f"s_cbranch_scc0 {out}")
        A(f"s_sleep {self.slp}")
        A(f"s_branch {lp}")
        A(f"{out}:")
        A("s_waitcnt vmcnt(0)")
        A("v_cvt_pk_bf16_f32 v4, v64, v65\nv_cvt_pk_bf16_f32 v5, v66, v67\nv_cvt_pk_bf16_f32 v6, v68, v69\nv_cvt_pk_bf16_f32 v7, v70, v71")
        A(f"v_lshlrev_b32 v1, 3, v0\nv_add_u32 v1, {QV}, v1\nv_mov_b32 v8, 1")
        A("ds_write_b64 v1, v[4:5]\nds_write_b64 v1, v[6:7] offset:512")
        self.flag_add(self.VFL, 8, F_Q)
        self.probe_mark("q", 8)
        self.stamp(4)
        A(f"v_and_b32 v1, 3, v0\nv_lshlrev_b32 v5, 4, v1\nv_add_u32 v5, {STL}, v5\nv_lshlrev_b32 v1, 3, v1")
        self.flag_wait(self.VFL, 4, F_ST, 4, slp=4)
        A("ds_read_b128 v[8:11], v5\nds_read_b128 v[12:15], v5 offset:64")
        A("s_waitcnt lgkmcnt(0)")
        A("v_max3_f32 v16, v8, v9, v10\nv_max_f32 v16, v16, v11")
        for k in range(4):
            A(f"v_sub_f32 v{8+k}, v{8+k}, v16")
        for k in range(4):
            A(f"v_mul_f32 v{8+k}, s59, v{8+k}")
        for k in range(4):
            A(f"v_exp_f32 v{8+k}, v{8+k}")
        A("v_mul_f32 v17, v8, v12\nv_fmac_f32 v17, v9, v13\nv_fmac_f32 v17, v10, v14\nv_fmac_f32 v17, v11, v15")
        A("s_mov_b64 exec, 15")
        A("buffer_store_dwordx2 v[16:17], v1, s[16:19], s64 offen sc1")
        A("s_mov_b64 exec, -1")
        self.stamp(5)

    def split_weights(self):
        A = self.A
        self.flag_wait(self.VFL, 4, F_MID, 1, slp=4)
        A("v_and_b32 v1, 7, v0\nv_lshlrev_b32 v1, 5, v1")
        self.cnt_wait("0", "v1")
        A(f"s_lshl_b32 s6, s4, 10\ns_add_u32 s6, s6, {ST_OFF}")
        lp, out = self.lab("spoll"), self.lab("sok")
        A("s_mov_b32 s7, 0")
        A(f"{lp}:")
        A("buffer_load_dwordx4 v[8:11], v2, s[16:19], s6 offen sc1")
        self.spin_guard(7, out)
        A("s_waitcnt vmcnt(0)")
        A("v_cmp_u_f32 vcc, v8, v9\nv_cmp_u_f32 s[78:79], v10, v11")
        A("s_or_b64 vcc, vcc, s[78:79]")
        A(f"s_cbranch_scc0 {out}")
        A(f"s_sleep {self.slp}")
        A(f"s_branch {lp}")
        A(f"{out}:")
        A("s_waitcnt vmcnt(0)")
        A("v_mov_b32 v4, v8\nv_mov_b32 v5, v10")
        self.allred("v_max_f32", [4, 5], [6, 7], rors=("x2", 4, 8))
        A("v_sub_f32 v8, v8, v4\nv_sub_f32 v10, v10, v5\nv_mul_f32 v8, s59, v8\nv_mul_f32 v10, s59, v10")
        A("v_exp_f32 v8, v8\nv_exp_f32 v10, v10")
        A("v_mul_f32 v9, v8, v9\nv_mul_f32 v11, v10, v11")
        self.allred("v_add_f32", [9, 11], [6, 7], rors=("x2", 4, 8))
        A("v_rcp_f32 v9, v9\nv_rcp_f32 v11, v11")
        A(f"v_lshlrev_b32 v5, 3, v0\nv_add_u32 v5, {WT}, v5\nv_mov_b32 v4, 1")
        A("v_mul_f32 v8, v8, v9\nv_mul_f32 v9, v10, v11")
        A("ds_write_b64 v5, v[8:9]")
        self.flag_add(self.VFL, 4, F_W)
        self.stamp(6)

    def cnt_wait(self, soff, voff):
        A = self.A
        lp, out = self.lab("cpoll"), self.lab("cok")
        A("s_mov_b32 s7, 0")
        if "noatomic" in self.dbg: A(f"s_branch {out}")
        A(f"{lp}:")
        A(f"buffer_load_dword v4, {voff}, s[48:51], {soff} offen sc1")
        self.spin_guard(7, out)
        A("s_waitcnt vmcnt(0)")
        A("v_cmp_gt_u32 vcc, 32, v4")
        A(f"s_cbranch_vccz {out}")
        A(f"s_sleep {self.slp}")
        A(f"s_branch {lp}")
        A(f"{out}:")
        A("s_waitcnt vmcnt(0)")

    def ln_scalars(self, mean, var, t):
        A = self.A
        A(f"v_cvt_pk_bf16_f32 v{t}, v{mean}, v{var}")
        A(f"v_lshlrev_b32 v{mean}, 16, v{t}\nv_and_b32 v{var}, s60, v{t}")
        A(f"v_add_f32 v{var}, {EPS}, v{var}")
        A(f"v_cvt_pk_bf16_f32 v{t}, v{var}, v{var}\nv_and_b32 v{var}, s60, v{t}")
        A(f"v_sqrt_f32 v{var}, v{var}")
        A(f"v_cvt_pk_bf16_f32 v{t}, v{var}, v{var}\nv_and_b32 v{var}, s60, v{t}")
        A(f"v_rcp_f32 v{var}, v{var}")

    def h123(self):
        A = self.A
        A("L_h123:")
        l2, l3, dn = self.lab("h2"), self.lab("h3"), self.lab("hd")
        A("v_mov_b32 v4, 0\nv_mov_b32 v5, 0\nv_mov_b32 v6, 0\nv_mov_b32 v7, 0")
        A(f"s_cmp_eq_u32 s3, 2\ns_cbranch_scc1 {l2}\ns_cmp_eq_u32 s3, 3\ns_cbranch_scc1 {l3}")
        self.probe_mark("t0", 4, invert=True)
        self.probe_mark("start", 8)
        self.probe_mark("entry", 8)
        A("v_mov_b32 v8, -1\nv_mov_b32 v9, -1\nv_mov_b32 v10, -1\nv_mov_b32 v11, -1")
        mark = len(self.L)
        A("buffer_store_dwordx4 v[8:11], v2, s[16:19], s66 offen sc1")
        A("buffer_store_dwordx4 v[8:11], v2, s[16:19], s66 offen offset:1024 sc1")
        A(f"s_lshl_b32 s7, s61, 11\ns_add_u32 s7, s7, {Z_OFF}\ns_cmp_lt_u32 s5, 7\ns_cselect_b32 s7, s7, 0x400000")
        A("buffer_store_dwordx4 v[8:11], v2, s[16:19], s7 offen sc1")
        A("buffer_store_dwordx4 v[8:11], v2, s[16:19], s7 offen offset:1024 sc1")
        A("s_mov_b64 exec, 3")
        A("buffer_store_dwordx4 v[8:11], v2, s[16:19], s64 offen sc1")
        A("s_mov_b64 exec, 0xffff")
        A("buffer_store_dwordx4 v[8:11], v2, s[16:19], s67 offen sc1")
        A("buffer_store_dwordx4 v[8:11], v2, s[16:19], s58 offen sc1")
        A("s_mov_b64 exec, -1")
        if "noclear" in self.dbg:
            self.L = self.L[:mark] + [x for x in self.L[mark:] if "buffer_store" not in x]
        if "clrpol" in self.dbg:
            self.L = self.L[:mark] + [x.replace(" sc1", " sc1 nt") for x in self.L[mark:]]
        A("v_mov_b32 v5, 1")
        A("s_barrier")
        A("s_waitcnt vmcnt(0)")
        A("s_mov_b64 exec, 1")
        if "noatomic" not in self.dbg: A("buffer_atomic_add v5, v4, s[48:51], s65 offen sc1")
        self.flag_add(self.VFL, 5, F_CLR)
        A(f"s_branch {dn}")
        A(f"{l2}:")
        A(f"ds_write_b128 v{self.VFL}, v[4:7]\nds_write_b128 v{self.VFL}, v[4:7] offset:16\nds_write_b128 v{self.VFL}, v[4:7] offset:32")
        A("s_waitcnt lgkmcnt(0)")
        A("s_barrier")
        if self.prefetch_code:
            A("s_getpc_b64 s[6:7]")
            A("L_pc_anchor:")
            A(f"s_sub_u32 s6, s6, L_pc_anchor-{KN}\ns_subb_u32 s7, s7, 0")
            A("s_lshl_b32 s68, s5, 10\nv_lshl_add_u32 v1, v0, 6, s68")
            A(f"v_min_u32 v4, L_code_end-{KN}-4, v1")
            A("s_mov_b64 exec, 0xffff")
            A(f"global_load_dword v8, v4, s[6:7]")
            A("s_mov_b64 exec, -1")
        A(f"s_branch {dn}")
        A(f"{l3}:")
        A(f"v_add_u32 v1, {ZR}, v2")
        A("ds_write_b128 v1, v[4:7]\nds_write_b128 v1, v[4:7] offset:512")
        A("s_barrier")
        A(f"{dn}:")
        A("s_waitcnt vmcnt(0) lgkmcnt(0)")
        if True:
            sk, lp = self.lab("gskip"), self.lab("gloop")
            A(f"s_cmp_ge_u32 s5, 7\ns_cbranch_scc1 {sk}")
            if "nog" in self.dbg:
                A("v_mov_b32 v5, 1")
                self.flag_add(self.VFL, 5, F_GL)
                A(f"s_branch {sk}")
            A("s_cmp_eq_u32 s3, 1\ns_cselect_b32 s68, s32, s36\ns_cselect_b32 s69, s33, s37")
            A("s_cmp_eq_u32 s3, 3\ns_cselect_b32 s68, s40, s68\ns_cselect_b32 s69, s41, s69")
            A("s_mov_b32 s70, 0x1c0000\ns_mov_b32 s71, 0x20000")
            A("s_mov_b32 s6, 57344\ns_cselect_b32 s72, 1024, s6")
            A("s_lshl_b32 s6, s61, 15\ns_lshl_b32 s7, s61, 6\ns_cmp_eq_u32 s3, 3\ns_cselect_b32 s73, s6, s7")
            A("s_lshl_b32 s74, s3, 15")
            A("s_movk_i32 s6, 3584")
            A("v_lshrrev_b32 v3, 2, v0\nv_mul_lo_u32 v3, v3, s6\nv_and_b32 v1, 3, v0\nv_lshl_add_u32 v3, v1, 4, v3")
            A("s_cmp_eq_u32 s3, 3\ns_cselect_b64 vcc, -1, 0")
            A("v_cndmask_b32 v3, v3, v2, vcc")
            if self.grot:
                A(f"s_and_b32 s78, s61, 1\ns_mul_i32 s78, s78, {self.grot}")
                A("s_mul_i32 s6, s78, s72\ns_add_u32 s73, s73, s6\ns_lshl_b32 s6, s78, 10\ns_add_u32 s74, s74, s6")
            A(f"s_mov_b32 s7, 32")
            A(f"{lp}:")
            A(f"s_waitcnt vmcnt({self.gpace-1})")
            A("s_mov_b32 m0, s74")
            A("s_add_u32 s74, s74, 1024")
            A(f"buffer_load_dwordx4 v3, s[68:71], s73 offen {self.gpol} lds")
            A("s_add_u32 s73, s73, s72")
            if self.grot:
                nw = self.lab("nowrap")
                A(f"s_add_u32 s78, s78, 1\ns_cmp_lg_u32 s78, 32\ns_cbranch_scc1 {nw}")
                A("s_lshl_b32 s6, s72, 5\ns_sub_u32 s73, s73, s6\ns_sub_u32 s74, s74, 0x8000")
                A(f"{nw}:")
            A(f"s_sub_u32 s7, s7, 1\ns_cmp_lg_u32 s7, 0\ns_cbranch_scc1 {lp}")
            A("v_mov_b32 v5, 1\ns_waitcnt vmcnt(0)")
            self.flag_add(self.VFL, 5, F_GL)
            A(f"{sk}:")

    def tail(self):
        A = self.A
        WOA, GB, WDA, P2, P1 = 16, 32, 96, 128, 192
        WTR, SUM, OB = 208, 224, 192
        vH1, vH2, vOVw, vOVr, vYs, vHVw, vHVr, vHVs, vHHw, vHHr, vZs, vH3, vFo, vFh, vX0, vX1, CS = range(228, 245)
        A("v_lshrrev_b32 v12, 4, v0\nv_bfe_u32 v13, v0, 2, 2\nv_and_b32 v14, 3, v0")
        A("v_lshl_add_u32 v15, v12, 3, v13")
        A(f"v_lshrrev_b32 v4, 3, v0\nv_lshlrev_b32 v4, 11, v4\nv_and_b32 v5, 7, v0\nv_lshl_add_u32 v{vH1}, v5, 4, v4")
        A(f"s_lshl_b32 s64, s4, 16\ns_lshl_b32 s6, s62, 9\ns_add_u32 s64, s64, s6\ns_lshl_b32 s6, s3, 7\ns_add_u32 s64, s64, s6\ns_add_u32 s64, s64, {OP_OFF}")
        A("s_add_u32 s65, s64, 0x4000\ns_add_u32 s66, s64, 0x8000\ns_add_u32 s67, s64, 0xc000")
        A(f"s_lshl_b32 s6, s3, 6\ns_add_u32 s6, s6, {OV}")
        A(f"v_lshlrev_b32 v4, 4, v12\nv_lshl_add_u32 v5, v5, 1, v4\nv_add_u32 v{vOVw}, s6, v5")
        A(f"v_add_u32 v{vOVr}, {OV}, v4\nv_mov_b32 v{vYs}, v4")
        A(f"s_lshl_b32 s58, s4, 2\ns_add_u32 s58, s58, s62\ns_lshl_b32 s58, s58, 11\ns_lshl_b32 s6, s63, 8\ns_add_u32 s58, s58, s6")
        A(f"s_lshl_b32 s6, s3, 6\ns_add_u32 s58, s58, s6\ns_add_u32 s58, s58, {Y_OFF}")
        A(f"v_lshrrev_b32 v4, 5, v0\nv_and_b32 v5, 31, v0")
        A(f"v_lshlrev_b32 v6, 11, v4\nv_lshl_add_u32 v{vH2}, v5, 4, v6")
        A(f"v_lshlrev_b32 v6, 3, v5\nv_lshl_add_u32 v6, v4, 2, v6\ns_lshl_b32 s6, s3, 8\nv_add_u32 v6, s6, v6")
        A(f"buffer_load_dword v7, v6, s[20:23], 0 offen")
        A(f"buffer_load_dword v1, v6, s[44:47], 0 offen")
        A(f"v_add_u32 v{vHVw}, {HV}, v6")
        A(f"v_lshlrev_b32 v4, 4, v12\nv_add_u32 v{vHVr}, {HV}, v4\nv_add_u32 v{vHVs}, {HV}, v2")
        A(f"v_and_b32 v5, 15, v0")
        A(f"s_lshl_b32 s6, s3, 4\ns_add_u32 s6, s6, {HH}\nv_lshl_add_u32 v{vHHw}, v5, 1, s6")
        A(f"v_lshl_add_u32 v6, v5, 6, v4\nv_mov_b32 v{vZs}, v6")
        A(f"v_add_u32 v6, {ZR+64}, v6\nv_cmp_gt_u32 vcc, 8, v5\nv_mov_b32 v{vHHr}, {ZR+16*64}\nv_cndmask_b32 v{vHHr}, v{vHHr}, v6, vcc")
        A(f"v_lshlrev_b32 v{vH3}, 11, v0")
        A(f"s_lshl_b32 s75, s4, 2\ns_add_u32 s75, s75, s5\ns_lshl_b32 s75, s75, 2\ns_add_u32 s75, s75, s3")
        A(f"s_lshl_b32 s6, s75, 3\nv_lshl_add_u32 v{vFo}, v12, 1, s6\nv_add_u32 v{vFh}, {HV}, v{vFo}")
        A("s_lshl_b32 s75, s75, 4")
        A(f"s_lshl_b32 s76, s61, 11\ns_lshl_b32 s6, s3, 9\ns_add_u32 s76, s76, s6\ns_add_u32 s76, s76, {Z_OFF}")
        A(f"s_add_u32 s77, s6, {Y_OFF}")
        A("s_waitcnt vmcnt(0) lgkmcnt(0)")
        A(f"v_lshlrev_b32 v{vX0}, 16, v7\nv_and_b32 v{vX1}, s60, v7")
        A("s_cmp_ge_u32 s5, 7\ns_cbranch_scc1 L_notg1")
        self.flag_wait(self.VFL, 4, F_GL, 3, slp=4)
        A(f"v_lshlrev_b32 v1, 6, v15\nv_and_b32 v4, 1, v14\nv_lshl_add_u32 v1, v4, 3, v1\nv_lshrrev_b32 v4, 1, v14\nv_lshl_add_u32 v1, v4, 15, v1")
        A(f"s_lshl_b32 s6, s3, 4\ns_add_u32 s6, s6, {WG}\nv_add_u32 v1, s6, v1")
        for half in range(4):
            for m in range(4 * half, 4 * half + 4):
                A(f"ds_read_b64_tr_b16 {vr(GB+4*m,2)}, v1 offset:{m*2048}")
                A(f"ds_read_b64_tr_b16 {vr(GB+4*m+2,2)}, v1 offset:{m*2048 + 256}")
            A("s_waitcnt lgkmcnt(0)")
        A(f"v_lshlrev_b32 v1, 10, v15\nv_lshl_add_u32 v1, v14, 3, v1\ns_lshl_b32 s6, s3, 8\ns_add_u32 s6, s6, {WD}\nv_add_u32 v1, s6, v1")
        for half in range(2):
            for c8 in range(4 * half, 4 * half + 4):
                A(f"ds_read_b64_tr_b16 {vr(WDA+4*c8,2)}, v1 offset:{c8*32}")
                A(f"ds_read_b64_tr_b16 {vr(WDA+4*c8+2,2)}, v1 offset:{c8*32 + 4096}")
            A("s_waitcnt lgkmcnt(0)")
        A("v_mov_b32 v4, 0x3f803f80\nv_mov_b32 v5, v4\nv_mov_b32 v6, v4\nv_mov_b32 v7, v4")
        for m in range(16):
            A(f"v_mfma_f32_16x16x32_bf16 v[8:11], v[4:7], {vr(GB+4*m,4)}, {'0' if m == 0 else 'v[8:11]'}")
        A(f"v_mov_b32 v{CS}, v8")
        A("L_notg1:")
        if self.stamps: self.stamp(15)
        A("s_cmp_lg_u32 s3, 0\ns_cbranch_scc1 L_nosw")
        self.split_weights()
        A("L_nosw:")
        A("v_lshrrev_b32 v4, 3, v0\nv_lshlrev_b32 v3, 13, v4\nv_and_b32 v4, 2, v4\nv_and_b32 v1, 7, v0\nv_xor_b32 v1, v1, v4\nv_lshl_add_u32 v3, v1, 4, v3")
        A("v_xor_b32 v8, 64, v3")
        A("s_lshl_b32 s68, s4, 19\ns_lshl_b32 s6, s62, 11\ns_add_u32 s68, s68, s6\ns_lshl_b32 s6, s63, 7\ns_add_u32 s68, s68, s6")
        A("s_and_b32 s6, s3, 1\ns_lshl_b32 s6, s6, 16\ns_add_u32 s68, s68, s6\ns_lshr_b32 s6, s3, 1\ns_lshl_b32 s6, s6, 10\ns_add_u32 s68, s68, s6")
        A(f"s_lshl_b32 s69, s3, 12\ns_add_u32 s69, s69, {WO}")
        A("v_lshrrev_b32 v4, 1, v13\nv_and_b32 v5, 1, v12\nv_lshl_add_u32 v4, v5, 1, v4\nv_xor_b32 v4, s3, v4")
        A("v_lshlrev_b32 v1, 7, v15\nv_lshl_add_u32 v1, v14, 3, v1\nv_lshl_add_u32 v1, v4, 5, v1")
        A(f"v_lshrrev_b32 v9, 3, v0\nv_lshlrev_b32 v9, 4, v9\nv_add_u32 v9, {WT}, v9")
        self.flag_wait(self.VFL, 4, F_A, self.acnt, slp=1)
        self.stamp(7)
        for kg in range(4):
            A(f"s_add_u32 m0, s69, {kg*1024}\ns_add_u32 s6, s68, {kg*128*1024}")
            A(f"buffer_load_dwordx4 {'v8' if kg & 1 else 'v3'}, s[28:31], s6 offen {self.wpol} lds")
        A("s_barrier")
        self.probe_mark("b3", 8)
        self.stamp(8)
        self.flag_wait(self.VFL, 4, F_W, 1, slp=1)
        for t in range(4):
            A(f"ds_read_b128 {vr(WTR+4*t,4)}, v9 offset:{t*128}")
        A("s_waitcnt vmcnt(0)")
        A("s_barrier")
        for m in range(4):
            A(f"ds_read_b64_tr_b16 {vr(WOA+4*m,2)}, v1 offset:{WO + m*4096}")
            A(f"ds_read_b64_tr_b16 {vr(WOA+4*m+2,2)}, v1 offset:{WO + m*4096 + 512}")

        def h2load(t):
            A(f"s_add_u32 s6, s77, {t*4096}")
            A(f"buffer_load_dwordx4 {vr(P2+4*t,4)}, v{vH2}, s[16:19], s6 offen sc1")

        A("s_cmp_ge_u32 s5, 7\ns_cbranch_scc1 L_notg2")
        for t in range(16):
            h2load(t)
        A("L_notg2:")
        for t in range(4):
            A(f"buffer_load_dwordx4 {vr(P1+4*t,4)}, v{vH1}, s[16:19], s{64+t} offen sc1")
        lp, out = self.lab("h1"), self.lab("h1ok")
        A("s_mov_b32 s7, 0")
        A("s_waitcnt lgkmcnt(0)")
        A(f"{lp}:")
        A("s_waitcnt vmcnt(0)")
        for t in range(4):
            for k in (0, 2):
                if t == 0:
                    A(f"v_pk_mul_f32 {vr(SUM+k,2)}, {vr(P1+k,2)}, {vr(WTR+k,2)}")
                else:
                    A(f"v_pk_fma_f32 {vr(SUM+k,2)}, {vr(P1+4*t+k,2)}, {vr(WTR+4*t+k,2)}, {vr(SUM+k,2)}")
        A(f"v_cmp_u_f32 vcc, v{SUM}, v{SUM+1}\nv_cmp_u_f32 s[78:79], v{SUM+2}, v{SUM+3}")
        A("s_or_b64 vcc, vcc, s[78:79]")
        A(f"s_cbranch_scc0 {out}")
        self.spin_guard(7, out)
        for t in range(4):
            sk = self.lab("h1s")
            A(f"v_cmp_u_f32 vcc, v{P1+4*t}, v{P1+4*t+1}\nv_cmp_u_f32 s[78:79], v{P1+4*t+2}, v{P1+4*t+3}")
            A("s_or_b64 exec, vcc, s[78:79]")
            A(f"s_cbranch_execz {sk}")
            A(f"buffer_load_dwordx4 {vr(P1+4*t,4)}, v{vH1}, s[16:19], s{64+t} offen sc1")
            A(f"{sk}:")
            A("s_mov_b64 exec, -1")
        A(f"s_branch {lp}")
        A(f"{out}:")
        self.stamp(9)
        A(f"v_permlane32_swap_b32 v{SUM}, v{SUM+2}\nv_permlane32_swap_b32 v{SUM+1}, v{SUM+3}")
        A(f"v_add_f32 v{SUM}, v{SUM}, v{SUM+2}\nv_add_f32 v{SUM+1}, v{SUM+1}, v{SUM+3}")
        A(f"v_permlane16_swap_b32 v{SUM}, v{SUM+1}")
        A(f"v_add_f32 v{SUM}, v{SUM}, v{SUM+1}")
        A(f"v_add_f32_dpp v{SUM}, v{SUM}, v{SUM} row_ror:8 row_mask:0xf bank_mask:0xf")
        A(f"v_cvt_pk_bf16_f32 v{SUM}, v{SUM}, v{SUM}")
        A(f"ds_write_b16 v{vOVw}, v{SUM}")
        A("s_waitcnt lgkmcnt(0)")
        A("s_barrier")
        for m in range(4):
            A(f"ds_read_b128 {vr(OB+4*m,4)}, v{vOVr} offset:{m*64}")
        for m in range(4):
            A(f"s_waitcnt lgkmcnt({3-m})")
            A(f"v_mfma_f32_16x16x32_bf16 v[8:11], {vr(WOA+4*m,4)}, {vr(OB+4*m,4)}, {'0' if m == 0 else 'v[8:11]'}")
        A("s_mov_b32 exec_lo, 0x00010001\ns_mov_b32 exec_hi, 0x00010001")
        A("s_cmp_ge_u32 s5, 7")
        A(f"buffer_store_dwordx4 v[8:11], v{vYs}, s[16:19], s58 offen sc1")
        A("s_mov_b64 exec, -1")
        if self.stamps:
            self.stamp(10)
            sk = self.lab("st")
            A(f"s_cmp_lt_u32 s5, 7\ns_cbranch_scc1 {sk}")
            A("s_cmp_lg_u32 s3, 0\ns_cbranch_scc1 L_end")
            self.stamp_store(1, 16)
            A("s_endpgm")
            A(f"{sk}:")
        else:
            A("s_cbranch_scc1 L_end")
        lp, out = self.lab("h2"), self.lab("h2ok")
        A("s_mov_b32 s7, 0\ns_mov_b32 s62, 0")
        A(f"v_mov_b32 v{SUM}, 0\nv_mov_b32 v{SUM+1}, 0\nv_mov_b32 v{SUM+2}, 0\nv_mov_b32 v{SUM+3}, 0")
        A(f"{lp}:")
        for gq in range(8):
            sk, re = self.lab("h2s"), self.lab("h2r")
            a, b = P2 + 8 * gq, P2 + 8 * gq + 4
            A(f"s_bitcmp1_b32 s62, {gq}\ns_cbranch_scc1 {sk}")
            A(f"v_pk_add_f32 v[4:5], {vr(a,2)}, {vr(b,2)}\nv_pk_add_f32 v[6:7], {vr(a+2,2)}, {vr(b+2,2)}")
            A("v_cmp_u_f32 vcc, v4, v5\nv_cmp_u_f32 s[78:79], v6, v7")
            A("s_or_b64 vcc, vcc, s[78:79]")
            A(f"s_cbranch_scc1 {re}")
            A(f"v_pk_add_f32 {vr(SUM,2)}, {vr(SUM,2)}, v[4:5]\nv_pk_add_f32 {vr(SUM+2,2)}, {vr(SUM+2,2)}, v[6:7]")
            A(f"s_bitset1_b32 s62, {gq}")
            A(f"s_branch {sk}")
            A(f"{re}:")
            h2load(2 * gq)
            h2load(2 * gq + 1)
            A(f"{sk}:")
        A(f"s_cmp_eq_u32 s62, 0xff\ns_cbranch_scc1 {out}")
        self.spin_guard(7, out)
        A("s_waitcnt vmcnt(0)")
        A(f"s_branch {lp}")
        A(f"{out}:")
        self.probe_mark("h2", 8)
        self.stamp(11)
        A(f"v_permlane32_swap_b32 v{SUM}, v{SUM+2}\nv_permlane32_swap_b32 v{SUM+1}, v{SUM+3}")
        A(f"v_add_f32 v{SUM}, v{SUM}, v{SUM+2}\nv_add_f32 v{SUM+1}, v{SUM+1}, v{SUM+3}")
        A(f"v_cvt_pk_bf16_f32 v4, v{SUM}, v{SUM+1}")
        A(f"v_lshlrev_b32 v5, 16, v4\nv_and_b32 v6, s60, v4")
        A(f"v_add_f32 v5, v{vX0}, v5\nv_add_f32 v6, v{vX1}, v6")
        A(f"v_cvt_pk_bf16_f32 v4, v5, v6")
        A(f"ds_write_b32 v{vHVw}, v4")
        A("s_waitcnt lgkmcnt(0)")
        A("s_barrier")
        A(f"ds_read_b128 v[4:7], v{vHVs}")
        for m in range(14):
            A(f"ds_read_b128 {vr(P2+4*m,4)}, v{vHVr} offset:{m*64}")
        T = 192
        st = []
        for k in range(4):
            st += [f"v_lshlrev_b32 v{T+2*k}, 16, v{4+k}", f"v_and_b32 v{T+2*k+1}, s60, v{4+k}"]
        st += [f"v_readfirstlane_b32 s6, v{T}"]
        st += [f"v_subrev_f32 v{T+k}, s6, v{T+k}" for k in range(7, -1, -1)]
        st += [f"v_add_f32 v{T+8}, v{T}, v{T+1}", f"v_mul_f32 v{T+9}, v{T}, v{T}"]
        for k in range(1, 8):
            if k >= 2:
                st += [f"v_add_f32 v{T+8}, v{T+8}, v{T+k}"]
            st += [f"v_fmac_f32 v{T+9}, v{T+k}, v{T+k}"]
        save = self.L
        self.L = []
        self.allred("v_add_f32", [T + 8, T + 9], [T + 10, T + 11])
        A(f"v_mul_f32 v{T+8}, {INV512}, v{T+8}\nv_mul_f32 v{T+9}, {INV512}, v{T+9}")
        A(f"v_fma_f32 v{T+9}, -v{T+8}, v{T+8}, v{T+9}\nv_add_f32 v{T+8}, s6, v{T+8}\nv_max_f32 v{T+9}, 0, v{T+9}")
        self.ln_scalars(T + 8, T + 9, T + 10)
        st += [x.strip() for x in self.L]
        self.L = save
        per = -(-len(st) // 16)
        for m in range(16):
            if m == 0:
                A("s_waitcnt lgkmcnt(13)")
            else:
                A(f"s_waitcnt lgkmcnt({15-m})")
            A(f"v_mfma_f32_16x16x32_bf16 v[8:11], {vr(P2+4*m,4)}, {vr(GB+4*m,4)}, {'0' if m == 0 else 'v[8:11]'}")
            if m == 0:
                for m2 in (14, 15):
                    A(f"ds_read_b128 {vr(P2+4*m2,4)}, v{vHVr} offset:{m2*64}")
            for x in st[m * per:(m + 1) * per]:
                A(x)
        A(f"ds_read_u16 v12, v{vFh}")
        A(f"v_fma_f32 v4, -v{T+8}, v{CS}, v8\nv_mul_f32 v4, v4, v{T+9}")
        A("v_cvt_pk_bf16_f32 v4, v4, v4\nv_and_b32 v4, s60, v4")
        A("v_mul_f32 v5, s59, v4\nv_exp_f32 v5, -v5")
        A("v_mov_b32_dpp v6, v4 row_ror:8 row_mask:0xf bank_mask:0xf")
        A("v_add_f32 v5, 1.0, v5\nv_rcp_f32 v5, v5")
        A("v_cvt_pk_bf16_f32 v5, v5, v5\nv_and_b32 v5, s60, v5")
        A("v_mul_f32 v5, v5, v6\nv_cvt_pk_bf16_f32 v5, v5, v5")
        A("s_mov_b64 exec, 0xff")
        A(f"ds_write_b16 v{vHHw}, v5")
        A("s_mov_b64 exec, -1")
        A("s_waitcnt lgkmcnt(0)")
        A("s_barrier")
        for c8 in range(8):
            A(f"ds_read_b128 {vr(P1+4*c8,4)}, v{vHHr} offset:{(7-c8)*64}")
        for c8 in range(8):
            A(f"s_waitcnt lgkmcnt({7-c8})")
            A(f"v_mfma_f32_16x16x32_bf16 v[8:11], {vr(WDA+4*c8,4)}, {vr(P1+4*c8,4)}, {'0' if c8 == 0 else 'v[8:11]'}")
        A("s_mov_b32 exec_lo, 0x00ff00ff\ns_mov_b32 exec_hi, 0x00ff00ff")
        A("s_cmp_ge_u32 s5, 4")
        A(f"buffer_store_dwordx4 v[8:11], v{vZs}, s[16:19], s76 offen sc1")
        A("s_mov_b64 exec, -1")
        if self.stamps:
            self.stamp(12)
            sk = self.lab("st")
            A(f"s_cmp_lt_u32 s5, 4\ns_cbranch_scc1 {sk}")
            A("s_cmp_lg_u32 s3, 0\ns_cbranch_scc1 L_end")
            self.stamp_store(1, 16)
            A("s_endpgm")
            A(f"{sk}:")
        else:
            A("s_cbranch_scc1 L_end")
        lp, out = self.lab("h3"), self.lab("h3ok")
        A("s_mov_b32 s7, 0")
        A("v_lshlrev_b32 v12, 16, v12")
        A(f"{lp}:")
        A(f"buffer_load_dwordx4 v[4:7], v{vH3}, s[52:55], s75 offen sc1")
        self.spin_guard(7, out)
        A("s_waitcnt vmcnt(0)")
        A("v_cmp_u_f32 vcc, v4, v5\nv_cmp_u_f32 s[78:79], v6, v7")
        A("s_or_b64 vcc, vcc, s[78:79]")
        A(f"s_cbranch_scc1 {lp}")
        A(f"{out}:")
        A("s_waitcnt vmcnt(0)")
        self.probe_mark("h3", 8)
        self.stamp(13)
        A("v_permlane32_swap_b32 v4, v6\nv_permlane32_swap_b32 v5, v7")
        A("v_add_f32 v4, v4, v6\nv_add_f32 v5, v5, v7")
        A("v_permlane16_swap_b32 v4, v5")
        A("v_add_f32 v4, v4, v5")
        for n in (8, 4, 2, 1):
            A(f"v_add_f32_dpp v4, v4, v4 row_ror:{n} row_mask:0xf bank_mask:0xf")
        A("v_cvt_pk_bf16_f32 v4, v4, v4\nv_and_b32 v4, s60, v4")
        A("v_add_f32 v4, v12, v4\nv_cvt_pk_bf16_f32 v4, v4, v4")
        if self.probe:
            lp = self.lab("pr")
            A("s_sleep 20\nv_mov_b32 v251, 0")
            A("buffer_load_dwordx2 v[248:249], v251, s[48:51], 0 offen offset:4 sc1\ns_waitcnt vmcnt(0)")
            A("v_readfirstlane_b32 s92, v248\nv_readfirstlane_b32 s93, v249\ns_not_b32 s92, s92")
            if self.probe == "t0": A("s_mov_b32 s93, s92")
            A(f"s_add_u32 s93, s93, {self.pticks}\ns_mov_b32 s7, 0")
            A(f"{lp}:\ns_memrealtime s[96:97]\ns_add_u32 s7, s7, 1\ns_cmp_gt_u32 s7, 100000\ns_cbranch_scc1 {lp}x\ns_waitcnt lgkmcnt(0)\ns_sub_u32 s6, s96, s93\ns_cmp_lt_i32 s6, 0\ns_cbranch_scc1 {lp}\n{lp}x:\ns_waitcnt lgkmcnt(0)")
        A("s_mov_b32 exec_lo, 0x00010001\ns_mov_b32 exec_hi, 0x00010001")
        A(f"buffer_store_short v4, v{vFo}, s[44:47], 0 offen {self.outpol}")
        if self.stamps:
            A("s_mov_b64 exec, -1")
            A("s_waitcnt vmcnt(0)")
            self.stamp(14)
            A("s_cmp_lg_u32 s3, 0\ns_cbranch_scc1 L_end")
            self.stamp_store(1, 16)

    def build(self):
        self.entry()
        self.streamer()
        self.helper()
        self.A("L_end:\ns_endpgm\nL_code_end:")
        body, nn = hazard.fix(self.L)
        head = open("cdna_kernels/" + KN[:-7] + ".s.ref").read().split("; Override launch")[0]
        out = head
        out += f"; @launch grid=(256,1,1) block=(512,1,1) lds={LDS_SIZE}\n"
        out += '.amdgcn_target "amdgcn-amd-amdhsa--gfx950"\n.text\n'
        out += f".globl {KN}\n.p2align 8\n.type {KN},@function\n{KN}:\n"
        out += "\n".join(body) + "\n"
        out += f""".section .rodata,"a"
.p2align 6
.amdhsa_kernel {KN}
  .amdhsa_next_free_vgpr 256
  .amdhsa_next_free_sgpr 102
  .amdhsa_accum_offset 256
  .amdhsa_group_segment_fixed_size 0
  .amdhsa_kernarg_size 96
  .amdhsa_user_sgpr_count 2
  .amdhsa_user_sgpr_kernarg_segment_ptr 1
  .amdhsa_system_sgpr_workgroup_id_x 1
.end_amdhsa_kernel
"""
        return out


def gen(**kw):
    return Gen(**kw).build()


if __name__ == "__main__":
    kw = eval("dict(" + (sys.argv[2] if len(sys.argv) > 2 else "") + ")")
    open(sys.argv[1], "w").write(gen(**kw))
```

```python
import sys
import hazard

KN = "sequential_preLN__gqa_block_cached__glu_gated_glu__decode_kernel"

Q_OFF = 0x0
ST_OFF = 0x2000
Y_OFF = 0x10000
Z_OFF = 0x20000
OP_OFF = 0x40000
QP_OFF = 0xC0000
WS_SIZE = 0xD0000
STAMP_OFF = 0x100000
NG = 56
WQ = 0
WO = 16384
WG = 32768
WU = 65536
WD = 98304
ACC = 131072
XN = ACC + 8192
QV = XN + 1024
HV = QV + 1024
ZR = HV + 1024
HH = ZR + 8 * 64
OV = ZR + 1536
STL = OV + 256
ML = STL + 128
FL = ML + 64
F_Q, F_ST, F_W, F_EARLY, F_MID, F_A, F_CLR, F_GL, F_Y, F_LOC = 0, 4, 8, 12, 16, 20, 24, 28, 32, 36
WT = ML + 128
YL = WT + 512
LDS_SIZE = YL + 1024

LOG2E = "0x3fb8aa3b"
SCALE = "0x3db504f3"
EPS = "0x3727c5ac"
INV512 = "0x3b000000"
HIMASK = "0xffff0000"
SPIN_MAX = 100000


def vr(a, n=1):
    return f"v{a}" if n == 1 else f"v[{a}:{a+n-1}]"


def sr(a, n=1):
    return f"s{a}" if n == 1 else f"s[{a}:{a+n-1}]"


class Gen:
    def __init__(self, D=5, DN=None, DG=None, RING=48, NTN=67, NTG=55, pol="nt", wpol="nt", qpol=None, gpol=None,
                 stamps=0, gpace=2, grot=0, outpol="", pvrate=3, kbudget=3, prefetch_code=True, dbg=(), slp=8,
                 h2pre=False, h2rot=False, h2delay=0, qpace=0, gran1=True, sprio=0, h1early=False, d1=3, d2=4, d3=16, b1=0, b2=0, b3=0, fw=2, h2mode=0, oppol='sc1', h1pol='sc1', local=True, h2gate=True, qlate=False, dq=8, probe=None, ps=9, pticks=6000, n_early=28, mid_back=26, a_back=1, acnt=4, stdelay=3):
        self.L = []
        self.uid = 0
        self.RING, self.NTN, self.NTG, self.pol, self.wpol = RING, NTN, NTG, pol, wpol
        assert NTG + 3 * NTN == 256
        self.DN = tuple(DN) if DN else ((0, D),)
        self.DG = tuple(DG) if DG else self.DN
        self.qpol = wpol if qpol is None else qpol
        self.gpol = wpol if gpol is None else gpol
        self.stamps, self.gpace, self.grot, self.outpol = stamps, gpace, grot, outpol
        self.pvrate, self.kbudget, self.prefetch_code, self.dbg, self.slp = pvrate, kbudget, prefetch_code, dbg, slp
        self.h2pre = h2pre; self.h2rot = h2rot; self.h2delay = h2delay; self.qpace = qpace; self.gran1 = gran1; self.sprio = sprio; self.h1early = h1early; self.d1, self.d2, self.d3, self.b1, self.b2, self.b3 = d1, d2, d3, b1, b2, b3; self.fw = fw; self.h2mode = h2mode; self.oppol = oppol; self.h1pol = h1pol; self.local = local; self.h2gate = h2gate; self.qlate = qlate; self.dq = dq; self.probe = probe; self.ps = ps; self.pticks = pticks
        self.n_early, self.mid_back, self.a_back, self.acnt, self.stdelay = n_early, mid_back, a_back, acnt, stdelay

    def A(self, s):
        for l in s.split("\n"):
            l = l.strip()
            if not l:
                continue
            self.L.append(l if l.endswith(":") else "    " + l)

    def lab(self, p):
        self.uid += 1
        return f"L_{p}_{self.uid}"

    def stamp(self, k):
        if self.stamps:
            self.A(f"s_memrealtime s[98:99]\ns_waitcnt lgkmcnt(0)\ns_mov_b32 s{80+k}, s98")

    def stamp_store(self, role, n):
        if not self.stamps:
            return
        A = self.A
        A("s_mov_b64 exec, 1")
        A(f"s_lshl_b32 s6, s2, 9\ns_add_u32 s6, s6, {STAMP_OFF + role*64}")
        A("v_mov_b32 v1, 0")
        for k in range(n):
            A(f"v_mov_b32 v3, s{80+k}")
            A(f"buffer_store_dword v3, v1, s[16:19], s6 offen offset:{4*k}")
        A("s_mov_b64 exec, -1")

    def allred(self, op, regs, tmps, rors=(8, 4, 2, 1)):
        A = self.A
        for n in rors:
            for r in regs:
                if n == "x2":
                    A(f"{op}_dpp v{r}, v{r}, v{r} quad_perm:[2,3,0,1] row_mask:0xf bank_mask:0xf")
                else:
                    A(f"{op}_dpp v{r}, v{r}, v{r} row_ror:{n} row_mask:0xf bank_mask:0xf")
        for sw in ("v_permlane16_swap_b32", "v_permlane32_swap_b32"):
            for r, t in zip(regs, tmps):
                A(f"v_mov_b32 v{t}, v{r}")
            for r, t in zip(regs, tmps):
                A(f"{sw} v{r}, v{t}")
            for r, t in zip(regs, tmps):
                A(f"{op} v{r}, v{r}, v{t}")

    def flag_add(self, vaddr, vone, off):
        self.A(f"s_mov_b64 exec, 1\nds_add_u32 v{vaddr}, v{vone} offset:{off}\ns_mov_b64 exec, -1")

    def flag_wait(self, vaddr, vt, off, val, slp=2):
        lp, out = self.lab("fw"), self.lab("fwok")
        self.A("s_mov_b32 s7, 0")
        self.A(f"{lp}:")
        self.A(f"ds_read_b32 v{vt}, v{vaddr} offset:{off}")
        self.A(f"s_add_u32 s7, s7, 1\ns_cmp_gt_u32 s7, {SPIN_MAX*8}\ns_cbranch_scc1 {out}")
        self.A("s_waitcnt lgkmcnt(0)")
        self.A(f"v_cmp_le_u32 vcc, {val}, v{vt}")
        self.A(f"s_cbranch_vccnz {out}")
        self.A(f"s_sleep {slp}")
        self.A(f"s_branch {lp}")
        self.A(f"{out}:")
        self.A("s_waitcnt lgkmcnt(0)")

    def probe_mark(self, name, off, invert=False):
        if not self.probe or (name != "t0" and name != self.probe):
            return
        A = self.A
        sk = self.lab("pm")
        if name == "t0": A(f"s_cmp_lg_u32 s5, 0\ns_cbranch_scc1 {sk}")
        elif name in ("entry", "start", "sfirst", "sland", "hx"): A(f"s_cmp_lg_u32 s5, {self.ps}\ns_cbranch_scc1 {sk}")
        else: A(f"s_cmp_lg_u32 s3, 0\ns_cbranch_scc1 {sk}")
        if name in ("t0", "entry"): A("s_mov_b32 s96, s94")
        else: A("s_memrealtime s[96:97]\ns_waitcnt lgkmcnt(0)")
        if invert: A("s_not_b32 s96, s96")
        A(f"s_mov_b64 exec, 1\nv_mov_b32 v250, s96\nv_mov_b32 v251, 0")
        A(f"buffer_atomic_umax v250, v251, s[48:51], 0 offen offset:{off} sc1")
        A("s_mov_b64 exec, -1")
        A(f"{sk}:")

    def store_alt(self, stores, sflag):
        a, b = self.lab("sa"), self.lab("sb")
        self.A(f"s_cmp_lg_u32 {sflag}, 0\ns_cbranch_scc1 {a}")
        for x in stores: self.A(x + " sc1")
        self.A(f"s_branch {b}\n{a}:")
        for x in stores: self.A(x)
        self.A(f"{b}:")

    def spin_guard(self, cnt, out):
        self.A(f"s_add_u32 s{cnt}, s{cnt}, 1\ns_cmp_gt_u32 s{cnt}, {SPIN_MAX if not [x for x in self.dbg if x.startswith(('no', 'wqc'))] else 2}\ns_cbranch_scc1 {out}")

    def entry(self):
        A = self.A
        if self.probe: A("s_memrealtime s[94:95]\ns_load_dwordx2 s[48:49], s[0:1], 80\ns_mov_b32 s50, 256\ns_mov_b32 s51, 0x20000")
        A("s_load_dwordx2 s[8:9], s[0:1], 8")
        A("s_load_dwordx2 s[12:13], s[0:1], 16")
        A("s_load_dwordx2 s[16:17], s[0:1], 88")
        A("s_cmp_ge_u32 s2, 256")
        A("s_cbranch_scc1 L_end")
        A("v_readfirstlane_b32 s3, v0")
        A("s_and_b32 s4, s2, 7")
        A("s_lshr_b32 s5, s2, 3")
        A("v_and_b32 v0, 63, v0")
        A("s_lshr_b32 s3, s3, 6")
        A(f"s_mov_b32 s18, {0x200000 if self.stamps else WS_SIZE}")
        A("s_mov_b32 s19, 0x20000")
        A("s_cmp_ge_u32 s3, 4")
        A("s_cbranch_scc1 L_helper")

    def streamer(self):
        A = self.A
        A("s_mov_b32 s10, 0x4000000\ns_mov_b32 s11, 0x20000\ns_mov_b32 s14, 0x4000000\ns_mov_b32 s15, 0x20000")
        A("v_bfe_u32 v1, v0, 2, 2\nv_lshlrev_b32 v1, 8, v1\nv_and_b32 v3, 3, v0\nv_lshl_add_u32 v1, v3, 4, v1")
        A("v_lshrrev_b32 v3, 4, v0\nv_lshl_add_u32 v1, v3, 6, v1\nv_lshlrev_b32 v2, 4, v0")
        A(f"s_lshl_b32 s56, s4, 23\ns_lshl_b32 s57, s3, {10 if self.gran1 else 2}\ns_add_u32 s56, s56, s57")
        if self.sprio: A(f"s_setprio {self.sprio}")
        two = self.DG != self.DN or self.NTG != self.NTN
        if two:
            A("s_cmp_lt_u32 s5, 8\ns_cbranch_scc1 L_stream_g")
        A(f"s_mul_i32 s57, s5, {self.NTN*4096}\ns_add_u32 s56, s56, s57\ns_sub_u32 s56, s56, {8*(self.NTN-self.NTG)*4096}")
        self.stream_body(self.DN, self.NTN, not two)
        if two:
            A("L_stream_g:")
            A(f"s_mul_i32 s57, s5, {self.NTG*4096}\ns_add_u32 s56, s56, s57")
            self.stream_body(self.DG, self.NTG, True)
        self.stream_tail()

    def stream_body(self, sched, NT, islast):
        A = self.A
        RING = self.RING
        R0 = 256 - 4 * RING
        assert R0 >= 64
        NB = -(-NT // 4)
        rem = NT % 4
        NL = 2 * NT
        S0, VFL, VONE, VFG, D0, X0, X1, VM, VL, VF, VT, VT2, VRD, M4 = 8, 25, 26, 27, 28, 44, 45, 46, 47, 48, 49, 50, 51, 52
        ACC0, ACC1 = 56, 60
        AB, TLO, THI = 28, 36, 37
        assert NB <= 17
        slot = lambda n: R0 + 4 * (n % RING)
        A("s_mov_b32 s57, s56")
        if rem and not self.gran1:
            A(f"s_mul_i32 s62, s3, {(4-rem)*1024}\ns_sub_u32 s62, 16384, s62")
        A("s_waitcnt lgkmcnt(0)")

        def depth(n):
            d = sched[0][1]
            for n0, dd in sched:
                if n >= (n0 if n0 >= 0 else NL + n0):
                    d = dd
            return d
        st = {"landed": -1}
        self.probe_mark("sfirst", 8)
        self.stamp(0)

        def load(n):
            d = depth(n)
            if n - d > st["landed"]:
                A(f"s_waitcnt vmcnt({d-1})")
                st["landed"] = n - d
            if n == depth(0): self.probe_mark("sland", 8)
            if self.stamps == 3 and n in (8, 20, 32, 46, 90): self.stamp({8: 1, 20: 2, 32: 3, 46: 4, 90: 5}[n])
            t = n % NT
            j = t % 4
            va, srd, so = ("v1", "s[8:11]", "s56") if n < NT else ("v2", "s[12:15]", "s57")
            if self.gran1:
                A(f"buffer_load_dwordx4 {vr(slot(n),4)}, {va}, {srd}, {so} offen {self.pol}")
                if t + 1 < NT: A(f"s_add_u32 {so}, {so}, 4096")
            else:
                A(f"buffer_load_dwordx4 {vr(slot(n),4)}, {va}, {srd}, {so} offen offset:{j*1024} {self.pol}")
            if j == 3 and t + 1 < NT and not self.gran1:
                A(f"s_add_u32 {so}, {so}, {'s62' if (rem and t + 1 == 4*(NB-1)) else 16384}")
            if n == depth(0) - 1:
                A(f"v_mov_b32 v{VFL}, {FL}\nv_mov_b32 v{VONE}, 1")
                A(f"s_mov_b32 s58, {SCALE}\ns_mov_b32 s59, {LOG2E}\ns_mov_b32 s60, {HIMASK}")
                A(f"v_and_b32 v3, 3, v0\nv_lshlrev_b32 v3, 8, v3\nv_bfe_u32 v4, v0, 2, 2\nv_lshl_add_u32 v3, v4, 4, v3")
                A(f"v_lshrrev_b32 v4, 4, v0\nv_lshl_add_u32 v3, v4, 6, v3\nv_add_u32 v3, {QV}, v3")
                A("s_barrier")
            if n == self.n_early:
                self.flag_add(VFL, VONE, F_EARLY)
            if n == NL - self.mid_back:
                self.flag_add(VFL, VONE, F_MID)
            if n == NL - self.a_back:
                self.flag_add(VFL, VONE, F_A)

        def flagged_read(off, val, read):
            lp, out = self.lab("sf"), self.lab("sfok")
            A("s_mov_b32 s7, 0")
            A(f"{lp}:")
            A(f"ds_read_b32 v{VFG}, v{VFL} offset:{off}")
            A(read)
            A(f"s_add_u32 s7, s7, 1\ns_cmp_gt_u32 s7, {SPIN_MAX*8}\ns_cbranch_scc1 {out}")
            A("s_waitcnt lgkmcnt(0)")
            A(f"v_cmp_gt_u32 vcc, {val}, v{VFG}")
            A(f"s_cbranch_vccnz {lp}")
            A(f"{out}:")
            A("s_waitcnt lgkmcnt(0)")

        def qsync():
            if self.stamps == 2: self.stamp(1)
            flagged_read(F_Q, 1, f"ds_read_b128 v[4:7], v3\nds_read_b32 v{VT}, v{VFL} offset:{F_LOC}")
            A(f"v_readfirstlane_b32 s63, v{VT}")
            if self.stamps == 2: self.stamp(2)

        def qk(i):
            nt = rem if (rem and i == NB - 1) else 4
            for j in range(nt):
                A(f"v_mfma_f32_16x16x32_bf16 {vr(D0+4*j,4)}, {vr(slot(4*i+j),4)}, v[4:7], 0")
            d = lambda j, b: D0 + 4 * j + b
            dp = lambda dst, s0, s1, ror, bm: A(f"v_add_f32_dpp v{dst}, v{s0}, v{s1} row_ror:{ror} row_mask:0xf bank_mask:{bm:#x}")
            dp(X0, d(0, 1), d(0, 0), 12, 1)
            dp(X1, d(2, 1), d(2, 0), 12, 1)
            dp(X0, d(1, 0), d(1, 1), 4, 2)
            dp(X1, d(3, 0), d(3, 1), 4, 2)
            dp(X0, d(0, 3), d(0, 2), 12, 4)
            dp(X1, d(2, 3), d(2, 2), 12, 4)
            dp(X0, d(1, 2), d(1, 3), 4, 8)
            dp(X1, d(3, 2), d(3, 3), 4, 8)
            dp(S0 + i, X0, X0, 8, 3)
            dp(S0 + i, X1, X1, 8, 12)
            if nt < 4:
                A(f"v_mov_b32 v{VT}, 0xff800000")
                A(f"v_mov_b32_dpp v{S0+i}, v{VT} quad_perm:[0,1,2,3] row_mask:0xf bank_mask:{(0xf << nt) & 0xf:#x}")

        def rnd(i):
            a, b = S0 + i, S0 + min(i + 1, NB - 1)
            A(f"v_cvt_pk_bf16_f32 v{VT}, v{a}, v{b}")
            if a != b: A(f"v_lshlrev_b32 v{a}, 16, v{VT}")
            A(f"v_and_b32 v{b}, s60, v{VT}")
            if a != b: A(f"v_mul_f32 v{a}, s58, v{a}")
            A(f"v_mul_f32 v{b}, s58, v{b}")
            A(f"v_cvt_pk_bf16_f32 v{VT}, v{a}, v{b}")
            if a != b: A(f"v_lshlrev_b32 v{a}, 16, v{VT}")
            A(f"v_and_b32 v{b}, s60, v{VT}")
            if i == 0:
                A(f"v_max_f32 v{VM}, v{a}, v{b}")
            else:
                A(f"v_max3_f32 v{VM}, v{VM}, v{a}, v{b}")

        def sm_max():
            self.allred("v_max_f32", [VM], [VT], rors=(4, 8))
            A(f"v_mul_f32 v{VT2}, s59, v{VM}")

        def sm_exp(lo, hi):
            for i in range(lo, hi):
                A(f"v_fma_f32 v{S0+i}, v{S0+i}, s59, -v{VT2}")
            for i in range(lo, hi):
                A(f"v_exp_f32 v{S0+i}, v{S0+i}")
            for i in range(lo, hi):
                if i == 1:
                    A(f"v_add_f32 v{VL}, v{S0}, v{S0+1}")
                elif i > 1:
                    A(f"v_add_f32 v{VL}, v{VL}, v{S0+i}")

        def sm_sum():
            self.allred("v_add_f32", [VL], [VT], rors=(4, 8))
            A(f"v_and_b32 v3, 3, v0\nv_lshlrev_b32 v3, 4, v3\nv_add_u32 v3, {STL}, v3")
            A(f"s_lshl_b32 s6, s3, 2\nv_add_u32 v4, s6, v3")
            A("s_mov_b64 exec, 15")
            A(f"ds_write_b32 v4, v{VM}\nds_write_b32 v4, v{VL} offset:64")
            self.flag_add(VFL, VONE, F_ST)
            if self.stamps == 2: self.stamp(3)

        def pv_setup():
            for r in list(range(AB, AB + 8)) + list(range(ACC0, ACC0 + 8)):
                A(f"v_mov_b32 v{r}, 0")
            A(f"s_lshl_b32 s6, s3, 10\ns_add_u32 s6, s6, {ACC}\nv_add_u32 v{VRD}, s6, v2")
            A(f"s_lshl_b32 s61, s4, 16\ns_lshl_b32 s7, s5, 11\ns_add_u32 s61, s61, s7\ns_lshl_b32 s7, s3, 10\ns_add_u32 s61, s61, s7\ns_add_u32 s61, s61, {OP_OFF}")

        def msync():
            if self.stamps == 2: self.stamp(4)
            flagged_read(F_ST, 4, f"ds_read_b128 {vr(M4,4)}, v3")
            if self.stamps == 2: self.stamp(5)
            A(f"v_max3_f32 v{VF}, v{M4}, v{M4+1}, v{M4+2}\nv_max_f32 v{VF}, v{VF}, v{M4+3}")
            A(f"v_sub_f32 v{VF}, v{VM}, v{VF}\nv_mul_f32 v{VF}, s59, v{VF}\nv_exp_f32 v{VF}, v{VF}")
            A(f"s_lshl_b32 s6, s3, 11\ns_add_u32 s6, s6, {ACC}\nv_add_u32 v3, s6, v2")

        def tcalc(i):
            A(f"v_mul_f32 v{VT}, v{S0+i}, v{VF}")
            A(f"v_cvt_pk_bf16_f32 v{TLO}, v{VT}, 0\nv_cvt_pk_bf16_f32 v{THI}, 0, v{VT}")

        def mv(dst, src, dbank, j):
            rot = 4 * ((dbank - j) & 3)
            ctl = f"row_ror:{rot}" if rot else "quad_perm:[0,1,2,3]"
            A(f"v_mov_b32_dpp v{dst}, v{src} {ctl} row_mask:0xf bank_mask:{1<<dbank:#x}")

        abuf = lambda t: AB + 2 * (t % 4)

        def prep(ts):
            for t in ts:
                mv(abuf(t), TLO, 0, t % 4)
                mv(abuf(t) + 1, TLO, 2, t % 4)
            for t in ts:
                mv(abuf(t), THI, 1, t % 4)
                mv(abuf(t) + 1, THI, 3, t % 4)

        def pv(t):
            s = slot(NT + t)
            A(f"v_mfma_f32_16x16x16_bf16 {vr(ACC0,4)}, {vr(abuf(t),2)}, {vr(s,2)}, {vr(ACC0,4)}")
            A(f"v_mfma_f32_16x16x16_bf16 {vr(ACC1,4)}, {vr(abuf(t),2)}, {vr(s+2,2)}, {vr(ACC1,4)}")

        KB = float(self.kbudget)
        items = [(RING - 1 - depth(RING - 1), qsync, 0.5, -1, 0)]
        for i in range(NB):
            last = min(4 * i + 3, NT - 1)
            items.append((last, (lambda i=i: qk(i)), 2, last, 0))
            if i % 2 == 1 or i == NB - 1:
                items.append((-1, (lambda i=i: rnd(i - (i % 2))), 0.5, -1, 0))
        h = NB // 2
        items += [(-1, sm_max, 1.5, -1, 0), (-1, lambda: sm_exp(0, h), 2, -1, 0), (-1, lambda: sm_exp(h, NB), 2, -1, 0),
                  (-1, sm_sum, 2, -1, 0), (-1, pv_setup, 2, -1, 0), (-1, msync, 1, -1, self.stdelay)]
        for i in range(NB):
            items.append((-1, (lambda i=i: tcalc(i)), 0, -1, 0))
            for u in (2 * i, 2 * i + 1):
                ts = [t for t in (2 * u, 2 * u + 1) if t < NT]
                if not ts: continue
                items.append((-1, (lambda ts=ts: prep(ts)), 0, -1, 0))
                for t in ts:
                    items.append((NT + t, (lambda t=t: pv(t)), KB / self.pvrate, NT + t, 0))
        pos = 0
        freed = -1
        lastn = 0
        for n in range(NL):
            while n - RING > freed:
                need, emit, cost, fr, dl = items[pos]
                assert need <= st["landed"], (n, need)
                emit(); pos += 1; freed = max(freed, fr); lastn = n
            load(n)
            budget = KB
            while pos < len(items) and items[pos][0] <= st["landed"] and (budget > 0 or items[pos][2] == 0) and n >= lastn + items[pos][4]:
                need, emit, cost, fr, dl = items[pos]
                emit(); pos += 1; budget -= cost; freed = max(freed, fr); lastn = n
        while pos < len(items):
            need, emit, cost, fr, dl = items[pos]
            if need > st["landed"]:
                A(f"s_waitcnt vmcnt({NL-1-need})")
                st["landed"] = need
            emit(); pos += 1
        A("s_cmp_ge_u32 s3, 2")
        A(f"ds_write_b128 v3, {vr(ACC0,4)}\nds_write_b128 v3, {vr(ACC1,4)} offset:1024")
        A("s_waitcnt lgkmcnt(0)")
        A("s_barrier")
        if not islast:
            A("s_branch L_stail")

    def reload(self, n, base, ld):
        A = self.A
        for t in range(n):
            sk = self.lab("rs")
            A(f"v_cmp_u_f32 vcc, v{base+4*t}, v{base+4*t+1}\nv_cmp_u_f32 s[78:79], v{base+4*t+2}, v{base+4*t+3}")
            A("s_or_b64 exec, vcc, s[78:79]")
            A(f"s_cbranch_execz {sk}")
            ld(t)
            A(f"{sk}:")
            A("s_mov_b64 exec, -1")

    def lane_sum4(self, R):
        A = self.A
        A(f"v_permlane32_swap_b32 v{R}, v{R+2}\nv_permlane32_swap_b32 v{R+1}, v{R+3}")
        A(f"v_add_f32 v{R}, v{R}, v{R+2}\nv_add_f32 v{R+1}, v{R+1}, v{R+3}")
        A(f"v_permlane16_swap_b32 v{R}, v{R+1}")
        A(f"v_add_f32 v{R}, v{R}, v{R+1}")
        A(f"v_add_f32_dpp v{R}, v{R}, v{R} row_ror:8 row_mask:0xf bank_mask:0xf")

    def stream_tail(self):
        A = self.A
        VRD = 51
        ex = "L_sexit"
        A("L_stail:")
        A("s_cbranch_scc1 L_noop")
        for sw in range(4):
            A(f"ds_read_b128 {vr(8+4*sw,4)}, v{VRD} offset:{sw*2048}")
        A("s_waitcnt lgkmcnt(2)")
        A("v_pk_add_f32 v[8:9], v[8:9], v[12:13]\nv_pk_add_f32 v[10:11], v[10:11], v[14:15]")
        A("s_waitcnt lgkmcnt(0)")
        A("v_pk_add_f32 v[16:17], v[16:17], v[20:21]\nv_pk_add_f32 v[18:19], v[18:19], v[22:23]")
        A("v_pk_add_f32 v[8:9], v[8:9], v[16:17]\nv_pk_add_f32 v[10:11], v[10:11], v[18:19]")
        self.store_alt(["buffer_store_dwordx4 v[8:11], v2, s[16:19], s61 offen"], "s63")
        A("L_noop:")
        self.stamp(6)
        A(f"s_cmp_ge_u32 s5, 7\ns_cbranch_scc1 {ex}")
        SEL, XR, P2, vH2, vHVw, vH3, vFo, vFh = 40, 28, 64, 32, 33, 34, 35, 36
        A("s_load_dwordx2 s[20:21], s[0:1], 0\ns_load_dwordx2 s[44:45], s[0:1], 72")
        A("s_mov_b32 s22, 1024\ns_mov_b32 s23, 0x20000\ns_mov_b32 s46, 1024\ns_mov_b32 s47, 0x20000")
        A("v_lshrrev_b32 v12, 4, v0\nv_and_b32 v5, 15, v0\ns_lshl_b32 s6, s3, 8")
        A(f"v_lshlrev_b32 v6, 10, v12\nv_lshl_add_u32 v{vH2}, v5, 4, v6")
        A(f"v_and_b32 v6, 1, v12\nv_lshlrev_b32 v6, 3, v6\nv_lshl_add_u32 v6, v5, 4, v6\nv_add_u32 v13, s6, v6\nv_add_u32 v{vHVw}, {HV}, v13")
        A(f"s_add_u32 s64, s6, {Y_OFF}")
        for t in range(1, 8):
            A(f"s_add_u32 s{64+t}, s64, {t*4096}")
        A("v_and_b32 v6, 1, v5\nv_lshlrev_b32 v6, 4, v6\nv_mov_b32 v7, 0x3f80\nv_lshlrev_b32 v6, v6, v7\nv_lshrrev_b32 v7, 1, v5")
        for q in range(4):
            A(f"v_cmp_eq_u32 vcc, {q}, v7\nv_cndmask_b32 v{SEL+q}, 0, v6, vcc")
        A(f"v_lshrrev_b32 v6, 3, v0\nv_lshlrev_b32 v6, 11, v6\nv_and_b32 v7, 7, v0\nv_lshl_add_u32 v{vH3}, v7, 4, v6")
        A("s_lshl_b32 s72, s4, 1\ns_add_u32 s72, s72, s5")
        A(f"s_lshl_b32 s6, s72, 6\nv_lshlrev_b32 v6, 3, v7\nv_lshl_add_u32 v6, v12, 1, v6\nv_add_u32 v{vFo}, s6, v6\nv_add_u32 v{vFh}, {HV}, v{vFo}")
        A(f"s_lshl_b32 s72, s72, 7\ns_add_u32 s72, s72, {Z_OFF}")
        A("s_waitcnt lgkmcnt(0)")
        A("buffer_load_dwordx2 v[8:9], v13, s[20:23], 0 offen")
        A("buffer_load_dword v10, v13, s[44:47], 0 offen")
        if self.h2gate: self.flag_wait(25, 4, F_Y, 4, slp=1)
        if self.d2: A(f"s_sleep {self.d2}")
        h2load = lambda t: A(f"buffer_load_dwordx4 {vr(P2+4*t,4)}, v{vH2}, s[16:19], s{64+t} offen sc1")
        for t in range(8):
            h2load(t)
        A("s_waitcnt vmcnt(8)")
        A(f"v_lshlrev_b32 v{XR}, 16, v8\nv_and_b32 v{XR+1}, s60, v8\nv_lshlrev_b32 v{XR+2}, 16, v9\nv_and_b32 v{XR+3}, s60, v9")
        if self.h2mode == 0:
            lp, out = self.lab("h2"), self.lab("h2ok")
            A("s_mov_b32 s7, 0")
            A(f"{lp}:")
            A("s_waitcnt vmcnt(0)")
            for t in range(8):
                A(f"v_mfma_f32_16x16x32_bf16 v[8:11], {vr(SEL,4)}, {vr(P2+4*t,4)}, {'0' if t == 0 else 'v[8:11]'}")
            A("v_cmp_u_f32 vcc, v8, v9\nv_cmp_u_f32 s[78:79], v10, v11")
            A("s_or_b64 vcc, vcc, s[78:79]")
            A(f"s_cbranch_scc0 {out}")
            self.spin_guard(7, out)
            if self.b2: A(f"s_sleep {self.b2}")
            self.reload(8, P2, h2load)
            A(f"s_branch {lp}")
            A(f"{out}:")
        else:
            lp, out = self.lab("h2"), self.lab("h2ok")
            A("s_mov_b32 s7, 0")
            for t in range(8):
                A(f"s_mov_b64 s[{24+2*t}:{25+2*t}], -1")
            A(f"{lp}:")
            A("s_waitcnt vmcnt(0)")
            for t in range(8):
                m = f"s[{24+2*t}:{25+2*t}]"
                A(f"s_mov_b64 exec, {m}")
                A(f"v_cmp_u_f32 vcc, v{P2+4*t}, v{P2+4*t+1}\nv_cmp_u_f32 {m}, v{P2+4*t+2}, v{P2+4*t+3}")
                A(f"s_or_b64 {m}, vcc, {m}")
                if self.h2mode == 1:
                    A(f"s_mov_b64 exec, {m}")
                    h2load(t)
            A("s_or_b64 s[40:41], s[24:25], s[26:27]\ns_or_b64 s[42:43], s[28:29], s[30:31]\ns_or_b64 s[40:41], s[40:41], s[32:33]\ns_or_b64 s[42:43], s[42:43], s[34:35]")
            A("s_or_b64 s[40:41], s[40:41], s[36:37]\ns_or_b64 s[42:43], s[42:43], s[38:39]\ns_or_b64 s[40:41], s[40:41], s[42:43]")
            A(f"s_cbranch_scc0 {out}")
            self.spin_guard(7, out)
            if self.b2: A(f"s_sleep {self.b2}")
            if self.h2mode == 2:
                for t in range(8):
                    A(f"s_mov_b64 exec, s[{24+2*t}:{25+2*t}]")
                    h2load(t)
            A(f"s_branch {lp}")
            A(f"{out}:")
            A("s_mov_b64 exec, -1")
            for t in range(8):
                A(f"v_mfma_f32_16x16x32_bf16 v[8:11], {vr(SEL,4)}, {vr(P2+4*t,4)}, {'0' if t == 0 else 'v[8:11]'}")
        if self.stamps: A("s_mov_b32 s84, s7")
        self.probe_mark("h2", 8)
        self.stamp(1)
        A("v_cvt_pk_bf16_f32 v4, v8, v9\nv_cvt_pk_bf16_f32 v5, v10, v11")
        A("v_lshlrev_b32 v8, 16, v4\nv_and_b32 v9, s60, v4\nv_lshlrev_b32 v10, 16, v5\nv_and_b32 v11, s60, v5")
        A(f"v_pk_add_f32 v[8:9], v[8:9], {vr(XR,2)}\nv_pk_add_f32 v[10:11], v[10:11], {vr(XR+2,2)}")
        A("v_cvt_pk_bf16_f32 v4, v8, v9\nv_cvt_pk_bf16_f32 v5, v10, v11")
        A("s_mov_b64 exec, 0xffffffff")
        A(f"ds_write_b64 v{vHVw}, v[4:5]")
        A("s_mov_b64 exec, -1")
        A("s_waitcnt lgkmcnt(0)")
        A("s_barrier")
        A(f"s_cmp_ge_u32 s5, 2\ns_cbranch_scc1 {ex}\ns_cmp_lg_u32 s3, {self.fw}\ns_cbranch_scc1 {ex}")
        A(f"ds_read_u16 v12, v{vFh}")
        for t in range(1, 7):
            A(f"s_add_u32 s{64+t}, s72, {t*16384}")
        A("s_mov_b32 s64, s72")
        A("s_waitcnt lgkmcnt(0)")
        A("v_lshlrev_b32 v12, 16, v12")
        A("s_barrier")
        if self.d3: A(f"s_sleep {self.d3}")
        h3load = lambda t: A(f"buffer_load_dwordx4 {vr(P2+4*t,4)}, v{vH3}, s[16:19], s{64+t} offen sc1")
        for t in range(7):
            h3load(t)
        lp, out = self.lab("h3"), self.lab("h3ok")
        A("s_mov_b32 s7, 0")
        A(f"{lp}:")
        A("s_waitcnt vmcnt(0)")
        for k in (0, 2):
            A(f"v_pk_add_f32 {vr(4+k,2)}, {vr(P2+k,2)}, {vr(P2+4+k,2)}")
        for k in (0, 2):
            A(f"v_pk_add_f32 {vr(8+k,2)}, {vr(P2+8+k,2)}, {vr(P2+12+k,2)}")
        for k in (0, 2):
            A(f"v_pk_add_f32 {vr(16+k,2)}, {vr(P2+16+k,2)}, {vr(P2+20+k,2)}")
        for k in (0, 2):
            A(f"v_pk_add_f32 {vr(4+k,2)}, {vr(4+k,2)}, {vr(P2+24+k,2)}")
        for k in (0, 2):
            A(f"v_pk_add_f32 {vr(8+k,2)}, {vr(8+k,2)}, {vr(16+k,2)}")
        for k in (0, 2):
            A(f"v_pk_add_f32 {vr(4+k,2)}, {vr(4+k,2)}, {vr(8+k,2)}")
        A("v_cmp_u_f32 vcc, v4, v5\nv_cmp_u_f32 s[78:79], v6, v7")
        A("s_or_b64 vcc, vcc, s[78:79]")
        A(f"s_cbranch_scc0 {out}")
        self.spin_guard(7, out)
        if self.b3: A(f"s_sleep {self.b3}")
        self.reload(7, P2, h3load)
        A(f"s_branch {lp}")
        A(f"{out}:")
        if self.stamps: A("s_mov_b32 s85, s7")
        self.probe_mark("h3", 8)
        self.stamp(2)
        self.lane_sum4(4)
        A("v_cvt_pk_bf16_f32 v4, v4, v4\nv_and_b32 v4, s60, v4")
        A("v_add_f32 v4, v12, v4\nv_cvt_pk_bf16_f32 v4, v4, v4")
        if self.probe:
            lp = self.lab("pr")
            A("s_sleep 20\nv_mov_b32 v251, 0")
            A("buffer_load_dwordx2 v[248:249], v251, s[48:51], 0 offen offset:4 sc1\ns_waitcnt vmcnt(0)")
            A("v_readfirstlane_b32 s92, v248\nv_readfirstlane_b32 s93, v249\ns_not_b32 s92, s92")
            if self.probe == "t0": A("s_mov_b32 s93, s92")
            A(f"s_add_u32 s93, s93, {self.pticks}\ns_mov_b32 s7, 0")
            A(f"{lp}:\ns_memrealtime s[96:97]\ns_add_u32 s7, s7, 1\ns_cmp_gt_u32 s7, 100000\ns_cbranch_scc1 {lp}x\ns_waitcnt lgkmcnt(0)\ns_sub_u32 s6, s96, s93\ns_cmp_lt_i32 s6, 0\ns_cbranch_scc1 {lp}\n{lp}x:\ns_waitcnt lgkmcnt(0)")
        A("s_mov_b32 exec_lo, 0x00ff00ff\ns_mov_b32 exec_hi, 0x00ff00ff")
        A(f"buffer_store_short v4, v{vFo}, s[44:47], 0 offen {self.outpol}")
        if self.stamps:
            A("s_mov_b64 exec, -1\ns_waitcnt vmcnt(0)")
            self.stamp(3)
        A(f"{ex}:")
        if self.stamps:
            A(f"s_cmp_lg_u32 s3, {self.fw}\ns_cbranch_scc1 L_end")
            self.stamp_store(0, 7)
        A("s_endpgm")

    def helper(self):
        A = self.A
        wp = self.wpol
        A("L_helper:")
        A("s_load_dwordx2 s[20:21], s[0:1], 0")
        A("s_load_dwordx2 s[24:25], s[0:1], 24")
        A("s_load_dwordx2 s[48:49], s[0:1], 80")
        A("s_load_dwordx2 s[28:29], s[0:1], 32")
        A("s_sub_u32 s3, s3, 4")
        A("s_mov_b32 s22, 1024\ns_mov_b32 s23, 0x20000\ns_mov_b32 s26, 0x400000\ns_mov_b32 s27, 0x20000")
        A("s_mov_b32 s50, 256\ns_mov_b32 s51, 0x20000\ns_mov_b32 s30, 0x400000\ns_mov_b32 s31, 0x20000")
        A("v_lshlrev_b32 v2, 4, v0")
        A(f"s_mov_b32 s59, {LOG2E}\ns_mov_b32 s60, {HIMASK}")
        A("s_mul_i32 s61, s4, 7\ns_add_u32 s61, s61, s5")
        A("s_lshr_b32 s62, s5, 3\ns_and_b32 s63, s5, 7")
        A("s_waitcnt lgkmcnt(0)")
        A("s_load_dwordx2 s[32:33], s[0:1], 48")
        A("s_load_dwordx2 s[36:37], s[0:1], 56")
        A("s_load_dwordx2 s[40:41], s[0:1], 64")
        A("s_load_dwordx2 s[44:45], s[0:1], 72")
        A("s_mov_b32 s34, 0x1c0000\ns_mov_b32 s35, 0x20000\ns_mov_b32 s38, 0x1c0000\ns_mov_b32 s39, 0x20000")
        A("s_mov_b32 s42, 0x1c0000\ns_mov_b32 s43, 0x20000\ns_mov_b32 s46, 1024\ns_mov_b32 s47, 0x20000")
        A(f"s_add_u32 s52, s16, {Z_OFF}\ns_addc_u32 s53, s17, 0\ns_mov_b32 s54, {NG*2048}\ns_mov_b32 s55, 0x20000")
        A(f"s_lshl_b32 s6, s4, 5\ns_add_u32 s6, s6, s5\ns_lshl_b32 s64, s6, 5\ns_add_u32 s64, s64, {ST_OFF}")
        A(f"s_lshl_b32 s66, s6, 11\ns_add_u32 s66, s66, {OP_OFF}")
        A(f"s_lshl_b32 s7, s4, 2\ns_add_u32 s7, s7, s62\ns_lshl_b32 s7, s7, 11\ns_lshl_b32 s6, s63, 8\ns_add_u32 s58, s7, s6")
        A(f"s_lshr_b32 s67, s58, 1\ns_add_u32 s67, s67, {Y_OFF}\ns_add_u32 s58, s58, {QP_OFF}\ns_lshl_b32 s65, s4, 5")
        A("s_getreg_b32 s6, hwreg(HW_REG_XCC_ID, 0, 4)")
        A("s_mul_i32 s7, s6, s6\ns_lshl_b32 s7, s7, 18\ns_lshl_b32 s6, s6, 8\ns_or_b32 s6, s6, s7\ns_or_b32 s14, s6, 1")
        self.VFL = 245
        A(f"v_mov_b32 v{self.VFL}, {FL}")
        A("s_cmp_lg_u32 s3, 0")
        A("s_cbranch_scc1 L_h123")
        self.h0()
        A("s_branch L_hjoin")
        self.h123()
        A("L_hjoin:")
        self.tail()

    def h0(self):
        A = self.A
        self.stamp(0)
        A("buffer_load_dwordx4 v[4:7], v2, s[20:23], 0 offen")
        A("v_lshrrev_b32 v3, 3, v0\nv_lshlrev_b32 v3, 13, v3\nv_and_b32 v1, 7, v0\nv_lshl_add_u32 v3, v1, 4, v3")
        A("s_lshl_b32 s6, s62, 20\ns_lshl_b32 s7, s4, 10\ns_add_u32 s6, s6, s7\ns_lshl_b32 s7, s63, 7\ns_add_u32 s6, s6, s7")
        if "wqcontig" in self.dbg: A("s_lshl_b32 s6, s2, 14\nv_mov_b32 v3, v2")
        for t in range(16):
            if self.qpace and t >= self.qpace: A(f"s_waitcnt vmcnt({self.qpace-1})")
            A(f"s_mov_b32 m0, {WQ + t*1024}")
            if "nowq" not in self.dbg: A(f"buffer_load_dwordx4 v3, s[24:27], s6 offen {self.qpol} lds")
            if t < 15:
                A("s_add_u32 s6, s6, 0x10000" if "wqcontig" not in self.dbg else "s_add_u32 s6, s6, 1024")
            if t == 3:
                A("s_barrier")
        A("s_waitcnt vmcnt(16)" if "nowq" not in self.dbg else "s_waitcnt vmcnt(0)")
        self.probe_mark("hx", 8)
        for k in range(4):
            A(f"v_lshlrev_b32 v{12+2*k}, 16, v{4+k}\nv_and_b32 v{13+2*k}, s60, v{4+k}")
        A("v_add_f32 v20, v12, v13\nv_add_f32 v21, v14, v15\nv_add_f32 v22, v16, v17\nv_add_f32 v23, v18, v19")
        A("v_add_f32 v20, v20, v21\nv_add_f32 v22, v22, v23\nv_add_f32 v20, v20, v22")
        self.allred("v_add_f32", [20], [21])
        A(f"v_mul_f32 v20, {INV512}, v20")
        for k in range(8):
            A(f"v_sub_f32 v{24+k}, v{12+k}, v20")
        A("v_mul_f32 v22, v24, v24")
        for k in range(1, 8):
            A(f"v_fmac_f32 v22, v{24+k}, v{24+k}")
        self.allred("v_add_f32", [22], [21])
        A(f"v_mul_f32 v22, {INV512}, v22")
        self.ln_scalars(20, 22, 21)
        for k in range(4):
            a, b = 12 + 2 * k, 13 + 2 * k
            A(f"v_sub_f32 v{a}, v{a}, v20\nv_sub_f32 v{b}, v{b}, v20")
            A(f"v_cvt_pk_bf16_f32 v21, v{a}, v{b}")
            A(f"v_lshlrev_b32 v{a}, 16, v21\nv_and_b32 v{b}, s60, v21")
            A(f"v_mul_f32 v{a}, v{a}, v22\nv_mul_f32 v{b}, v{b}, v22")
            A(f"v_cvt_pk_bf16_f32 v{4+k}, v{a}, v{b}")
        A(f"v_add_u32 v1, {XN}, v2")
        A("ds_write_b128 v1, v[4:7]")
        A("v_lshrrev_b32 v12, 4, v0\nv_bfe_u32 v13, v0, 2, 2\nv_and_b32 v14, 3, v0")
        A("v_lshl_add_u32 v15, v12, 3, v13\nv_lshlrev_b32 v15, 7, v15\nv_lshl_add_u32 v15, v14, 3, v15")
        A(f"s_lshl_b32 s6, s62, 8\ns_add_u32 s6, s6, {XN}\nv_lshlrev_b32 v17, 4, v12\nv_add_u32 v16, s6, v17")
        A("s_waitcnt lgkmcnt(0)")
        for m in range(4):
            A(f"ds_read_b128 {vr(128+4*m,4)}, v16 offset:{m*64}")
        A("v_mov_b32 v1, 0")
        A("s_waitcnt vmcnt(0)")
        self.stamp(1)
        for m in range(4):
            base = 64 + 16 * m
            for ct in range(4):
                A(f"ds_read_b64_tr_b16 {vr(base+4*ct,2)}, v15 offset:{WQ + m*4096 + ct*32}")
                A(f"ds_read_b64_tr_b16 {vr(base+4*ct+2,2)}, v15 offset:{WQ + m*4096 + ct*32 + 512}")
            A("s_waitcnt lgkmcnt(0)")
            for ct in range(4):
                c = "0" if m == 0 else vr(32 + 4 * ct, 4)
                A(f"v_mfma_f32_16x16x32_bf16 {vr(32+4*ct,4)}, {vr(base+4*ct,4)}, {vr(128+4*m,4)}, {c}")
        qst = [f"buffer_store_dwordx4 {vr(32+4*ct,4)}, v17, s[16:19], s58 offen offset:{ct*64}" for ct in range(4)]
        if not self.qlate:
            self.flag_wait(self.VFL, 4, F_CLR, 1, slp=1)
            A("s_mov_b32 exec_lo, 0x00010001\ns_mov_b32 exec_hi, 0x00010001")
            for x in qst: A(x + " sc1")
            A("s_mov_b64 exec, -1")
        self.flag_wait(self.VFL, 4, F_EARLY, 1)
        self.cnt_wait("s65", "v1")
        self.stamp(3)
        A("v_readfirstlane_b32 s6, v4\ns_lshl_b32 s7, s14, 5\ns_cmp_eq_u32 s6, s7\ns_cselect_b32 s15, 1, 0")
        if not self.local: A("s_mov_b32 s15, 0")
        A(f"v_mov_b32 v5, s15\nds_write_b32 v{self.VFL}, v5 offset:{F_LOC}")
        if self.qlate:
            A("s_mov_b32 exec_lo, 0x00010001\ns_mov_b32 exec_hi, 0x00010001")
            self.store_alt(qst, "s15")
            A("s_mov_b64 exec, -1")
            if self.dq: A(f"s_sleep {self.dq}")
        self.stamp(2)
        A(f"s_lshl_b32 s6, s4, 13\ns_add_u32 s6, s6, {QP_OFF}\ns_add_u32 s66, s6, 4096")
        lp, out = self.lab("qpoll"), self.lab("qok")
        A("s_mov_b32 s7, 0")
        A(f"{lp}:")
        for rb in range(4):
            for hf in range(2):
                if "noqld" not in self.dbg: A(f"buffer_load_dwordx4 {vr(64+8*rb+4*hf,4)}, v2, s[16:19], {'s6' if rb < 2 else 's66'} offen offset:{(rb&1)*2048+hf*1024} sc1")
        self.spin_guard(7, out)
        A("s_waitcnt vmcnt(0)")
        for k in range(0, 8, 2):
            A(f"v_pk_add_f32 {vr(64+k,2)}, {vr(64+k,2)}, {vr(72+k,2)}\nv_pk_add_f32 {vr(80+k,2)}, {vr(80+k,2)}, {vr(88+k,2)}")
        for k in range(0, 8, 2):
            A(f"v_pk_add_f32 {vr(64+k,2)}, {vr(64+k,2)}, {vr(80+k,2)}")
        A("v_cmp_u_f32 vcc, v64, v65\nv_cmp_u_f32 s[68:69], v66, v67\nv_cmp_u_f32 s[70:71], v68, v69\nv_cmp_u_f32 s[72:73], v70, v71")
        A("s_or_b64 vcc, vcc, s[68:69]\ns_or_b64 s[70:71], s[70:71], s[72:73]\ns_or_b64 vcc, vcc, s[70:71]")
        if "noqpoll" in self.dbg: A(f"s_branch {out}")
        A(f"s_cbranch_scc0 {out}")
        A(f"s_sleep {self.slp}")
        A(f"s_branch {lp}")
        A(f"{out}:")
        A("s_waitcnt vmcnt(0)")
        A("v_cvt_pk_bf16_f32 v4, v64, v65\nv_cvt_pk_bf16_f32 v5, v66, v67\nv_cvt_pk_bf16_f32 v6, v68, v69\nv_cvt_pk_bf16_f32 v7, v70, v71")
        A(f"v_lshlrev_b32 v1, 3, v0\nv_add_u32 v1, {QV}, v1\nv_mov_b32 v8, 1")
        A("ds_write_b64 v1, v[4:5]\nds_write_b64 v1, v[6:7] offset:512")
        self.flag_add(self.VFL, 8, F_Q)
        self.probe_mark("q", 8)
        self.stamp(13)
        A(f"v_and_b32 v1, 3, v0\nv_lshlrev_b32 v5, 4, v1\nv_add_u32 v5, {STL}, v5\nv_lshlrev_b32 v1, 3, v1")
        self.flag_wait(self.VFL, 4, F_ST, 4, slp=4)
        A("ds_read_b128 v[8:11], v5\nds_read_b128 v[12:15], v5 offset:64")
        A("s_waitcnt lgkmcnt(0)")
        A("v_max3_f32 v16, v8, v9, v10\nv_max_f32 v16, v16, v11")
        for k in range(4):
            A(f"v_sub_f32 v{8+k}, v{8+k}, v16")
        for k in range(4):
            A(f"v_mul_f32 v{8+k}, s59, v{8+k}")
        for k in range(4):
            A(f"v_exp_f32 v{8+k}, v{8+k}")
        A("v_mul_f32 v17, v8, v12\nv_fmac_f32 v17, v9, v13\nv_fmac_f32 v17, v10, v14\nv_fmac_f32 v17, v11, v15")
        A("s_mov_b64 exec, 15")
        self.store_alt(["buffer_store_dwordx2 v[16:17], v1, s[16:19], s64 offen"], "s15")
        A("s_mov_b64 exec, -1")
        self.stamp(5)

    def split_weights(self):
        A = self.A
        self.flag_wait(self.VFL, 4, F_MID, 1, slp=4)
        A("v_and_b32 v1, 7, v0\nv_lshlrev_b32 v1, 5, v1")
        self.cnt_wait("0", "v1")
        A(f"s_lshl_b32 s6, s4, 10\ns_add_u32 s6, s6, {ST_OFF}")
        lp, out = self.lab("spoll"), self.lab("sok")
        A("s_mov_b32 s7, 0")
        A(f"{lp}:")
        if "nostld" in self.dbg: A(f"s_branch {out}")
        A("buffer_load_dwordx4 v[8:11], v2, s[16:19], s6 offen sc1")
        self.spin_guard(7, out)
        A("s_waitcnt vmcnt(0)")
        A("v_cmp_u_f32 vcc, v8, v9\nv_cmp_u_f32 s[78:79], v10, v11")
        A("s_or_b64 vcc, vcc, s[78:79]")
        A(f"s_cbranch_scc0 {out}")
        A(f"s_sleep {self.slp}")
        A(f"s_branch {lp}")
        A(f"{out}:")
        A("s_waitcnt vmcnt(0)")
        A("v_mov_b32 v4, v8\nv_mov_b32 v5, v10")
        self.allred("v_max_f32", [4, 5], [6, 7], rors=("x2", 4, 8))
        A("v_sub_f32 v8, v8, v4\nv_sub_f32 v10, v10, v5\nv_mul_f32 v8, s59, v8\nv_mul_f32 v10, s59, v10")
        A("v_exp_f32 v8, v8\nv_exp_f32 v10, v10")
        A("v_mul_f32 v9, v8, v9\nv_mul_f32 v11, v10, v11")
        self.allred("v_add_f32", [9, 11], [6, 7], rors=("x2", 4, 8))
        A("v_rcp_f32 v9, v9\nv_rcp_f32 v11, v11")
        A(f"v_lshlrev_b32 v5, 3, v0\nv_add_u32 v5, {WT}, v5\nv_mov_b32 v4, 1")
        A("v_mul_f32 v8, v8, v9\nv_mul_f32 v9, v10, v11")
        A("ds_write_b64 v5, v[8:9]")
        self.flag_add(self.VFL, 4, F_W)
        self.stamp(6)

    def cnt_wait(self, soff, voff, pre=False):
        A = self.A
        lp, out = self.lab("cpoll"), self.lab("cok")
        A("s_mov_b32 s7, 0")
        if "noatomic" in self.dbg: A(f"s_branch {out}")
        if pre: A(f"s_branch {lp}c")
        A(f"{lp}:")
        A(f"buffer_load_dword v4, {voff}, s[48:51], {soff} offen sc1")
        self.spin_guard(7, out)
        A(f"{lp}c:")
        A("s_waitcnt vmcnt(0)")
        A("v_and_b32 v5, 0xff, v4\nv_cmp_gt_u32 vcc, 32, v5")
        A(f"s_cbranch_vccz {out}")
        A(f"s_sleep {self.slp}")
        A(f"s_branch {lp}")
        A(f"{out}:")
        A("s_waitcnt vmcnt(0)")

    def ln_scalars(self, mean, var, t):
        A = self.A
        A(f"v_cvt_pk_bf16_f32 v{t}, v{mean}, v{var}")
        A(f"v_lshlrev_b32 v{mean}, 16, v{t}\nv_and_b32 v{var}, s60, v{t}")
        A(f"v_add_f32 v{var}, {EPS}, v{var}")
        A(f"v_cvt_pk_bf16_f32 v{t}, v{var}, v{var}\nv_and_b32 v{var}, s60, v{t}")
        A(f"v_sqrt_f32 v{var}, v{var}")
        A(f"v_cvt_pk_bf16_f32 v{t}, v{var}, v{var}\nv_and_b32 v{var}, s60, v{t}")
        A(f"v_rcp_f32 v{var}, v{var}")

    def h123(self):
        A = self.A
        A("L_h123:")
        l2, l3, dn = self.lab("h2"), self.lab("h3"), self.lab("hd")
        A("v_mov_b32 v4, 0\nv_mov_b32 v5, 0\nv_mov_b32 v6, 0\nv_mov_b32 v7, 0")
        A(f"s_cmp_eq_u32 s3, 2\ns_cbranch_scc1 {l2}\ns_cmp_eq_u32 s3, 3\ns_cbranch_scc1 {l3}")
        self.probe_mark("t0", 4, invert=True)
        self.probe_mark("start", 8)
        self.probe_mark("entry", 8)
        A("v_mov_b32 v8, -1\nv_mov_b32 v9, -1\nv_mov_b32 v10, -1\nv_mov_b32 v11, -1")
        mark = len(self.L)
        A("buffer_store_dwordx4 v[8:11], v2, s[16:19], s66 offen sc1")
        A("buffer_store_dwordx4 v[8:11], v2, s[16:19], s66 offen offset:1024 sc1")
        A(f"s_lshl_b32 s7, s61, 11\ns_add_u32 s7, s7, {Z_OFF}\ns_cmp_lt_u32 s5, 7\ns_cselect_b32 s7, s7, 0x400000")
        A("buffer_store_dwordx4 v[8:11], v2, s[16:19], s7 offen sc1")
        A("buffer_store_dwordx4 v[8:11], v2, s[16:19], s7 offen offset:1024 sc1")
        A("s_mov_b64 exec, 3")
        A("buffer_store_dwordx4 v[8:11], v2, s[16:19], s64 offen sc1")
        A("s_mov_b64 exec, 0xff")
        A("buffer_store_dwordx4 v[8:11], v2, s[16:19], s67 offen sc1")
        A("s_mov_b64 exec, 0xffff")
        A("buffer_store_dwordx4 v[8:11], v2, s[16:19], s58 offen sc1")
        A("s_mov_b64 exec, -1")
        if "noclear" in self.dbg:
            self.L = self.L[:mark] + [x for x in self.L[mark:] if "buffer_store" not in x]
        if "clrpol" in self.dbg:
            self.L = self.L[:mark] + [x.replace(" sc1", " sc1 nt") for x in self.L[mark:]]
        A("v_mov_b32 v5, 1")
        A("s_barrier")
        A("s_waitcnt vmcnt(0)")
        A("s_mov_b64 exec, 1")
        A("v_mov_b32 v6, s14")
        if "noatomic" not in self.dbg: A("buffer_atomic_add v6, v4, s[48:51], s65 offen sc1")
        self.flag_add(self.VFL, 5, F_CLR)
        A(f"s_branch {dn}")
        A(f"{l2}:")
        A(f"ds_write_b128 v{self.VFL}, v[4:7]\nds_write_b128 v{self.VFL}, v[4:7] offset:16\nds_write_b128 v{self.VFL}, v[4:7] offset:32")
        A("s_waitcnt lgkmcnt(0)")
        A("s_barrier")
        if self.prefetch_code:
            A("s_getpc_b64 s[6:7]")
            A("L_pc_anchor:")
            A(f"s_sub_u32 s6, s6, L_pc_anchor-{KN}\ns_subb_u32 s7, s7, 0")
            A("s_lshl_b32 s68, s5, 10\nv_lshl_add_u32 v1, v0, 6, s68")
            A(f"v_min_u32 v4, L_code_end-{KN}-4, v1")
            A("s_mov_b64 exec, 0xffff")
            A(f"global_load_dword v8, v4, s[6:7]")
            A("s_mov_b64 exec, -1")
        A(f"s_branch {dn}")
        A(f"{l3}:")
        A(f"v_add_u32 v1, {ZR}, v2")
        A("ds_write_b128 v1, v[4:7]\nds_write_b128 v1, v[4:7] offset:512")
        A("s_barrier")
        A(f"{dn}:")
        A("s_waitcnt vmcnt(0) lgkmcnt(0)")
        if True:
            sk, lp = self.lab("gskip"), self.lab("gloop")
            A(f"s_cmp_ge_u32 s5, 7\ns_cbranch_scc1 {sk}")
            if "nog" in self.dbg:
                A("v_mov_b32 v5, 1")
                self.flag_add(self.VFL, 5, F_GL)
                A(f"s_branch {sk}")
            A("s_cmp_eq_u32 s3, 1\ns_cselect_b32 s68, s32, s36\ns_cselect_b32 s69, s33, s37")
            A("s_cmp_eq_u32 s3, 3\ns_cselect_b32 s68, s40, s68\ns_cselect_b32 s69, s41, s69")
            A("s_mov_b32 s70, 0x1c0000\ns_mov_b32 s71, 0x20000")
            A("s_mov_b32 s6, 57344\ns_cselect_b32 s72, 1024, s6")
            A("s_lshl_b32 s6, s61, 15\ns_lshl_b32 s7, s61, 6\ns_cmp_eq_u32 s3, 3\ns_cselect_b32 s73, s6, s7")
            A("s_lshl_b32 s74, s3, 15")
            A("s_movk_i32 s6, 3584")
            A("v_lshrrev_b32 v3, 2, v0\nv_mul_lo_u32 v3, v3, s6\nv_and_b32 v1, 3, v0\nv_lshl_add_u32 v3, v1, 4, v3")
            A("s_cmp_eq_u32 s3, 3\ns_cselect_b64 vcc, -1, 0")
            A("v_cndmask_b32 v3, v3, v2, vcc")
            if self.grot:
                A(f"s_and_b32 s78, s61, 1\ns_mul_i32 s78, s78, {self.grot}")
                A("s_mul_i32 s6, s78, s72\ns_add_u32 s73, s73, s6\ns_lshl_b32 s6, s78, 10\ns_add_u32 s74, s74, s6")
            A(f"s_mov_b32 s7, 32")
            A(f"{lp}:")
            A(f"s_waitcnt vmcnt({self.gpace-1})")
            A("s_mov_b32 m0, s74")
            A("s_add_u32 s74, s74, 1024")
            A(f"buffer_load_dwordx4 v3, s[68:71], s73 offen {self.gpol} lds")
            A("s_add_u32 s73, s73, s72")
            if self.grot:
                nw = self.lab("nowrap")
                A(f"s_add_u32 s78, s78, 1\ns_cmp_lg_u32 s78, 32\ns_cbranch_scc1 {nw}")
                A("s_lshl_b32 s6, s72, 5\ns_sub_u32 s73, s73, s6\ns_sub_u32 s74, s74, 0x8000")
                A(f"{nw}:")
            A(f"s_sub_u32 s7, s7, 1\ns_cmp_lg_u32 s7, 0\ns_cbranch_scc1 {lp}")
            A("v_mov_b32 v5, 1\ns_waitcnt vmcnt(0)")
            self.flag_add(self.VFL, 5, F_GL)
            A(f"{sk}:")

    def tail(self):
        A = self.A
        WOA, GB, WDA, P2, P1 = 16, 32, 96, 128, 192
        WTR, SUM, SEL, XR = 208, 224, 160, 164
        vH1, vYw, vYr, vYs, vHVr, vHVs, vHHw, vHHr, vZs, vTR, vWT, CS, vONE = range(228, 241)
        A("v_lshrrev_b32 v12, 4, v0\nv_bfe_u32 v13, v0, 2, 2\nv_and_b32 v14, 3, v0")
        A("v_lshl_add_u32 v15, v12, 3, v13")
        A(f"v_lshrrev_b32 v4, 3, v0\nv_lshlrev_b32 v6, 11, v4\nv_and_b32 v5, 7, v0\nv_lshl_add_u32 v{vH1}, v5, 4, v6")
        A(f"v_lshlrev_b32 v4, 4, v4\nv_add_u32 v{vWT}, {WT}, v4")
        A(f"s_mov_b32 s13, s67")
        A(f"s_lshl_b32 s64, s4, 16\ns_lshl_b32 s6, s62, 9\ns_add_u32 s64, s64, s6\ns_lshl_b32 s6, s3, 7\ns_add_u32 s64, s64, s6\ns_add_u32 s64, s64, {OP_OFF}")
        A("s_add_u32 s65, s64, 0x4000\ns_add_u32 s66, s64, 0x8000\ns_add_u32 s67, s64, 0xc000")
        A(f"s_lshl_b32 s6, s3, 8\ns_add_u32 s7, s6, {YL}")
        A(f"v_lshlrev_b32 v4, 4, v12\nv_add_u32 v{vYw}, s7, v4\nv_add_u32 v{vYr}, {YL}, v2\nv_lshlrev_b32 v{vYs}, 3, v0")
        A(f"v_and_b32 v5, 15, v0")
        A(f"v_add_u32 v{vHVr}, {HV}, v4\nv_add_u32 v{vHVs}, {HV}, v2")
        A(f"s_lshl_b32 s6, s3, 4\ns_add_u32 s6, s6, {HH}\nv_lshl_add_u32 v{vHHw}, v5, 1, s6")
        A(f"v_lshl_add_u32 v6, v5, 6, v4\nv_mov_b32 v{vZs}, v6")
        A(f"v_add_u32 v6, {ZR+64}, v6\nv_cmp_gt_u32 vcc, 8, v5\nv_mov_b32 v{vHHr}, {ZR+16*64}\nv_cndmask_b32 v{vHHr}, v{vHHr}, v6, vcc")
        A(f"s_lshl_b32 s76, s61, 11\ns_lshl_b32 s6, s3, 9\ns_add_u32 s76, s76, s6\ns_add_u32 s76, s76, {Z_OFF}")
        A(f"v_mov_b32 v{vONE}, 1")
        A("s_cmp_ge_u32 s5, 7\ns_cbranch_scc1 L_notg1")
        self.flag_wait(self.VFL, 4, F_GL, 3, slp=4)
        A(f"v_lshlrev_b32 v1, 6, v15\nv_and_b32 v4, 1, v14\nv_lshl_add_u32 v1, v4, 3, v1\nv_lshrrev_b32 v4, 1, v14\nv_lshl_add_u32 v1, v4, 15, v1")
        A(f"s_lshl_b32 s6, s3, 4\ns_add_u32 s6, s6, {WG}\nv_add_u32 v1, s6, v1")
        for half in range(4):
            for m in range(4 * half, 4 * half + 4):
                A(f"ds_read_b64_tr_b16 {vr(GB+4*m,2)}, v1 offset:{m*2048}")
                A(f"ds_read_b64_tr_b16 {vr(GB+4*m+2,2)}, v1 offset:{m*2048 + 256}")
            A("s_waitcnt lgkmcnt(0)")
        A(f"v_lshlrev_b32 v1, 10, v15\nv_lshl_add_u32 v1, v14, 3, v1\ns_lshl_b32 s6, s3, 8\ns_add_u32 s6, s6, {WD}\nv_add_u32 v1, s6, v1")
        for half in range(2):
            for c8 in range(4 * half, 4 * half + 4):
                A(f"ds_read_b64_tr_b16 {vr(WDA+4*c8,2)}, v1 offset:{c8*32}")
                A(f"ds_read_b64_tr_b16 {vr(WDA+4*c8+2,2)}, v1 offset:{c8*32 + 4096}")
            A("s_waitcnt lgkmcnt(0)")
        A("v_mov_b32 v4, 0x3f803f80\nv_mov_b32 v5, v4\nv_mov_b32 v6, v4\nv_mov_b32 v7, v4")
        for m in range(16):
            A(f"v_mfma_f32_16x16x32_bf16 v[8:11], v[4:7], {vr(GB+4*m,4)}, {'0' if m == 0 else 'v[8:11]'}")
        A(f"v_mov_b32 v{CS}, v8")
        A("L_notg1:")
        if self.stamps: self.stamp(15)
        A("s_cmp_lg_u32 s3, 0\ns_cbranch_scc1 L_nosw")
        self.split_weights()
        A("L_nosw:")
        A("v_lshrrev_b32 v4, 3, v0\nv_lshlrev_b32 v3, 13, v4\nv_and_b32 v4, 2, v4\nv_and_b32 v1, 7, v0\nv_xor_b32 v1, v1, v4\nv_lshl_add_u32 v3, v1, 4, v3")
        A("v_xor_b32 v8, 64, v3")
        A("s_lshl_b32 s68, s4, 19\ns_lshl_b32 s6, s62, 11\ns_add_u32 s68, s68, s6\ns_lshl_b32 s6, s63, 7\ns_add_u32 s68, s68, s6")
        A("s_and_b32 s6, s3, 1\ns_lshl_b32 s6, s6, 16\ns_add_u32 s68, s68, s6\ns_lshr_b32 s6, s3, 1\ns_lshl_b32 s6, s6, 10\ns_add_u32 s68, s68, s6")
        A(f"s_lshl_b32 s69, s3, 12\ns_add_u32 s69, s69, {WO}")
        A("v_lshrrev_b32 v4, 1, v13\nv_and_b32 v5, 1, v12\nv_lshl_add_u32 v4, v5, 1, v4")
        A(f"v_lshlrev_b32 v1, 7, v15\nv_lshl_add_u32 v1, v14, 3, v1\nv_lshl_add_u32 v1, v4, 5, v1\nv_add_u32 v{vTR}, s69, v1")
        A(f"v_xor_b32 v9, 32, v{vTR}\nv_xor_b32 v10, 64, v{vTR}\nv_xor_b32 v11, 0x60, v{vTR}")
        self.flag_wait(self.VFL, 4, F_W, 1, slp=2)
        for t in range(4):
            A(f"ds_read_b128 {vr(WTR+4*t,4)}, v{vWT} offset:{t*128}")
        self.flag_wait(self.VFL, 4, F_A, self.acnt, slp=1)
        self.stamp(7)
        for kg in range(4):
            A(f"s_add_u32 m0, s69, {kg*1024}\ns_add_u32 s6, s68, {kg*128*1024}")
            if "nowo" not in self.dbg: A(f"buffer_load_dwordx4 {'v8' if kg & 1 else 'v3'}, s[28:31], s6 offen {self.wpol} lds")

        def h1load(t):
            A(f"buffer_load_dwordx4 {vr(P1+4*t,4)}, v{vH1}, s[16:19], s{64+t} offen {self.h1pol}")

        if self.h1early:
            for t in range(4): h1load(t)
        A("s_barrier")
        self.probe_mark("b3", 8)
        self.stamp(8)
        if not self.h1early:
            if self.d1: A(f"s_sleep {self.d1}")
            for t in range(4): h1load(t)
        A("s_waitcnt vmcnt(4)")
        if self.stamps: self.stamp(5)
        for ct, va in enumerate((vTR, 9, 10, 11)):
            A(f"ds_read_b64_tr_b16 {vr(WOA+4*ct,2)}, v{va}")
            A(f"ds_read_b64_tr_b16 {vr(WOA+4*ct+2,2)}, v{va} offset:512")
        lp, out = self.lab("h1"), self.lab("h1ok")
        A("s_mov_b32 s7, 0")
        A(f"{lp}:")
        A("s_waitcnt vmcnt(0)")
        for t in range(4):
            for k in (0, 2):
                if t == 0:
                    A(f"v_pk_mul_f32 {vr(SUM+k,2)}, {vr(P1+k,2)}, {vr(WTR+k,2)}")
                else:
                    A(f"v_pk_fma_f32 {vr(SUM+k,2)}, {vr(P1+4*t+k,2)}, {vr(WTR+4*t+k,2)}, {vr(SUM+k,2)}")
        A(f"v_cmp_u_f32 vcc, v{SUM}, v{SUM+1}\nv_cmp_u_f32 s[78:79], v{SUM+2}, v{SUM+3}")
        A("s_or_b64 vcc, vcc, s[78:79]")
        A(f"s_cbranch_scc0 {out}")
        self.spin_guard(7, out)
        if self.b1: A(f"s_sleep {self.b1}")
        self.reload(4, P1, h1load)
        A(f"s_branch {lp}")
        A(f"{out}:")
        if self.stamps: A("s_mov_b32 s81, s7")
        self.stamp(9)
        self.lane_sum4(SUM)
        A(f"v_mov_b32_dpp v{SUM+1}, v{SUM} row_ror:15 row_mask:0xf bank_mask:0xf")
        A(f"v_cvt_pk_bf16_f32 v{SUM}, v{SUM}, v{SUM+1}")
        for k in range(4):
            A(f"v_mov_b32_dpp v{4+k}, v{SUM} row_newbcast:{2*k} row_mask:0xf bank_mask:0xf")
        A("s_waitcnt lgkmcnt(0)")
        for ct in range(4):
            A(f"v_mfma_f32_16x16x32_bf16 {vr(P1+4*ct,4)}, {vr(WOA+4*ct,4)}, v[4:7], 0")
        A("s_mov_b32 exec_lo, 0x00010001\ns_mov_b32 exec_hi, 0x00010001")
        for ct in range(4):
            A(f"ds_write_b128 v{vYw}, {vr(P1+4*ct,4)} offset:{ct*64}")
        A(f"s_mov_b64 exec, 1\nds_add_u32 v{self.VFL}, v{vONE} offset:{F_Y}")
        A("s_cmp_lg_u32 s3, 0")
        A("s_cbranch_scc1 L_noy")
        A("s_mov_b64 exec, 0xffff")
        lp, out = self.lab("yw"), self.lab("ywok")
        A("s_mov_b32 s7, 0")
        A(f"{lp}:")
        A(f"ds_read_b32 v8, v{self.VFL} offset:{F_Y}")
        for k in range(4):
            A(f"ds_read_b128 {vr(P1+4*k,4)}, v{vYr} offset:{k*256}")
        A(f"s_add_u32 s7, s7, 1\ns_cmp_gt_u32 s7, {SPIN_MAX*8}\ns_cbranch_scc1 {out}")
        A("s_waitcnt lgkmcnt(4)")
        A("v_cmp_gt_u32 vcc, 4, v8")
        A("s_waitcnt lgkmcnt(0)")
        A(f"s_cbranch_vccnz {lp}")
        A(f"{out}:")
        A("s_waitcnt lgkmcnt(0)")
        A(f"v_pk_add_f32 {vr(P1,2)}, {vr(P1,2)}, {vr(P1+4,2)}\nv_pk_add_f32 {vr(P1+2,2)}, {vr(P1+2,2)}, {vr(P1+6,2)}")
        A(f"v_pk_add_f32 {vr(P1+8,2)}, {vr(P1+8,2)}, {vr(P1+12,2)}\nv_pk_add_f32 {vr(P1+10,2)}, {vr(P1+10,2)}, {vr(P1+14,2)}")
        A(f"v_pk_add_f32 {vr(P1,2)}, {vr(P1,2)}, {vr(P1+8,2)}\nv_pk_add_f32 {vr(P1+2,2)}, {vr(P1+2,2)}, {vr(P1+10,2)}")
        A(f"v_cvt_pk_bf16_f32 v4, v{P1}, v{P1+1}\nv_cvt_pk_bf16_f32 v5, v{P1+2}, v{P1+3}")
        A(f"buffer_store_dwordx2 v[4:5], v{vYs}, s[16:19], s13 offen sc1")
        A("L_noy:")
        A("s_mov_b64 exec, -1")
        if self.stamps:
            self.stamp(10)
            sk = self.lab("st")
            A(f"s_cmp_lt_u32 s5, 7\ns_cbranch_scc1 {sk}")
            A("s_cmp_lg_u32 s3, 0\ns_cbranch_scc1 L_end")
            self.stamp_store(1, 16)
            A("s_endpgm")
            A(f"{sk}:")
        else:
            A("s_cmp_ge_u32 s5, 7\ns_cbranch_scc1 L_end")
        A("s_barrier")
        self.stamp(11)
        A(f"ds_read_b128 v[4:7], v{vHVs}")
        for m in range(14):
            A(f"ds_read_b128 {vr(P2+4*m,4)}, v{vHVr} offset:{m*64}")
        T = 192
        st = []
        for k in range(4):
            st += [f"v_lshlrev_b32 v{T+2*k}, 16, v{4+k}", f"v_and_b32 v{T+2*k+1}, s60, v{4+k}"]
        st += [f"v_readfirstlane_b32 s6, v{T}"]
        st += [f"v_subrev_f32 v{T+k}, s6, v{T+k}" for k in range(7, -1, -1)]
        st += [f"v_add_f32 v{T+8}, v{T}, v{T+1}", f"v_mul_f32 v{T+9}, v{T}, v{T}"]
        for k in range(1, 8):
            if k >= 2:
                st += [f"v_add_f32 v{T+8}, v{T+8}, v{T+k}"]
            st += [f"v_fmac_f32 v{T+9}, v{T+k}, v{T+k}"]
        save = self.L
        self.L = []
        self.allred("v_add_f32", [T + 8, T + 9], [T + 10, T + 11])
        A(f"v_mul_f32 v{T+8}, {INV512}, v{T+8}\nv_mul_f32 v{T+9}, {INV512}, v{T+9}")
        A(f"v_fma_f32 v{T+9}, -v{T+8}, v{T+8}, v{T+9}\nv_add_f32 v{T+8}, s6, v{T+8}\nv_max_f32 v{T+9}, 0, v{T+9}")
        self.ln_scalars(T + 8, T + 9, T + 10)
        st += [x.strip() for x in self.L]
        self.L = save
        per = -(-len(st) // 16)
        for m in range(16):
            if m == 0:
                A("s_waitcnt lgkmcnt(13)")
            else:
                A(f"s_waitcnt lgkmcnt({15-m})")
            A(f"v_mfma_f32_16x16x32_bf16 v[8:11], {vr(P2+4*m,4)}, {vr(GB+4*m,4)}, {'0' if m == 0 else 'v[8:11]'}")
            if m == 0:
                for m2 in (14, 15):
                    A(f"ds_read_b128 {vr(P2+4*m2,4)}, v{vHVr} offset:{m2*64}")
            for x in st[m * per:(m + 1) * per]:
                A(x)
        A(f"v_fma_f32 v4, -v{T+8}, v{CS}, v8\nv_mul_f32 v4, v4, v{T+9}")
        A("v_cvt_pk_bf16_f32 v4, v4, v4\nv_and_b32 v4, s60, v4")
        A("v_mul_f32 v5, s59, v4\nv_exp_f32 v5, -v5")
        A("v_mov_b32_dpp v6, v4 row_ror:8 row_mask:0xf bank_mask:0xf")
        A("v_add_f32 v5, 1.0, v5\nv_rcp_f32 v5, v5")
        A("v_cvt_pk_bf16_f32 v5, v5, v5\nv_and_b32 v5, s60, v5")
        A("v_mul_f32 v5, v5, v6\nv_cvt_pk_bf16_f32 v5, v5, v5")
        A("s_mov_b64 exec, 0xff")
        A(f"ds_write_b16 v{vHHw}, v5")
        A("s_mov_b64 exec, -1")
        A("s_waitcnt lgkmcnt(0)")
        if self.stamps: self.stamp(4)
        A("s_barrier")
        for c8 in range(8):
            A(f"ds_read_b128 {vr(P1+4*c8,4)}, v{vHHr} offset:{(7-c8)*64}")
        for c8 in range(8):
            A(f"s_waitcnt lgkmcnt({7-c8})")
            A(f"v_mfma_f32_16x16x32_bf16 v[8:11], {vr(WDA+4*c8,4)}, {vr(P1+4*c8,4)}, {'0' if c8 == 0 else 'v[8:11]'}")
        A("s_mov_b32 exec_lo, 0x00ff00ff\ns_mov_b32 exec_hi, 0x00ff00ff")
        A(f"buffer_store_dwordx4 v[8:11], v{vZs}, s[16:19], s76 offen sc1")
        if self.stamps:
            A("s_mov_b64 exec, -1")
            self.stamp(12)
            A("s_cmp_lg_u32 s3, 0\ns_cbranch_scc1 L_end")
            self.stamp_store(1, 16)

    def build(self):
        self.entry()
        self.streamer()
        self.helper()
        self.A("L_end:\ns_endpgm\nL_code_end:")
        body, nn = hazard.fix(self.L)
        head = open("cdna_kernels/" + KN[:-7] + ".s.ref").read().split("; Override launch")[0]
        out = head
        out += f"; @launch grid=(256,1,1) block=(512,1,1) lds={LDS_SIZE}\n"
        out += '.amdgcn_target "amdgcn-amd-amdhsa--gfx950"\n.text\n'
        out += f".globl {KN}\n.p2align 8\n.type {KN},@function\n{KN}:\n"
        out += "\n".join(body) + "\n"
        out += f""".section .rodata,"a"
.p2align 6
.amdhsa_kernel {KN}
  .amdhsa_next_free_vgpr 256
  .amdhsa_next_free_sgpr 102
  .amdhsa_accum_offset 256
  .amdhsa_group_segment_fixed_size 0
  .amdhsa_kernarg_size 96
  .amdhsa_user_sgpr_count 2
  .amdhsa_user_sgpr_kernarg_segment_ptr 1
  .amdhsa_system_sgpr_workgroup_id_x 1
.end_amdhsa_kernel
"""
        return out


def gen(**kw):
    return Gen(**kw).build()


if __name__ == "__main__":
    kw = eval("dict(" + (sys.argv[2] if len(sys.argv) > 2 else "") + ")")
    open(sys.argv[1], "w").write(gen(**kw))
```

```python
import re
TRANS = ("v_exp_", "v_log_", "v_rcp_", "v_rsq_", "v_sqrt_", "v_sin_", "v_cos_")
def regs_of(tok):
    tok = tok.strip()
    neg = tok.lstrip("-")
    if neg.startswith("abs(") : neg = neg[4:-1]
    if neg.startswith("|"): neg = neg.strip("|")
    m = re.fullmatch(r"([vsa])(\d+)", neg)
    if m: return {(m.group(1), int(m.group(2)))}
    m = re.fullmatch(r"([vsa])\[(\d+):(\d+)\]", neg)
    if m: return {(m.group(1), i) for i in range(int(m.group(2)), int(m.group(3))+1)}
    if neg == "vcc": return {("s", 106), ("s", 107)}
    if neg == "vcc_lo": return {("s", 106)}
    if neg == "vcc_hi": return {("s", 107)}
    if neg == "exec": return {("s", 126), ("s", 127)}
    if neg == "exec_lo": return {("s", 126)}
    if neg == "exec_hi": return {("s", 127)}
    if neg == "m0": return {("s", 124)}
    return set()
class I:
    def __init__(self, text):
        self.text = text
        t = text.split(";")[0].strip()
        self.label = None; self.is_ins = False
        self.cls = None; self.wr = set(); self.rd = set()
        self.srcA = self.srcB = self.srcC = set(); self.passes = 0
        self.dpp = False; self.perm = False; self.trans = False; self.states = 1
        self.target = None; self.uncond = False; self.ends = False
        self.store_data = set(); self.wide_store = False; self.ldsdma = False; self.lanesel = set(); self.rdlane = set()
        self.sread_vmem = set()
        if not t: return
        if t.endswith(":"): self.label = t[:-1]; return
        if t.startswith("."): return
        self.is_ins = True
        parts = t.split(None, 1); mn = parts[0]; self.mn = mn
        rest = parts[1] if len(parts) > 1 else ""
        ops = []; depth = 0; cur = ""
        for ch in rest:
            if ch == "[" or ch == "(": depth += 1
            if ch == "]" or ch == ")": depth -= 1
            if ch == "," and depth == 0: ops.append(cur.strip()); cur = ""
            else: cur += ch
        if cur.strip(): ops.append(cur.strip())
        mods = ""
        if ops:
            last = ops[-1].split(None, 1)
            ops[-1] = last[0]
            mods = last[1] if len(last) > 1 else ""
        self.ops = ops; self.mods = mods
        R = [regs_of(o) for o in ops]
        U = lambda l: set().union(*l) if l else set()
        if mn == "s_nop": self.cls = "nop"; self.states = int(ops[0], 0) + 1; return
        if mn.startswith("v_mfma"):
            self.cls = "mfma"; self.wr = R[0]; self.srcA, self.srcB, self.srcC = R[1], R[2], R[3]
            self.rd = R[1] | R[2] | R[3]
            if "32x32" in mn: self.passes = 8
            elif "16x16" in mn: self.passes = 4
            else: self.passes = 2
            assert "bf16" in mn or "f16" in mn
            return
        if mn.startswith("v_"):
            self.cls = "valu"
            self.trans = mn.startswith(TRANS)
            self.dpp = "_dpp" in mn or "row_" in mods or "quad_perm" in mods
            if mn.startswith("v_permlane"):
                self.perm = True; self.wr = R[0] | R[1]; self.rd = R[0] | R[1]; return
            if mn.startswith(("v_add_co", "v_sub_co", "v_addc_co", "v_subb_co")):
                self.wr = R[0] | R[1]; self.rd = U(R[2:]); return
            self.wr = R[0]; self.rd = U(R[1:])
            if mn.startswith(("v_fmac", "v_pk_fmac", "v_writelane", "v_dot2c")): self.rd |= R[0]
            if self.dpp: self.rd |= R[0]
            if mn.startswith(("v_readlane", "v_readfirstlane")): self.rdlane = R[1]
            if mn.startswith(("v_readlane", "v_writelane")): self.lanesel = R[2]
            assert not mn.startswith("v_cmpx")
            return
        if mn.startswith(("buffer_", "global_")):
            self.cls = "vmem"
            self.ldsdma = " lds" in (" " + mods) or "_lds_" in mn
            allr = U(R)
            self.sread_vmem = {r for r in allr if r[0] == "s"}
            if "_load" in mn and not self.ldsdma:
                self.wr = R[0]; self.rd = U(R[1:])
            elif "_load" in mn:
                self.rd = allr
            else:
                self.rd = allr
                d = R[0] if mn.startswith("buffer_") else R[1]
                self.store_data = d
                self.wide_store = mn.endswith(("x3", "x4"))
                if "atomic" in mn and "sc0" in mods: self.wr = d
            return
        if mn.startswith("ds_"):
            self.cls = "ds"
            if mn.startswith(("ds_read", "ds_bpermute", "ds_permute", "ds_swizzle")) or "_rtn" in mn:
                self.wr = R[0]; self.rd = U(R[1:])
            else: self.rd = U(R)
            return
        if mn.startswith("s_"):
            self.cls = "salu"
            if mn in ("s_branch",) or mn.startswith("s_cbranch"):
                self.target = ops[0]; self.uncond = mn == "s_branch"; return
            if mn == "s_endpgm": self.ends = True; return
            if mn.startswith(("s_cmp", "s_bitcmp", "s_waitcnt", "s_barrier", "s_sleep", "s_setprio")):
                self.rd = U(R); return
            self.wr = R[0] if R else set(); self.rd = U(R[1:])
            if "saveexec" in mn: self.wr = self.wr | regs_of("exec")
            return
        raise ValueError("unknown instruction: " + t)
V = lambda s: {r for r in s if r[0] in "va"}
S = lambda s: {r for r in s if r[0] == "s"}
def need(p, c):
    n = 0
    if p.cls == "valu":
        pv = V(p.wr); ps = S(p.wr)
        if c.cls == "mfma" and pv & c.rd: n = max(n, 2)
        if c.cls == "valu":
            if c.dpp and pv & c.rd: n = max(n, 2)
            if c.perm and pv & c.rd: n = max(n, 2)
            if p.trans and not c.trans and pv & c.rd: n = max(n, 1)
            if p.trans and c.trans and pv & c.rd: n = max(n, 1)
            if ps & c.rd: n = max(n, 2)
            if ps & c.lanesel: n = max(n, 4)
            if pv & c.rdlane: n = max(n, 1)
        if c.cls == "vmem" and ps & c.sread_vmem: n = max(n, 5)
        if c.cls == "salu" and ps & c.rd: n = max(n, 1)
    if p.cls == "valu" and p.mn.startswith("v_dot"):
        if c.cls in ("valu", "mfma", "vmem", "ds") and V(p.wr) & (c.rd | c.wr):
            same = c.cls == "valu" and c.mn == p.mn
            if not same: n = max(n, 3)
            elif V(p.wr) & (regs_of(c.ops[1]) | regs_of(c.ops[2])): n = max(n, 3)
    if p.cls == "mfma":
        idx = {2: 0, 4: 1, 8: 2}[p.passes]
        if c.cls == "mfma":
            if p.wr & (c.srcA | c.srcB): n = max(n, [5, 8, 12][idx])
            if p.wr & c.srcC:
                if p.wr == c.srcC and p.passes == c.passes: n = max(n, [2, 0, 0][idx])
                else: n = max(n, [4, 6, 10][idx])
            elif p.wr & c.wr: n = max(n, [5, 8, 12][idx])
        elif c.cls in ("valu", "vmem", "ds"):
            if p.wr & (c.rd | c.wr): n = max(n, [5, 8, 12][idx])
            if c.cls == "valu" and p.srcC & c.wr: n = max(n, [1, 3, 7][idx])
    if p.cls == "vmem" and p.wide_store:
        if c.cls in ("valu", "mfma") and p.store_data & c.wr: n = max(n, 2)
        elif p.store_data & c.wr: n = max(n, 1)
    if p.cls == "salu" and ("s", 124) in p.wr and c.cls == "vmem" and c.ldsdma: n = max(n, 1)
    return n
def fix(lines, verbose=False):
    ins = [I(l) for l in lines]
    total = 0
    def maps():
        labels = {x.label: i for i, x in enumerate(ins) if x.label}
        jumps = {}
        for i, x in enumerate(ins):
            if x.target is not None: jumps.setdefault(labels[x.target], []).append(i)
        return jumps
    while True:
        jumps = maps()
        changed = False
        i = 0
        while i < len(ins):
            c = ins[i]
            if c.is_ins and c.cls != "nop":
                worst = 0
                stack = [(i, 0)]; seen = set()
                while stack:
                    pos, dist = stack.pop()
                    preds = []
                    if pos > 0:
                        q = ins[pos-1]
                        if not (q.is_ins and (q.uncond or q.ends)): preds.append(pos-1)
                    if ins[pos].label: preds += jumps.get(pos, [])
                    for q in preds:
                        x = ins[q]
                        if (q, dist) in seen: continue
                        seen.add((q, dist))
                        if x.is_ins:
                            worst = max(worst, need(x, c) - dist)
                            d2 = dist + x.states
                        else: d2 = dist
                        if d2 < 13: stack.append((q, d2))
                if worst > 0:
                    ins.insert(i, I(f"    s_nop {worst-1}")); total += worst
                    if verbose: print("nop", worst, "before", c.text)
                    changed = True
                    jumps = maps()
                    i += 1
            i += 1
        if not changed: break
    return [x.text for x in ins], total
```

```python
import sys
import hazard

KN = "sequential_preLN__gqa_block_cached__glu_gated_glu__decode_kernel"

Q_OFF = 0x0
ST_OFF = 0x2000
Y_OFF = 0x10000
Z_OFF = 0x20000
OP_OFF = 0x40000
YF_OFF = 0x4000
QP_OFF = 0xC0000
WS_SIZE = 0xD0000
STAMP_OFF = 0x100000
NG = 56
WQ = 0
WO = 16384
WG = 32768
WU = 65536
WD = 98304
ACC = 131072
XN = ACC + 8192
QV = XN + 1024
HV = QV + 1024
ZR = HV + 1024
HH = ZR + 8 * 64
OV = ZR + 1536
STL = OV + 256
ML = STL + 128
FL = ML + 64
F_Q, F_ST, F_W, F_EARLY, F_MID, F_A, F_CLR, F_GL, F_Y, F_LOC = 0, 4, 8, 12, 16, 20, 24, 28, 32, 36
WT = ML + 128
YL = WT + 512
LDS_SIZE = YL + 1024

LOG2E = "0x3fb8aa3b"
SCALE = "0x3db504f3"
EPS = "0x3727c5ac"
INV512 = "0x3b000000"
HIMASK = "0xffff0000"
SPIN_MAX = 100000


def vr(a, n=1):
    return f"v{a}" if n == 1 else f"v[{a}:{a+n-1}]"


def sr(a, n=1):
    return f"s{a}" if n == 1 else f"s[{a}:{a+n-1}]"


class Gen:
    def __init__(self, D=5, DN=None, DG=None, RING=48, NTN=67, NTG=55, pol="nt", wpol="nt", qpol=None, gpol=None,
                 stamps=0, gpace=3, grot=0, outpol="", pvrate=3, kbudget=3, prefetch_code=True, dbg=(), slp=8,
                 h2pre=False, h2rot=False, h2delay=0, qpace=0, gran1=True, sprio=0, h1early=False, d1=3, d2=12, d3=16, b1=0, b2=0, b3=0, fw=2, h2mode=0, oppol='sc1', h1pol='sc1', local=True, h2gate=True, qlate=True, dq=16, gmap8=True, yhint=False, bf=0, dot2=True, probe=None, ps=9, pticks=6000, n_early=18, mid_back=26, a_back=1, acnt=4, stdelay=3):
        self.L = []
        self.uid = 0
        self.RING, self.NTN, self.NTG, self.pol, self.wpol = RING, NTN, NTG, pol, wpol
        assert NTG + 3 * NTN == 256
        self.DN = tuple(DN) if DN else ((0, D), (-12, 12))
        self.DG = tuple(DG) if DG else ((0, D),)
        self.qpol = wpol if qpol is None else qpol
        self.gpol = wpol if gpol is None else gpol
        self.stamps, self.gpace, self.grot, self.outpol = stamps, gpace, grot, outpol
        self.pvrate, self.kbudget, self.prefetch_code, self.dbg, self.slp = pvrate, kbudget, prefetch_code, dbg, slp
        self.h2pre = h2pre; self.h2rot = h2rot; self.h2delay = h2delay; self.qpace = qpace; self.gran1 = gran1; self.sprio = sprio; self.h1early = h1early; self.d1, self.d2, self.d3, self.b1, self.b2, self.b3 = d1, d2, d3, b1, b2, b3; self.fw = fw; self.h2mode = h2mode; self.oppol = oppol; self.h1pol = h1pol; self.local = local; self.h2gate = h2gate; self.qlate = qlate; self.dq = dq; self.gmap8 = gmap8; self.yhint = yhint; self.bf = bf; self.dot2 = dot2; self.probe = probe; self.ps = ps; self.pticks = pticks
        self.n_early, self.mid_back, self.a_back, self.acnt, self.stdelay = n_early, mid_back, a_back, acnt, stdelay

    def A(self, s):
        for l in s.split("\n"):
            l = l.strip()
            if not l:
                continue
            self.L.append(l if l.endswith(":") else "    " + l)

    def lab(self, p):
        self.uid += 1
        return f"L_{p}_{self.uid}"

    def stamp(self, k, keep=False):
        if self.stamps and (self.stamps != 4 or keep):
            self.A(f"s_memrealtime s[98:99]\ns_waitcnt lgkmcnt(0)\ns_mov_b32 s{80+k}, s98")

    def stamp_store(self, role, n):
        if not self.stamps:
            return
        A = self.A
        A("s_mov_b64 exec, 1")
        A(f"s_lshl_b32 s6, s2, 9\ns_add_u32 s6, s6, {STAMP_OFF + role*64}")
        A("v_mov_b32 v1, 0")
        for k in range(n):
            A(f"v_mov_b32 v3, s{80+k}")
            A(f"buffer_store_dword v3, v1, s[16:19], s6 offen offset:{4*k}")
        A("s_mov_b64 exec, -1")

    def allred(self, op, regs, tmps, rors=(8, 4, 2, 1)):
        A = self.A
        for n in rors:
            for r in regs:
                if n == "x2":
                    A(f"{op}_dpp v{r}, v{r}, v{r} quad_perm:[2,3,0,1] row_mask:0xf bank_mask:0xf")
                else:
                    A(f"{op}_dpp v{r}, v{r}, v{r} row_ror:{n} row_mask:0xf bank_mask:0xf")
        for sw in ("v_permlane16_swap_b32", "v_permlane32_swap_b32"):
            for r, t in zip(regs, tmps):
                A(f"v_mov_b32 v{t}, v{r}")
            for r, t in zip(regs, tmps):
                A(f"{sw} v{r}, v{t}")
            for r, t in zip(regs, tmps):
                A(f"{op} v{r}, v{r}, v{t}")

    def flag_add(self, vaddr, vone, off):
        self.A(f"s_mov_b64 exec, 1\nds_add_u32 v{vaddr}, v{vone} offset:{off}\ns_mov_b64 exec, -1")

    def flag_wait(self, vaddr, vt, off, val, slp=2):
        lp, out = self.lab("fw"), self.lab("fwok")
        self.A("s_mov_b32 s7, 0")
        self.A(f"{lp}:")
        self.A(f"ds_read_b32 v{vt}, v{vaddr} offset:{off}")
        self.A(f"s_add_u32 s7, s7, 1\ns_cmp_gt_u32 s7, {SPIN_MAX*8}\ns_cbranch_scc1 {out}")
        self.A("s_waitcnt lgkmcnt(0)")
        self.A(f"v_cmp_le_u32 vcc, {val}, v{vt}")
        self.A(f"s_cbranch_vccnz {out}")
        self.A(f"s_sleep {slp}")
        self.A(f"s_branch {lp}")
        self.A(f"{out}:")
        self.A("s_waitcnt lgkmcnt(0)")

    def probe_mark(self, name, off, invert=False):
        if not self.probe or (name != "t0" and name != self.probe):
            return
        A = self.A
        sk = self.lab("pm")
        if name == "t0": A(f"s_cmp_lg_u32 s5, 0\ns_cbranch_scc1 {sk}")
        elif name in ("entry", "start", "sfirst", "sland", "hx"): A(f"s_cmp_lg_u32 s5, {self.ps}\ns_cbranch_scc1 {sk}")
        else: A(f"s_cmp_lg_u32 s3, 0\ns_cbranch_scc1 {sk}")
        if name in ("t0", "entry"): A("s_mov_b32 s96, s94")
        else: A("s_memrealtime s[96:97]\ns_waitcnt lgkmcnt(0)")
        if invert: A("s_not_b32 s96, s96")
        A(f"s_mov_b64 exec, 1\nv_mov_b32 v250, s96\nv_mov_b32 v251, 0")
        A(f"buffer_atomic_umax v250, v251, s[48:51], 0 offen offset:{off} sc1")
        A("s_mov_b64 exec, -1")
        A(f"{sk}:")

    def store_alt(self, stores, sflag):
        a, b = self.lab("sa"), self.lab("sb")
        self.A(f"s_cmp_lg_u32 {sflag}, 0\ns_cbranch_scc1 {a}")
        for x in stores: self.A(x + " sc1")
        self.A(f"s_branch {b}\n{a}:")
        for x in stores: self.A(x)
        self.A(f"{b}:")

    def spin_guard(self, cnt, out):
        self.A(f"s_add_u32 s{cnt}, s{cnt}, 1\ns_cmp_gt_u32 s{cnt}, {SPIN_MAX if not [x for x in self.dbg if x.startswith(('no', 'wqc'))] else 2}\ns_cbranch_scc1 {out}")

    def entry(self):
        A = self.A
        if self.probe: A("s_memrealtime s[94:95]\ns_load_dwordx2 s[48:49], s[0:1], 80\ns_mov_b32 s50, 256\ns_mov_b32 s51, 0x20000")
        A("s_load_dwordx2 s[8:9], s[0:1], 8")
        A("s_load_dwordx2 s[12:13], s[0:1], 16")
        A("s_load_dwordx2 s[16:17], s[0:1], 88")
        A("s_cmp_ge_u32 s2, 256")
        A("s_cbranch_scc1 L_end")
        A("v_readfirstlane_b32 s3, v0")
        A("s_and_b32 s4, s2, 7")
        A("s_lshr_b32 s5, s2, 3")
        A("v_and_b32 v0, 63, v0")
        A("s_lshr_b32 s3, s3, 6")
        if self.gmap8:
            A("s_lshl_b32 s100, s4, 3\ns_add_u32 s100, s100, s5\ns_cmp_lt_u32 s5, 8\ns_cselect_b32 s100, s100, 63")
            A("s_mul_i32 s101, s4, 3\ns_add_u32 s101, s101, s5\ns_cmp_lt_u32 s5, 3\ns_cselect_b32 s101, s101, 63")
        else:
            A("s_mul_i32 s100, s4, 7\ns_add_u32 s100, s100, s5\ns_cmp_lt_u32 s5, 7\ns_cselect_b32 s100, s100, 63")
            A("s_lshl_b32 s101, s4, 1\ns_add_u32 s101, s101, s5\ns_cmp_lt_u32 s5, 2\ns_cselect_b32 s101, s101, 63")
        A(f"s_mov_b32 s18, {0x200000 if self.stamps else WS_SIZE}")
        A("s_mov_b32 s19, 0x20000")
        A("s_cmp_ge_u32 s3, 4")
        A("s_cbranch_scc1 L_helper")

    def streamer(self):
        A = self.A
        A("s_mov_b32 s10, 0x4000000\ns_mov_b32 s11, 0x20000\ns_mov_b32 s14, 0x4000000\ns_mov_b32 s15, 0x20000")
        A("v_bfe_u32 v1, v0, 2, 2\nv_lshlrev_b32 v1, 8, v1\nv_and_b32 v3, 3, v0\nv_lshl_add_u32 v1, v3, 4, v1")
        A("v_lshrrev_b32 v3, 4, v0\nv_lshl_add_u32 v1, v3, 6, v1\nv_lshlrev_b32 v2, 4, v0")
        A(f"s_lshl_b32 s56, s4, 23\ns_lshl_b32 s57, s3, {10 if self.gran1 else 2}\ns_add_u32 s56, s56, s57")
        if self.sprio: A(f"s_setprio {self.sprio}")
        two = self.DG != self.DN or self.NTG != self.NTN
        if two:
            A("s_cmp_lt_u32 s5, 8\ns_cbranch_scc1 L_stream_g")
        A(f"s_mul_i32 s57, s5, {self.NTN*4096}\ns_add_u32 s56, s56, s57\ns_sub_u32 s56, s56, {8*(self.NTN-self.NTG)*4096}")
        self.stream_body(self.DN, self.NTN, not two)
        if two:
            A("L_stream_g:")
            A(f"s_mul_i32 s57, s5, {self.NTG*4096}\ns_add_u32 s56, s56, s57")
            self.stream_body(self.DG, self.NTG, True)
        self.stream_tail()

    def stream_body(self, sched, NT, islast):
        A = self.A
        RING = self.RING
        R0 = 256 - 4 * RING
        assert R0 >= 64
        NB = -(-NT // 4)
        rem = NT % 4
        NL = 2 * NT
        S0, VFL, VONE, VFG, D0, X0, X1, VM, VL, VF, VT, VT2, VRD, M4 = 8, 25, 26, 27, 28, 44, 45, 46, 47, 48, 49, 50, 51, 52
        ACC0, ACC1 = 56, 60
        AB, TLO, THI = 28, 36, 37
        assert NB <= 17
        slot = lambda n: R0 + 4 * (n % RING)
        A("s_mov_b32 s57, s56")
        if rem and not self.gran1:
            A(f"s_mul_i32 s62, s3, {(4-rem)*1024}\ns_sub_u32 s62, 16384, s62")
        A("s_waitcnt lgkmcnt(0)")

        def depth(n):
            d = sched[0][1]
            for n0, dd in sched:
                if n >= (n0 if n0 >= 0 else NL + n0):
                    d = dd
            return d
        st = {"landed": -1}
        self.probe_mark("sfirst", 8)
        self.stamp(0, True)

        def load(n):
            d = depth(n)
            if n - d > st["landed"]:
                A(f"s_waitcnt vmcnt({d-1})")
                st["landed"] = n - d
            if n == depth(0): self.probe_mark("sland", 8)
            if self.stamps == 3 and n in (8, 20, 32, 46, 90): self.stamp({8: 1, 20: 2, 32: 3, 46: 4, 90: 5}[n])
            t = n % NT
            j = t % 4
            va, srd, so = ("v1", "s[8:11]", "s56") if n < NT else ("v2", "s[12:15]", "s57")
            if self.gran1:
                A(f"buffer_load_dwordx4 {vr(slot(n),4)}, {va}, {srd}, {so} offen {self.pol}")
                if t + 1 < NT: A(f"s_add_u32 {so}, {so}, 4096")
            else:
                A(f"buffer_load_dwordx4 {vr(slot(n),4)}, {va}, {srd}, {so} offen offset:{j*1024} {self.pol}")
            if j == 3 and t + 1 < NT and not self.gran1:
                A(f"s_add_u32 {so}, {so}, {'s62' if (rem and t + 1 == 4*(NB-1)) else 16384}")
            if n == depth(0) - 1:
                A(f"v_mov_b32 v{VFL}, {FL}\nv_mov_b32 v{VONE}, 1")
                A(f"s_mov_b32 s58, {SCALE}\ns_mov_b32 s59, {LOG2E}\ns_mov_b32 s60, {HIMASK}")
                A(f"v_and_b32 v3, 3, v0\nv_lshlrev_b32 v3, 8, v3\nv_bfe_u32 v4, v0, 2, 2\nv_lshl_add_u32 v3, v4, 4, v3")
                A(f"v_lshrrev_b32 v4, 4, v0\nv_lshl_add_u32 v3, v4, 6, v3\nv_add_u32 v3, {QV}, v3")
                A("s_barrier")
            if n == self.n_early:
                self.flag_add(VFL, VONE, F_EARLY)
            if n == NL - self.mid_back:
                self.flag_add(VFL, VONE, F_MID)
            if n == NL - self.a_back:
                self.flag_add(VFL, VONE, F_A)

        def flagged_read(off, val, read):
            lp, out = self.lab("sf"), self.lab("sfok")
            A("s_mov_b32 s7, 0")
            A(f"{lp}:")
            A(f"ds_read_b32 v{VFG}, v{VFL} offset:{off}")
            A(read)
            A(f"s_add_u32 s7, s7, 1\ns_cmp_gt_u32 s7, {SPIN_MAX*8}\ns_cbranch_scc1 {out}")
            A("s_waitcnt lgkmcnt(0)")
            A(f"v_cmp_gt_u32 vcc, {val}, v{VFG}")
            A(f"s_cbranch_vccnz {lp}")
            A(f"{out}:")
            A("s_waitcnt lgkmcnt(0)")

        def qsync():
            if self.stamps == 2: self.stamp(1)
            flagged_read(F_Q, 1, f"ds_read_b128 v[4:7], v3\nds_read_b32 v{VT}, v{VFL} offset:{F_LOC}")
            A(f"v_readfirstlane_b32 s63, v{VT}")
            if self.stamps == 2: self.stamp(2)

        def qk(i):
            nt = rem if (rem and i == NB - 1) else 4
            for j in range(nt):
                A(f"v_mfma_f32_16x16x32_bf16 {vr(D0+4*j,4)}, {vr(slot(4*i+j),4)}, v[4:7], 0")
            d = lambda j, b: D0 + 4 * j + b
            dp = lambda dst, s0, s1, ror, bm: A(f"v_add_f32_dpp v{dst}, v{s0}, v{s1} row_ror:{ror} row_mask:0xf bank_mask:{bm:#x}")
            dp(X0, d(0, 1), d(0, 0), 12, 1)
            dp(X1, d(2, 1), d(2, 0), 12, 1)
            dp(X0, d(1, 0), d(1, 1), 4, 2)
            dp(X1, d(3, 0), d(3, 1), 4, 2)
            dp(X0, d(0, 3), d(0, 2), 12, 4)
            dp(X1, d(2, 3), d(2, 2), 12, 4)
            dp(X0, d(1, 2), d(1, 3), 4, 8)
            dp(X1, d(3, 2), d(3, 3), 4, 8)
            dp(S0 + i, X0, X0, 8, 3)
            dp(S0 + i, X1, X1, 8, 12)
            if nt < 4:
                A(f"v_mov_b32 v{VT}, 0xff800000")
                A(f"v_mov_b32_dpp v{S0+i}, v{VT} quad_perm:[0,1,2,3] row_mask:0xf bank_mask:{(0xf << nt) & 0xf:#x}")

        def rnd(i):
            a, b = S0 + i, S0 + min(i + 1, NB - 1)
            A(f"v_cvt_pk_bf16_f32 v{VT}, v{a}, v{b}")
            if a != b: A(f"v_lshlrev_b32 v{a}, 16, v{VT}")
            A(f"v_and_b32 v{b}, s60, v{VT}")
            if a != b: A(f"v_mul_f32 v{a}, s58, v{a}")
            A(f"v_mul_f32 v{b}, s58, v{b}")
            A(f"v_cvt_pk_bf16_f32 v{VT}, v{a}, v{b}")
            if a != b: A(f"v_lshlrev_b32 v{a}, 16, v{VT}")
            A(f"v_and_b32 v{b}, s60, v{VT}")
            if i == 0:
                A(f"v_max_f32 v{VM}, v{a}, v{b}")
            else:
                A(f"v_max3_f32 v{VM}, v{VM}, v{a}, v{b}")

        def sm_max():
            self.allred("v_max_f32", [VM], [VT], rors=(4, 8))
            A(f"v_mul_f32 v{VT2}, s59, v{VM}")

        def sm_exp(lo, hi):
            for i in range(lo, hi):
                A(f"v_fma_f32 v{S0+i}, v{S0+i}, s59, -v{VT2}")
            for i in range(lo, hi):
                A(f"v_exp_f32 v{S0+i}, v{S0+i}")
            for i in range(lo, hi):
                if i == 1:
                    A(f"v_add_f32 v{VL}, v{S0}, v{S0+1}")
                elif i > 1:
                    A(f"v_add_f32 v{VL}, v{VL}, v{S0+i}")

        def sm_sum():
            self.allred("v_add_f32", [VL], [VT], rors=(4, 8))
            A(f"v_and_b32 v3, 3, v0\nv_lshlrev_b32 v3, 4, v3\nv_add_u32 v3, {STL}, v3")
            A(f"s_lshl_b32 s6, s3, 2\nv_add_u32 v4, s6, v3")
            A("s_mov_b64 exec, 15")
            A(f"ds_write_b32 v4, v{VM}\nds_write_b32 v4, v{VL} offset:64")
            self.flag_add(VFL, VONE, F_ST)
            if self.stamps == 2: self.stamp(3)

        def pv_setup():
            for r in list(range(AB, AB + 8)) + list(range(ACC0, ACC0 + 8)):
                A(f"v_mov_b32 v{r}, 0")
            A(f"s_lshl_b32 s6, s3, 10\ns_add_u32 s6, s6, {ACC}\nv_add_u32 v{VRD}, s6, v2")
            A(f"s_lshl_b32 s61, s4, 16\ns_lshl_b32 s7, s5, 11\ns_add_u32 s61, s61, s7\ns_lshl_b32 s7, s3, 10\ns_add_u32 s61, s61, s7\ns_add_u32 s61, s61, {OP_OFF}")

        def msync():
            if self.stamps == 2: self.stamp(4)
            flagged_read(F_ST, 4, f"ds_read_b128 {vr(M4,4)}, v3")
            if self.stamps == 2: self.stamp(5)
            A(f"v_max3_f32 v{VF}, v{M4}, v{M4+1}, v{M4+2}\nv_max_f32 v{VF}, v{VF}, v{M4+3}")
            A(f"v_sub_f32 v{VF}, v{VM}, v{VF}\nv_mul_f32 v{VF}, s59, v{VF}\nv_exp_f32 v{VF}, v{VF}")
            A(f"s_lshl_b32 s6, s3, 11\ns_add_u32 s6, s6, {ACC}\nv_add_u32 v3, s6, v2")

        def tcalc(i):
            A(f"v_mul_f32 v{VT}, v{S0+i}, v{VF}")
            A(f"v_cvt_pk_bf16_f32 v{TLO}, v{VT}, 0\nv_cvt_pk_bf16_f32 v{THI}, 0, v{VT}")

        def mv(dst, src, dbank, j):
            rot = 4 * ((dbank - j) & 3)
            ctl = f"row_ror:{rot}" if rot else "quad_perm:[0,1,2,3]"
            A(f"v_mov_b32_dpp v{dst}, v{src} {ctl} row_mask:0xf bank_mask:{1<<dbank:#x}")

        abuf = lambda t: AB + 2 * (t % 4)

        def prep(ts):
            for t in ts:
                mv(abuf(t), TLO, 0, t % 4)
                mv(abuf(t) + 1, TLO, 2, t % 4)
            for t in ts:
                mv(abuf(t), THI, 1, t % 4)
                mv(abuf(t) + 1, THI, 3, t % 4)

        def pv(t):
            s = slot(NT + t)
            A(f"v_mfma_f32_16x16x16_bf16 {vr(ACC0,4)}, {vr(abuf(t),2)}, {vr(s,2)}, {vr(ACC0,4)}")
            A(f"v_mfma_f32_16x16x16_bf16 {vr(ACC1,4)}, {vr(abuf(t),2)}, {vr(s+2,2)}, {vr(ACC1,4)}")

        KB = float(self.kbudget)
        items = [(RING - 1 - depth(RING - 1), qsync, 0.5, -1, 0)]
        for i in range(NB):
            last = min(4 * i + 3, NT - 1)
            items.append((last, (lambda i=i: qk(i)), 2, last, 0))
            if i % 2 == 1 or i == NB - 1:
                items.append((-1, (lambda i=i: rnd(i - (i % 2))), 0.5, -1, 0))
        h = NB // 2
        items += [(-1, sm_max, 1.5, -1, 0), (-1, lambda: sm_exp(0, h), 2, -1, 0), (-1, lambda: sm_exp(h, NB), 2, -1, 0),
                  (-1, sm_sum, 2, -1, 0), (-1, pv_setup, 2, -1, 0), (-1, msync, 1, -1, self.stdelay)]
        for i in range(NB):
            items.append((-1, (lambda i=i: tcalc(i)), 0, -1, 0))
            for u in (2 * i, 2 * i + 1):
                ts = [t for t in (2 * u, 2 * u + 1) if t < NT]
                if not ts: continue
                items.append((-1, (lambda ts=ts: prep(ts)), 0, -1, 0))
                for t in ts:
                    items.append((NT + t, (lambda t=t: pv(t)), KB / self.pvrate, NT + t, 0))
        pos = 0
        freed = -1
        lastn = 0
        for n in range(NL):
            while n - RING > freed:
                need, emit, cost, fr, dl = items[pos]
                assert need <= st["landed"], (n, need)
                emit(); pos += 1; freed = max(freed, fr); lastn = n
            load(n)
            budget = KB
            while pos < len(items) and items[pos][0] <= st["landed"] and (budget > 0 or items[pos][2] == 0) and n >= lastn + items[pos][4]:
                need, emit, cost, fr, dl = items[pos]
                emit(); pos += 1; budget -= cost; freed = max(freed, fr); lastn = n
        while pos < len(items):
            need, emit, cost, fr, dl = items[pos]
            if need > st["landed"]:
                A(f"s_waitcnt vmcnt({NL-1-need})")
                st["landed"] = need
            emit(); pos += 1
        A("s_cmp_ge_u32 s3, 2")
        A(f"ds_write_b128 v3, {vr(ACC0,4)}\nds_write_b128 v3, {vr(ACC1,4)} offset:1024")
        A("s_waitcnt lgkmcnt(0)")
        A("s_barrier")
        if not islast:
            A("s_branch L_stail")

    def reload(self, n, base, ld):
        A = self.A
        for t in range(n):
            sk = self.lab("rs")
            A(f"v_cmp_u_f32 vcc, v{base+4*t}, v{base+4*t+1}\nv_cmp_u_f32 s[78:79], v{base+4*t+2}, v{base+4*t+3}")
            A("s_or_b64 exec, vcc, s[78:79]")
            A(f"s_cbranch_execz {sk}")
            ld(t)
            A(f"{sk}:")
            A("s_mov_b64 exec, -1")

    def lane_sum4(self, R):
        A = self.A
        A(f"v_permlane32_swap_b32 v{R}, v{R+2}\nv_permlane32_swap_b32 v{R+1}, v{R+3}")
        A(f"v_add_f32 v{R}, v{R}, v{R+2}\nv_add_f32 v{R+1}, v{R+1}, v{R+3}")
        A(f"v_permlane16_swap_b32 v{R}, v{R+1}")
        A(f"v_add_f32 v{R}, v{R}, v{R+1}")
        A(f"v_add_f32_dpp v{R}, v{R}, v{R} row_ror:8 row_mask:0xf bank_mask:0xf")

    def stream_tail(self):
        A = self.A
        VRD = 51
        ex = "L_sexit"
        A("L_stail:")
        A("s_cbranch_scc1 L_noop")
        for sw in range(4):
            A(f"ds_read_b128 {vr(8+4*sw,4)}, v{VRD} offset:{sw*2048}")
        A("s_waitcnt lgkmcnt(2)")
        A("v_pk_add_f32 v[8:9], v[8:9], v[12:13]\nv_pk_add_f32 v[10:11], v[10:11], v[14:15]")
        A("s_waitcnt lgkmcnt(0)")
        A("v_pk_add_f32 v[16:17], v[16:17], v[20:21]\nv_pk_add_f32 v[18:19], v[18:19], v[22:23]")
        A("v_pk_add_f32 v[8:9], v[8:9], v[16:17]\nv_pk_add_f32 v[10:11], v[10:11], v[18:19]")
        self.store_alt(["buffer_store_dwordx4 v[8:11], v2, s[16:19], s61 offen"], "s63")
        A("L_noop:")
        self.stamp(6)
        A(f"s_cmp_ge_u32 s100, 56\ns_cbranch_scc1 {ex}")
        SEL, XR, P2, vH2, vHVw, vH3, vFo, vFh = 40, 28, 64, 32, 33, 34, 35, 36
        A("s_load_dwordx2 s[20:21], s[0:1], 0\ns_load_dwordx2 s[44:45], s[0:1], 72")
        A("s_mov_b32 s22, 1024\ns_mov_b32 s23, 0x20000\ns_mov_b32 s46, 1024\ns_mov_b32 s47, 0x20000")
        A("v_lshrrev_b32 v12, 4, v0\nv_and_b32 v5, 15, v0\ns_lshl_b32 s6, s3, 8")
        A(f"v_lshlrev_b32 v6, 10, v12\nv_lshl_add_u32 v{vH2}, v5, 4, v6")
        A(f"v_and_b32 v6, 1, v12\nv_lshlrev_b32 v6, 3, v6\nv_lshl_add_u32 v6, v5, 4, v6\nv_add_u32 v13, s6, v6\nv_add_u32 v{vHVw}, {HV}, v13")
        A(f"s_add_u32 s64, s6, {Y_OFF}")
        for t in range(1, 8):
            A(f"s_add_u32 s{64+t}, s64, {t*4096}")
        A("v_and_b32 v6, 1, v5\nv_lshlrev_b32 v6, 4, v6\nv_mov_b32 v7, 0x3f80\nv_lshlrev_b32 v6, v6, v7\nv_lshrrev_b32 v7, 1, v5")
        for q in range(4):
            A(f"v_cmp_eq_u32 vcc, {q}, v7\nv_cndmask_b32 v{SEL+q}, 0, v6, vcc")
        A(f"v_lshrrev_b32 v6, 3, v0\nv_lshlrev_b32 v6, 11, v6\nv_and_b32 v7, 7, v0\nv_lshl_add_u32 v{vH3}, v7, 4, v6")
        A("s_and_b32 s72, s101, 15")
        A(f"s_lshl_b32 s6, s72, 6\nv_lshlrev_b32 v6, 3, v7\nv_lshl_add_u32 v6, v12, 1, v6\nv_add_u32 v{vFo}, s6, v6\nv_add_u32 v{vFh}, {HV}, v{vFo}")
        A(f"s_lshl_b32 s72, s72, 7\ns_add_u32 s72, s72, {Z_OFF}")
        A("s_waitcnt lgkmcnt(0)")
        A("buffer_load_dwordx2 v[8:9], v13, s[20:23], 0 offen")
        A("buffer_load_dword v10, v13, s[44:47], 0 offen")
        h2load = lambda t: A(f"buffer_load_dwordx4 {vr(P2+4*t,4)}, v{vH2}, s[16:19], s{64+t} offen sc1")
        if not self.yhint:
            if self.h2gate: self.flag_wait(25, 4, F_Y, 4, slp=1)
            if self.d2: A(f"s_sleep {self.d2}")
            for t in range(8):
                h2load(t)
            A("s_waitcnt vmcnt(8)")
        else:
            A(f"v_and_b32 v14, 7, v0\nv_lshlrev_b32 v14, 2, v14\ns_mov_b32 s73, {YF_OFF}\ns_mov_b32 s74, 0")
            A("s_waitcnt vmcnt(0)")
        A(f"v_lshlrev_b32 v{XR}, 16, v8\nv_and_b32 v{XR+1}, s60, v8\nv_lshlrev_b32 v{XR+2}, 16, v9\nv_and_b32 v{XR+3}, s60, v9")
        if self.yhint:
            if self.h2gate: self.flag_wait(25, 4, F_Y, 4, slp=1)
            lp, out = self.lab("yf"), self.lab("yfok")
            A("s_mov_b32 s7, 0")
            A(f"{lp}:")
            A("buffer_load_dword v15, v14, s[16:19], s73 offen sc1")
            A(f"s_add_u32 s7, s7, 1\ns_cmp_gt_u32 s7, {SPIN_MAX}\ns_cselect_b32 s75, 0xff, 0")
            A("s_waitcnt vmcnt(0)")
            A("v_cmp_ne_u32 vcc, -1, v15")
            A("s_or_b32 s75, s75, vcc_lo\ns_and_b32 s75, s75, 0xff\ns_andn2_b32 s6, s75, s74")
            if self.bf:
                A(f"s_cbranch_scc1 {lp}n\ns_sleep {self.bf}\ns_branch {lp}\n{lp}n:")
            else:
                A(f"s_cbranch_scc0 {lp}")
            for t in range(8):
                sk = self.lab("yt")
                A(f"s_bitcmp1_b32 s6, {t}\ns_cbranch_scc0 {sk}")
                h2load(t)
                A(f"{sk}:")
            A(f"s_mov_b32 s74, s75\ns_cmp_lg_u32 s74, 0xff\ns_cbranch_scc1 {lp}")
        if self.h2mode == 0:
            lp, out = self.lab("h2"), self.lab("h2ok")
            A("s_mov_b32 s7, 0")
            A(f"{lp}:")
            A("s_waitcnt vmcnt(0)")
            for t in range(8):
                A(f"v_mfma_f32_16x16x32_bf16 v[8:11], {vr(SEL,4)}, {vr(P2+4*t,4)}, {'0' if t == 0 else 'v[8:11]'}")
            A("v_cmp_u_f32 vcc, v8, v9\nv_cmp_u_f32 s[78:79], v10, v11")
            A("s_or_b64 vcc, vcc, s[78:79]")
            A(f"s_cbranch_scc0 {out}")
            self.spin_guard(7, out)
            if self.b2: A(f"s_sleep {self.b2}")
            self.reload(8, P2, h2load)
            A(f"s_branch {lp}")
            A(f"{out}:")
        else:
            lp, out = self.lab("h2"), self.lab("h2ok")
            A("s_mov_b32 s7, 0")
            for t in range(8):
                A(f"s_mov_b64 s[{24+2*t}:{25+2*t}], -1")
            A(f"{lp}:")
            A("s_waitcnt vmcnt(0)")
            for t in range(8):
                m = f"s[{24+2*t}:{25+2*t}]"
                A(f"s_mov_b64 exec, {m}")
                A(f"v_cmp_u_f32 vcc, v{P2+4*t}, v{P2+4*t+1}\nv_cmp_u_f32 {m}, v{P2+4*t+2}, v{P2+4*t+3}")
                A(f"s_or_b64 {m}, vcc, {m}")
                if self.h2mode == 1:
                    A(f"s_mov_b64 exec, {m}")
                    h2load(t)
            A("s_or_b64 s[40:41], s[24:25], s[26:27]\ns_or_b64 s[42:43], s[28:29], s[30:31]\ns_or_b64 s[40:41], s[40:41], s[32:33]\ns_or_b64 s[42:43], s[42:43], s[34:35]")
            A("s_or_b64 s[40:41], s[40:41], s[36:37]\ns_or_b64 s[42:43], s[42:43], s[38:39]\ns_or_b64 s[40:41], s[40:41], s[42:43]")
            A(f"s_cbranch_scc0 {out}")
            self.spin_guard(7, out)
            if self.b2: A(f"s_sleep {self.b2}")
            if self.h2mode == 2:
                for t in range(8):
                    A(f"s_mov_b64 exec, s[{24+2*t}:{25+2*t}]")
                    h2load(t)
            A(f"s_branch {lp}")
            A(f"{out}:")
            A("s_mov_b64 exec, -1")
            for t in range(8):
                A(f"v_mfma_f32_16x16x32_bf16 v[8:11], {vr(SEL,4)}, {vr(P2+4*t,4)}, {'0' if t == 0 else 'v[8:11]'}")
        if self.stamps == 1: A("s_mov_b32 s84, s7")
        self.probe_mark("h2", 8)
        if self.stamps != 2: self.stamp(1)
        A("v_cvt_pk_bf16_f32 v4, v8, v9\nv_cvt_pk_bf16_f32 v5, v10, v11")
        A("v_lshlrev_b32 v8, 16, v4\nv_and_b32 v9, s60, v4\nv_lshlrev_b32 v10, 16, v5\nv_and_b32 v11, s60, v5")
        A(f"v_pk_add_f32 v[8:9], v[8:9], {vr(XR,2)}\nv_pk_add_f32 v[10:11], v[10:11], {vr(XR+2,2)}")
        A("v_cvt_pk_bf16_f32 v4, v8, v9\nv_cvt_pk_bf16_f32 v5, v10, v11")
        A("s_mov_b64 exec, 0xffffffff")
        A(f"ds_write_b64 v{vHVw}, v[4:5]")
        A("s_mov_b64 exec, -1")
        A("s_waitcnt lgkmcnt(0)")
        A("s_barrier")
        A(f"s_cmp_ge_u32 s101, 16\ns_cbranch_scc1 {ex}\ns_cmp_lg_u32 s3, {self.fw}\ns_cbranch_scc1 {ex}")
        A(f"ds_read_u16 v12, v{vFh}")
        for t in range(1, 7):
            A(f"s_add_u32 s{64+t}, s72, {t*16384}")
        A("s_mov_b32 s64, s72")
        A("s_waitcnt lgkmcnt(0)")
        A("v_lshlrev_b32 v12, 16, v12")
        A("s_barrier")
        if self.d3: A(f"s_sleep {self.d3}")
        h3load = lambda t: A(f"buffer_load_dwordx4 {vr(P2+4*t,4)}, v{vH3}, s[16:19], s{64+t} offen sc1")
        for t in range(7):
            h3load(t)
        lp, out = self.lab("h3"), self.lab("h3ok")
        A("s_mov_b32 s7, 0")
        A(f"{lp}:")
        A("s_waitcnt vmcnt(0)")
        for k in (0, 2):
            A(f"v_pk_add_f32 {vr(4+k,2)}, {vr(P2+k,2)}, {vr(P2+4+k,2)}")
        for k in (0, 2):
            A(f"v_pk_add_f32 {vr(8+k,2)}, {vr(P2+8+k,2)}, {vr(P2+12+k,2)}")
        for k in (0, 2):
            A(f"v_pk_add_f32 {vr(16+k,2)}, {vr(P2+16+k,2)}, {vr(P2+20+k,2)}")
        for k in (0, 2):
            A(f"v_pk_add_f32 {vr(4+k,2)}, {vr(4+k,2)}, {vr(P2+24+k,2)}")
        for k in (0, 2):
            A(f"v_pk_add_f32 {vr(8+k,2)}, {vr(8+k,2)}, {vr(16+k,2)}")
        for k in (0, 2):
            A(f"v_pk_add_f32 {vr(4+k,2)}, {vr(4+k,2)}, {vr(8+k,2)}")
        A("v_cmp_u_f32 vcc, v4, v5\nv_cmp_u_f32 s[78:79], v6, v7")
        A("s_or_b64 vcc, vcc, s[78:79]")
        A(f"s_cbranch_scc0 {out}")
        self.spin_guard(7, out)
        if self.b3: A(f"s_sleep {self.b3}")
        self.reload(7, P2, h3load)
        A(f"s_branch {lp}")
        A(f"{out}:")
        if self.stamps == 1: A("s_mov_b32 s85, s7")
        self.probe_mark("h3", 8)
        if self.stamps != 2: self.stamp(2)
        self.lane_sum4(4)
        A("v_cvt_pk_bf16_f32 v4, v4, v4\nv_and_b32 v4, s60, v4")
        A("v_add_f32 v4, v12, v4\nv_cvt_pk_bf16_f32 v4, v4, v4")
        if self.probe:
            lp = self.lab("pr")
            A("s_sleep 20\nv_mov_b32 v251, 0")
            A("buffer_load_dwordx2 v[248:249], v251, s[48:51], 0 offen offset:4 sc1\ns_waitcnt vmcnt(0)")
            A("v_readfirstlane_b32 s92, v248\nv_readfirstlane_b32 s93, v249\ns_not_b32 s92, s92")
            if self.probe == "t0": A("s_mov_b32 s93, s92")
            A(f"s_add_u32 s93, s93, {self.pticks}\ns_mov_b32 s7, 0")
            A(f"{lp}:\ns_memrealtime s[96:97]\ns_add_u32 s7, s7, 1\ns_cmp_gt_u32 s7, 100000\ns_cbranch_scc1 {lp}x\ns_waitcnt lgkmcnt(0)\ns_sub_u32 s6, s96, s93\ns_cmp_lt_i32 s6, 0\ns_cbranch_scc1 {lp}\n{lp}x:\ns_waitcnt lgkmcnt(0)")
        A("s_mov_b32 exec_lo, 0x00ff00ff\ns_mov_b32 exec_hi, 0x00ff00ff")
        A(f"buffer_store_short v4, v{vFo}, s[44:47], 0 offen {self.outpol}")
        if self.stamps:
            A("s_mov_b64 exec, -1" + ("\ns_waitcnt vmcnt(0)" if self.stamps != 4 else ""))
            if self.stamps != 2: self.stamp(3, True)
        A(f"{ex}:")
        if self.stamps:
            A(f"s_cmp_lg_u32 s3, {self.fw}\ns_cbranch_scc1 L_end")
            self.stamp_store(0, 7)
        A("s_endpgm")

    def helper(self):
        A = self.A
        wp = self.wpol
        A("L_helper:")
        A("s_load_dwordx2 s[20:21], s[0:1], 0")
        A("s_load_dwordx2 s[24:25], s[0:1], 24")
        A("s_load_dwordx2 s[48:49], s[0:1], 80")
        A("s_load_dwordx2 s[28:29], s[0:1], 32")
        A("s_sub_u32 s3, s3, 4")
        A("s_mov_b32 s22, 1024\ns_mov_b32 s23, 0x20000\ns_mov_b32 s26, 0x400000\ns_mov_b32 s27, 0x20000")
        A("s_mov_b32 s50, 256\ns_mov_b32 s51, 0x20000\ns_mov_b32 s30, 0x400000\ns_mov_b32 s31, 0x20000")
        A("v_lshlrev_b32 v2, 4, v0")
        A(f"s_mov_b32 s59, {LOG2E}\ns_mov_b32 s60, {HIMASK}")
        A("s_mov_b32 s61, s100")
        A("s_lshr_b32 s62, s5, 3\ns_and_b32 s63, s5, 7")
        A("s_waitcnt lgkmcnt(0)")
        A("s_load_dwordx2 s[32:33], s[0:1], 48")
        A("s_load_dwordx2 s[36:37], s[0:1], 56")
        A("s_load_dwordx2 s[40:41], s[0:1], 64")
        A("s_load_dwordx2 s[44:45], s[0:1], 72")
        A("s_mov_b32 s34, 0x1c0000\ns_mov_b32 s35, 0x20000\ns_mov_b32 s38, 0x1c0000\ns_mov_b32 s39, 0x20000")
        A("s_mov_b32 s42, 0x1c0000\ns_mov_b32 s43, 0x20000\ns_mov_b32 s46, 1024\ns_mov_b32 s47, 0x20000")
        A(f"s_add_u32 s52, s16, {Z_OFF}\ns_addc_u32 s53, s17, 0\ns_mov_b32 s54, {NG*2048}\ns_mov_b32 s55, 0x20000")
        A(f"s_lshl_b32 s6, s4, 5\ns_add_u32 s6, s6, s5\ns_lshl_b32 s64, s6, 5\ns_add_u32 s64, s64, {ST_OFF}")
        A(f"s_lshl_b32 s66, s6, 11\ns_add_u32 s66, s66, {OP_OFF}")
        A(f"s_lshl_b32 s7, s4, 2\ns_add_u32 s7, s7, s62\ns_lshl_b32 s7, s7, 11\ns_lshl_b32 s6, s63, 8\ns_add_u32 s58, s7, s6")
        A(f"s_lshr_b32 s67, s58, 1\ns_add_u32 s67, s67, {Y_OFF}\ns_add_u32 s58, s58, {QP_OFF}\ns_lshl_b32 s65, s4, 5")
        A("s_getreg_b32 s6, hwreg(HW_REG_XCC_ID, 0, 4)")
        A("s_mul_i32 s7, s6, s6\ns_lshl_b32 s7, s7, 18\ns_lshl_b32 s6, s6, 8\ns_or_b32 s6, s6, s7\ns_or_b32 s14, s6, 1")
        self.VFL = 245
        A(f"v_mov_b32 v{self.VFL}, {FL}")
        A("s_cmp_lg_u32 s3, 0")
        A("s_cbranch_scc1 L_h123")
        self.h0()
        A("s_branch L_hjoin")
        self.h123()
        A("L_hjoin:")
        self.tail()

    def h0(self):
        A = self.A
        self.stamp(0)
        A("buffer_load_dwordx4 v[4:7], v2, s[20:23], 0 offen")
        A("v_lshrrev_b32 v3, 3, v0\nv_lshlrev_b32 v3, 13, v3\nv_and_b32 v1, 7, v0\nv_lshl_add_u32 v3, v1, 4, v3")
        A("s_lshl_b32 s6, s62, 20\ns_lshl_b32 s7, s4, 10\ns_add_u32 s6, s6, s7\ns_lshl_b32 s7, s63, 7\ns_add_u32 s6, s6, s7")
        if "wqcontig" in self.dbg: A("s_lshl_b32 s6, s2, 14\nv_mov_b32 v3, v2")
        for t in range(16):
            if self.qpace and t >= self.qpace: A(f"s_waitcnt vmcnt({self.qpace-1})")
            A(f"s_mov_b32 m0, {WQ + t*1024}")
            if "nowq" not in self.dbg: A(f"buffer_load_dwordx4 v3, s[24:27], s6 offen {self.qpol} lds")
            if t < 15:
                A("s_add_u32 s6, s6, 0x10000" if "wqcontig" not in self.dbg else "s_add_u32 s6, s6, 1024")
            if t == 3:
                A("s_barrier")
        A("s_waitcnt vmcnt(16)" if "nowq" not in self.dbg else "s_waitcnt vmcnt(0)")
        self.probe_mark("hx", 8)
        for k in range(4):
            A(f"v_lshlrev_b32 v{12+2*k}, 16, v{4+k}\nv_and_b32 v{13+2*k}, s60, v{4+k}")
        A("v_add_f32 v20, v12, v13\nv_add_f32 v21, v14, v15\nv_add_f32 v22, v16, v17\nv_add_f32 v23, v18, v19")
        A("v_add_f32 v20, v20, v21\nv_add_f32 v22, v22, v23\nv_add_f32 v20, v20, v22")
        self.allred("v_add_f32", [20], [21])
        A(f"v_mul_f32 v20, {INV512}, v20")
        for k in range(8):
            A(f"v_sub_f32 v{24+k}, v{12+k}, v20")
        A("v_mul_f32 v22, v24, v24")
        for k in range(1, 8):
            A(f"v_fmac_f32 v22, v{24+k}, v{24+k}")
        self.allred("v_add_f32", [22], [21])
        A(f"v_mul_f32 v22, {INV512}, v22")
        self.ln_scalars(20, 22, 21)
        for k in range(4):
            a, b = 12 + 2 * k, 13 + 2 * k
            A(f"v_sub_f32 v{a}, v{a}, v20\nv_sub_f32 v{b}, v{b}, v20")
            A(f"v_cvt_pk_bf16_f32 v21, v{a}, v{b}")
            A(f"v_lshlrev_b32 v{a}, 16, v21\nv_and_b32 v{b}, s60, v21")
            A(f"v_mul_f32 v{a}, v{a}, v22\nv_mul_f32 v{b}, v{b}, v22")
            A(f"v_cvt_pk_bf16_f32 v{4+k}, v{a}, v{b}")
        A(f"v_add_u32 v1, {XN}, v2")
        A("ds_write_b128 v1, v[4:7]")
        A("v_lshrrev_b32 v12, 4, v0\nv_bfe_u32 v13, v0, 2, 2\nv_and_b32 v14, 3, v0")
        A("v_lshl_add_u32 v15, v12, 3, v13\nv_lshlrev_b32 v15, 7, v15\nv_lshl_add_u32 v15, v14, 3, v15")
        A(f"s_lshl_b32 s6, s62, 8\ns_add_u32 s6, s6, {XN}\nv_lshlrev_b32 v17, 4, v12\nv_add_u32 v16, s6, v17")
        A("s_waitcnt lgkmcnt(0)")
        for m in range(4):
            A(f"ds_read_b128 {vr(128+4*m,4)}, v16 offset:{m*64}")
        A("v_mov_b32 v1, 0")
        A("s_waitcnt vmcnt(0)")
        self.stamp(1)
        for m in range(4):
            base = 64 + 16 * m
            for ct in range(4):
                A(f"ds_read_b64_tr_b16 {vr(base+4*ct,2)}, v15 offset:{WQ + m*4096 + ct*32}")
                A(f"ds_read_b64_tr_b16 {vr(base+4*ct+2,2)}, v15 offset:{WQ + m*4096 + ct*32 + 512}")
            A("s_waitcnt lgkmcnt(0)")
            for ct in range(4):
                c = "0" if m == 0 else vr(32 + 4 * ct, 4)
                A(f"v_mfma_f32_16x16x32_bf16 {vr(32+4*ct,4)}, {vr(base+4*ct,4)}, {vr(128+4*m,4)}, {c}")
        qst = [f"buffer_store_dwordx4 {vr(32+4*ct,4)}, v17, s[16:19], s58 offen offset:{ct*64}" for ct in range(4)]
        if not self.qlate:
            self.flag_wait(self.VFL, 4, F_CLR, 1, slp=1)
            A("s_mov_b32 exec_lo, 0x00010001\ns_mov_b32 exec_hi, 0x00010001")
            for x in qst: A(x + " sc1")
            A("s_mov_b64 exec, -1")
        self.flag_wait(self.VFL, 4, F_EARLY, 1)
        self.cnt_wait("s65", "v1")
        self.stamp(3)
        A("v_readfirstlane_b32 s6, v4\ns_lshl_b32 s7, s14, 5\ns_cmp_eq_u32 s6, s7\ns_cselect_b32 s15, 1, 0")
        if not self.local: A("s_mov_b32 s15, 0")
        A(f"v_mov_b32 v5, s15\nds_write_b32 v{self.VFL}, v5 offset:{F_LOC}")
        if self.qlate:
            A("s_mov_b32 exec_lo, 0x00010001\ns_mov_b32 exec_hi, 0x00010001")
            self.store_alt(qst, "s15")
            A("s_mov_b64 exec, -1")
            if self.dq: A(f"s_sleep {self.dq}")
        self.stamp(2)
        A(f"s_lshl_b32 s6, s4, 13\ns_add_u32 s6, s6, {QP_OFF}\ns_add_u32 s66, s6, 4096")
        lp, out = self.lab("qpoll"), self.lab("qok")
        A("s_mov_b32 s7, 0")
        A(f"{lp}:")
        for rb in range(4):
            for hf in range(2):
                if "noqld" not in self.dbg: A(f"buffer_load_dwordx4 {vr(64+8*rb+4*hf,4)}, v2, s[16:19], {'s6' if rb < 2 else 's66'} offen offset:{(rb&1)*2048+hf*1024} sc1")
        self.spin_guard(7, out)
        A("s_waitcnt vmcnt(0)")
        for k in range(0, 8, 2):
            A(f"v_pk_add_f32 {vr(64+k,2)}, {vr(64+k,2)}, {vr(72+k,2)}\nv_pk_add_f32 {vr(80+k,2)}, {vr(80+k,2)}, {vr(88+k,2)}")
        for k in range(0, 8, 2):
            A(f"v_pk_add_f32 {vr(64+k,2)}, {vr(64+k,2)}, {vr(80+k,2)}")
        A("v_cmp_u_f32 vcc, v64, v65\nv_cmp_u_f32 s[68:69], v66, v67\nv_cmp_u_f32 s[70:71], v68, v69\nv_cmp_u_f32 s[72:73], v70, v71")
        A("s_or_b64 vcc, vcc, s[68:69]\ns_or_b64 s[70:71], s[70:71], s[72:73]\ns_or_b64 vcc, vcc, s[70:71]")
        if "noqpoll" in self.dbg: A(f"s_branch {out}")
        A(f"s_cbranch_scc0 {out}")
        A(f"s_sleep {self.slp}")
        A(f"s_branch {lp}")
        A(f"{out}:")
        A("s_waitcnt vmcnt(0)")
        A("v_cvt_pk_bf16_f32 v4, v64, v65\nv_cvt_pk_bf16_f32 v5, v66, v67\nv_cvt_pk_bf16_f32 v6, v68, v69\nv_cvt_pk_bf16_f32 v7, v70, v71")
        A(f"v_lshlrev_b32 v1, 3, v0\nv_add_u32 v1, {QV}, v1\nv_mov_b32 v8, 1")
        A("ds_write_b64 v1, v[4:5]\nds_write_b64 v1, v[6:7] offset:512")
        self.flag_add(self.VFL, 8, F_Q)
        self.probe_mark("q", 8)
        self.stamp(13)
        A(f"v_and_b32 v1, 3, v0\nv_lshlrev_b32 v5, 4, v1\nv_add_u32 v5, {STL}, v5\nv_lshlrev_b32 v1, 3, v1")
        self.flag_wait(self.VFL, 4, F_ST, 4, slp=4)
        A("ds_read_b128 v[8:11], v5\nds_read_b128 v[12:15], v5 offset:64")
        A("s_waitcnt lgkmcnt(0)")
        A("v_max3_f32 v16, v8, v9, v10\nv_max_f32 v16, v16, v11")
        for k in range(4):
            A(f"v_sub_f32 v{8+k}, v{8+k}, v16")
        for k in range(4):
            A(f"v_mul_f32 v{8+k}, s59, v{8+k}")
        for k in range(4):
            A(f"v_exp_f32 v{8+k}, v{8+k}")
        A("v_mul_f32 v17, v8, v12\nv_fmac_f32 v17, v9, v13\nv_fmac_f32 v17, v10, v14\nv_fmac_f32 v17, v11, v15")
        A("s_mov_b64 exec, 15")
        self.store_alt(["buffer_store_dwordx2 v[16:17], v1, s[16:19], s64 offen"], "s15")
        A("s_mov_b64 exec, -1")
        self.stamp(5)

    def split_weights(self):
        A = self.A
        self.flag_wait(self.VFL, 4, F_MID, 1, slp=4)
        A("v_and_b32 v1, 7, v0\nv_lshlrev_b32 v1, 5, v1")
        self.cnt_wait("0", "v1")
        A(f"s_lshl_b32 s6, s4, 10\ns_add_u32 s6, s6, {ST_OFF}")
        lp, out = self.lab("spoll"), self.lab("sok")
        A("s_mov_b32 s7, 0")
        A(f"{lp}:")
        if "nostld" in self.dbg: A(f"s_branch {out}")
        A("buffer_load_dwordx4 v[8:11], v2, s[16:19], s6 offen sc1")
        self.spin_guard(7, out)
        A("s_waitcnt vmcnt(0)")
        A("v_cmp_u_f32 vcc, v8, v9\nv_cmp_u_f32 s[78:79], v10, v11")
        A("s_or_b64 vcc, vcc, s[78:79]")
        A(f"s_cbranch_scc0 {out}")
        A(f"s_sleep {self.slp}")
        A(f"s_branch {lp}")
        A(f"{out}:")
        A("s_waitcnt vmcnt(0)")
        A("v_mov_b32 v4, v8\nv_mov_b32 v5, v10")
        self.allred("v_max_f32", [4, 5], [6, 7], rors=("x2", 4, 8))
        A("v_sub_f32 v8, v8, v4\nv_sub_f32 v10, v10, v5\nv_mul_f32 v8, s59, v8\nv_mul_f32 v10, s59, v10")
        A("v_exp_f32 v8, v8\nv_exp_f32 v10, v10")
        A("v_mul_f32 v9, v8, v9\nv_mul_f32 v11, v10, v11")
        self.allred("v_add_f32", [9, 11], [6, 7], rors=("x2", 4, 8))
        A("v_rcp_f32 v9, v9\nv_rcp_f32 v11, v11")
        A(f"v_lshlrev_b32 v5, 3, v0\nv_add_u32 v5, {WT}, v5\nv_mov_b32 v4, 1")
        A("v_mul_f32 v8, v8, v9\nv_mul_f32 v9, v10, v11")
        A("ds_write_b64 v5, v[8:9]")
        self.flag_add(self.VFL, 4, F_W)
        self.stamp(6)

    def cnt_wait(self, soff, voff, pre=False):
        A = self.A
        lp, out = self.lab("cpoll"), self.lab("cok")
        A("s_mov_b32 s7, 0")
        if "noatomic" in self.dbg: A(f"s_branch {out}")
        if pre: A(f"s_branch {lp}c")
        A(f"{lp}:")
        A(f"buffer_load_dword v4, {voff}, s[48:51], {soff} offen sc1")
        self.spin_guard(7, out)
        A(f"{lp}c:")
        A("s_waitcnt vmcnt(0)")
        A("v_and_b32 v5, 0xff, v4\nv_cmp_gt_u32 vcc, 32, v5")
        A(f"s_cbranch_vccz {out}")
        A(f"s_sleep {self.slp}")
        A(f"s_branch {lp}")
        A(f"{out}:")
        A("s_waitcnt vmcnt(0)")

    def ln_scalars(self, mean, var, t):
        A = self.A
        A(f"v_cvt_pk_bf16_f32 v{t}, v{mean}, v{var}")
        A(f"v_lshlrev_b32 v{mean}, 16, v{t}\nv_and_b32 v{var}, s60, v{t}")
        A(f"v_add_f32 v{var}, {EPS}, v{var}")
        A(f"v_cvt_pk_bf16_f32 v{t}, v{var}, v{var}\nv_and_b32 v{var}, s60, v{t}")
        A(f"v_sqrt_f32 v{var}, v{var}")
        A(f"v_cvt_pk_bf16_f32 v{t}, v{var}, v{var}\nv_and_b32 v{var}, s60, v{t}")
        A(f"v_rcp_f32 v{var}, v{var}")

    def h123(self):
        A = self.A
        A("L_h123:")
        l2, l3, dn = self.lab("h2"), self.lab("h3"), self.lab("hd")
        A("v_mov_b32 v4, 0\nv_mov_b32 v5, 0\nv_mov_b32 v6, 0\nv_mov_b32 v7, 0")
        A(f"s_cmp_eq_u32 s3, 2\ns_cbranch_scc1 {l2}\ns_cmp_eq_u32 s3, 3\ns_cbranch_scc1 {l3}")
        self.probe_mark("t0", 4, invert=True)
        self.probe_mark("start", 8)
        self.probe_mark("entry", 8)
        A("v_mov_b32 v8, -1\nv_mov_b32 v9, -1\nv_mov_b32 v10, -1\nv_mov_b32 v11, -1")
        mark = len(self.L)
        A("buffer_store_dwordx4 v[8:11], v2, s[16:19], s66 offen sc1")
        A("buffer_store_dwordx4 v[8:11], v2, s[16:19], s66 offen offset:1024 sc1")
        A(f"s_lshl_b32 s7, s61, 11\ns_add_u32 s7, s7, {Z_OFF}\ns_cmp_lt_u32 s100, 56\ns_cselect_b32 s7, s7, 0x400000")
        A("buffer_store_dwordx4 v[8:11], v2, s[16:19], s7 offen sc1")
        A("buffer_store_dwordx4 v[8:11], v2, s[16:19], s7 offen offset:1024 sc1")
        A("s_mov_b64 exec, 3")
        A("buffer_store_dwordx4 v[8:11], v2, s[16:19], s64 offen sc1")
        if self.yhint:
            A(f"s_lshl_b32 s7, s4, 2\ns_add_u32 s7, s7, {YF_OFF}\ns_cmp_eq_u32 s5, 8\ns_cselect_b32 s7, s7, 0x400000")
            A("s_mov_b64 exec, 1")
            A("buffer_store_dword v8, v2, s[16:19], s7 offen sc1")
        A("s_mov_b64 exec, 0xff")
        A("buffer_store_dwordx4 v[8:11], v2, s[16:19], s67 offen sc1")
        A("s_mov_b64 exec, 0xffff")
        A("buffer_store_dwordx4 v[8:11], v2, s[16:19], s58 offen sc1")
        A("s_mov_b64 exec, -1")
        if "noclear" in self.dbg:
            self.L = self.L[:mark] + [x for x in self.L[mark:] if "buffer_store" not in x]
        if "clrpol" in self.dbg:
            self.L = self.L[:mark] + [x.replace(" sc1", " sc1 nt") for x in self.L[mark:]]
        A("v_mov_b32 v5, 1")
        A("s_barrier")
        A("s_waitcnt vmcnt(0)")
        A("s_mov_b64 exec, 1")
        A("v_mov_b32 v6, s14")
        if "noatomic" not in self.dbg: A("buffer_atomic_add v6, v4, s[48:51], s65 offen sc1")
        self.flag_add(self.VFL, 5, F_CLR)
        A(f"s_branch {dn}")
        A(f"{l2}:")
        A(f"ds_write_b128 v{self.VFL}, v[4:7]\nds_write_b128 v{self.VFL}, v[4:7] offset:16\nds_write_b128 v{self.VFL}, v[4:7] offset:32")
        A("s_waitcnt lgkmcnt(0)")
        A("s_barrier")
        if self.prefetch_code:
            A("s_getpc_b64 s[6:7]")
            A("L_pc_anchor:")
            A(f"s_sub_u32 s6, s6, L_pc_anchor-{KN}\ns_subb_u32 s7, s7, 0")
            A("s_lshl_b32 s68, s5, 10\nv_lshl_add_u32 v1, v0, 6, s68")
            A(f"v_min_u32 v4, L_code_end-{KN}-4, v1")
            A("s_mov_b64 exec, 0xffff")
            A(f"global_load_dword v8, v4, s[6:7]")
            A("s_mov_b64 exec, -1")
        A(f"s_branch {dn}")
        A(f"{l3}:")
        A(f"v_add_u32 v1, {ZR}, v2")
        A("ds_write_b128 v1, v[4:7]\nds_write_b128 v1, v[4:7] offset:512")
        A("s_barrier")
        A(f"{dn}:")
        A("s_waitcnt vmcnt(0) lgkmcnt(0)")
        if True:
            sk, lp = self.lab("gskip"), self.lab("gloop")
            A(f"s_cmp_ge_u32 s100, 56\ns_cbranch_scc1 {sk}")
            if "nog" in self.dbg:
                A("v_mov_b32 v5, 1")
                self.flag_add(self.VFL, 5, F_GL)
                A(f"s_branch {sk}")
            A("s_cmp_eq_u32 s3, 1\ns_cselect_b32 s68, s32, s36\ns_cselect_b32 s69, s33, s37")
            A("s_cmp_eq_u32 s3, 3\ns_cselect_b32 s68, s40, s68\ns_cselect_b32 s69, s41, s69")
            A("s_mov_b32 s70, 0x1c0000\ns_mov_b32 s71, 0x20000")
            A("s_mov_b32 s6, 57344\ns_cselect_b32 s72, 1024, s6")
            A("s_lshl_b32 s6, s61, 15\ns_lshl_b32 s7, s61, 6\ns_cmp_eq_u32 s3, 3\ns_cselect_b32 s73, s6, s7")
            A("s_lshl_b32 s74, s3, 15")
            A("s_movk_i32 s6, 3584")
            A("v_lshrrev_b32 v3, 2, v0\nv_mul_lo_u32 v3, v3, s6\nv_and_b32 v1, 3, v0\nv_lshl_add_u32 v3, v1, 4, v3")
            A("s_cmp_eq_u32 s3, 3\ns_cselect_b64 vcc, -1, 0")
            A("v_cndmask_b32 v3, v3, v2, vcc")
            if self.grot:
                A(f"s_and_b32 s78, s61, 1\ns_mul_i32 s78, s78, {self.grot}")
                A("s_mul_i32 s6, s78, s72\ns_add_u32 s73, s73, s6\ns_lshl_b32 s6, s78, 10\ns_add_u32 s74, s74, s6")
            A(f"s_mov_b32 s7, 32")
            A(f"{lp}:")
            A(f"s_waitcnt vmcnt({self.gpace-1})")
            A("s_mov_b32 m0, s74")
            A("s_add_u32 s74, s74, 1024")
            A(f"buffer_load_dwordx4 v3, s[68:71], s73 offen {self.gpol} lds")
            A("s_add_u32 s73, s73, s72")
            if self.grot:
                nw = self.lab("nowrap")
                A(f"s_add_u32 s78, s78, 1\ns_cmp_lg_u32 s78, 32\ns_cbranch_scc1 {nw}")
                A("s_lshl_b32 s6, s72, 5\ns_sub_u32 s73, s73, s6\ns_sub_u32 s74, s74, 0x8000")
                A(f"{nw}:")
            A(f"s_sub_u32 s7, s7, 1\ns_cmp_lg_u32 s7, 0\ns_cbranch_scc1 {lp}")
            A("v_mov_b32 v5, 1\ns_waitcnt vmcnt(0)")
            self.flag_add(self.VFL, 5, F_GL)
            A(f"{sk}:")

    def tail(self):
        A = self.A
        WOA, GB, WDA, P2, P1 = 16, 32, 96, 128, 192
        WTR, SUM, SEL, XR = 208, 224, 160, 164
        vH1, vYw, vYr, vYs, vHVr, vHVs, vHHw, vHHr, vZs, vTR, vWT, CS, vONE, vB1 = range(228, 242)
        A("v_lshrrev_b32 v12, 4, v0\nv_bfe_u32 v13, v0, 2, 2\nv_and_b32 v14, 3, v0")
        A("v_lshl_add_u32 v15, v12, 3, v13")
        A(f"v_lshrrev_b32 v4, 3, v0\nv_lshlrev_b32 v6, 11, v4\nv_and_b32 v5, 7, v0\nv_lshl_add_u32 v{vH1}, v5, 4, v6")
        A(f"v_lshlrev_b32 v4, 4, v4\nv_add_u32 v{vWT}, {WT}, v4")
        A(f"s_lshl_b32 s12, s4, 2\ns_add_u32 s12, s12, {YF_OFF}\ns_cmp_eq_u32 s5, 8\ns_cselect_b32 s12, s12, 0x400000")
        A(f"s_mov_b32 s13, s67")
        A(f"s_lshl_b32 s64, s4, 16\ns_lshl_b32 s6, s62, 9\ns_add_u32 s64, s64, s6\ns_lshl_b32 s6, s3, 7\ns_add_u32 s64, s64, s6\ns_add_u32 s64, s64, {OP_OFF}")
        A("s_add_u32 s65, s64, 0x4000\ns_add_u32 s66, s64, 0x8000\ns_add_u32 s67, s64, 0xc000")
        A(f"s_lshl_b32 s6, s3, 8\ns_add_u32 s7, s6, {YL}")
        A(f"v_lshlrev_b32 v4, 4, v12\nv_add_u32 v{vYw}, s7, v4\nv_add_u32 v{vYr}, {YL}, v2\nv_lshlrev_b32 v{vYs}, 3, v0")
        A(f"v_and_b32 v5, 15, v0")
        A(f"v_add_u32 v{vHVr}, {HV}, v4\nv_add_u32 v{vHVs}, {HV}, v2")
        A(f"s_lshl_b32 s6, s3, 4\ns_add_u32 s6, s6, {HH}\nv_lshl_add_u32 v{vHHw}, v5, 1, s6")
        A(f"v_lshl_add_u32 v6, v5, 6, v4\nv_mov_b32 v{vZs}, v6")
        A(f"v_add_u32 v6, {ZR+64}, v6\nv_cmp_gt_u32 vcc, 8, v5\nv_mov_b32 v{vHHr}, {ZR+16*64}\nv_cndmask_b32 v{vHHr}, v{vHHr}, v6, vcc")
        A(f"s_lshl_b32 s76, s61, 11\ns_lshl_b32 s6, s3, 9\ns_add_u32 s76, s76, s6\ns_add_u32 s76, s76, {Z_OFF}")
        A(f"v_mov_b32 v{vONE}, 1\nv_mov_b32 v{vB1}, 0x3f803f80")
        A("s_cmp_ge_u32 s100, 56\ns_cbranch_scc1 L_notg1")
        self.flag_wait(self.VFL, 4, F_GL, 3, slp=4)
        A(f"v_lshlrev_b32 v1, 6, v15\nv_and_b32 v4, 1, v14\nv_lshl_add_u32 v1, v4, 3, v1\nv_lshrrev_b32 v4, 1, v14\nv_lshl_add_u32 v1, v4, 15, v1")
        A(f"s_lshl_b32 s6, s3, 4\ns_add_u32 s6, s6, {WG}\nv_add_u32 v1, s6, v1")
        for half in range(4):
            for m in range(4 * half, 4 * half + 4):
                A(f"ds_read_b64_tr_b16 {vr(GB+4*m,2)}, v1 offset:{m*2048}")
                A(f"ds_read_b64_tr_b16 {vr(GB+4*m+2,2)}, v1 offset:{m*2048 + 256}")
            A("s_waitcnt lgkmcnt(0)")
        A(f"v_lshlrev_b32 v1, 10, v15\nv_lshl_add_u32 v1, v14, 3, v1\ns_lshl_b32 s6, s3, 8\ns_add_u32 s6, s6, {WD}\nv_add_u32 v1, s6, v1")
        for half in range(2):
            for c8 in range(4 * half, 4 * half + 4):
                A(f"ds_read_b64_tr_b16 {vr(WDA+4*c8,2)}, v1 offset:{c8*32}")
                A(f"ds_read_b64_tr_b16 {vr(WDA+4*c8+2,2)}, v1 offset:{c8*32 + 4096}")
            A("s_waitcnt lgkmcnt(0)")
        A("v_mov_b32 v4, 0x3f803f80\nv_mov_b32 v5, v4\nv_mov_b32 v6, v4\nv_mov_b32 v7, v4")
        for m in range(16):
            A(f"v_mfma_f32_16x16x32_bf16 v[8:11], v[4:7], {vr(GB+4*m,4)}, {'0' if m == 0 else 'v[8:11]'}")
        A(f"v_mov_b32 v{CS}, v8")
        A("L_notg1:")
        if self.stamps: self.stamp(15)
        A("s_cmp_lg_u32 s3, 0\ns_cbranch_scc1 L_nosw")
        self.split_weights()
        A("L_nosw:")
        A("v_lshrrev_b32 v4, 3, v0\nv_lshlrev_b32 v3, 13, v4\nv_and_b32 v4, 2, v4\nv_and_b32 v1, 7, v0\nv_xor_b32 v1, v1, v4\nv_lshl_add_u32 v3, v1, 4, v3")
        A("v_xor_b32 v8, 64, v3")
        A("s_lshl_b32 s68, s4, 19\ns_lshl_b32 s6, s62, 11\ns_add_u32 s68, s68, s6\ns_lshl_b32 s6, s63, 7\ns_add_u32 s68, s68, s6")
        A("s_and_b32 s6, s3, 1\ns_lshl_b32 s6, s6, 16\ns_add_u32 s68, s68, s6\ns_lshr_b32 s6, s3, 1\ns_lshl_b32 s6, s6, 10\ns_add_u32 s68, s68, s6")
        A(f"s_lshl_b32 s69, s3, 12\ns_add_u32 s69, s69, {WO}")
        A("v_lshrrev_b32 v4, 1, v13\nv_and_b32 v5, 1, v12\nv_lshl_add_u32 v4, v5, 1, v4")
        A(f"v_lshlrev_b32 v1, 7, v15\nv_lshl_add_u32 v1, v14, 3, v1\nv_lshl_add_u32 v1, v4, 5, v1\nv_add_u32 v{vTR}, s69, v1")
        A(f"v_xor_b32 v9, 32, v{vTR}\nv_xor_b32 v10, 64, v{vTR}\nv_xor_b32 v11, 0x60, v{vTR}")
        self.flag_wait(self.VFL, 4, F_W, 1, slp=2)
        for t in range(4):
            A(f"ds_read_b128 {vr(WTR+4*t,4)}, v{vWT} offset:{t*128}")
        self.flag_wait(self.VFL, 4, F_A, self.acnt, slp=1)
        self.stamp(7)
        for kg in range(4):
            A(f"s_add_u32 m0, s69, {kg*1024}\ns_add_u32 s6, s68, {kg*128*1024}")
            if "nowo" not in self.dbg: A(f"buffer_load_dwordx4 {'v8' if kg & 1 else 'v3'}, s[28:31], s6 offen {self.wpol} lds")

        def h1load(t):
            A(f"buffer_load_dwordx4 {vr(P1+4*t,4)}, v{vH1}, s[16:19], s{64+t} offen {self.h1pol}")

        if self.h1early:
            for t in range(4): h1load(t)
        A("s_barrier")
        self.probe_mark("b3", 8)
        self.stamp(8, True)
        if not self.h1early:
            if self.d1: A(f"s_sleep {self.d1}")
            for t in range(4): h1load(t)
        A("s_waitcnt vmcnt(4)")
        if self.stamps: self.stamp(5)
        for ct, va in enumerate((vTR, 9, 10, 11)):
            A(f"ds_read_b64_tr_b16 {vr(WOA+4*ct,2)}, v{va}")
            A(f"ds_read_b64_tr_b16 {vr(WOA+4*ct+2,2)}, v{va} offset:512")
        lp, out = self.lab("h1"), self.lab("h1ok")
        A("s_mov_b32 s7, 0")
        A(f"{lp}:")
        A("s_waitcnt vmcnt(0)")
        for t in range(4):
            for k in (0, 2):
                if t == 0:
                    A(f"v_pk_mul_f32 {vr(SUM+k,2)}, {vr(P1+k,2)}, {vr(WTR+k,2)}")
                else:
                    A(f"v_pk_fma_f32 {vr(SUM+k,2)}, {vr(P1+4*t+k,2)}, {vr(WTR+4*t+k,2)}, {vr(SUM+k,2)}")
        A(f"v_cmp_u_f32 vcc, v{SUM}, v{SUM+1}\nv_cmp_u_f32 s[78:79], v{SUM+2}, v{SUM+3}")
        A("s_or_b64 vcc, vcc, s[78:79]")
        A(f"s_cbranch_scc0 {out}")
        self.spin_guard(7, out)
        if self.b1: A(f"s_sleep {self.b1}")
        self.reload(4, P1, h1load)
        A(f"s_branch {lp}")
        A(f"{out}:")
        if self.stamps: A("s_mov_b32 s81, s7")
        self.stamp(9)
        self.lane_sum4(SUM)
        A(f"v_mov_b32_dpp v{SUM+1}, v{SUM} row_ror:15 row_mask:0xf bank_mask:0xf")
        A(f"v_cvt_pk_bf16_f32 v{SUM}, v{SUM}, v{SUM+1}")
        for k in range(4):
            A(f"v_mov_b32_dpp v{4+k}, v{SUM} row_newbcast:{2*k} row_mask:0xf bank_mask:0xf")
        A("s_waitcnt lgkmcnt(0)")
        for ct in range(4):
            A(f"v_mfma_f32_16x16x32_bf16 {vr(P1+4*ct,4)}, {vr(WOA+4*ct,4)}, v[4:7], 0")
        A("s_mov_b32 exec_lo, 0x00010001\ns_mov_b32 exec_hi, 0x00010001")
        for ct in range(4):
            A(f"ds_write_b128 v{vYw}, {vr(P1+4*ct,4)} offset:{ct*64}")
        A(f"s_mov_b64 exec, 1\nds_add_u32 v{self.VFL}, v{vONE} offset:{F_Y}")
        A("s_cmp_lg_u32 s3, 0")
        A("s_cbranch_scc1 L_noy")
        A("s_mov_b64 exec, 0xffff")
        lp, out = self.lab("yw"), self.lab("ywok")
        A("s_mov_b32 s7, 0")
        A(f"{lp}:")
        A(f"ds_read_b32 v8, v{self.VFL} offset:{F_Y}")
        for k in range(4):
            A(f"ds_read_b128 {vr(P1+4*k,4)}, v{vYr} offset:{k*256}")
        A(f"s_add_u32 s7, s7, 1\ns_cmp_gt_u32 s7, {SPIN_MAX*8}\ns_cbranch_scc1 {out}")
        A("s_waitcnt lgkmcnt(4)")
        A("v_cmp_gt_u32 vcc, 4, v8")
        A("s_waitcnt lgkmcnt(0)")
        A(f"s_cbranch_vccnz {lp}")
        A(f"{out}:")
        A("s_waitcnt lgkmcnt(0)")
        A(f"v_pk_add_f32 {vr(P1,2)}, {vr(P1,2)}, {vr(P1+4,2)}\nv_pk_add_f32 {vr(P1+2,2)}, {vr(P1+2,2)}, {vr(P1+6,2)}")
        A(f"v_pk_add_f32 {vr(P1+8,2)}, {vr(P1+8,2)}, {vr(P1+12,2)}\nv_pk_add_f32 {vr(P1+10,2)}, {vr(P1+10,2)}, {vr(P1+14,2)}")
        A(f"v_pk_add_f32 {vr(P1,2)}, {vr(P1,2)}, {vr(P1+8,2)}\nv_pk_add_f32 {vr(P1+2,2)}, {vr(P1+2,2)}, {vr(P1+10,2)}")
        A(f"v_cvt_pk_bf16_f32 v4, v{P1}, v{P1+1}\nv_cvt_pk_bf16_f32 v5, v{P1+2}, v{P1+3}")
        A(f"buffer_store_dwordx2 v[4:5], v{vYs}, s[16:19], s13 offen sc1")
        if self.yhint:
            A("s_mov_b64 exec, 1")
            A(f"buffer_store_dword v{vONE}, v{vYs}, s[16:19], s12 offen sc1")
        A("L_noy:")
        A("s_mov_b64 exec, -1")
        if self.stamps:
            self.stamp(10)
            sk = self.lab("st")
            A(f"s_cmp_lt_u32 s100, 56\ns_cbranch_scc1 {sk}")
            A("s_cmp_lg_u32 s3, 0\ns_cbranch_scc1 L_end")
            self.stamp_store(1, 16)
            A("s_endpgm")
            A(f"{sk}:")
        else:
            A("s_cmp_ge_u32 s100, 56\ns_cbranch_scc1 L_end")
        A("s_barrier")
        self.stamp(11)
        A(f"ds_read_b128 v[4:7], v{vHVs}")
        for m in range(14):
            A(f"ds_read_b128 {vr(P2+4*m,4)}, v{vHVr} offset:{m*64}")
        T = 192
        st = []
        if not self.dot2:
            for k in range(4):
                st += [f"v_lshlrev_b32 v{T+2*k}, 16, v{4+k}", f"v_and_b32 v{T+2*k+1}, s60, v{4+k}"]
            st += [f"v_readfirstlane_b32 s6, v{T}"]
            st += [f"v_subrev_f32 v{T+k}, s6, v{T+k}" for k in range(7, -1, -1)]
            st += [f"v_add_f32 v{T+8}, v{T}, v{T+1}", f"v_mul_f32 v{T+9}, v{T}, v{T}"]
            for k in range(1, 8):
                if k >= 2:
                    st += [f"v_add_f32 v{T+8}, v{T+8}, v{T+k}"]
                st += [f"v_fmac_f32 v{T+9}, v{T+k}, v{T+k}"]
            save = self.L
            self.L = []
            self.allred("v_add_f32", [T + 8, T + 9], [T + 10, T + 11])
            A(f"v_mul_f32 v{T+8}, {INV512}, v{T+8}\nv_mul_f32 v{T+9}, {INV512}, v{T+9}")
            A(f"v_fma_f32 v{T+9}, -v{T+8}, v{T+8}, v{T+9}\nv_add_f32 v{T+8}, s6, v{T+8}\nv_max_f32 v{T+9}, 0, v{T+9}")
        else:
            for k in range(4):
                st += [f"v_dot2_f32_bf16 v{T+8}, v{4+k}, v{vB1}, {'0' if k == 0 else f'v{T+8}'}",
                       f"v_dot2_f32_bf16 v{T+9}, v{4+k}, v{4+k}, {'0' if k == 0 else f'v{T+9}'}"]
            save = self.L
            self.L = []
            self.allred("v_add_f32", [T + 8, T + 9], [T + 10, T + 11])
            A(f"v_mul_f32 v{T+8}, {INV512}, v{T+8}\nv_mul_f32 v{T+9}, {INV512}, v{T+9}")
            A(f"v_fma_f32 v{T+9}, -v{T+8}, v{T+8}, v{T+9}\nv_max_f32 v{T+9}, 0, v{T+9}")
        self.ln_scalars(T + 8, T + 9, T + 10)
        st += [x.strip() for x in self.L]
        self.L = save
        per = -(-len(st) // 15)
        for m in range(16):
            if m == 0:
                A("s_waitcnt lgkmcnt(13)")
            elif m % 2 == 1:
                A(f"s_waitcnt lgkmcnt({max(14-m, 0)})")
            A(f"v_mfma_f32_16x16x32_bf16 v[8:11], {vr(P2+4*m,4)}, {vr(GB+4*m,4)}, {'0' if m == 0 else 'v[8:11]'}")
            if m == 0:
                for m2 in (14, 15):
                    A(f"ds_read_b128 {vr(P2+4*m2,4)}, v{vHVr} offset:{m2*64}")
            for x in st[m * per:(m + 1) * per]:
                A(x)
        A(f"v_fma_f32 v4, -v{T+8}, v{CS}, v8\nv_mul_f32 v4, v4, v{T+9}")
        A("v_cvt_pk_bf16_f32 v4, v4, v4\nv_and_b32 v4, s60, v4")
        A("v_mul_f32 v5, s59, v4\nv_exp_f32 v5, -v5")
        A("v_mov_b32_dpp v6, v4 row_ror:8 row_mask:0xf bank_mask:0xf")
        A("v_add_f32 v5, 1.0, v5\nv_rcp_f32 v5, v5")
        A("v_cvt_pk_bf16_f32 v5, v5, v5\nv_and_b32 v5, s60, v5")
        A("v_mul_f32 v5, v5, v6\nv_cvt_pk_bf16_f32 v5, v5, v5")
        A("s_mov_b64 exec, 0xff")
        A(f"ds_write_b16 v{vHHw}, v5")
        A("s_mov_b64 exec, -1")
        A("s_waitcnt lgkmcnt(0)")
        if self.stamps: self.stamp(4)
        A("s_barrier")
        for c8 in range(8):
            A(f"ds_read_b128 {vr(P1+4*c8,4)}, v{vHHr} offset:{(7-c8)*64}")
        for c8 in range(8):
            A(f"s_waitcnt lgkmcnt({7-c8})")
            A(f"v_mfma_f32_16x16x32_bf16 v[8:11], {vr(WDA+4*c8,4)}, {vr(P1+4*c8,4)}, {'0' if c8 == 0 else 'v[8:11]'}")
        A("s_mov_b32 exec_lo, 0x00ff00ff\ns_mov_b32 exec_hi, 0x00ff00ff")
        A(f"buffer_store_dwordx4 v[8:11], v{vZs}, s[16:19], s76 offen sc1")
        if self.stamps:
            A("s_mov_b64 exec, -1")
            self.stamp(12)
            A("s_cmp_lg_u32 s3, 0\ns_cbranch_scc1 L_end")
            self.stamp_store(1, 16)

    def build(self):
        self.entry()
        self.streamer()
        self.helper()
        self.A("L_end:\ns_endpgm\nL_code_end:")
        body, nn = hazard.fix(self.L)
        head = open("cdna_kernels/" + KN[:-7] + ".s.ref").read().split("; Override launch")[0]
        out = head
        out += f"; @launch grid=(256,1,1) block=(512,1,1) lds={LDS_SIZE}\n"
        out += '.amdgcn_target "amdgcn-amd-amdhsa--gfx950"\n.text\n'
        out += f".globl {KN}\n.p2align 8\n.type {KN},@function\n{KN}:\n"
        out += "\n".join(body) + "\n"
        out += f""".section .rodata,"a"
.p2align 6
.amdhsa_kernel {KN}
  .amdhsa_next_free_vgpr 256
  .amdhsa_next_free_sgpr 102
  .amdhsa_accum_offset 256
  .amdhsa_group_segment_fixed_size 0
  .amdhsa_kernarg_size 96
  .amdhsa_user_sgpr_count 2
  .amdhsa_user_sgpr_kernarg_segment_ptr 1
  .amdhsa_system_sgpr_workgroup_id_x 1
.end_amdhsa_kernel
"""
        return out


def gen(**kw):
    return Gen(**kw).build()


if __name__ == "__main__":
    kw = eval("dict(" + (sys.argv[2] if len(sys.argv) > 2 else "") + ")")
    open(sys.argv[1], "w").write(gen(**kw))
```

```python
import sys
import hazard

KN = "sequential_preLN__gqa_block_cached__glu_gated_glu__decode_kernel"

ST_OFF = 0x2000
Y_OFF = 0x10000
Z_OFF = 0x20000
OP_OFF = 0x40000
QP_OFF = 0xC0000
WS_SIZE = 0xD0000
STAMP_OFF = 0x100000
OOB = 0x400000
NG = 56
WQ = 0
WO = 0
WG = 32768
WU = 65536
WD = 98304
ACC = 131072
XN = ACC + 8192
QV = XN + 1024
HV = QV + 1024
ZR = HV + 1024
HH = ZR + 8 * 64
STL = ZR + 1536
FL = STL + 128
F_Q, F_ST, F_W, F_EARLY, F_MID, F_A, F_LOC, F_ACC, F_OPS, F_Y, F_GL, F_G2, F_P = range(0, 52, 4)
WT = FL + 64
YL = WT + 512
ONES = YL + 2048
LDS_SIZE = ONES + 1024

LOG2E = "0x3fb8aa3b"
SCALE = "0x3db504f3"
EPS = "0x3727c5ac"
INV512 = "0x3b000000"
HIMASK = "0xffff0000"
SPIN_MAX = 100000

HEADER = """; One persistent launch: 256 workgroups (one per CU), 8 waves each.  g = id & 7 is the kv head, s = id >> 3 the split.
"""


def vr(a, n=1):
    return f"v{a}" if n == 1 else f"v[{a}:{a+n-1}]"


class Gen:
    def __init__(self, DN=((0, 5), (-12, 12)), DG=None, DP=None, RING=48, NTW=64, NTG=65, NTP=63, pol="nt", wpol="nt", gpol="nt", ppol="",
                 stamps=0, pvrate=3, kbudget=3, dbg=(), slp=8, n_early=18, dq=16, mid_back=26, stdelay=3,
                 d1=3, d2=0, d3=17, b1=0, b2=0, b3=0, dg=0, local=True, fw=2, h2on="gl", acnt=4, a_back=1, p_back=0, wdpf=True):
        self.__dict__.update(locals())
        assert 2 * NTW + NTG + NTP == 256
        self.DN = tuple(DN)
        self.DG = tuple(DG) if DG else self.DN
        self.DP = tuple(DP) if DP else self.DN
        self.L = []
        self.uid = 0

    def A(self, s):
        for l in s.split("\n"):
            l = l.strip()
            if not l:
                continue
            self.L.append(l if l.endswith(":") else "    " + l)

    def lab(self, p):
        self.uid += 1
        return f"L_{p}_{self.uid}"

    def stamp(self, k, keep=False):
        if self.stamps and (self.stamps != 4 or keep):
            self.A(f"s_memrealtime s[98:99]\ns_waitcnt lgkmcnt(0)\ns_mov_b32 s{80+k}, s98")

    def stamp_store(self, role, n):
        A = self.A
        A("s_mov_b64 exec, 1")
        A(f"s_lshl_b32 s6, s2, 9\ns_add_u32 s6, s6, {STAMP_OFF + role*64}")
        A("v_mov_b32 v1, 0")
        for k in range(n):
            A(f"v_mov_b32 v3, s{80+k}")
            A(f"buffer_store_dword v3, v1, s[16:19], s6 offen offset:{4*k}")
        A("s_mov_b64 exec, -1")

    def allred(self, op, regs, tmps, rors=(8, 4, 2, 1)):
        A = self.A
        for n in rors:
            for r in regs:
                ctl = "quad_perm:[2,3,0,1]" if n == "x2" else f"row_ror:{n}"
                A(f"{op}_dpp v{r}, v{r}, v{r} {ctl} row_mask:0xf bank_mask:0xf")
        for sw in ("v_permlane16_swap_b32", "v_permlane32_swap_b32"):
            for r, t in zip(regs, tmps):
                A(f"v_mov_b32 v{t}, v{r}")
            for r, t in zip(regs, tmps):
                A(f"{sw} v{r}, v{t}")
            for r, t in zip(regs, tmps):
                A(f"{op} v{r}, v{r}, v{t}")

    def lane_sum4(self, Rs):
        A = self.A
        for R in Rs: A(f"v_permlane32_swap_b32 v{R}, v{R+2}\nv_permlane32_swap_b32 v{R+1}, v{R+3}")
        for R in Rs: A(f"v_add_f32 v{R}, v{R}, v{R+2}\nv_add_f32 v{R+1}, v{R+1}, v{R+3}")
        for R in Rs: A(f"v_permlane16_swap_b32 v{R}, v{R+1}")
        for R in Rs: A(f"v_add_f32 v{R}, v{R}, v{R+1}")
        for R in Rs: A(f"v_add_f32_dpp v{R}, v{R}, v{R} row_ror:8 row_mask:0xf bank_mask:0xf")

    def flag_add(self, vaddr, vone, off):
        self.A(f"s_mov_b64 exec, 1\nds_add_u32 v{vaddr}, v{vone} offset:{off}\ns_mov_b64 exec, -1")

    def flagged(self, vfl, vt, off, val, reads=(), slp=0):
        A = self.A
        lp, out = self.lab("fl"), self.lab("flok")
        A("s_mov_b32 s7, 0")
        A(f"{lp}:")
        A(f"ds_read_b32 v{vt}, v{vfl} offset:{off}")
        for r in reads: A(r)
        A(f"s_add_u32 s7, s7, 1\ns_cmp_gt_u32 s7, {SPIN_MAX*8}\ns_cbranch_scc1 {out}")
        A(f"s_waitcnt lgkmcnt({len(reads)})")
        A(f"v_cmp_le_u32 vcc, {val}, v{vt}")
        A(f"s_cbranch_vccnz {out}")
        if reads: A("s_waitcnt lgkmcnt(0)")
        if slp: A(f"s_sleep {slp}")
        A(f"s_branch {lp}")
        A(f"{out}:")
        if not reads: A("s_waitcnt lgkmcnt(0)")

    def spin_guard(self, out):
        self.A(f"s_add_u32 s7, s7, 1\ns_cmp_gt_u32 s7, {SPIN_MAX}\ns_cbranch_scc1 {out}")

    def store_alt(self, stores, sflag):
        a, b = self.lab("sa"), self.lab("sb")
        self.A(f"s_cmp_lg_u32 {sflag}, 0\ns_cbranch_scc1 {a}")
        for x in stores: self.A(x + " sc1")
        self.A(f"s_branch {b}\n{a}:")
        for x in stores: self.A(x)
        self.A(f"{b}:")

    def reload(self, bases, ld):
        A = self.A
        for t, base in enumerate(bases):
            sk = self.lab("rs")
            A(f"v_cmp_u_f32 vcc, v{base}, v{base+1}\nv_cmp_u_f32 s[78:79], v{base+2}, v{base+3}")
            A("s_or_b64 exec, vcc, s[78:79]")
            A(f"s_cbranch_execz {sk}")
            ld(t)
            A(f"{sk}:")
            A("s_mov_b64 exec, -1")

    def cnt_wait(self, soff, voff):
        A = self.A
        lp, out = self.lab("cpoll"), self.lab("cok")
        A("s_mov_b32 s7, 0")
        A(f"{lp}:")
        A(f"buffer_load_dword v4, {voff}, s[48:51], {soff} offen sc1")
        self.spin_guard(out)
        A("s_waitcnt vmcnt(0)")
        A("v_and_b32 v5, 0xff, v4\nv_cmp_gt_u32 vcc, 32, v5")
        A(f"s_cbranch_vccz {out}")
        A(f"s_sleep {self.slp}")
        A(f"s_branch {lp}")
        A(f"{out}:")
        A("s_waitcnt vmcnt(0)")

    def ln_scalars(self, mean, var, t):
        A = self.A
        A(f"v_cvt_pk_bf16_f32 v{t}, v{mean}, v{var}")
        A(f"v_lshlrev_b32 v{mean}, 16, v{t}\nv_and_b32 v{var}, s60, v{t}")
        A(f"v_add_f32 v{var}, {EPS}, v{var}")
        A(f"v_cvt_pk_bf16_f32 v{t}, v{var}, v{var}\nv_and_b32 v{var}, s60, v{t}")
        A(f"v_sqrt_f32 v{var}, v{var}")
        A(f"v_cvt_pk_bf16_f32 v{t}, v{var}, v{var}\nv_and_b32 v{var}, s60, v{t}")
        A(f"v_rcp_f32 v{var}, v{var}")

    def entry(self):
        A = self.A
        A("s_load_dwordx2 s[8:9], s[0:1], 8           ; K")
        A("s_load_dwordx2 s[12:13], s[0:1], 16        ; V")
        A("s_load_dwordx2 s[16:17], s[0:1], 88        ; ws")
        A("s_cmp_ge_u32 s2, 256")
        A("s_cbranch_scc1 L_end")
        if "perm" in self.dbg:
            A("s_and_b32 s4, s2, 7\ns_lshr_b32 s5, s2, 3\ns_lshl_b32 s4, s4, 5\ns_or_b32 s2, s4, s5")
        if "perm2" in self.dbg:
            A("s_xor_b32 s4, s2, 1\ns_and_b32 s5, s2, 0xfe\ns_cmp_eq_u32 s5, 0x48\ns_cselect_b32 s2, s4, s2")
        A("v_readfirstlane_b32 s3, v0")
        A("s_and_b32 s4, s2, 7                        ; g")
        A("s_lshr_b32 s5, s2, 3                       ; s")
        A("v_and_b32 v0, 63, v0")
        A("s_lshr_b32 s3, s3, 6                       ; wave")
        A("s_lshl_b32 s100, s4, 3\ns_add_u32 s100, s100, s5\ns_cmp_lt_u32 s5, 8\ns_cselect_b32 s100, s100, 63")
        A(f"s_mov_b32 s18, {0x200000 if self.stamps else WS_SIZE}")
        A("s_mov_b32 s19, 0x20000")
        A("s_cmp_ge_u32 s3, 4")
        A("s_cbranch_scc1 L_helper")

    def streamer(self):
        A = self.A
        A("s_mov_b32 s10, 0x4000000\ns_mov_b32 s11, 0x20000\ns_mov_b32 s14, 0x4000000\ns_mov_b32 s15, 0x20000")
        A("v_bfe_u32 v1, v0, 2, 2\nv_lshlrev_b32 v1, 8, v1\nv_and_b32 v3, 3, v0\nv_lshl_add_u32 v1, v3, 4, v1")
        A("v_lshrrev_b32 v3, 4, v0\nv_lshl_add_u32 v1, v3, 6, v1\nv_lshlrev_b32 v2, 4, v0")
        A("s_lshl_b32 s56, s4, 23\ns_lshl_b32 s57, s3, 10\ns_add_u32 s56, s56, s57")
        NG_, NW, NP = self.NTG, self.NTW, self.NTP
        A(f"s_min_u32 s6, s5, 8\ns_mul_i32 s57, s6, {NG_*4096}\ns_add_u32 s56, s56, s57")
        A(f"s_sub_u32 s7, s5, s6\ns_min_u32 s6, s7, 16\ns_mul_i32 s57, s6, {NW*4096}\ns_add_u32 s56, s56, s57")
        A(f"s_sub_u32 s7, s7, s6\ns_mul_i32 s57, s7, {NP*4096}\ns_add_u32 s56, s56, s57")
        kinds = [(self.DN, NW), (self.DG, NG_), (self.DP, NP)]
        uniq = list(dict.fromkeys(kinds))
        if kinds[1] != kinds[0]: A(f"s_cmp_lt_u32 s5, 8\ns_cbranch_scc1 L_stream_{uniq.index(kinds[1])}")
        if kinds[2] != kinds[0]: A(f"s_cmp_ge_u32 s5, 24\ns_cbranch_scc1 L_stream_{uniq.index(kinds[2])}")
        for i, (d, nt) in enumerate(uniq):
            A(f"L_stream_{i}:")
            self.stream_body(d, nt, i == len(uniq) - 1)
        self.stream_tail()

    def stream_body(self, sched, NT, islast):
        A = self.A
        RING = self.RING
        R0 = 256 - 4 * RING
        assert R0 >= 64
        NB = -(-NT // 4)
        rem = NT % 4
        NL = 2 * NT
        S0, VFL, VONE, VFG, D0, X0, X1, VM, VL, VF, VT, VT2, VRD, M4 = 8, 25, 26, 27, 28, 44, 45, 46, 47, 48, 49, 50, 51, 52
        ACC0, ACC1 = 56, 60
        AB, TLO, THI = 28, 36, 37
        assert NB <= 17
        slot = lambda n: R0 + 4 * (n % RING)
        A("s_mov_b32 s57, s56")
        A("s_waitcnt lgkmcnt(0)")

        def depth(n):
            d = sched[0][1]
            for n0, dd in sched:
                if n >= (n0 if n0 >= 0 else NL + n0):
                    d = dd
            return d
        st = {"landed": -1}
        self.stamp(0, True)

        def load(n):
            d = depth(n)
            if n - d > st["landed"]:
                A(f"s_waitcnt vmcnt({d-1})")
                st["landed"] = n - d
            t = n % NT
            va, srd, so = ("v1", "s[8:11]", "s56") if n < NT else ("v2", "s[12:15]", "s57")
            A(f"buffer_load_dwordx4 {vr(slot(n),4)}, {va}, {srd}, {so} offen {self.pol}")
            if t + 1 < NT: A(f"s_add_u32 {so}, {so}, 4096")
            if n == depth(0) - 1:
                A(f"v_mov_b32 v{VFL}, {FL}\nv_mov_b32 v{VONE}, 1")
                A(f"s_mov_b32 s58, {SCALE}\ns_mov_b32 s59, {LOG2E}\ns_mov_b32 s60, {HIMASK}")
                A(f"v_and_b32 v3, 3, v0\nv_lshlrev_b32 v3, 8, v3\nv_bfe_u32 v4, v0, 2, 2\nv_lshl_add_u32 v3, v4, 4, v3")
                A(f"v_lshrrev_b32 v4, 4, v0\nv_lshl_add_u32 v3, v4, 6, v3\nv_add_u32 v3, {QV}, v3")
                A("s_barrier")
            if n == self.n_early:
                self.flag_add(VFL, VONE, F_EARLY)
            if n == NL - self.mid_back:
                self.flag_add(VFL, VONE, F_MID)
            if n == NL - self.a_back:
                self.flag_add(VFL, VONE, F_A)
            if n == NL - self.p_back:
                self.flag_add(VFL, VONE, F_P)

        def qsync():
            A("; q (four heads) as B operand, and whether the group shares a die")
            self.flagged(VFL, VFG, F_Q, 1, ["ds_read_b128 v[4:7], v3", f"ds_read_b32 v{VT}, v{VFL} offset:{F_LOC}"])
            A(f"s_waitcnt lgkmcnt(0)\nv_readfirstlane_b32 s63, v{VT}")

        def qk(i):
            nt = rem if (rem and i == NB - 1) else 4
            for j in range(nt):
                A(f"v_mfma_f32_16x16x32_bf16 {vr(D0+4*j,4)}, {vr(slot(4*i+j),4)}, v[4:7], 0")
            d = lambda j, b: D0 + 4 * j + b
            dp = lambda dst, s0, s1, ror, bm: A(f"v_add_f32_dpp v{dst}, v{s0}, v{s1} row_ror:{ror} row_mask:0xf bank_mask:{bm:#x}")
            dp(X0, d(0, 1), d(0, 0), 12, 1)
            dp(X1, d(2, 1), d(2, 0), 12, 1)
            dp(X0, d(1, 0), d(1, 1), 4, 2)
            dp(X1, d(3, 0), d(3, 1), 4, 2)
            dp(X0, d(0, 3), d(0, 2), 12, 4)
            dp(X1, d(2, 3), d(2, 2), 12, 4)
            dp(X0, d(1, 2), d(1, 3), 4, 8)
            dp(X1, d(3, 2), d(3, 3), 4, 8)
            dp(S0 + i, X0, X0, 8, 3)
            dp(S0 + i, X1, X1, 8, 12)
            if nt < 4:
                A(f"v_mov_b32 v{VT}, 0xff800000")
                A(f"v_mov_b32_dpp v{S0+i}, v{VT} quad_perm:[0,1,2,3] row_mask:0xf bank_mask:{(0xf << nt) & 0xf:#x}")

        def rnd(i):
            a, b = S0 + i, S0 + min(i + 1, NB - 1)
            A(f"v_cvt_pk_bf16_f32 v{VT}, v{a}, v{b}")
            if a != b: A(f"v_lshlrev_b32 v{a}, 16, v{VT}")
            A(f"v_and_b32 v{b}, s60, v{VT}")
            if a != b: A(f"v_mul_f32 v{a}, s58, v{a}")
            A(f"v_mul_f32 v{b}, s58, v{b}")
            A(f"v_cvt_pk_bf16_f32 v{VT}, v{a}, v{b}")
            if a != b: A(f"v_lshlrev_b32 v{a}, 16, v{VT}")
            A(f"v_and_b32 v{b}, s60, v{VT}")
            if i == 0:
                A(f"v_max_f32 v{VM}, v{a}, v{b}")
            else:
                A(f"v_max3_f32 v{VM}, v{VM}, v{a}, v{b}")

        def sm_max():
            A("; maximum over this wave's keys")
            self.allred("v_max_f32", [VM], [VT], rors=(4, 8))
            A(f"v_mul_f32 v{VT2}, s59, v{VM}")

        def sm_exp(lo, hi):
            for i in range(lo, hi):
                A(f"v_fma_f32 v{S0+i}, v{S0+i}, s59, -v{VT2}")
            for i in range(lo, hi):
                A(f"v_exp_f32 v{S0+i}, v{S0+i}")
            for i in range(lo, hi):
                if i == 1:
                    A(f"v_add_f32 v{VL}, v{S0}, v{S0+1}")
                elif i > 1:
                    A(f"v_add_f32 v{VL}, v{VL}, v{S0+i}")

        def sm_sum():
            self.allred("v_add_f32", [VL], [VT], rors=(4, 8))
            A(f"v_and_b32 v3, 3, v0\nv_lshlrev_b32 v3, 4, v3\nv_add_u32 v3, {STL}, v3")
            A(f"s_lshl_b32 s6, s3, 2\nv_add_u32 v4, s6, v3")
            A("s_mov_b64 exec, 15")
            A(f"ds_write_b32 v4, v{VM}\nds_write_b32 v4, v{VL} offset:64")
            self.flag_add(VFL, VONE, F_ST)

        def pv_setup():
            for r in list(range(AB, AB + 8)) + list(range(ACC0, ACC0 + 8)):
                A(f"v_mov_b32 v{r}, 0")
            A(f"s_lshl_b32 s6, s3, 10\ns_add_u32 s6, s6, {ACC}\nv_add_u32 v{VRD}, s6, v2")
            A(f"s_lshl_b32 s61, s4, 16\ns_lshl_b32 s7, s5, 11\ns_add_u32 s61, s61, s7\ns_lshl_b32 s7, s3, 10\ns_add_u32 s61, s61, s7\ns_add_u32 s61, s61, {OP_OFF}")

        def msync():
            A("; rescale this wave's exponentials to the maximum of the workgroup")
            self.flagged(VFL, VFG, F_ST, 4, [f"ds_read_b128 {vr(M4,4)}, v3"])
            A("s_waitcnt lgkmcnt(0)")
            A(f"v_max3_f32 v{VF}, v{M4}, v{M4+1}, v{M4+2}\nv_max_f32 v{VF}, v{VF}, v{M4+3}")
            A(f"v_sub_f32 v{VF}, v{VM}, v{VF}\nv_mul_f32 v{VF}, s59, v{VF}\nv_exp_f32 v{VF}, v{VF}")
            A(f"s_lshl_b32 s6, s3, 11\ns_add_u32 s6, s6, {ACC}\nv_add_u32 v3, s6, v2")

        def tcalc(i):
            A(f"v_mul_f32 v{VT}, v{S0+i}, v{VF}")
            A(f"v_cvt_pk_bf16_f32 v{TLO}, v{VT}, 0\nv_cvt_pk_bf16_f32 v{THI}, 0, v{VT}")

        def mv(dst, src, dbank, j):
            rot = 4 * ((dbank - j) & 3)
            ctl = f"row_ror:{rot}" if rot else "quad_perm:[0,1,2,3]"
            A(f"v_mov_b32_dpp v{dst}, v{src} {ctl} row_mask:0xf bank_mask:{1<<dbank:#x}")

        abuf = lambda t: AB + 2 * (t % 4)

        def prep(ts):
            for t in ts:
                mv(abuf(t), TLO, 0, t % 4)
                mv(abuf(t) + 1, TLO, 2, t % 4)
            for t in ts:
                mv(abuf(t), THI, 1, t % 4)
                mv(abuf(t) + 1, THI, 3, t % 4)

        def pv(t):
            s = slot(NT + t)
            A(f"v_mfma_f32_16x16x16_bf16 {vr(ACC0,4)}, {vr(abuf(t),2)}, {vr(s,2)}, {vr(ACC0,4)}")
            A(f"v_mfma_f32_16x16x16_bf16 {vr(ACC1,4)}, {vr(abuf(t),2)}, {vr(s+2,2)}, {vr(ACC1,4)}")

        KB = float(self.kbudget)
        items = [(RING - 1 - depth(RING - 1), qsync, 0.5, -1, 0)]
        for i in range(NB):
            lt = min(4 * i + 3, NT - 1)
            items.append((lt, (lambda i=i: qk(i)), 2, lt, 0))
            if i % 2 == 1 or i == NB - 1:
                items.append((-1, (lambda i=i: rnd(i - (i % 2))), 0.5, -1, 0))
        h = NB // 2
        items += [(-1, sm_max, 1.5, -1, 0), (-1, lambda: sm_exp(0, h), 2, -1, 0), (-1, lambda: sm_exp(h, NB), 2, -1, 0),
                  (-1, sm_sum, 2, -1, 0), (-1, pv_setup, 2, -1, 0), (-1, msync, 1, -1, self.stdelay)]
        for i in range(NB):
            items.append((-1, (lambda i=i: tcalc(i)), 0, -1, 0))
            for u in (2 * i, 2 * i + 1):
                ts = [t for t in (2 * u, 2 * u + 1) if t < NT]
                if not ts: continue
                items.append((-1, (lambda ts=ts: prep(ts)), 0, -1, 0))
                for t in ts:
                    items.append((NT + t, (lambda t=t: pv(t)), KB / self.pvrate, NT + t, 0))
        pos, freed, lastn = 0, -1, 0
        for n in range(NL):
            while n - RING > freed:
                need, emit, cost, fr, dl = items[pos]
                assert need <= st["landed"], (n, need)
                emit(); pos += 1; freed = max(freed, fr); lastn = n
            load(n)
            budget = KB
            while pos < len(items) and items[pos][0] <= st["landed"] and (budget > 0 or items[pos][2] == 0) and n >= lastn + items[pos][4]:
                need, emit, cost, fr, dl = items[pos]
                emit(); pos += 1; budget -= cost; freed = max(freed, fr); lastn = n
        while pos < len(items):
            need, emit, cost, fr, dl = items[pos]
            if need > st["landed"]:
                A(f"s_waitcnt vmcnt({NL-1-need})")
                st["landed"] = need
            emit(); pos += 1
        A("s_cmp_ge_u32 s3, 2")
        A(f"ds_write_b128 v3, {vr(ACC0,4)}\nds_write_b128 v3, {vr(ACC1,4)} offset:1024")
        self.flag_add(VFL, VONE, F_ACC)
        if not islast:
            A("s_branch L_stail")

    def stream_tail(self):
        A = self.A
        VFL, VONE, VRD = 25, 26, 51
        ex = "L_sexit"
        A("L_stail:")
        A("s_cbranch_scc1 L_noop")
        self.flagged(VFL, 27, F_ACC, 4, [f"ds_read_b128 {vr(8+4*sw,4)}, v{VRD} offset:{sw*2048}" for sw in range(4)])
        A("s_waitcnt lgkmcnt(2)")
        A("v_pk_add_f32 v[8:9], v[8:9], v[12:13]\nv_pk_add_f32 v[10:11], v[10:11], v[14:15]")
        A("s_waitcnt lgkmcnt(0)")
        A("v_pk_add_f32 v[16:17], v[16:17], v[20:21]\nv_pk_add_f32 v[18:19], v[18:19], v[22:23]")
        A("v_pk_add_f32 v[8:9], v[8:9], v[16:17]\nv_pk_add_f32 v[10:11], v[10:11], v[18:19]")
        self.store_alt(["buffer_store_dwordx4 v[8:11], v2, s[16:19], s61 offen"], "s63")
        self.flag_add(VFL, VONE, F_OPS)
        A("L_noop:")
        self.stamp(6, True)
        A(f"s_cmp_ge_u32 s100, 56\ns_cbranch_scc1 {ex}")
        SEL, XR, P2, vH2, vHVw, vH3, vFo, vFh = 40, 28, 64, 32, 33, 34, 35, 36
        A("s_load_dwordx2 s[20:21], s[0:1], 0\ns_load_dwordx2 s[44:45], s[0:1], 72")
        A("s_mov_b32 s22, 1024\ns_mov_b32 s23, 0x20000\ns_mov_b32 s46, 1024\ns_mov_b32 s47, 0x20000")
        A("v_lshrrev_b32 v12, 4, v0\nv_and_b32 v5, 15, v0\ns_lshl_b32 s6, s3, 8")
        A(f"v_lshlrev_b32 v6, 10, v12\nv_lshl_add_u32 v{vH2}, v5, 4, v6")
        A(f"v_and_b32 v6, 1, v12\nv_lshlrev_b32 v6, 3, v6\nv_lshl_add_u32 v6, v5, 4, v6\nv_add_u32 v13, s6, v6\nv_add_u32 v{vHVw}, {HV}, v13")
        A(f"s_add_u32 s64, s6, {Y_OFF}")
        for t in range(1, 8):
            A(f"s_add_u32 s{64+t}, s64, {t*4096}")
        A("v_and_b32 v6, 1, v5\nv_lshlrev_b32 v6, 4, v6\nv_mov_b32 v7, 0x3f80\nv_lshlrev_b32 v6, v6, v7\nv_lshrrev_b32 v7, 1, v5")
        for q in range(4):
            A(f"v_cmp_eq_u32 vcc, {q}, v7\nv_cndmask_b32 v{SEL+q}, 0, v6, vcc")
        A(f"v_lshrrev_b32 v6, 3, v0\nv_lshlrev_b32 v6, 11, v6\nv_and_b32 v7, 7, v0\nv_lshl_add_u32 v{vH3}, v7, 4, v6")
        A("s_mul_i32 s101, s4, 3\ns_add_u32 s101, s101, s5\ns_cmp_lt_u32 s5, 3\ns_cselect_b32 s101, s101, 63")
        A("s_and_b32 s72, s101, 15")
        A(f"s_lshl_b32 s6, s72, 6\nv_lshlrev_b32 v6, 3, v7\nv_lshl_add_u32 v6, v12, 1, v6\nv_add_u32 v{vFo}, s6, v6\nv_add_u32 v{vFh}, {HV}, v{vFo}")
        A(f"s_lshl_b32 s72, s72, 7\ns_add_u32 s72, s72, {Z_OFF}")
        A("s_waitcnt lgkmcnt(0)")
        A("buffer_load_dwordx2 v[8:9], v13, s[20:23], 0 offen")
        A("buffer_load_dword v10, v13, s[44:47], 0 offen")
        self.flagged(VFL, 4, {"gl": F_GL, "g2": F_G2}[self.h2on], 4, slp=1)
        if self.d2: A(f"s_sleep {self.d2}")
        h2load = lambda t: A(f"buffer_load_dwordx4 {vr(P2+4*t,4)}, v{vH2}, s[16:19], s{64+t} offen sc1")
        for t in range(8):
            h2load(t)
        A("s_waitcnt vmcnt(8)")
        A(f"v_lshlrev_b32 v{XR}, 16, v8\nv_and_b32 v{XR+1}, s60, v8\nv_lshlrev_b32 v{XR+2}, 16, v9\nv_and_b32 v{XR+3}, s60, v9")
        lp, out = self.lab("h2"), self.lab("h2ok")
        A("s_mov_b32 s7, 0")
        A(f"{lp}:")
        A("s_waitcnt vmcnt(0)")
        for t in range(8):
            A(f"v_mfma_f32_16x16x32_bf16 v[8:11], {vr(SEL,4)}, {vr(P2+4*t,4)}, {'0' if t == 0 else 'v[8:11]'}")
        A("v_cmp_u_f32 vcc, v8, v9\nv_cmp_u_f32 s[78:79], v10, v11")
        A("s_or_b64 vcc, vcc, s[78:79]")
        A(f"s_cbranch_scc0 {out}")
        self.spin_guard(out)
        if self.b2: A(f"s_sleep {self.b2}")
        self.reload([P2 + 4 * t for t in range(8)], h2load)
        A(f"s_branch {lp}")
        A(f"{out}:")
        if self.stamps == 1: A("s_mov_b32 s84, s7")
        self.stamp(1)
        A(f"v_pk_add_f32 v[8:9], v[8:9], {vr(XR,2)}\nv_pk_add_f32 v[10:11], v[10:11], {vr(XR+2,2)}")
        A("v_cvt_pk_bf16_f32 v4, v8, v9\nv_cvt_pk_bf16_f32 v5, v10, v11")
        A("s_mov_b64 exec, 0xffffffff")
        A(f"ds_write_b64 v{vHVw}, v[4:5]")
        A("s_mov_b64 exec, -1")
        A("s_waitcnt lgkmcnt(0)")
        A("s_barrier")
        A(f"s_cmp_ge_u32 s101, 16\ns_cbranch_scc1 {ex}\ns_cmp_lg_u32 s3, {self.fw}\ns_cbranch_scc1 {ex}")
        A(f"ds_read_u16 v12, v{vFh}")
        for t in range(1, 7):
            A(f"s_add_u32 s{64+t}, s72, {t*16384}")
        A("s_mov_b32 s64, s72")
        A("s_waitcnt lgkmcnt(0)")
        A("v_lshlrev_b32 v12, 16, v12")
        A("s_barrier")
        if self.d3: A(f"s_sleep {self.d3}")
        h3load = lambda t: A(f"buffer_load_dwordx4 {vr(P2+4*t,4)}, v{vH3}, s[16:19], s{64+t} offen sc1")
        for t in range(7):
            h3load(t)
        lp, out = self.lab("h3"), self.lab("h3ok")
        A("s_mov_b32 s7, 0")
        A(f"{lp}:")
        A("s_waitcnt vmcnt(0)")
        for dst, a, b in ((4, P2, P2 + 4), (8, P2 + 8, P2 + 12), (16, P2 + 16, P2 + 20), (4, 4, P2 + 24), (8, 8, 16), (4, 4, 8)):
            for k in (0, 2):
                A(f"v_pk_add_f32 {vr(dst+k,2)}, {vr(a+k,2)}, {vr(b+k,2)}")
        A("v_cmp_u_f32 vcc, v4, v5\nv_cmp_u_f32 s[78:79], v6, v7")
        A("s_or_b64 vcc, vcc, s[78:79]")
        A(f"s_cbranch_scc0 {out}")
        self.spin_guard(out)
        if self.b3: A(f"s_sleep {self.b3}")
        self.reload([P2 + 4 * t for t in range(7)], h3load)
        A(f"s_branch {lp}")
        A(f"{out}:")
        if self.stamps == 1: A("s_mov_b32 s85, s7")
        self.stamp(2)
        self.lane_sum4([4])
        A("v_add_f32 v4, v12, v4\nv_cvt_pk_bf16_f32 v4, v4, v4")
        A("s_mov_b32 exec_lo, 0x00ff00ff\ns_mov_b32 exec_hi, 0x00ff00ff")
        A(f"buffer_store_short v4, v{vFo}, s[44:47], 0 offen")
        if self.stamps:
            A("s_mov_b64 exec, -1")
            self.stamp(3, True)
        A(f"{ex}:")
        if self.stamps:
            A(f"s_cmp_lg_u32 s3, {self.fw}\ns_cbranch_scc1 L_end")
            self.stamp_store(0, 7)
        A("s_endpgm")

    VFL = 245

    def helper(self):
        A = self.A
        A("L_helper:")
        A("s_load_dwordx2 s[20:21], s[0:1], 0         ; x")
        A("s_load_dwordx2 s[24:25], s[0:1], 24        ; wq")
        A("s_load_dwordx2 s[48:49], s[0:1], 80        ; debug")
        A("s_load_dwordx2 s[28:29], s[0:1], 32        ; wo")
        A("s_sub_u32 s3, s3, 4")
        A("s_mov_b32 s22, 1024\ns_mov_b32 s23, 0x20000\ns_mov_b32 s26, 0x400000\ns_mov_b32 s27, 0x20000")
        A("s_mov_b32 s50, 256\ns_mov_b32 s51, 0x20000\ns_mov_b32 s30, 0x400000\ns_mov_b32 s31, 0x20000")
        A("v_lshlrev_b32 v2, 4, v0")
        A(f"s_mov_b32 s59, {LOG2E}\ns_mov_b32 s60, {HIMASK}")
        A("s_lshr_b32 s62, s5, 3\ns_and_b32 s63, s5, 7")
        A("s_waitcnt lgkmcnt(0)")
        A("s_load_dwordx2 s[32:33], s[0:1], 48        ; w_gate")
        A("s_load_dwordx2 s[36:37], s[0:1], 56        ; w_up")
        A("s_load_dwordx2 s[40:41], s[0:1], 64        ; w_down")
        A("s_mov_b32 s34, 0x1c0000\ns_mov_b32 s35, 0x20000\ns_mov_b32 s38, 0x1c0000\ns_mov_b32 s39, 0x20000")
        A("s_mov_b32 s42, 0x1c0000\ns_mov_b32 s43, 0x20000")
        A(f"s_lshl_b32 s6, s4, 5\ns_add_u32 s6, s6, s5\ns_lshl_b32 s64, s6, 5\ns_add_u32 s64, s64, {ST_OFF}")
        A(f"s_lshl_b32 s66, s6, 11\ns_add_u32 s66, s66, {OP_OFF}")
        A(f"s_lshl_b32 s7, s4, 2\ns_add_u32 s7, s7, s62\ns_lshl_b32 s7, s7, 11\ns_lshl_b32 s6, s63, 8\ns_add_u32 s58, s7, s6")
        A(f"s_add_u32 s58, s58, {QP_OFF}\ns_lshl_b32 s65, s4, 5")
        A(f"s_sub_u32 s12, s5, 8\ns_lshl_b32 s13, s4, 4\ns_add_u32 s13, s13, s12\ns_lshl_b32 s13, s13, 8\ns_add_u32 s13, s13, {Y_OFF}")
        A("s_getreg_b32 s6, hwreg(HW_REG_XCC_ID, 0, 4)")
        A("s_mul_i32 s7, s6, s6\ns_lshl_b32 s7, s7, 18\ns_lshl_b32 s6, s6, 8\ns_or_b32 s6, s6, s7\ns_or_b32 s14, s6, 1")
        A(f"v_mov_b32 v{self.VFL}, {FL}")
        A("s_cmp_lg_u32 s3, 0")
        A("s_cbranch_scc1 L_h123")
        self.h0()
        A("s_branch L_hjoin")
        self.h123()
        A("L_hjoin:")
        self.flagged(self.VFL, 4, F_W, 1, slp=4)
        A("v_lshrrev_b32 v12, 4, v0\nv_bfe_u32 v13, v0, 2, 2\nv_and_b32 v14, 3, v0\nv_lshl_add_u32 v15, v12, 3, v13\nv_mov_b32 v240, 1")
        A("s_cmp_lt_u32 s5, 8\ns_cbranch_scc1 L_gpath\ns_cmp_ge_u32 s5, 24\ns_cbranch_scc1 L_ppath")
        self.wpath()
        self.ppath()
        self.gpath()

    def h0(self):
        A = self.A
        self.stamp(0)
        A("buffer_load_dwordx4 v[4:7], v2, s[20:23], 0 offen")
        A("v_lshrrev_b32 v3, 3, v0\nv_lshlrev_b32 v3, 13, v3\nv_and_b32 v1, 7, v0\nv_lshl_add_u32 v3, v1, 4, v3")
        A("s_lshl_b32 s6, s62, 20\ns_lshl_b32 s7, s4, 10\ns_add_u32 s6, s6, s7\ns_lshl_b32 s7, s63, 7\ns_add_u32 s6, s6, s7")
        for t in range(16):
            A(f"s_mov_b32 m0, {WQ + t*1024}")
            A(f"buffer_load_dwordx4 v3, s[24:27], s6 offen {self.wpol} lds")
            if t < 15:
                A("s_add_u32 s6, s6, 0x10000")
            if t == 3:
                A("s_barrier")
        A("s_waitcnt vmcnt(16)")
        for k in range(4):
            A(f"v_lshlrev_b32 v{12+2*k}, 16, v{4+k}\nv_and_b32 v{13+2*k}, s60, v{4+k}")
        A("v_add_f32 v20, v12, v13\nv_add_f32 v21, v14, v15\nv_add_f32 v22, v16, v17\nv_add_f32 v23, v18, v19")
        A("v_add_f32 v20, v20, v21\nv_add_f32 v22, v22, v23\nv_add_f32 v20, v20, v22")
        self.allred("v_add_f32", [20], [21])
        A(f"v_mul_f32 v20, {INV512}, v20")
        for k in range(8):
            A(f"v_sub_f32 v{24+k}, v{12+k}, v20")
        A("v_mul_f32 v22, v24, v24")
        for k in range(1, 8):
            A(f"v_fmac_f32 v22, v{24+k}, v{24+k}")
        self.allred("v_add_f32", [22], [21])
        A(f"v_mul_f32 v22, {INV512}, v22")
        self.ln_scalars(20, 22, 21)
        for k in range(4):
            a, b = 12 + 2 * k, 13 + 2 * k
            A(f"v_sub_f32 v{a}, v{a}, v20\nv_sub_f32 v{b}, v{b}, v20")
            A(f"v_cvt_pk_bf16_f32 v21, v{a}, v{b}")
            A(f"v_lshlrev_b32 v{a}, 16, v21\nv_and_b32 v{b}, s60, v21")
            A(f"v_mul_f32 v{a}, v{a}, v22\nv_mul_f32 v{b}, v{b}, v22")
            A(f"v_cvt_pk_bf16_f32 v{4+k}, v{a}, v{b}")
        A(f"v_add_u32 v1, {XN}, v2")
        A("ds_write_b128 v1, v[4:7]")
        A("v_lshrrev_b32 v12, 4, v0\nv_bfe_u32 v13, v0, 2, 2\nv_and_b32 v14, 3, v0")
        A("v_lshl_add_u32 v15, v12, 3, v13\nv_lshlrev_b32 v15, 7, v15\nv_lshl_add_u32 v15, v14, 3, v15")
        A(f"s_lshl_b32 s6, s62, 8\ns_add_u32 s6, s6, {XN}\nv_lshlrev_b32 v17, 4, v12\nv_add_u32 v16, s6, v17")
        A("s_waitcnt lgkmcnt(0)")
        for m in range(4):
            A(f"ds_read_b128 {vr(128+4*m,4)}, v16 offset:{m*64}")
        A("v_mov_b32 v1, 0")
        A("s_waitcnt vmcnt(0)")
        for m in range(4):
            base = 64 + 16 * m
            for ct in range(4):
                A(f"ds_read_b64_tr_b16 {vr(base+4*ct,2)}, v15 offset:{WQ + m*4096 + ct*32}")
                A(f"ds_read_b64_tr_b16 {vr(base+4*ct+2,2)}, v15 offset:{WQ + m*4096 + ct*32 + 512}")
            A("s_waitcnt lgkmcnt(0)")
            for ct in range(4):
                c = "0" if m == 0 else vr(32 + 4 * ct, 4)
                A(f"v_mfma_f32_16x16x32_bf16 {vr(32+4*ct,4)}, {vr(base+4*ct,4)}, {vr(128+4*m,4)}, {c}")
        self.flagged(self.VFL, 4, F_EARLY, 1, slp=2)
        self.cnt_wait("s65", "v1")
        self.stamp(3)
        A("v_readfirstlane_b32 s6, v4\ns_lshl_b32 s7, s14, 5\ns_cmp_eq_u32 s6, s7\ns_cselect_b32 s15, 1, 0")
        if not self.local: A("s_mov_b32 s15, 0")
        A(f"v_mov_b32 v5, s15\nds_write_b32 v{self.VFL}, v5 offset:{F_LOC}")
        A("s_mov_b32 exec_lo, 0x00010001\ns_mov_b32 exec_hi, 0x00010001")
        self.store_alt([f"buffer_store_dwordx4 {vr(32+4*ct,4)}, v17, s[16:19], s58 offen offset:{ct*64}" for ct in range(4)], "s15")
        A("s_mov_b64 exec, -1")
        if self.dq: A(f"s_sleep {self.dq}")
        A(f"s_lshl_b32 s6, s4, 13\ns_add_u32 s6, s6, {QP_OFF}\ns_add_u32 s66, s6, 4096")
        lp, out = self.lab("qpoll"), self.lab("qok")
        A("s_mov_b32 s7, 0")
        A(f"{lp}:")
        for rb in range(4):
            for hf in range(2):
                A(f"buffer_load_dwordx4 {vr(64+8*rb+4*hf,4)}, v2, s[16:19], {'s6' if rb < 2 else 's66'} offen offset:{(rb&1)*2048+hf*1024} sc1")
        self.spin_guard(out)
        A("s_waitcnt vmcnt(0)")
        for k in range(0, 8, 2):
            A(f"v_pk_add_f32 {vr(64+k,2)}, {vr(64+k,2)}, {vr(72+k,2)}\nv_pk_add_f32 {vr(80+k,2)}, {vr(80+k,2)}, {vr(88+k,2)}")
        for k in range(0, 8, 2):
            A(f"v_pk_add_f32 {vr(64+k,2)}, {vr(64+k,2)}, {vr(80+k,2)}")
        A("v_cmp_u_f32 vcc, v64, v65\nv_cmp_u_f32 s[68:69], v66, v67\nv_cmp_u_f32 s[70:71], v68, v69\nv_cmp_u_f32 s[72:73], v70, v71")
        A("s_or_b64 vcc, vcc, s[68:69]\ns_or_b64 s[70:71], s[70:71], s[72:73]\ns_or_b64 vcc, vcc, s[70:71]")
        A(f"s_cbranch_scc0 {out}")
        A(f"s_sleep {self.slp}")
        A(f"s_branch {lp}")
        A(f"{out}:")
        A("s_waitcnt vmcnt(0)")
        A("v_cvt_pk_bf16_f32 v4, v64, v65\nv_cvt_pk_bf16_f32 v5, v66, v67\nv_cvt_pk_bf16_f32 v6, v68, v69\nv_cvt_pk_bf16_f32 v7, v70, v71")
        A(f"v_lshlrev_b32 v1, 3, v0\nv_add_u32 v1, {QV}, v1\nv_mov_b32 v8, 1")
        A("ds_write_b64 v1, v[4:5]\nds_write_b64 v1, v[6:7] offset:512")
        self.flag_add(self.VFL, 8, F_Q)
        self.stamp(13)
        A(f"v_and_b32 v1, 3, v0\nv_lshlrev_b32 v5, 4, v1\nv_add_u32 v5, {STL}, v5\nv_lshlrev_b32 v1, 3, v1")
        self.flagged(self.VFL, 4, F_ST, 4, slp=4)
        A("ds_read_b128 v[8:11], v5\nds_read_b128 v[12:15], v5 offset:64")
        A("s_waitcnt lgkmcnt(0)")
        A("v_max3_f32 v16, v8, v9, v10\nv_max_f32 v16, v16, v11")
        for k in range(4):
            A(f"v_sub_f32 v{8+k}, v{8+k}, v16")
        for k in range(4):
            A(f"v_mul_f32 v{8+k}, s59, v{8+k}")
        for k in range(4):
            A(f"v_exp_f32 v{8+k}, v{8+k}")
        A("v_mul_f32 v17, v8, v12\nv_fmac_f32 v17, v9, v13\nv_fmac_f32 v17, v10, v14\nv_fmac_f32 v17, v11, v15")
        A("s_mov_b64 exec, 15")
        self.store_alt(["buffer_store_dwordx2 v[16:17], v1, s[16:19], s64 offen"], "s15")
        A("s_mov_b64 exec, -1")
        self.flagged(self.VFL, 4, F_MID, 1, slp=4)
        A("v_and_b32 v1, 7, v0\nv_lshlrev_b32 v1, 5, v1")
        self.cnt_wait("0", "v1")
        sk = self.lab("now")
        A(f"v_mov_b32 v6, 1\ns_cmp_ge_u32 s12, 16\ns_cbranch_scc1 {sk}")
        A(f"s_lshl_b32 s6, s4, 10\ns_add_u32 s6, s6, {ST_OFF}")
        lp, out = self.lab("spoll"), self.lab("sok")
        A("s_mov_b32 s7, 0")
        A(f"{lp}:")
        A("buffer_load_dwordx4 v[8:11], v2, s[16:19], s6 offen sc1")
        self.spin_guard(out)
        A("s_waitcnt vmcnt(0)")
        A("v_cmp_u_f32 vcc, v8, v9\nv_cmp_u_f32 s[78:79], v10, v11")
        A("s_or_b64 vcc, vcc, s[78:79]")
        A(f"s_cbranch_scc0 {out}")
        A(f"s_sleep {self.slp}")
        A(f"s_branch {lp}")
        A(f"{out}:")
        A("s_waitcnt vmcnt(0)")
        A("v_mov_b32 v4, v8\nv_mov_b32 v5, v10")
        self.allred("v_max_f32", [4, 5], [12, 13], rors=("x2", 4, 8))
        A("v_sub_f32 v8, v8, v4\nv_sub_f32 v10, v10, v5\nv_mul_f32 v8, s59, v8\nv_mul_f32 v10, s59, v10")
        A("v_exp_f32 v8, v8\nv_exp_f32 v10, v10")
        A("v_mul_f32 v9, v8, v9\nv_mul_f32 v11, v10, v11")
        self.allred("v_add_f32", [9, 11], [12, 13], rors=("x2", 4, 8))
        A("v_rcp_f32 v9, v9\nv_rcp_f32 v11, v11")
        A(f"v_lshlrev_b32 v5, 3, v0\nv_add_u32 v5, {WT}, v5")
        A("v_mul_f32 v8, v8, v9\nv_mul_f32 v9, v10, v11")
        A("ds_write_b64 v5, v[8:9]")
        A(f"{sk}:")
        self.flag_add(self.VFL, 6, F_W)
        self.stamp(6)

    def h123(self):
        A = self.A
        A("L_h123:")
        l2, l3, dn = self.lab("h2"), self.lab("h3"), self.lab("hd")
        A("v_mov_b32 v4, 0\nv_mov_b32 v5, 0\nv_mov_b32 v6, 0\nv_mov_b32 v7, 0")
        A(f"s_cmp_eq_u32 s3, 2\ns_cbranch_scc1 {l2}\ns_cmp_eq_u32 s3, 3\ns_cbranch_scc1 {l3}")
        A("v_mov_b32 v8, -1\nv_mov_b32 v9, -1\nv_mov_b32 v10, -1\nv_mov_b32 v11, -1")
        A("buffer_store_dwordx4 v[8:11], v2, s[16:19], s66 offen sc1")
        A("buffer_store_dwordx4 v[8:11], v2, s[16:19], s66 offen offset:1024 sc1")
        A("s_mov_b64 exec, 3")
        A("buffer_store_dwordx4 v[8:11], v2, s[16:19], s64 offen sc1")
        A("s_mov_b64 exec, 0xffff")
        A("buffer_store_dwordx4 v[8:11], v2, s[16:19], s58 offen sc1")
        a, b = self.lab("cz"), self.lab("cd")
        A(f"s_cmp_lt_u32 s5, 8\ns_cbranch_scc1 {a}")
        A(f"s_cmp_ge_u32 s5, 24\ns_cbranch_scc1 {b}")
        A(f"buffer_store_dwordx4 v[8:11], v2, s[16:19], s13 offen sc1\ns_branch {b}")
        A(f"{a}:\ns_cmp_ge_u32 s100, 56\ns_cbranch_scc1 {b}")
        A(f"s_mov_b64 exec, -1\ns_lshl_b32 s7, s100, 11\ns_add_u32 s7, s7, {Z_OFF}")
        A("buffer_store_dwordx4 v[8:11], v2, s[16:19], s7 offen sc1")
        A("buffer_store_dwordx4 v[8:11], v2, s[16:19], s7 offen offset:1024 sc1")
        A(f"{b}:")
        A("s_mov_b64 exec, -1\nv_mov_b32 v6, s14")
        A("s_barrier")
        A("s_waitcnt vmcnt(0)")
        A("s_mov_b64 exec, 1")
        A("buffer_atomic_add v6, v4, s[48:51], s65 offen sc1")
        A("s_mov_b64 exec, -1")
        A(f"s_branch {dn}")
        A(f"{l2}:")
        for o in (0, 16, 32, 48):
            A(f"ds_write_b128 v{self.VFL}, v[4:7] offset:{o}")
        A("s_waitcnt lgkmcnt(0)")
        A("s_barrier")
        A("s_getpc_b64 s[6:7]")
        A("L_pc_anchor:")
        A(f"s_sub_u32 s6, s6, L_pc_anchor-{KN}\ns_subb_u32 s7, s7, 0")
        A("s_lshl_b32 s68, s5, 10\nv_lshl_add_u32 v1, v0, 6, s68")
        A(f"v_min_u32 v4, L_code_end-{KN}-4, v1")
        A("s_mov_b64 exec, 0xffff")
        A("global_load_dword v8, v4, s[6:7]")
        A("s_mov_b64 exec, -1")
        A(f"s_branch {dn}")
        A(f"{l3}:")
        A(f"v_add_u32 v1, {ZR}, v2")
        A("ds_write_b128 v1, v[4:7]\nds_write_b128 v1, v[4:7] offset:512")
        A(f"v_mov_b32 v8, 0x3f803f80\nv_mov_b32 v9, v8\nv_mov_b32 v10, v8\nv_mov_b32 v11, v8\nv_add_u32 v1, {ONES}, v2\nds_write_b128 v1, v[8:11]")
        A("s_barrier")
        A(f"{dn}:")
        A("s_waitcnt vmcnt(0) lgkmcnt(0)")

    def wpath(self):
        A = self.A
        VFL, vONE = self.VFL, 240
        WOA, PA, WTR, SA, DD = 16, 48, 64, 80, 96
        vH1, vYw, vYr, vYs, vPF, vWa, vWb = range(84, 91)
        TR = 128
        A(f"v_lshrrev_b32 v4, 3, v0\nv_lshlrev_b32 v6, 11, v4\nv_and_b32 v5, 7, v0\nv_lshl_add_u32 v{vH1}, v5, 4, v6")
        A(f"v_lshlrev_b32 v6, 4, v4\nv_add_u32 v6, {WT}, v6")
        for t in range(4):
            A(f"ds_read_b128 {vr(WTR+4*t,4)}, v6 offset:{t*128}")
        A("s_and_b32 s8, s12, 12\ns_add_u32 s8, s8, s3\ns_and_b32 s9, s12, 3")
        A(f"s_lshl_b32 s6, s4, 16\ns_add_u32 s6, s6, {OP_OFF}\ns_lshl_b32 s64, s8, 7\ns_add_u32 s64, s64, s6")
        for t in range(1, 4):
            A(f"s_add_u32 s{64+t}, s64, {t*0x4000}")
        A("s_lshl_b32 s72, s4, 19\ns_lshl_b32 s6, s9, 8\ns_add_u32 s72, s72, s6")
        A("s_and_b32 s6, s8, 1\ns_lshl_b32 s6, s6, 16\ns_add_u32 s72, s72, s6\ns_lshr_b32 s6, s8, 2\ns_lshl_b32 s6, s6, 11\ns_add_u32 s72, s72, s6")
        A("s_bfe_u32 s6, s8, 0x10001\ns_lshl_b32 s6, s6, 10\ns_add_u32 s72, s72, s6")
        A(f"v_and_b32 v5, 15, v0\nv_lshlrev_b32 v6, 4, v5\nv_lshlrev_b32 v7, 5, v12\nv_xor_b32 v6, v6, v7\nv_lshl_add_u32 v{vWa}, v12, 13, v6\nv_xor_b32 v{vWb}, 0x80, v{vWa}")
        A(f"s_lshl_b32 s74, s3, 13")
        A(f"v_and_b32 v6, 1, v12\nv_lshl_add_u32 v6, v6, 2, v13\nv_lshlrev_b32 v6, 5, v6\nv_lshl_add_u32 v6, v15, 8, v6\nv_lshl_add_u32 v6, v14, 3, v6\nv_add_u32 v{TR}, s74, v6")
        for ct in range(1, 8):
            A(f"v_xor_b32 v{TR+ct}, {ct*32}, v{TR}")
        A(f"s_lshl_b32 s6, s3, 9\ns_add_u32 s6, s6, {YL}")
        A(f"v_lshlrev_b32 v4, 4, v12\nv_add_u32 v{vYw}, s6, v4\nv_add_u32 v{vYr}, {YL}, v2\nv_lshlrev_b32 v{vYs}, 3, v0")
        A(f"v_lshlrev_b32 v{vPF}, 7, v0\ns_lshl_b32 s20, s4, 18\ns_lshl_b32 s6, s12, 14\ns_add_u32 s20, s20, s6\ns_lshl_b32 s6, s3, 12\ns_add_u32 s20, s20, s6")

        def h1load(t):
            A(f"buffer_load_dwordx4 {vr(PA+4*t,4)}, v{vH1}, s[16:19], s{64+t} offen sc1")

        self.flagged(VFL, 4, F_A, self.acnt, slp=1)
        self.stamp(7)
        for t in range(8):
            A(f"s_add_u32 m0, s74, {WO + t*1024}\ns_add_u32 s6, s72, {(t>>1)*131072 + (t&1)*32768}")
            A(f"buffer_load_dwordx4 v{vWb if t & 2 else vWa}, s[28:31], s6 offen {self.wpol} lds")

        def wotr():
            for ct in range(8):
                if ct in (5, 7): A("s_waitcnt lgkmcnt(8)")
                A(f"ds_read_b64_tr_b16 {vr(WOA+4*ct,2)}, v{TR+ct} offset:{WO}")
                A(f"ds_read_b64_tr_b16 {vr(WOA+4*ct+2,2)}, v{TR+ct} offset:{WO+1024}")
        if self.a_back > 4:
            A("s_waitcnt vmcnt(0)")
            self.stamp(5)
            wotr()
        self.flagged(VFL, 4, F_ACC, 4, slp=1)
        self.stamp(8)
        if self.d1: A(f"s_sleep {self.d1}")
        for t in range(4): h1load(t)
        if self.a_back <= 4:
            A("s_waitcnt vmcnt(4)")
            self.stamp(5)
            wotr()
        lp, out = self.lab("h1"), self.lab("h1ok")
        A("s_mov_b32 s7, 0")
        A(f"{lp}:")
        A("s_waitcnt vmcnt(0)")
        for t in range(4):
            for k in (0, 2):
                if t == 0:
                    A(f"v_pk_mul_f32 {vr(SA+k,2)}, {vr(PA+k,2)}, {vr(WTR+k,2)}")
                else:
                    A(f"v_pk_fma_f32 {vr(SA+k,2)}, {vr(PA+4*t+k,2)}, {vr(WTR+4*t+k,2)}, {vr(SA+k,2)}")
        A(f"v_cmp_u_f32 vcc, v{SA}, v{SA+1}\nv_cmp_u_f32 s[78:79], v{SA+2}, v{SA+3}")
        A("s_or_b64 vcc, vcc, s[78:79]")
        A(f"s_cbranch_scc0 {out}")
        self.spin_guard(out)
        if self.b1: A(f"s_sleep {self.b1}")
        self.reload([PA + 4 * t for t in range(4)], h1load)
        A(f"s_branch {lp}")
        A(f"{out}:")
        if self.stamps: A("s_mov_b32 s81, s7")
        self.stamp(9)
        self.lane_sum4([SA])
        A(f"v_mov_b32_dpp v{SA+1}, v{SA} row_ror:15 row_mask:0xf bank_mask:0xf")
        A(f"v_cvt_pk_bf16_f32 v{SA}, v{SA}, v{SA+1}")
        for k in range(4):
            A(f"v_mov_b32_dpp v{4+k}, v{SA} row_newbcast:{2*k} row_mask:0xf bank_mask:0xf")
        A("s_waitcnt lgkmcnt(0)")
        for ct in range(8):
            A(f"v_mfma_f32_16x16x32_bf16 {vr(DD+4*ct,4)}, {vr(WOA+4*ct,4)}, v[4:7], 0")
        A("s_mov_b32 exec_lo, 0x00010001\ns_mov_b32 exec_hi, 0x00010001")
        for ct in range(8):
            A(f"ds_write_b128 v{vYw}, {vr(DD+4*ct,4)} offset:{ct*64}")
        A(f"s_mov_b64 exec, 1\nds_add_u32 v{VFL}, v{vONE} offset:{F_Y}")
        A("s_cmp_lg_u32 s3, 0")
        A("s_cbranch_scc1 L_noy")
        A("s_mov_b64 exec, 0xffffffff")
        self.flagged(VFL, 8, F_Y, 4, [f"ds_read_b128 {vr(PA+4*k,4)}, v{vYr} offset:{k*512}" for k in range(4)])
        A("s_waitcnt lgkmcnt(2)")
        A(f"v_pk_add_f32 {vr(PA,2)}, {vr(PA,2)}, {vr(PA+4,2)}\nv_pk_add_f32 {vr(PA+2,2)}, {vr(PA+2,2)}, {vr(PA+6,2)}")
        A("s_waitcnt lgkmcnt(0)")
        A(f"v_pk_add_f32 {vr(PA+8,2)}, {vr(PA+8,2)}, {vr(PA+12,2)}\nv_pk_add_f32 {vr(PA+10,2)}, {vr(PA+10,2)}, {vr(PA+14,2)}")
        A(f"v_pk_add_f32 {vr(PA,2)}, {vr(PA,2)}, {vr(PA+8,2)}\nv_pk_add_f32 {vr(PA+2,2)}, {vr(PA+2,2)}, {vr(PA+10,2)}")
        A(f"v_cvt_pk_bf16_f32 v4, v{PA}, v{PA+1}\nv_cvt_pk_bf16_f32 v5, v{PA+2}, v{PA+3}")
        A(f"buffer_store_dwordx2 v[4:5], v{vYs}, s[16:19], s13 offen sc1")
        A("L_noy:")
        self.stamp(10)
        if self.wdpf:
            sk = self.lab("wp")
            A(f"s_cmp_eq_u32 s4, 7\ns_cbranch_scc1 {sk}\ns_mov_b64 exec, 0xffffffff")
            A(f"buffer_load_dword v254, v{vPF}, s[40:43], s20 offen {self.ppol}\n{sk}:")
        if self.stamps:
            A("s_mov_b64 exec, -1\ns_cmp_lg_u32 s3, 0\ns_cbranch_scc1 L_end")
            self.stamp_store(1, 16)
        A("s_endpgm")

    def ppath(self):
        A = self.A
        A("L_ppath:")
        dn = self.lab("pe")
        A(f"s_cmp_eq_u32 s4, 7\ns_cbranch_scc1 {dn}")
        A("s_movk_i32 s6, 3584\nv_lshrrev_b32 v6, 2, v0\nv_mul_lo_u32 v6, v6, s6\nv_lshl_add_u32 v6, v14, 7, v6\nv_lshlrev_b32 v7, 7, v0")
        A(f"s_sub_u32 s6, s5, 24\ns_lshl_b32 s6, s6, 2\ns_add_u32 s6, s6, s3\ns_mul_i32 s20, s6, {16*3584}\ns_lshl_b32 s7, s4, 9\ns_add_u32 s20, s20, s7")
        A("s_lshl_b32 s21, s4, 18\ns_lshl_b32 s6, s6, 13\ns_add_u32 s21, s21, s6")
        self.flagged(self.VFL, 4, *((F_P, self.acnt) if self.p_back else (F_OPS, 2)), slp=1)
        self.stamp(7)
        A(f"buffer_load_dword v8, v6, s[32:35], s20 offen {self.ppol}")
        A(f"buffer_load_dword v9, v6, s[36:39], s20 offen {self.ppol}")
        if not self.wdpf: A(f"buffer_load_dword v10, v7, s[40:43], s21 offen {self.ppol}")
        if self.stamps:
            A("s_waitcnt vmcnt(0)")
            self.stamp(14)
        A(f"{dn}:")
        if self.stamps:
            A("s_cmp_lg_u32 s3, 0\ns_cbranch_scc1 L_end")
            self.stamp_store(1, 16)
        A("s_endpgm")

    def gpath(self):
        A = self.A
        VFL, vONE = self.VFL, 240
        GB, WDA, P2, P1, T = 32, 96, 128, 192, 192
        vHVr, vHVs, vHHw, vHHr, vZs, vB1, vGg, vGu, vGT, vDT, vDv, vDw = range(228, 240)
        A("L_gpath:")
        if self.stamps:
            sk = self.lab("g7")
            A(f"s_cmp_lt_u32 s100, 56\ns_cbranch_scc1 {sk}\ns_cmp_lg_u32 s3, 0\ns_cbranch_scc1 L_end")
            self.stamp_store(1, 16)
            A(f"s_endpgm\n{sk}:")
        else:
            A("s_cmp_ge_u32 s100, 56\ns_cbranch_scc1 L_end")
        A("v_lshlrev_b32 v4, 4, v12\nv_and_b32 v5, 15, v0")
        A(f"v_add_u32 v7, {HV}, v4\nv_add_u32 v6, {ONES}, v4\nv_cmp_eq_u32 vcc, 1, v5\nv_cndmask_b32 v{vHVr}, v7, v6, vcc\nv_add_u32 v{vHVs}, {HV}, v2")
        A(f"s_lshl_b32 s6, s3, 4\ns_add_u32 s6, s6, {HH}\nv_lshl_add_u32 v{vHHw}, v5, 1, s6")
        A(f"v_lshl_add_u32 v{vZs}, v5, 6, v4")
        A(f"v_add_u32 v6, {ZR+64}, v{vZs}\nv_cmp_gt_u32 vcc, 8, v5\nv_mov_b32 v7, {ZR+16*64}\nv_cndmask_b32 v{vHHr}, v7, v6, vcc")
        A(f"s_lshl_b32 s76, s100, 11\ns_lshl_b32 s6, s3, 9\ns_add_u32 s76, s76, s6\ns_add_u32 s76, s76, {Z_OFF}")
        A(f"v_mov_b32 v{vB1}, 0x3f803f80")
        A("s_movk_i32 s6, 3584\nv_lshrrev_b32 v6, 2, v0\nv_mul_lo_u32 v6, v6, s6")
        A(f"v_lshrrev_b32 v7, 5, v0\nv_xor_b32 v7, v7, v14\nv_lshl_add_u32 v{vGg}, v7, 4, v6\nv_xor_b32 v7, 2, v7\nv_lshl_add_u32 v{vGu}, v7, 4, v6")
        A(f"s_mul_i32 s21, s3, {128*3584}\ns_lshl_b32 s6, s100, 6\ns_add_u32 s21, s21, s6")
        A(f"s_lshl_b32 s22, s100, 15\ns_lshl_b32 s6, s3, 8\ns_add_u32 s22, s22, s6\ns_lshl_b32 s6, s3, 13\ns_add_u32 s23, s6, {WG}")
        A(f"v_lshlrev_b32 v6, 4, v5\nv_lshlrev_b32 v7, 5, v12\nv_xor_b32 v6, v6, v7\nv_lshl_add_u32 v{vDv}, v12, 10, v6\nv_xor_b32 v{vDw}, 0x80, v{vDv}")
        A(f"v_and_b32 v6, 1, v12\nv_and_b32 v7, 2, v14\nv_or_b32 v6, v6, v7\nv_xor_b32 v6, s3, v6\nv_lshlrev_b32 v6, 4, v6")
        A(f"v_lshl_add_u32 v6, v15, 6, v6\nv_and_b32 v8, 1, v14\nv_lshl_add_u32 v6, v8, 3, v6\nv_lshl_add_u32 v6, v7, 14, v6\nv_add_u32 v{vGT}, {WG}, v6")
        A(f"v_and_b32 v6, 1, v12\nv_lshl_add_u32 v6, v6, 2, v13\nv_lshlrev_b32 v6, 5, v6\nv_lshl_add_u32 v6, v15, 8, v6\nv_lshl_add_u32 v6, v14, 3, v6")
        A(f"s_lshl_b32 s6, s3, 13\ns_add_u32 s6, s6, {WD}\nv_add_u32 v{vDT}, s6, v6")
        self.flagged(VFL, 4, F_OPS, 2, slp=1)
        self.stamp(8)
        if self.dg: A(f"s_sleep {self.dg}")
        for t in range(8):
            A(f"s_add_u32 m0, s23, {t*1024}\ns_add_u32 s6, s21, {t*16*3584}")
            A(f"buffer_load_dwordx4 v{vGg}, s[32:35], s6 offen {self.gpol} lds")
            A(f"s_add_u32 m0, s23, {WU-WG+t*1024}")
            A(f"buffer_load_dwordx4 v{vGu}, s[36:39], s6 offen {self.gpol} lds")
        for t in range(8):
            A(f"s_add_u32 m0, s23, {WD-WG+t*1024}\ns_add_u32 s6, s22, {t*4096}")
            A(f"buffer_load_dwordx4 v{vDw if t & 2 else vDv}, s[40:43], s6 offen {self.gpol} lds")
        A("s_waitcnt vmcnt(8)")
        self.flag_add(VFL, vONE, F_GL)
        self.flagged(VFL, 4, F_GL, 4)
        self.stamp(9)
        for m in range(16):
            if m >= 7 and m % 2 == 1: A("s_waitcnt lgkmcnt(8)")
            A(f"ds_read_b64_tr_b16 {vr(GB+4*m,2)}, v{vGT} offset:{m*2048}")
            A(f"ds_read_b64_tr_b16 {vr(GB+4*m+2,2)}, v{vGT} offset:{m*2048 + 256}")
        A("s_waitcnt vmcnt(0) lgkmcnt(0)")
        if self.h2on == "g2": self.flag_add(VFL, vONE, F_G2)
        for c8 in range(8):
            if c8: A(f"v_xor_b32 v5, {c8*32}, v{vDT}")
            va = vDT if c8 == 0 else 5
            if c8 in (5, 7): A("s_waitcnt lgkmcnt(8)")
            A(f"ds_read_b64_tr_b16 {vr(WDA+4*c8,2)}, v{va}")
            A(f"ds_read_b64_tr_b16 {vr(WDA+4*c8+2,2)}, v{va} offset:1024")
        A("s_waitcnt lgkmcnt(0)")
        self.stamp(15)
        A("s_barrier")
        self.stamp(11)
        A(f"ds_read_b128 v[4:7], v{vHVs}")
        for m in range(14):
            A(f"ds_read_b128 {vr(P2+4*m,4)}, v{vHVr} offset:{m*64}")
        save = self.L
        self.L = []
        for k in range(4):
            A(f"v_dot2_f32_bf16 v{T+8}, v{4+k}, v{vB1}, {'0' if k == 0 else f'v{T+8}'}")
            A(f"v_dot2_f32_bf16 v{T+9}, v{4+k}, v{4+k}, {'0' if k == 0 else f'v{T+9}'}")
        self.allred("v_add_f32", [T + 8, T + 9], [T + 10, T + 11])
        A(f"v_mul_f32 v{T+8}, {INV512}, v{T+8}\nv_mul_f32 v{T+9}, {INV512}, v{T+9}")
        A(f"v_fma_f32 v{T+9}, -v{T+8}, v{T+8}, v{T+9}\nv_max_f32 v{T+9}, 0, v{T+9}")
        self.ln_scalars(T + 8, T + 9, T + 10)
        st = [x.strip() for x in self.L]
        self.L = save
        per = -(-len(st) // 15)
        for m in range(16):
            if m == 0:
                A("s_waitcnt lgkmcnt(13)")
            elif m % 2 == 1:
                A(f"s_waitcnt lgkmcnt({max(14-m, 0)})")
            A(f"v_mfma_f32_16x16x32_bf16 v[8:11], {vr(P2+4*m,4)}, {vr(GB+4*m,4)}, {'0' if m == 0 else 'v[8:11]'}")
            if m == 0:
                for m2 in (14, 15):
                    A(f"ds_read_b128 {vr(P2+4*m2,4)}, v{vHVr} offset:{m2*64}")
            for x in st[m * per:(m + 1) * per]:
                A(x)
        A(f"v_fma_f32 v4, -v{T+8}, v9, v8\nv_mul_f32 v4, v4, v{T+9}")
        A("v_mul_f32 v5, s59, v4\nv_exp_f32 v5, -v5")
        A("v_mov_b32_dpp v6, v4 row_ror:8 row_mask:0xf bank_mask:0xf")
        A("v_add_f32 v5, 1.0, v5\nv_rcp_f32 v5, v5")
        A("v_mul_f32 v5, v5, v6\nv_cvt_pk_bf16_f32 v5, v5, v5")
        A("s_mov_b64 exec, 0xff")
        A(f"ds_write_b16 v{vHHw}, v5")
        A("s_mov_b64 exec, -1")
        A("s_waitcnt lgkmcnt(0)")
        A("s_barrier")
        for c8 in range(8):
            A(f"ds_read_b128 {vr(P1+4*c8,4)}, v{vHHr} offset:{(7-c8)*64}")
        for c8 in range(8):
            A(f"s_waitcnt lgkmcnt({7-c8})")
            A(f"v_mfma_f32_16x16x32_bf16 v[8:11], {vr(WDA+4*c8,4)}, {vr(P1+4*c8,4)}, {'0' if c8 == 0 else 'v[8:11]'}")
        A("s_mov_b32 exec_lo, 0x00ff00ff\ns_mov_b32 exec_hi, 0x00ff00ff")
        A(f"buffer_store_dwordx4 v[8:11], v{vZs}, s[16:19], s76 offen sc1")
        if self.stamps:
            A("s_mov_b64 exec, -1")
            self.stamp(12)
            A("s_cmp_lg_u32 s3, 0\ns_cbranch_scc1 L_end")
            self.stamp_store(1, 16)

    def build(self):
        self.entry()
        self.streamer()
        self.helper()
        self.A("L_end:\ns_endpgm\nL_code_end:")
        body, nn = hazard.fix(self.L)
        head = open("cdna_kernels/" + KN[:-7] + ".s.ref").read().split("; Override launch")[0]
        out = head
        out += f"; @launch grid=(256,1,1) block=(512,1,1) lds={LDS_SIZE}\n"
        out += HEADER
        out += '.amdgcn_target "amdgcn-amd-amdhsa--gfx950"\n.text\n'
        out += f".globl {KN}\n.p2align 8\n.type {KN},@function\n{KN}:\n"
        out += "\n".join(body) + "\n"
        out += f""".section .rodata,"a"
.p2align 6
.amdhsa_kernel {KN}
  .amdhsa_next_free_vgpr 256
  .amdhsa_next_free_sgpr 102
  .amdhsa_accum_offset 256
  .amdhsa_group_segment_fixed_size 0
  .amdhsa_kernarg_size 96
  .amdhsa_user_sgpr_count 2
  .amdhsa_user_sgpr_kernarg_segment_ptr 1
  .amdhsa_system_sgpr_workgroup_id_x 1
.end_amdhsa_kernel
"""
        return out


def gen(**kw):
    return Gen(**kw).build()


if __name__ == "__main__":
    kw = eval("dict(" + (sys.argv[2] if len(sys.argv) > 2 else "") + ")")
    open(sys.argv[1], "w").write(gen(**kw))
```

```python
import sys
import hazard

KN = "sequential_preLN__gqa_block_cached__glu_gated_glu__decode_kernel"

ST_OFF = 0x2000
Y_OFF = 0x10000
Z_OFF = 0x20000
OP_OFF = 0x40000
QP_OFF = 0xC0000
WS_SIZE = 0xD0000
STAMP_OFF = 0x100000
OOB = 0x400000
NG = 56
WQ = 0
WO = 0
WG = 32768
WU = 65536
WD = 98304
ACC = 131072
XN = ACC + 8192
QV = XN + 1024
HV = QV + 1024
ZR = HV + 1024
HH = ZR + 8 * 64
STL = ZR + 1536
FL = STL + 128
F_Q, F_ST, F_W, F_EARLY, F_MID, F_A, F_LOC, F_ACC, F_OPS, F_Y, F_GL, F_G2, F_P = range(0, 52, 4)
WT = FL + 64
YL = WT + 512
ONES = YL + 2048
LDS_SIZE = ONES + 1024

LOG2E = "0x3fb8aa3b"
SCALE = "0x3db504f3"
EPS = "0x3727c5ac"
INV512 = "0x3b000000"
HIMASK = "0xffff0000"
SPIN_MAX = 100000

HEADER = """; One persistent launch: 256 workgroups (one per CU), 8 waves each.  g = id & 7 is the kv head, s = id >> 3 the split.
"""


def vr(a, n=1):
    return f"v{a}" if n == 1 else f"v[{a}:{a+n-1}]"


class Gen:
    def __init__(self, DN=((0, 5), (-12, 12)), DG=None, DP=None, RING=48, NTW=64, NTG=65, NTP=63, pol="nt", wpol="nt", gpol="nt", ppol="",
                 stamps=0, pvrate=3, kbudget=3, dbg=(), slp=8, n_early=18, dq=16, mid_back=26, stdelay=3,
                 d1=3, d2=0, d3=17, b1=0, b2=0, b3=0, dg=0, local=True, fw=2, h2on="gl", acnt=4, a_back=1, p_back=0, wdpf=True, touch=True):
        self.__dict__.update(locals())
        assert 2 * NTW + NTG + NTP == 256
        self.DN = tuple(DN)
        self.DG = tuple(DG) if DG else self.DN
        self.DP = tuple(DP) if DP else self.DN
        self.L = []
        self.uid = 0

    def A(self, s):
        for l in s.split("\n"):
            l = l.strip()
            if not l:
                continue
            self.L.append(l if l.endswith(":") else "    " + l)

    def lab(self, p):
        self.uid += 1
        return f"L_{p}_{self.uid}"

    def stamp(self, k, keep=False):
        if self.stamps and (self.stamps != 4 or keep):
            self.A(f"s_memrealtime s[98:99]\ns_waitcnt lgkmcnt(0)\ns_mov_b32 s{80+k}, s98")

    def stamp_store(self, role, n):
        A = self.A
        A("s_mov_b64 exec, 1")
        A(f"s_lshl_b32 s6, s2, 9\ns_add_u32 s6, s6, {STAMP_OFF + role*64}")
        A("v_mov_b32 v1, 0")
        for k in range(n):
            A(f"v_mov_b32 v3, s{80+k}")
            A(f"buffer_store_dword v3, v1, s[16:19], s6 offen offset:{4*k}")
        A("s_mov_b64 exec, -1")

    def allred(self, op, regs, tmps, rors=(8, 4, 2, 1)):
        A = self.A
        for n in rors:
            for r in regs:
                ctl = "quad_perm:[2,3,0,1]" if n == "x2" else f"row_ror:{n}"
                A(f"{op}_dpp v{r}, v{r}, v{r} {ctl} row_mask:0xf bank_mask:0xf")
        for sw in ("v_permlane16_swap_b32", "v_permlane32_swap_b32"):
            for r, t in zip(regs, tmps):
                A(f"v_mov_b32 v{t}, v{r}")
            for r, t in zip(regs, tmps):
                A(f"{sw} v{r}, v{t}")
            for r, t in zip(regs, tmps):
                A(f"{op} v{r}, v{r}, v{t}")

    def lane_sum4(self, Rs):
        A = self.A
        for R in Rs: A(f"v_permlane32_swap_b32 v{R}, v{R+2}\nv_permlane32_swap_b32 v{R+1}, v{R+3}")
        for R in Rs: A(f"v_add_f32 v{R}, v{R}, v{R+2}\nv_add_f32 v{R+1}, v{R+1}, v{R+3}")
        for R in Rs: A(f"v_permlane16_swap_b32 v{R}, v{R+1}")
        for R in Rs: A(f"v_add_f32 v{R}, v{R}, v{R+1}")
        for R in Rs: A(f"v_add_f32_dpp v{R}, v{R}, v{R} row_ror:8 row_mask:0xf bank_mask:0xf")

    def flag_add(self, vaddr, vone, off):
        self.A(f"s_mov_b64 exec, 1\nds_add_u32 v{vaddr}, v{vone} offset:{off}\ns_mov_b64 exec, -1")

    def flagged(self, vfl, vt, off, val, reads=(), slp=0):
        A = self.A
        lp, out = self.lab("fl"), self.lab("flok")
        A("s_mov_b32 s7, 0")
        A(f"{lp}:")
        A(f"ds_read_b32 v{vt}, v{vfl} offset:{off}")
        for r in reads: A(r)
        A(f"s_add_u32 s7, s7, 1\ns_cmp_gt_u32 s7, {SPIN_MAX*8}\ns_cbranch_scc1 {out}")
        A(f"s_waitcnt lgkmcnt({len(reads)})")
        A(f"v_cmp_le_u32 vcc, {val}, v{vt}")
        A(f"s_cbranch_vccnz {out}")
        if reads: A("s_waitcnt lgkmcnt(0)")
        if slp: A(f"s_sleep {slp}")
        A(f"s_branch {lp}")
        A(f"{out}:")
        if not reads: A("s_waitcnt lgkmcnt(0)")

    def spin_guard(self, out):
        self.A(f"s_add_u32 s7, s7, 1\ns_cmp_gt_u32 s7, {SPIN_MAX}\ns_cbranch_scc1 {out}")

    def store_alt(self, stores, sflag):
        a, b = self.lab("sa"), self.lab("sb")
        self.A(f"s_cmp_lg_u32 {sflag}, 0\ns_cbranch_scc1 {a}")
        for x in stores: self.A(x + " sc1")
        self.A(f"s_branch {b}\n{a}:")
        for x in stores: self.A(x)
        self.A(f"{b}:")

    def reload(self, bases, ld):
        A = self.A
        for t, base in enumerate(bases):
            sk = self.lab("rs")
            A(f"v_cmp_u_f32 vcc, v{base}, v{base+1}\nv_cmp_u_f32 s[78:79], v{base+2}, v{base+3}")
            A("s_or_b64 exec, vcc, s[78:79]")
            A(f"s_cbranch_execz {sk}")
            ld(t)
            A(f"{sk}:")
            A("s_mov_b64 exec, -1")

    def cnt_wait(self, soff, voff):
        A = self.A
        lp, out = self.lab("cpoll"), self.lab("cok")
        A("s_mov_b32 s7, 0")
        A(f"{lp}:")
        A(f"buffer_load_dword v4, {voff}, s[48:51], {soff} offen sc1")
        self.spin_guard(out)
        A("s_waitcnt vmcnt(0)")
        A("v_and_b32 v5, 0xff, v4\nv_cmp_gt_u32 vcc, 32, v5")
        A(f"s_cbranch_vccz {out}")
        A(f"s_sleep {self.slp}")
        A(f"s_branch {lp}")
        A(f"{out}:")
        A("s_waitcnt vmcnt(0)")

    def ln_scalars(self, mean, var, t):
        A = self.A
        A(f"v_cvt_pk_bf16_f32 v{t}, v{mean}, v{var}")
        A(f"v_lshlrev_b32 v{mean}, 16, v{t}\nv_and_b32 v{var}, s60, v{t}")
        A(f"v_add_f32 v{var}, {EPS}, v{var}")
        A(f"v_cvt_pk_bf16_f32 v{t}, v{var}, v{var}\nv_and_b32 v{var}, s60, v{t}")
        A(f"v_sqrt_f32 v{var}, v{var}")
        A(f"v_cvt_pk_bf16_f32 v{t}, v{var}, v{var}\nv_and_b32 v{var}, s60, v{t}")
        A(f"v_rcp_f32 v{var}, v{var}")

    def entry(self):
        A = self.A
        A("s_load_dwordx2 s[8:9], s[0:1], 8           ; K")
        A("s_load_dwordx2 s[12:13], s[0:1], 16        ; V")
        A("s_load_dwordx2 s[16:17], s[0:1], 88        ; ws")
        A("s_cmp_ge_u32 s2, 256")
        A("s_cbranch_scc1 L_end")
        if "perm" in self.dbg:
            A("s_and_b32 s4, s2, 7\ns_lshr_b32 s5, s2, 3\ns_lshl_b32 s4, s4, 5\ns_or_b32 s2, s4, s5")
        if "perm2" in self.dbg:
            A("s_xor_b32 s4, s2, 1\ns_and_b32 s5, s2, 0xfe\ns_cmp_eq_u32 s5, 0x48\ns_cselect_b32 s2, s4, s2")
        A("v_readfirstlane_b32 s3, v0")
        A("s_and_b32 s4, s2, 7                        ; g")
        A("s_lshr_b32 s5, s2, 3                       ; s")
        A("v_and_b32 v0, 63, v0")
        A("s_lshr_b32 s3, s3, 6                       ; wave")
        A("s_lshl_b32 s100, s4, 3\ns_add_u32 s100, s100, s5\ns_cmp_lt_u32 s5, 8\ns_cselect_b32 s100, s100, 63")
        A(f"s_mov_b32 s18, {0x200000 if self.stamps else WS_SIZE}")
        A("s_mov_b32 s19, 0x20000")
        A("s_cmp_ge_u32 s3, 4")
        A("s_cbranch_scc1 L_helper")

    def streamer(self):
        A = self.A
        A("s_mov_b32 s10, 0x4000000\ns_mov_b32 s11, 0x20000\ns_mov_b32 s14, 0x4000000\ns_mov_b32 s15, 0x20000")
        A("v_bfe_u32 v1, v0, 2, 2\nv_lshlrev_b32 v1, 8, v1\nv_and_b32 v3, 3, v0\nv_lshl_add_u32 v1, v3, 4, v1")
        A("v_lshrrev_b32 v3, 4, v0\nv_lshl_add_u32 v1, v3, 6, v1\nv_lshlrev_b32 v2, 4, v0")
        A("s_lshl_b32 s56, s4, 23\ns_lshl_b32 s57, s3, 10\ns_add_u32 s56, s56, s57")
        NG_, NW, NP = self.NTG, self.NTW, self.NTP
        A(f"s_min_u32 s6, s5, 8\ns_mul_i32 s57, s6, {NG_*4096}\ns_add_u32 s56, s56, s57")
        A(f"s_sub_u32 s7, s5, s6\ns_min_u32 s6, s7, 16\ns_mul_i32 s57, s6, {NW*4096}\ns_add_u32 s56, s56, s57")
        A(f"s_sub_u32 s7, s7, s6\ns_mul_i32 s57, s7, {NP*4096}\ns_add_u32 s56, s56, s57")
        kinds = [(self.DN, NW), (self.DG, NG_), (self.DP, NP)]
        uniq = list(dict.fromkeys(kinds))
        if kinds[1] != kinds[0]: A(f"s_cmp_lt_u32 s5, 8\ns_cbranch_scc1 L_stream_{uniq.index(kinds[1])}")
        if kinds[2] != kinds[0]: A(f"s_cmp_ge_u32 s5, 24\ns_cbranch_scc1 L_stream_{uniq.index(kinds[2])}")
        for i, (d, nt) in enumerate(uniq):
            A(f"L_stream_{i}:")
            self.stream_body(d, nt, i == len(uniq) - 1)
        self.stream_tail()

    def stream_body(self, sched, NT, islast):
        A = self.A
        RING = self.RING
        R0 = 256 - 4 * RING
        assert R0 >= 64
        NB = -(-NT // 4)
        rem = NT % 4
        NL = 2 * NT
        S0, VFL, VONE, VFG, D0, X0, X1, VM, VL, VF, VT, VT2, VRD, M4 = 8, 25, 26, 27, 28, 44, 45, 46, 47, 48, 49, 50, 51, 52
        ACC0, ACC1 = 56, 60
        AB, TLO, THI = 28, 36, 37
        assert NB <= 17
        slot = lambda n: R0 + 4 * (n % RING)
        A("s_mov_b32 s57, s56")
        A("s_waitcnt lgkmcnt(0)")

        def depth(n):
            d = sched[0][1]
            for n0, dd in sched:
                if n >= (n0 if n0 >= 0 else NL + n0):
                    d = dd
            return d
        st = {"landed": -1}
        self.stamp(0, True)

        def load(n):
            d = depth(n)
            if n - d > st["landed"]:
                A(f"s_waitcnt vmcnt({d-1})")
                st["landed"] = n - d
            t = n % NT
            va, srd, so = ("v1", "s[8:11]", "s56") if n < NT else ("v2", "s[12:15]", "s57")
            A(f"buffer_load_dwordx4 {vr(slot(n),4)}, {va}, {srd}, {so} offen {self.pol}")
            if t + 1 < NT: A(f"s_add_u32 {so}, {so}, 4096")
            if n == depth(0) - 1:
                A(f"v_mov_b32 v{VFL}, {FL}\nv_mov_b32 v{VONE}, 1")
                A(f"s_mov_b32 s58, {SCALE}\ns_mov_b32 s59, {LOG2E}\ns_mov_b32 s60, {HIMASK}")
                A(f"v_and_b32 v3, 3, v0\nv_lshlrev_b32 v3, 8, v3\nv_bfe_u32 v4, v0, 2, 2\nv_lshl_add_u32 v3, v4, 4, v3")
                A(f"v_lshrrev_b32 v4, 4, v0\nv_lshl_add_u32 v3, v4, 6, v3\nv_add_u32 v3, {QV}, v3")
                A("s_barrier")
            if n == self.n_early:
                self.flag_add(VFL, VONE, F_EARLY)
            if n == NL - self.mid_back:
                self.flag_add(VFL, VONE, F_MID)
            if n == NL - self.a_back:
                self.flag_add(VFL, VONE, F_A)
            if n == NL - self.p_back:
                self.flag_add(VFL, VONE, F_P)

        def qsync():
            A("; q (four heads) as B operand, and whether the group shares a die")
            self.flagged(VFL, VFG, F_Q, 1, ["ds_read_b128 v[4:7], v3", f"ds_read_b32 v{VT}, v{VFL} offset:{F_LOC}"])
            A(f"s_waitcnt lgkmcnt(0)\nv_readfirstlane_b32 s63, v{VT}")

        def qk(i):
            nt = rem if (rem and i == NB - 1) else 4
            for j in range(nt):
                A(f"v_mfma_f32_16x16x32_bf16 {vr(D0+4*j,4)}, {vr(slot(4*i+j),4)}, v[4:7], 0")
            d = lambda j, b: D0 + 4 * j + b
            dp = lambda dst, s0, s1, ror, bm: A(f"v_add_f32_dpp v{dst}, v{s0}, v{s1} row_ror:{ror} row_mask:0xf bank_mask:{bm:#x}")
            dp(X0, d(0, 1), d(0, 0), 12, 1)
            dp(X1, d(2, 1), d(2, 0), 12, 1)
            dp(X0, d(1, 0), d(1, 1), 4, 2)
            dp(X1, d(3, 0), d(3, 1), 4, 2)
            dp(X0, d(0, 3), d(0, 2), 12, 4)
            dp(X1, d(2, 3), d(2, 2), 12, 4)
            dp(X0, d(1, 2), d(1, 3), 4, 8)
            dp(X1, d(3, 2), d(3, 3), 4, 8)
            dp(S0 + i, X0, X0, 8, 3)
            dp(S0 + i, X1, X1, 8, 12)
            if nt < 4:
                A(f"v_mov_b32 v{VT}, 0xff800000")
                A(f"v_mov_b32_dpp v{S0+i}, v{VT} quad_perm:[0,1,2,3] row_mask:0xf bank_mask:{(0xf << nt) & 0xf:#x}")

        def rnd(i):
            a, b = S0 + i, S0 + min(i + 1, NB - 1)
            A(f"v_cvt_pk_bf16_f32 v{VT}, v{a}, v{b}")
            if a != b: A(f"v_lshlrev_b32 v{a}, 16, v{VT}")
            A(f"v_and_b32 v{b}, s60, v{VT}")
            if a != b: A(f"v_mul_f32 v{a}, s58, v{a}")
            A(f"v_mul_f32 v{b}, s58, v{b}")
            A(f"v_cvt_pk_bf16_f32 v{VT}, v{a}, v{b}")
            if a != b: A(f"v_lshlrev_b32 v{a}, 16, v{VT}")
            A(f"v_and_b32 v{b}, s60, v{VT}")
            if i == 0:
                A(f"v_max_f32 v{VM}, v{a}, v{b}")
            else:
                A(f"v_max3_f32 v{VM}, v{VM}, v{a}, v{b}")

        def sm_max():
            A("; maximum over this wave's keys")
            self.allred("v_max_f32", [VM], [VT], rors=(4, 8))
            A(f"v_mul_f32 v{VT2}, s59, v{VM}")

        def sm_exp(lo, hi):
            for i in range(lo, hi):
                A(f"v_fma_f32 v{S0+i}, v{S0+i}, s59, -v{VT2}")
            for i in range(lo, hi):
                A(f"v_exp_f32 v{S0+i}, v{S0+i}")
            for i in range(lo, hi):
                if i == 1:
                    A(f"v_add_f32 v{VL}, v{S0}, v{S0+1}")
                elif i > 1:
                    A(f"v_add_f32 v{VL}, v{VL}, v{S0+i}")

        def sm_sum():
            self.allred("v_add_f32", [VL], [VT], rors=(4, 8))
            A(f"v_and_b32 v3, 3, v0\nv_lshlrev_b32 v3, 4, v3\nv_add_u32 v3, {STL}, v3")
            A(f"s_lshl_b32 s6, s3, 2\nv_add_u32 v4, s6, v3")
            A("s_mov_b64 exec, 15")
            A(f"ds_write_b32 v4, v{VM}\nds_write_b32 v4, v{VL} offset:64")
            self.flag_add(VFL, VONE, F_ST)

        def pv_setup():
            for r in list(range(AB, AB + 8)) + list(range(ACC0, ACC0 + 8)):
                A(f"v_mov_b32 v{r}, 0")
            A(f"s_lshl_b32 s6, s3, 10\ns_add_u32 s6, s6, {ACC}\nv_add_u32 v{VRD}, s6, v2")
            A(f"s_lshl_b32 s61, s4, 16\ns_lshl_b32 s7, s5, 11\ns_add_u32 s61, s61, s7\ns_lshl_b32 s7, s3, 10\ns_add_u32 s61, s61, s7\ns_add_u32 s61, s61, {OP_OFF}")

        def msync():
            A("; rescale this wave's exponentials to the maximum of the workgroup")
            self.flagged(VFL, VFG, F_ST, 4, [f"ds_read_b128 {vr(M4,4)}, v3"])
            A("s_waitcnt lgkmcnt(0)")
            A(f"v_max3_f32 v{VF}, v{M4}, v{M4+1}, v{M4+2}\nv_max_f32 v{VF}, v{VF}, v{M4+3}")
            A(f"v_sub_f32 v{VF}, v{VM}, v{VF}\nv_mul_f32 v{VF}, s59, v{VF}\nv_exp_f32 v{VF}, v{VF}")
            A(f"s_lshl_b32 s6, s3, 11\ns_add_u32 s6, s6, {ACC}\nv_add_u32 v3, s6, v2")

        def tcalc(i):
            A(f"v_mul_f32 v{VT}, v{S0+i}, v{VF}")
            A(f"v_cvt_pk_bf16_f32 v{TLO}, v{VT}, 0\nv_cvt_pk_bf16_f32 v{THI}, 0, v{VT}")

        def mv(dst, src, dbank, j):
            rot = 4 * ((dbank - j) & 3)
            ctl = f"row_ror:{rot}" if rot else "quad_perm:[0,1,2,3]"
            A(f"v_mov_b32_dpp v{dst}, v{src} {ctl} row_mask:0xf bank_mask:{1<<dbank:#x}")

        abuf = lambda t: AB + 2 * (t % 4)

        def prep(ts):
            for t in ts:
                mv(abuf(t), TLO, 0, t % 4)
                mv(abuf(t) + 1, TLO, 2, t % 4)
            for t in ts:
                mv(abuf(t), THI, 1, t % 4)
                mv(abuf(t) + 1, THI, 3, t % 4)

        def pv(t):
            s = slot(NT + t)
            A(f"v_mfma_f32_16x16x16_bf16 {vr(ACC0,4)}, {vr(abuf(t),2)}, {vr(s,2)}, {vr(ACC0,4)}")
            A(f"v_mfma_f32_16x16x16_bf16 {vr(ACC1,4)}, {vr(abuf(t),2)}, {vr(s+2,2)}, {vr(ACC1,4)}")

        KB = float(self.kbudget)
        items = [(RING - 1 - depth(RING - 1), qsync, 0.5, -1, 0)]
        for i in range(NB):
            lt = min(4 * i + 3, NT - 1)
            items.append((lt, (lambda i=i: qk(i)), 2, lt, 0))
            if i % 2 == 1 or i == NB - 1:
                items.append((-1, (lambda i=i: rnd(i - (i % 2))), 0.5, -1, 0))
        h = NB // 2
        items += [(-1, sm_max, 1.5, -1, 0), (-1, lambda: sm_exp(0, h), 2, -1, 0), (-1, lambda: sm_exp(h, NB), 2, -1, 0),
                  (-1, sm_sum, 2, -1, 0), (-1, pv_setup, 2, -1, 0), (-1, msync, 1, -1, self.stdelay)]
        for i in range(NB):
            items.append((-1, (lambda i=i: tcalc(i)), 0, -1, 0))
            for u in (2 * i, 2 * i + 1):
                ts = [t for t in (2 * u, 2 * u + 1) if t < NT]
                if not ts: continue
                items.append((-1, (lambda ts=ts: prep(ts)), 0, -1, 0))
                for t in ts:
                    items.append((NT + t, (lambda t=t: pv(t)), KB / self.pvrate, NT + t, 0))
        pos, freed, lastn = 0, -1, 0
        for n in range(NL):
            while n - RING > freed:
                need, emit, cost, fr, dl = items[pos]
                assert need <= st["landed"], (n, need)
                emit(); pos += 1; freed = max(freed, fr); lastn = n
            load(n)
            budget = KB
            while pos < len(items) and items[pos][0] <= st["landed"] and (budget > 0 or items[pos][2] == 0) and n >= lastn + items[pos][4]:
                need, emit, cost, fr, dl = items[pos]
                emit(); pos += 1; budget -= cost; freed = max(freed, fr); lastn = n
        while pos < len(items):
            need, emit, cost, fr, dl = items[pos]
            if need > st["landed"]:
                A(f"s_waitcnt vmcnt({NL-1-need})")
                st["landed"] = need
            emit(); pos += 1
        A("s_cmp_ge_u32 s3, 2")
        A(f"ds_write_b128 v3, {vr(ACC0,4)}\nds_write_b128 v3, {vr(ACC1,4)} offset:1024")
        self.flag_add(VFL, VONE, F_ACC)
        if not islast:
            A("s_branch L_stail")

    def stream_tail(self):
        A = self.A
        VFL, VONE, VRD = 25, 26, 51
        ex = "L_sexit"
        A("L_stail:")
        A("s_cbranch_scc1 L_noop")
        self.flagged(VFL, 27, F_ACC, 4, [f"ds_read_b128 {vr(8+4*sw,4)}, v{VRD} offset:{sw*2048}" for sw in range(4)])
        A("s_waitcnt lgkmcnt(2)")
        A("v_pk_add_f32 v[8:9], v[8:9], v[12:13]\nv_pk_add_f32 v[10:11], v[10:11], v[14:15]")
        A("s_waitcnt lgkmcnt(0)")
        A("v_pk_add_f32 v[16:17], v[16:17], v[20:21]\nv_pk_add_f32 v[18:19], v[18:19], v[22:23]")
        A("v_pk_add_f32 v[8:9], v[8:9], v[16:17]\nv_pk_add_f32 v[10:11], v[10:11], v[18:19]")
        self.store_alt(["buffer_store_dwordx4 v[8:11], v2, s[16:19], s61 offen"], "s63")
        self.flag_add(VFL, VONE, F_OPS)
        A("L_noop:")
        self.stamp(6, True)
        A(f"s_cmp_ge_u32 s100, 56\ns_cbranch_scc1 {ex}")
        SEL, XR, P2, vH2, vHVw, vH3, vFo, vFh = 40, 28, 64, 32, 33, 34, 35, 36
        A("s_load_dwordx2 s[20:21], s[0:1], 0\ns_load_dwordx2 s[44:45], s[0:1], 72")
        A("s_mov_b32 s22, 1024\ns_mov_b32 s23, 0x20000\ns_mov_b32 s46, 1024\ns_mov_b32 s47, 0x20000")
        A("v_lshrrev_b32 v12, 4, v0\nv_and_b32 v5, 15, v0\ns_lshl_b32 s6, s3, 8")
        A(f"v_lshlrev_b32 v6, 10, v12\nv_lshl_add_u32 v{vH2}, v5, 4, v6")
        A(f"v_and_b32 v6, 1, v12\nv_lshlrev_b32 v6, 3, v6\nv_lshl_add_u32 v6, v5, 4, v6\nv_add_u32 v13, s6, v6\nv_add_u32 v{vHVw}, {HV}, v13")
        A(f"s_add_u32 s64, s6, {Y_OFF}")
        for t in range(1, 8):
            A(f"s_add_u32 s{64+t}, s64, {t*4096}")
        A("v_and_b32 v6, 1, v5\nv_lshlrev_b32 v6, 4, v6\nv_mov_b32 v7, 0x3f80\nv_lshlrev_b32 v6, v6, v7\nv_lshrrev_b32 v7, 1, v5")
        for q in range(4):
            A(f"v_cmp_eq_u32 vcc, {q}, v7\nv_cndmask_b32 v{SEL+q}, 0, v6, vcc")
        A(f"v_lshrrev_b32 v6, 3, v0\nv_lshlrev_b32 v6, 11, v6\nv_and_b32 v7, 7, v0\nv_lshl_add_u32 v{vH3}, v7, 4, v6")
        A("s_mul_i32 s101, s4, 3\ns_add_u32 s101, s101, s5\ns_cmp_lt_u32 s5, 3\ns_cselect_b32 s101, s101, 63")
        A("s_and_b32 s72, s101, 15")
        A(f"s_lshl_b32 s6, s72, 6\nv_lshlrev_b32 v6, 3, v7\nv_lshl_add_u32 v6, v12, 1, v6\nv_add_u32 v{vFo}, s6, v6\nv_add_u32 v{vFh}, {HV}, v{vFo}")
        A(f"s_lshl_b32 s72, s72, 7\ns_add_u32 s72, s72, {Z_OFF}")
        A("s_waitcnt lgkmcnt(0)")
        A("buffer_load_dwordx2 v[8:9], v13, s[20:23], 0 offen")
        A("buffer_load_dword v10, v13, s[44:47], 0 offen")
        self.flagged(VFL, 4, {"gl": F_GL, "g2": F_G2}[self.h2on], 4, slp=1)
        if self.d2: A(f"s_sleep {self.d2}")
        h2load = lambda t: A(f"buffer_load_dwordx4 {vr(P2+4*t,4)}, v{vH2}, s[16:19], s{64+t} offen sc1")
        for t in range(8):
            h2load(t)
        A("s_waitcnt vmcnt(8)")
        A(f"v_lshlrev_b32 v{XR}, 16, v8\nv_and_b32 v{XR+1}, s60, v8\nv_lshlrev_b32 v{XR+2}, 16, v9\nv_and_b32 v{XR+3}, s60, v9")
        lp, out = self.lab("h2"), self.lab("h2ok")
        A("s_mov_b32 s7, 0")
        A(f"{lp}:")
        A("s_waitcnt vmcnt(0)")
        for t in range(8):
            A(f"v_mfma_f32_16x16x32_bf16 v[8:11], {vr(SEL,4)}, {vr(P2+4*t,4)}, {'0' if t == 0 else 'v[8:11]'}")
        A("v_cmp_u_f32 vcc, v8, v9\nv_cmp_u_f32 s[78:79], v10, v11")
        A("s_or_b64 vcc, vcc, s[78:79]")
        A(f"s_cbranch_scc0 {out}")
        self.spin_guard(out)
        if self.b2: A(f"s_sleep {self.b2}")
        self.reload([P2 + 4 * t for t in range(8)], h2load)
        A(f"s_branch {lp}")
        A(f"{out}:")
        if self.stamps == 1: A("s_mov_b32 s84, s7")
        self.stamp(1)
        A(f"v_pk_add_f32 v[8:9], v[8:9], {vr(XR,2)}\nv_pk_add_f32 v[10:11], v[10:11], {vr(XR+2,2)}")
        A("v_cvt_pk_bf16_f32 v4, v8, v9\nv_cvt_pk_bf16_f32 v5, v10, v11")
        A("s_mov_b64 exec, 0xffffffff")
        A(f"ds_write_b64 v{vHVw}, v[4:5]")
        A("s_mov_b64 exec, -1")
        A("s_waitcnt lgkmcnt(0)")
        A("s_barrier")
        A(f"s_cmp_ge_u32 s101, 16\ns_cbranch_scc1 {ex}\ns_cmp_lg_u32 s3, {self.fw}\ns_cbranch_scc1 {ex}")
        A(f"ds_read_u16 v12, v{vFh}")
        for t in range(1, 7):
            A(f"s_add_u32 s{64+t}, s72, {t*16384}")
        A("s_mov_b32 s64, s72")
        A("s_waitcnt lgkmcnt(0)")
        A("v_lshlrev_b32 v12, 16, v12")
        A("s_barrier")
        if self.d3: A(f"s_sleep {self.d3}")
        h3load = lambda t: A(f"buffer_load_dwordx4 {vr(P2+4*t,4)}, v{vH3}, s[16:19], s{64+t} offen sc1")
        for t in range(7):
            h3load(t)
        lp, out = self.lab("h3"), self.lab("h3ok")
        A("s_mov_b32 s7, 0")
        A(f"{lp}:")
        A("s_waitcnt vmcnt(0)")
        for dst, a, b in ((4, P2, P2 + 4), (8, P2 + 8, P2 + 12), (16, P2 + 16, P2 + 20), (4, 4, P2 + 24), (8, 8, 16), (4, 4, 8)):
            for k in (0, 2):
                A(f"v_pk_add_f32 {vr(dst+k,2)}, {vr(a+k,2)}, {vr(b+k,2)}")
        A("v_cmp_u_f32 vcc, v4, v5\nv_cmp_u_f32 s[78:79], v6, v7")
        A("s_or_b64 vcc, vcc, s[78:79]")
        A(f"s_cbranch_scc0 {out}")
        self.spin_guard(out)
        if self.b3: A(f"s_sleep {self.b3}")
        self.reload([P2 + 4 * t for t in range(7)], h3load)
        A(f"s_branch {lp}")
        A(f"{out}:")
        if self.stamps == 1: A("s_mov_b32 s85, s7")
        self.stamp(2)
        self.lane_sum4([4])
        A("v_add_f32 v4, v12, v4\nv_cvt_pk_bf16_f32 v4, v4, v4")
        A("s_mov_b32 exec_lo, 0x00ff00ff\ns_mov_b32 exec_hi, 0x00ff00ff")
        A(f"buffer_store_short v4, v{vFo}, s[44:47], 0 offen")
        if self.stamps:
            A("s_mov_b64 exec, -1")
            self.stamp(3, True)
        A(f"{ex}:")
        if self.stamps:
            A(f"s_cmp_lg_u32 s3, {self.fw}\ns_cbranch_scc1 L_end")
            self.stamp_store(0, 7)
        A("s_endpgm")

    VFL = 245

    def helper(self):
        A = self.A
        A("L_helper:")
        A("s_load_dwordx2 s[20:21], s[0:1], 0         ; x")
        A("s_load_dwordx2 s[24:25], s[0:1], 24        ; wq")
        A("s_load_dwordx2 s[48:49], s[0:1], 80        ; debug")
        A("s_load_dwordx2 s[28:29], s[0:1], 32        ; wo")
        A("s_sub_u32 s3, s3, 4")
        A("s_mov_b32 s22, 1024\ns_mov_b32 s23, 0x20000\ns_mov_b32 s26, 0x400000\ns_mov_b32 s27, 0x20000")
        A("s_mov_b32 s50, 256\ns_mov_b32 s51, 0x20000\ns_mov_b32 s30, 0x400000\ns_mov_b32 s31, 0x20000")
        A("v_lshlrev_b32 v2, 4, v0")
        A(f"s_mov_b32 s59, {LOG2E}\ns_mov_b32 s60, {HIMASK}")
        A("s_lshr_b32 s62, s5, 3\ns_and_b32 s63, s5, 7")
        A("s_waitcnt lgkmcnt(0)")
        A("s_load_dwordx2 s[32:33], s[0:1], 48        ; w_gate")
        A("s_load_dwordx2 s[36:37], s[0:1], 56        ; w_up")
        A("s_load_dwordx2 s[40:41], s[0:1], 64        ; w_down")
        A("s_mov_b32 s34, 0x1c0000\ns_mov_b32 s35, 0x20000\ns_mov_b32 s38, 0x1c0000\ns_mov_b32 s39, 0x20000")
        A("s_mov_b32 s42, 0x1c0000\ns_mov_b32 s43, 0x20000")
        A(f"s_lshl_b32 s6, s4, 5\ns_add_u32 s6, s6, s5\ns_lshl_b32 s64, s6, 5\ns_add_u32 s64, s64, {ST_OFF}")
        A(f"s_lshl_b32 s66, s6, 11\ns_add_u32 s66, s66, {OP_OFF}")
        A(f"s_lshl_b32 s7, s4, 2\ns_add_u32 s7, s7, s62\ns_lshl_b32 s7, s7, 11\ns_lshl_b32 s6, s63, 8\ns_add_u32 s58, s7, s6")
        A(f"s_add_u32 s58, s58, {QP_OFF}\ns_lshl_b32 s65, s4, 5")
        A(f"s_sub_u32 s12, s5, 8\ns_lshl_b32 s13, s4, 4\ns_add_u32 s13, s13, s12\ns_lshl_b32 s13, s13, 8\ns_add_u32 s13, s13, {Y_OFF}")
        A("s_getreg_b32 s6, hwreg(HW_REG_XCC_ID, 0, 4)")
        A("s_mul_i32 s7, s6, s6\ns_lshl_b32 s7, s7, 18\ns_lshl_b32 s6, s6, 8\ns_or_b32 s6, s6, s7\ns_or_b32 s14, s6, 1")
        A(f"v_mov_b32 v{self.VFL}, {FL}")
        A("s_cmp_lg_u32 s3, 0")
        A("s_cbranch_scc1 L_h123")
        self.h0()
        A("s_branch L_hjoin")
        self.h123()
        A("L_hjoin:")
        self.flagged(self.VFL, 4, F_W, 1, slp=4)
        A("v_lshrrev_b32 v12, 4, v0\nv_bfe_u32 v13, v0, 2, 2\nv_and_b32 v14, 3, v0\nv_lshl_add_u32 v15, v12, 3, v13\nv_mov_b32 v240, 1")
        A("s_cmp_lt_u32 s5, 8\ns_cbranch_scc1 L_gpath\ns_cmp_ge_u32 s5, 24\ns_cbranch_scc1 L_ppath")
        self.wpath()
        self.ppath()
        self.gpath()

    def h0(self):
        A = self.A
        self.stamp(0)
        A("buffer_load_dwordx4 v[4:7], v2, s[20:23], 0 offen")
        A("v_lshrrev_b32 v3, 3, v0\nv_lshlrev_b32 v3, 13, v3\nv_and_b32 v1, 7, v0\nv_lshl_add_u32 v3, v1, 4, v3")
        A("s_lshl_b32 s6, s62, 20\ns_lshl_b32 s7, s4, 10\ns_add_u32 s6, s6, s7\ns_lshl_b32 s7, s63, 7\ns_add_u32 s6, s6, s7")
        for t in range(16):
            A(f"s_mov_b32 m0, {WQ + t*1024}")
            A(f"buffer_load_dwordx4 v3, s[24:27], s6 offen {self.wpol} lds")
            if t < 15:
                A("s_add_u32 s6, s6, 0x10000")
            if t == 3:
                A("s_barrier")
        A("s_waitcnt vmcnt(16)")
        for k in range(4):
            A(f"v_lshlrev_b32 v{12+2*k}, 16, v{4+k}\nv_and_b32 v{13+2*k}, s60, v{4+k}")
        A("v_add_f32 v20, v12, v13\nv_add_f32 v21, v14, v15\nv_add_f32 v22, v16, v17\nv_add_f32 v23, v18, v19")
        A("v_add_f32 v20, v20, v21\nv_add_f32 v22, v22, v23\nv_add_f32 v20, v20, v22")
        self.allred("v_add_f32", [20], [21])
        A(f"v_mul_f32 v20, {INV512}, v20")
        for k in range(8):
            A(f"v_sub_f32 v{24+k}, v{12+k}, v20")
        A("v_mul_f32 v22, v24, v24")
        for k in range(1, 8):
            A(f"v_fmac_f32 v22, v{24+k}, v{24+k}")
        self.allred("v_add_f32", [22], [21])
        A(f"v_mul_f32 v22, {INV512}, v22")
        self.ln_scalars(20, 22, 21)
        for k in range(4):
            a, b = 12 + 2 * k, 13 + 2 * k
            A(f"v_sub_f32 v{a}, v{a}, v20\nv_sub_f32 v{b}, v{b}, v20")
            A(f"v_cvt_pk_bf16_f32 v21, v{a}, v{b}")
            A(f"v_lshlrev_b32 v{a}, 16, v21\nv_and_b32 v{b}, s60, v21")
            A(f"v_mul_f32 v{a}, v{a}, v22\nv_mul_f32 v{b}, v{b}, v22")
            A(f"v_cvt_pk_bf16_f32 v{4+k}, v{a}, v{b}")
        A(f"v_add_u32 v1, {XN}, v2")
        A("ds_write_b128 v1, v[4:7]")
        A("v_lshrrev_b32 v12, 4, v0\nv_bfe_u32 v13, v0, 2, 2\nv_and_b32 v14, 3, v0")
        A("v_lshl_add_u32 v15, v12, 3, v13\nv_lshlrev_b32 v15, 7, v15\nv_lshl_add_u32 v15, v14, 3, v15")
        A(f"s_lshl_b32 s6, s62, 8\ns_add_u32 s6, s6, {XN}\nv_lshlrev_b32 v17, 4, v12\nv_add_u32 v16, s6, v17")
        A("s_waitcnt lgkmcnt(0)")
        for m in range(4):
            A(f"ds_read_b128 {vr(128+4*m,4)}, v16 offset:{m*64}")
        A("v_mov_b32 v1, 0")
        A("s_waitcnt vmcnt(0)")
        for m in range(4):
            base = 64 + 16 * m
            for ct in range(4):
                A(f"ds_read_b64_tr_b16 {vr(base+4*ct,2)}, v15 offset:{WQ + m*4096 + ct*32}")
                A(f"ds_read_b64_tr_b16 {vr(base+4*ct+2,2)}, v15 offset:{WQ + m*4096 + ct*32 + 512}")
            A("s_waitcnt lgkmcnt(0)")
            for ct in range(4):
                c = "0" if m == 0 else vr(32 + 4 * ct, 4)
                A(f"v_mfma_f32_16x16x32_bf16 {vr(32+4*ct,4)}, {vr(base+4*ct,4)}, {vr(128+4*m,4)}, {c}")
        self.flagged(self.VFL, 4, F_EARLY, 1, slp=2)
        self.cnt_wait("s65", "v1")
        self.stamp(3)
        A("v_readfirstlane_b32 s6, v4\ns_lshl_b32 s7, s14, 5\ns_cmp_eq_u32 s6, s7\ns_cselect_b32 s15, 1, 0")
        if not self.local: A("s_mov_b32 s15, 0")
        A(f"v_mov_b32 v5, s15\nds_write_b32 v{self.VFL}, v5 offset:{F_LOC}")
        A("s_mov_b32 exec_lo, 0x00010001\ns_mov_b32 exec_hi, 0x00010001")
        self.store_alt([f"buffer_store_dwordx4 {vr(32+4*ct,4)}, v17, s[16:19], s58 offen offset:{ct*64}" for ct in range(4)], "s15")
        A("s_mov_b64 exec, -1")
        if self.dq: A(f"s_sleep {self.dq}")
        A(f"s_lshl_b32 s6, s4, 13\ns_add_u32 s6, s6, {QP_OFF}\ns_add_u32 s66, s6, 4096")
        lp, out = self.lab("qpoll"), self.lab("qok")
        A("s_mov_b32 s7, 0")
        A(f"{lp}:")
        for rb in range(4):
            for hf in range(2):
                A(f"buffer_load_dwordx4 {vr(64+8*rb+4*hf,4)}, v2, s[16:19], {'s6' if rb < 2 else 's66'} offen offset:{(rb&1)*2048+hf*1024} sc1")
        self.spin_guard(out)
        A("s_waitcnt vmcnt(0)")
        for k in range(0, 8, 2):
            A(f"v_pk_add_f32 {vr(64+k,2)}, {vr(64+k,2)}, {vr(72+k,2)}\nv_pk_add_f32 {vr(80+k,2)}, {vr(80+k,2)}, {vr(88+k,2)}")
        for k in range(0, 8, 2):
            A(f"v_pk_add_f32 {vr(64+k,2)}, {vr(64+k,2)}, {vr(80+k,2)}")
        A("v_cmp_u_f32 vcc, v64, v65\nv_cmp_u_f32 s[68:69], v66, v67\nv_cmp_u_f32 s[70:71], v68, v69\nv_cmp_u_f32 s[72:73], v70, v71")
        A("s_or_b64 vcc, vcc, s[68:69]\ns_or_b64 s[70:71], s[70:71], s[72:73]\ns_or_b64 vcc, vcc, s[70:71]")
        A(f"s_cbranch_scc0 {out}")
        A(f"s_sleep {self.slp}")
        A(f"s_branch {lp}")
        A(f"{out}:")
        A("s_waitcnt vmcnt(0)")
        A("v_cvt_pk_bf16_f32 v4, v64, v65\nv_cvt_pk_bf16_f32 v5, v66, v67\nv_cvt_pk_bf16_f32 v6, v68, v69\nv_cvt_pk_bf16_f32 v7, v70, v71")
        A(f"v_lshlrev_b32 v1, 3, v0\nv_add_u32 v1, {QV}, v1\nv_mov_b32 v8, 1")
        A("ds_write_b64 v1, v[4:5]\nds_write_b64 v1, v[6:7] offset:512")
        self.flag_add(self.VFL, 8, F_Q)
        self.stamp(13)
        A(f"v_and_b32 v1, 3, v0\nv_lshlrev_b32 v5, 4, v1\nv_add_u32 v5, {STL}, v5\nv_lshlrev_b32 v1, 3, v1")
        self.flagged(self.VFL, 4, F_ST, 4, slp=4)
        A("ds_read_b128 v[8:11], v5\nds_read_b128 v[12:15], v5 offset:64")
        A("s_waitcnt lgkmcnt(0)")
        A("v_max3_f32 v16, v8, v9, v10\nv_max_f32 v16, v16, v11")
        for k in range(4):
            A(f"v_sub_f32 v{8+k}, v{8+k}, v16")
        for k in range(4):
            A(f"v_mul_f32 v{8+k}, s59, v{8+k}")
        for k in range(4):
            A(f"v_exp_f32 v{8+k}, v{8+k}")
        A("v_mul_f32 v17, v8, v12\nv_fmac_f32 v17, v9, v13\nv_fmac_f32 v17, v10, v14\nv_fmac_f32 v17, v11, v15")
        A("s_mov_b64 exec, 15")
        self.store_alt(["buffer_store_dwordx2 v[16:17], v1, s[16:19], s64 offen"], "s15")
        A("s_mov_b64 exec, -1")
        self.flagged(self.VFL, 4, F_MID, 1, slp=4)
        A("v_and_b32 v1, 7, v0\nv_lshlrev_b32 v1, 5, v1")
        self.cnt_wait("0", "v1")
        sk = self.lab("now")
        A(f"v_mov_b32 v6, 1\ns_cmp_ge_u32 s12, 16\ns_cbranch_scc1 {sk}")
        A(f"s_lshl_b32 s6, s4, 10\ns_add_u32 s6, s6, {ST_OFF}")
        lp, out = self.lab("spoll"), self.lab("sok")
        A("s_mov_b32 s7, 0")
        A(f"{lp}:")
        A("buffer_load_dwordx4 v[8:11], v2, s[16:19], s6 offen sc1")
        self.spin_guard(out)
        A("s_waitcnt vmcnt(0)")
        A("v_cmp_u_f32 vcc, v8, v9\nv_cmp_u_f32 s[78:79], v10, v11")
        A("s_or_b64 vcc, vcc, s[78:79]")
        A(f"s_cbranch_scc0 {out}")
        A(f"s_sleep {self.slp}")
        A(f"s_branch {lp}")
        A(f"{out}:")
        A("s_waitcnt vmcnt(0)")
        A("v_mov_b32 v4, v8\nv_mov_b32 v5, v10")
        self.allred("v_max_f32", [4, 5], [12, 13], rors=("x2", 4, 8))
        A("v_sub_f32 v8, v8, v4\nv_sub_f32 v10, v10, v5\nv_mul_f32 v8, s59, v8\nv_mul_f32 v10, s59, v10")
        A("v_exp_f32 v8, v8\nv_exp_f32 v10, v10")
        A("v_mul_f32 v9, v8, v9\nv_mul_f32 v11, v10, v11")
        self.allred("v_add_f32", [9, 11], [12, 13], rors=("x2", 4, 8))
        A("v_rcp_f32 v9, v9\nv_rcp_f32 v11, v11")
        A(f"v_lshlrev_b32 v5, 3, v0\nv_add_u32 v5, {WT}, v5")
        A("v_mul_f32 v8, v8, v9\nv_mul_f32 v9, v10, v11")
        A("ds_write_b64 v5, v[8:9]")
        A(f"{sk}:")
        self.flag_add(self.VFL, 6, F_W)
        self.stamp(6)

    def h123(self):
        A = self.A
        A("L_h123:")
        l2, l3, dn = self.lab("h2"), self.lab("h3"), self.lab("hd")
        A("v_mov_b32 v4, 0\nv_mov_b32 v5, 0\nv_mov_b32 v6, 0\nv_mov_b32 v7, 0")
        A(f"s_cmp_eq_u32 s3, 2\ns_cbranch_scc1 {l2}\ns_cmp_eq_u32 s3, 3\ns_cbranch_scc1 {l3}")
        A("v_mov_b32 v8, -1\nv_mov_b32 v9, -1\nv_mov_b32 v10, -1\nv_mov_b32 v11, -1")
        A("buffer_store_dwordx4 v[8:11], v2, s[16:19], s66 offen sc1")
        A("buffer_store_dwordx4 v[8:11], v2, s[16:19], s66 offen offset:1024 sc1")
        A("s_mov_b64 exec, 3")
        A("buffer_store_dwordx4 v[8:11], v2, s[16:19], s64 offen sc1")
        A("s_mov_b64 exec, 0xffff")
        A("buffer_store_dwordx4 v[8:11], v2, s[16:19], s58 offen sc1")
        a, b = self.lab("cz"), self.lab("cd")
        A(f"s_cmp_lt_u32 s5, 8\ns_cbranch_scc1 {a}")
        A(f"s_cmp_ge_u32 s5, 24\ns_cbranch_scc1 {b}")
        A(f"buffer_store_dwordx4 v[8:11], v2, s[16:19], s13 offen sc1\ns_branch {b}")
        A(f"{a}:\ns_cmp_ge_u32 s100, 56\ns_cbranch_scc1 {b}")
        A(f"s_mov_b64 exec, -1\ns_lshl_b32 s7, s100, 11\ns_add_u32 s7, s7, {Z_OFF}")
        A("buffer_store_dwordx4 v[8:11], v2, s[16:19], s7 offen sc1")
        A("buffer_store_dwordx4 v[8:11], v2, s[16:19], s7 offen offset:1024 sc1")
        A(f"{b}:")
        A("s_mov_b64 exec, -1\nv_mov_b32 v6, s14")
        A("s_barrier")
        A("s_waitcnt vmcnt(0)")
        A("s_mov_b64 exec, 1")
        A("buffer_atomic_add v6, v4, s[48:51], s65 offen sc1")
        A("s_mov_b64 exec, -1")
        A(f"s_branch {dn}")
        A(f"{l2}:")
        for o in (0, 16, 32, 48):
            A(f"ds_write_b128 v{self.VFL}, v[4:7] offset:{o}")
        A("s_waitcnt lgkmcnt(0)")
        A("s_barrier")
        A("s_getpc_b64 s[6:7]")
        A("L_pc_anchor:")
        A(f"s_sub_u32 s6, s6, L_pc_anchor-{KN}\ns_subb_u32 s7, s7, 0")
        A("s_lshl_b32 s68, s5, 10\nv_lshl_add_u32 v1, v0, 6, s68")
        A(f"v_min_u32 v4, L_code_end-{KN}-4, v1")
        A("s_mov_b64 exec, 0xffff")
        A("global_load_dword v8, v4, s[6:7]")
        A("s_mov_b64 exec, -1")
        A(f"s_branch {dn}")
        A(f"{l3}:")
        A(f"v_add_u32 v1, {ZR}, v2")
        A("ds_write_b128 v1, v[4:7]\nds_write_b128 v1, v[4:7] offset:512")
        self.touch_at = len(self.L)
        A(f"v_mov_b32 v8, 0x3f803f80\nv_mov_b32 v9, v8\nv_mov_b32 v10, v8\nv_mov_b32 v11, v8\nv_add_u32 v1, {ONES}, v2\nds_write_b128 v1, v[8:11]")
        A("s_barrier")
        if self.touch:
            A("; address translations of the weights that are first read at the end of the stream (values unused)")
            self.flagged(self.VFL, 12, F_EARLY if self.touch is True else F_ST, 1, slp=8)
            A("s_lshl_b32 s6, s4, 19\ns_mov_b64 exec, 1")
            A("buffer_load_dword v8, v4, s[28:31], s6 offen nt")
            A("buffer_load_dword v9, v4, s[32:35], 0 offen nt\nbuffer_load_dword v10, v4, s[36:39], 0 offen nt\nbuffer_load_dword v11, v4, s[40:43], 0 offen nt")
            A("s_mov_b64 exec, -1")
        A(f"{dn}:")
        A("s_waitcnt vmcnt(0) lgkmcnt(0)")

    def wpath(self):
        A = self.A
        VFL, vONE = self.VFL, 240
        WOA, PA, WTR, SA, DD = 16, 48, 64, 80, 96
        vH1, vYw, vYr, vYs, vPF, vWa, vWb = range(84, 91)
        TR = 128
        A(f"v_lshrrev_b32 v4, 3, v0\nv_lshlrev_b32 v6, 11, v4\nv_and_b32 v5, 7, v0\nv_lshl_add_u32 v{vH1}, v5, 4, v6")
        A(f"v_lshlrev_b32 v6, 4, v4\nv_add_u32 v6, {WT}, v6")
        for t in range(4):
            A(f"ds_read_b128 {vr(WTR+4*t,4)}, v6 offset:{t*128}")
        A("s_and_b32 s8, s12, 12\ns_add_u32 s8, s8, s3\ns_and_b32 s9, s12, 3")
        A(f"s_lshl_b32 s6, s4, 16\ns_add_u32 s6, s6, {OP_OFF}\ns_lshl_b32 s64, s8, 7\ns_add_u32 s64, s64, s6")
        for t in range(1, 4):
            A(f"s_add_u32 s{64+t}, s64, {t*0x4000}")
        A("s_lshl_b32 s72, s4, 19\ns_lshl_b32 s6, s9, 8\ns_add_u32 s72, s72, s6")
        A("s_and_b32 s6, s8, 1\ns_lshl_b32 s6, s6, 16\ns_add_u32 s72, s72, s6\ns_lshr_b32 s6, s8, 2\ns_lshl_b32 s6, s6, 11\ns_add_u32 s72, s72, s6")
        A("s_bfe_u32 s6, s8, 0x10001\ns_lshl_b32 s6, s6, 10\ns_add_u32 s72, s72, s6")
        A(f"v_and_b32 v5, 15, v0\nv_lshlrev_b32 v6, 4, v5\nv_lshlrev_b32 v7, 5, v12\nv_xor_b32 v6, v6, v7\nv_lshl_add_u32 v{vWa}, v12, 13, v6\nv_xor_b32 v{vWb}, 0x80, v{vWa}")
        A(f"s_lshl_b32 s74, s3, 13")
        A(f"v_and_b32 v6, 1, v12\nv_lshl_add_u32 v6, v6, 2, v13\nv_lshlrev_b32 v6, 5, v6\nv_lshl_add_u32 v6, v15, 8, v6\nv_lshl_add_u32 v6, v14, 3, v6\nv_add_u32 v{TR}, s74, v6")
        for ct in range(1, 8):
            A(f"v_xor_b32 v{TR+ct}, {ct*32}, v{TR}")
        A(f"s_lshl_b32 s6, s3, 9\ns_add_u32 s6, s6, {YL}")
        A(f"v_lshlrev_b32 v4, 4, v12\nv_add_u32 v{vYw}, s6, v4\nv_add_u32 v{vYr}, {YL}, v2\nv_lshlrev_b32 v{vYs}, 3, v0")
        A(f"v_lshlrev_b32 v{vPF}, 7, v0\ns_lshl_b32 s20, s4, 18\ns_lshl_b32 s6, s12, 14\ns_add_u32 s20, s20, s6\ns_lshl_b32 s6, s3, 12\ns_add_u32 s20, s20, s6")

        def h1load(t):
            A(f"buffer_load_dwordx4 {vr(PA+4*t,4)}, v{vH1}, s[16:19], s{64+t} offen sc1")

        self.flagged(VFL, 4, F_A, self.acnt, slp=1)
        self.stamp(7)
        for t in range(8):
            A(f"s_add_u32 m0, s74, {WO + t*1024}\ns_add_u32 s6, s72, {(t>>1)*131072 + (t&1)*32768}")
            A(f"buffer_load_dwordx4 v{vWb if t & 2 else vWa}, s[28:31], s6 offen {self.wpol} lds")

        def wotr():
            for ct in range(8):
                if ct in (5, 7): A("s_waitcnt lgkmcnt(8)")
                A(f"ds_read_b64_tr_b16 {vr(WOA+4*ct,2)}, v{TR+ct} offset:{WO}")
                A(f"ds_read_b64_tr_b16 {vr(WOA+4*ct+2,2)}, v{TR+ct} offset:{WO+1024}")
        if self.a_back > 4:
            A("s_waitcnt vmcnt(0)")
            self.stamp(5)
            wotr()
        self.flagged(VFL, 4, F_ACC, 4, slp=1)
        self.stamp(8)
        if self.d1: A(f"s_sleep {self.d1}")
        for t in range(4): h1load(t)
        if self.a_back <= 4:
            A("s_waitcnt vmcnt(4)")
            self.stamp(5)
            wotr()
        lp, out = self.lab("h1"), self.lab("h1ok")
        A("s_mov_b32 s7, 0")
        A(f"{lp}:")
        A("s_waitcnt vmcnt(0)")
        for t in range(4):
            for k in (0, 2):
                if t == 0:
                    A(f"v_pk_mul_f32 {vr(SA+k,2)}, {vr(PA+k,2)}, {vr(WTR+k,2)}")
                else:
                    A(f"v_pk_fma_f32 {vr(SA+k,2)}, {vr(PA+4*t+k,2)}, {vr(WTR+4*t+k,2)}, {vr(SA+k,2)}")
        A(f"v_cmp_u_f32 vcc, v{SA}, v{SA+1}\nv_cmp_u_f32 s[78:79], v{SA+2}, v{SA+3}")
        A("s_or_b64 vcc, vcc, s[78:79]")
        A(f"s_cbranch_scc0 {out}")
        self.spin_guard(out)
        if self.b1: A(f"s_sleep {self.b1}")
        self.reload([PA + 4 * t for t in range(4)], h1load)
        A(f"s_branch {lp}")
        A(f"{out}:")
        if self.stamps: A("s_mov_b32 s81, s7")
        self.stamp(9)
        self.lane_sum4([SA])
        A(f"v_mov_b32_dpp v{SA+1}, v{SA} row_ror:15 row_mask:0xf bank_mask:0xf")
        A(f"v_cvt_pk_bf16_f32 v{SA}, v{SA}, v{SA+1}")
        for k in range(4):
            A(f"v_mov_b32_dpp v{4+k}, v{SA} row_newbcast:{2*k} row_mask:0xf bank_mask:0xf")
        A("s_waitcnt lgkmcnt(0)")
        for ct in range(8):
            A(f"v_mfma_f32_16x16x32_bf16 {vr(DD+4*ct,4)}, {vr(WOA+4*ct,4)}, v[4:7], 0")
        A("s_mov_b32 exec_lo, 0x00010001\ns_mov_b32 exec_hi, 0x00010001")
        for ct in range(8):
            A(f"ds_write_b128 v{vYw}, {vr(DD+4*ct,4)} offset:{ct*64}")
        A(f"s_mov_b64 exec, 1\nds_add_u32 v{VFL}, v{vONE} offset:{F_Y}")
        A("s_cmp_lg_u32 s3, 0")
        A("s_cbranch_scc1 L_noy")
        A("s_mov_b64 exec, 0xffffffff")
        self.flagged(VFL, 8, F_Y, 4, [f"ds_read_b128 {vr(PA+4*k,4)}, v{vYr} offset:{k*512}" for k in range(4)])
        A("s_waitcnt lgkmcnt(2)")
        A(f"v_pk_add_f32 {vr(PA,2)}, {vr(PA,2)}, {vr(PA+4,2)}\nv_pk_add_f32 {vr(PA+2,2)}, {vr(PA+2,2)}, {vr(PA+6,2)}")
        A("s_waitcnt lgkmcnt(0)")
        A(f"v_pk_add_f32 {vr(PA+8,2)}, {vr(PA+8,2)}, {vr(PA+12,2)}\nv_pk_add_f32 {vr(PA+10,2)}, {vr(PA+10,2)}, {vr(PA+14,2)}")
        A(f"v_pk_add_f32 {vr(PA,2)}, {vr(PA,2)}, {vr(PA+8,2)}\nv_pk_add_f32 {vr(PA+2,2)}, {vr(PA+2,2)}, {vr(PA+10,2)}")
        A(f"v_cvt_pk_bf16_f32 v4, v{PA}, v{PA+1}\nv_cvt_pk_bf16_f32 v5, v{PA+2}, v{PA+3}")
        A(f"buffer_store_dwordx2 v[4:5], v{vYs}, s[16:19], s13 offen sc1")
        A("L_noy:")
        self.stamp(10)
        if self.wdpf:
            sk = self.lab("wp")
            A(f"s_cmp_eq_u32 s4, 7\ns_cbranch_scc1 {sk}\ns_mov_b64 exec, 0xffffffff")
            A(f"buffer_load_dword v254, v{vPF}, s[40:43], s20 offen {self.ppol}\n{sk}:")
        if self.stamps:
            A("s_mov_b64 exec, -1\ns_cmp_lg_u32 s3, 0\ns_cbranch_scc1 L_end")
            self.stamp_store(1, 16)
        A("s_endpgm")

    def ppath(self):
        A = self.A
        A("L_ppath:")
        dn = self.lab("pe")
        A(f"s_cmp_eq_u32 s4, 7\ns_cbranch_scc1 {dn}")
        A("s_movk_i32 s6, 3584\nv_lshrrev_b32 v6, 2, v0\nv_mul_lo_u32 v6, v6, s6\nv_lshl_add_u32 v6, v14, 7, v6\nv_lshlrev_b32 v7, 7, v0")
        A(f"s_sub_u32 s6, s5, 24\ns_lshl_b32 s6, s6, 2\ns_add_u32 s6, s6, s3\ns_mul_i32 s20, s6, {16*3584}\ns_lshl_b32 s7, s4, 9\ns_add_u32 s20, s20, s7")
        A("s_lshl_b32 s21, s4, 18\ns_lshl_b32 s6, s6, 13\ns_add_u32 s21, s21, s6")
        self.flagged(self.VFL, 4, *((F_P, self.acnt) if self.p_back else (F_OPS, 2)), slp=1)
        self.stamp(7)
        A(f"buffer_load_dword v8, v6, s[32:35], s20 offen {self.ppol}")
        A(f"buffer_load_dword v9, v6, s[36:39], s20 offen {self.ppol}")
        if not self.wdpf: A(f"buffer_load_dword v10, v7, s[40:43], s21 offen {self.ppol}")
        if self.stamps:
            A("s_waitcnt vmcnt(0)")
            self.stamp(14)
        A(f"{dn}:")
        if self.stamps:
            A("s_cmp_lg_u32 s3, 0\ns_cbranch_scc1 L_end")
            self.stamp_store(1, 16)
        A("s_endpgm")

    def gpath(self):
        A = self.A
        VFL, vONE = self.VFL, 240
        GB, WDA, P2, P1, T = 32, 96, 128, 192, 192
        vHVr, vHVs, vHHw, vHHr, vZs, vB1, vGg, vGu, vGT, vDT, vDv, vDw = range(228, 240)
        A("L_gpath:")
        if self.stamps:
            sk = self.lab("g7")
            A(f"s_cmp_lt_u32 s100, 56\ns_cbranch_scc1 {sk}\ns_cmp_lg_u32 s3, 0\ns_cbranch_scc1 L_end")
            self.stamp_store(1, 16)
            A(f"s_endpgm\n{sk}:")
        else:
            A("s_cmp_ge_u32 s100, 56\ns_cbranch_scc1 L_end")
        A("v_lshlrev_b32 v4, 4, v12\nv_and_b32 v5, 15, v0")
        A(f"v_add_u32 v7, {HV}, v4\nv_add_u32 v6, {ONES}, v4\nv_cmp_eq_u32 vcc, 1, v5\nv_cndmask_b32 v{vHVr}, v7, v6, vcc\nv_add_u32 v{vHVs}, {HV}, v2")
        A(f"s_lshl_b32 s6, s3, 4\ns_add_u32 s6, s6, {HH}\nv_lshl_add_u32 v{vHHw}, v5, 1, s6")
        A(f"v_lshl_add_u32 v{vZs}, v5, 6, v4")
        A(f"v_add_u32 v6, {ZR+64}, v{vZs}\nv_cmp_gt_u32 vcc, 8, v5\nv_mov_b32 v7, {ZR+16*64}\nv_cndmask_b32 v{vHHr}, v7, v6, vcc")
        A(f"s_lshl_b32 s76, s100, 11\ns_lshl_b32 s6, s3, 9\ns_add_u32 s76, s76, s6\ns_add_u32 s76, s76, {Z_OFF}")
        A(f"v_mov_b32 v{vB1}, 0x3f803f80")
        A("s_movk_i32 s6, 3584\nv_lshrrev_b32 v6, 2, v0\nv_mul_lo_u32 v6, v6, s6")
        A(f"v_lshrrev_b32 v7, 5, v0\nv_xor_b32 v7, v7, v14\nv_lshl_add_u32 v{vGg}, v7, 4, v6\nv_xor_b32 v7, 2, v7\nv_lshl_add_u32 v{vGu}, v7, 4, v6")
        A(f"s_mul_i32 s21, s3, {128*3584}\ns_lshl_b32 s6, s100, 6\ns_add_u32 s21, s21, s6")
        A(f"s_lshl_b32 s22, s100, 15\ns_lshl_b32 s6, s3, 8\ns_add_u32 s22, s22, s6\ns_lshl_b32 s6, s3, 13\ns_add_u32 s23, s6, {WG}")
        A(f"v_lshlrev_b32 v6, 4, v5\nv_lshlrev_b32 v7, 5, v12\nv_xor_b32 v6, v6, v7\nv_lshl_add_u32 v{vDv}, v12, 10, v6\nv_xor_b32 v{vDw}, 0x80, v{vDv}")
        A(f"v_and_b32 v6, 1, v12\nv_and_b32 v7, 2, v14\nv_or_b32 v6, v6, v7\nv_xor_b32 v6, s3, v6\nv_lshlrev_b32 v6, 4, v6")
        A(f"v_lshl_add_u32 v6, v15, 6, v6\nv_and_b32 v8, 1, v14\nv_lshl_add_u32 v6, v8, 3, v6\nv_lshl_add_u32 v6, v7, 14, v6\nv_add_u32 v{vGT}, {WG}, v6")
        A(f"v_and_b32 v6, 1, v12\nv_lshl_add_u32 v6, v6, 2, v13\nv_lshlrev_b32 v6, 5, v6\nv_lshl_add_u32 v6, v15, 8, v6\nv_lshl_add_u32 v6, v14, 3, v6")
        A(f"s_lshl_b32 s6, s3, 13\ns_add_u32 s6, s6, {WD}\nv_add_u32 v{vDT}, s6, v6")
        self.flagged(VFL, 4, F_OPS, 2, slp=1)
        self.stamp(8)
        if self.dg: A(f"s_sleep {self.dg}")
        for t in range(8):
            A(f"s_add_u32 m0, s23, {t*1024}\ns_add_u32 s6, s21, {t*16*3584}")
            A(f"buffer_load_dwordx4 v{vGg}, s[32:35], s6 offen {self.gpol} lds")
            A(f"s_add_u32 m0, s23, {WU-WG+t*1024}")
            A(f"buffer_load_dwordx4 v{vGu}, s[36:39], s6 offen {self.gpol} lds")
        for t in range(8):
            A(f"s_add_u32 m0, s23, {WD-WG+t*1024}\ns_add_u32 s6, s22, {t*4096}")
            A(f"buffer_load_dwordx4 v{vDw if t & 2 else vDv}, s[40:43], s6 offen {self.gpol} lds")
        A("s_waitcnt vmcnt(8)")
        self.flag_add(VFL, vONE, F_GL)
        self.flagged(VFL, 4, F_GL, 4)
        self.stamp(9)
        for m in range(16):
            if m >= 7 and m % 2 == 1: A("s_waitcnt lgkmcnt(8)")
            A(f"ds_read_b64_tr_b16 {vr(GB+4*m,2)}, v{vGT} offset:{m*2048}")
            A(f"ds_read_b64_tr_b16 {vr(GB+4*m+2,2)}, v{vGT} offset:{m*2048 + 256}")
        A("s_waitcnt vmcnt(0) lgkmcnt(0)")
        if self.h2on == "g2": self.flag_add(VFL, vONE, F_G2)
        for c8 in range(8):
            if c8: A(f"v_xor_b32 v5, {c8*32}, v{vDT}")
            va = vDT if c8 == 0 else 5
            if c8 in (5, 7): A("s_waitcnt lgkmcnt(8)")
            A(f"ds_read_b64_tr_b16 {vr(WDA+4*c8,2)}, v{va}")
            A(f"ds_read_b64_tr_b16 {vr(WDA+4*c8+2,2)}, v{va} offset:1024")
        A("s_waitcnt lgkmcnt(0)")
        self.stamp(15)
        A("s_barrier")
        self.stamp(11)
        A(f"ds_read_b128 v[4:7], v{vHVs}")
        for m in range(14):
            A(f"ds_read_b128 {vr(P2+4*m,4)}, v{vHVr} offset:{m*64}")
        save = self.L
        self.L = []
        for k in range(4):
            A(f"v_dot2_f32_bf16 v{T+8}, v{4+k}, v{vB1}, {'0' if k == 0 else f'v{T+8}'}")
            A(f"v_dot2_f32_bf16 v{T+9}, v{4+k}, v{4+k}, {'0' if k == 0 else f'v{T+9}'}")
        self.allred("v_add_f32", [T + 8, T + 9], [T + 10, T + 11])
        A(f"v_mul_f32 v{T+8}, {INV512}, v{T+8}\nv_mul_f32 v{T+9}, {INV512}, v{T+9}")
        A(f"v_fma_f32 v{T+9}, -v{T+8}, v{T+8}, v{T+9}\nv_max_f32 v{T+9}, 0, v{T+9}")
        self.ln_scalars(T + 8, T + 9, T + 10)
        st = [x.strip() for x in self.L]
        self.L = save
        per = -(-len(st) // 15)
        for m in range(16):
            if m == 0:
                A("s_waitcnt lgkmcnt(13)")
            elif m % 2 == 1:
                A(f"s_waitcnt lgkmcnt({max(14-m, 0)})")
            A(f"v_mfma_f32_16x16x32_bf16 v[8:11], {vr(P2+4*m,4)}, {vr(GB+4*m,4)}, {'0' if m == 0 else 'v[8:11]'}")
            if m == 0:
                for m2 in (14, 15):
                    A(f"ds_read_b128 {vr(P2+4*m2,4)}, v{vHVr} offset:{m2*64}")
            for x in st[m * per:(m + 1) * per]:
                A(x)
        A(f"v_fma_f32 v4, -v{T+8}, v9, v8\nv_mul_f32 v4, v4, v{T+9}")
        A("v_mul_f32 v5, s59, v4\nv_exp_f32 v5, -v5")
        A("v_mov_b32_dpp v6, v4 row_ror:8 row_mask:0xf bank_mask:0xf")
        A("v_add_f32 v5, 1.0, v5\nv_rcp_f32 v5, v5")
        A("v_mul_f32 v5, v5, v6\nv_cvt_pk_bf16_f32 v5, v5, v5")
        A("s_mov_b64 exec, 0xff")
        A(f"ds_write_b16 v{vHHw}, v5")
        A("s_mov_b64 exec, -1")
        A("s_waitcnt lgkmcnt(0)")
        A("s_barrier")
        for c8 in range(8):
            A(f"ds_read_b128 {vr(P1+4*c8,4)}, v{vHHr} offset:{(7-c8)*64}")
        for c8 in range(8):
            A(f"s_waitcnt lgkmcnt({7-c8})")
            A(f"v_mfma_f32_16x16x32_bf16 v[8:11], {vr(WDA+4*c8,4)}, {vr(P1+4*c8,4)}, {'0' if c8 == 0 else 'v[8:11]'}")
        A("s_mov_b32 exec_lo, 0x00ff00ff\ns_mov_b32 exec_hi, 0x00ff00ff")
        A(f"buffer_store_dwordx4 v[8:11], v{vZs}, s[16:19], s76 offen sc1")
        if self.stamps:
            A("s_mov_b64 exec, -1")
            self.stamp(12)
            A("s_cmp_lg_u32 s3, 0\ns_cbranch_scc1 L_end")
            self.stamp_store(1, 16)

    def build(self):
        self.entry()
        self.streamer()
        self.helper()
        self.A("L_end:\ns_endpgm\nL_code_end:")
        body, nn = hazard.fix(self.L)
        head = open("cdna_kernels/" + KN[:-7] + ".s.ref").read().split("; Override launch")[0]
        out = head
        out += f"; @launch grid=(256,1,1) block=(512,1,1) lds={LDS_SIZE}\n"
        out += HEADER
        out += '.amdgcn_target "amdgcn-amd-amdhsa--gfx950"\n.text\n'
        out += f".globl {KN}\n.p2align 8\n.type {KN},@function\n{KN}:\n"
        out += "\n".join(body) + "\n"
        out += f""".section .rodata,"a"
.p2align 6
.amdhsa_kernel {KN}
  .amdhsa_next_free_vgpr 256
  .amdhsa_next_free_sgpr 102
  .amdhsa_accum_offset 256
  .amdhsa_group_segment_fixed_size 0
  .amdhsa_kernarg_size 96
  .amdhsa_user_sgpr_count 2
  .amdhsa_user_sgpr_kernarg_segment_ptr 1
  .amdhsa_system_sgpr_workgroup_id_x 1
.end_amdhsa_kernel
"""
        return out


def gen(**kw):
    return Gen(**kw).build()


if __name__ == "__main__":
    kw = eval("dict(" + (sys.argv[2] if len(sys.argv) > 2 else "") + ")")
    open(sys.argv[1], "w").write(gen(**kw))
```

```python
import sys
import hazard

KN = "sequential_preLN__gqa_block_cached__glu_gated_glu__decode_kernel"

ST_OFF = 0x2000
Y_OFF = 0x10000
Z_OFF = 0x20000
OP_OFF = 0x40000
QP_OFF = 0xC0000
WS_SIZE = 0xD0000
STAMP_OFF = 0x100000
OOB = 0x400000
NG = 56
WQ = 0
WO = 0
WG = 32768
WU = 65536
WD = 98304
ACC = 131072
XN = ACC + 8192
QV = XN + 1024
HV = QV + 1024
ZR = HV + 1024
HH = ZR + 8 * 64
STL = ZR + 1536
FL = STL + 128
F_Q, F_ST, F_W, F_EARLY, F_MID, F_A, F_LOC, F_ACC, F_OPS, F_Y, F_GL, F_G2, F_P = range(0, 52, 4)
WT = FL + 64
YL = WT + 512
ONES = YL + 2048
LDS_SIZE = ONES + 1024

LOG2E = "0x3fb8aa3b"
SCALE = "0x3db504f3"
EPS = "0x3727c5ac"
INV512 = "0x3b000000"
HIMASK = "0xffff0000"
SPIN_MAX = 100000

HEADER = """; One persistent launch: 256 workgroups (one per CU), 8 waves each.  g = id & 7 is the kv head, s = id >> 3 the split.
"""


def vr(a, n=1):
    return f"v{a}" if n == 1 else f"v[{a}:{a+n-1}]"


class Gen:
    def __init__(self, DN=((0, 5), (-12, 12)), DG=None, DP=None, RING=48, NTW=64, NTG=65, NTP=63, pol="nt", wpol="nt", gpol="nt", ppol="",
                 stamps=0, pvrate=3, kbudget=3, dbg=(), slp=8, n_early=18, dq=16, mid_back=26, stdelay=3,
                 d1=3, d2=0, d3=17, b1=0, b2=0, b3=0, dg=0, local=True, fw=2, h2on="gl", acnt=4, a_back=1, p_back=0, wdpf=True, touch=True, wil=True, wdlate=0, psplit=32, ghead=0):
        self.__dict__.update(locals())
        assert 2 * NTW + NTG + NTP == 256
        self.DN = tuple(DN)
        self.DG = tuple(DG) if DG else self.DN
        self.DP = tuple(DP) if DP else self.DN
        self.L = []
        self.uid = 0

    def A(self, s):
        for l in s.split("\n"):
            l = l.strip()
            if not l:
                continue
            self.L.append(l if l.endswith(":") else "    " + l)

    def lab(self, p):
        self.uid += 1
        return f"L_{p}_{self.uid}"

    def stamp(self, k, keep=False):
        if self.stamps and (self.stamps != 4 or keep):
            self.A(f"s_memrealtime s[98:99]\ns_waitcnt lgkmcnt(0)\ns_mov_b32 s{80+k}, s98")

    def stamp_store(self, role, n):
        A = self.A
        A("s_mov_b64 exec, 1")
        A(f"s_lshl_b32 s6, s2, 9\ns_add_u32 s6, s6, {STAMP_OFF + role*64}")
        A("v_mov_b32 v1, 0")
        for k in range(n):
            A(f"v_mov_b32 v3, s{80+k}")
            A(f"buffer_store_dword v3, v1, s[16:19], s6 offen offset:{4*k}")
        A("s_mov_b64 exec, -1")

    def allred(self, op, regs, tmps, rors=(8, 4, 2, 1)):
        A = self.A
        for n in rors:
            for r in regs:
                ctl = "quad_perm:[2,3,0,1]" if n == "x2" else f"row_ror:{n}"
                A(f"{op}_dpp v{r}, v{r}, v{r} {ctl} row_mask:0xf bank_mask:0xf")
        for sw in ("v_permlane16_swap_b32", "v_permlane32_swap_b32"):
            for r, t in zip(regs, tmps):
                A(f"v_mov_b32 v{t}, v{r}")
            for r, t in zip(regs, tmps):
                A(f"{sw} v{r}, v{t}")
            for r, t in zip(regs, tmps):
                A(f"{op} v{r}, v{r}, v{t}")

    def lane_sum4(self, Rs):
        A = self.A
        for R in Rs: A(f"v_permlane32_swap_b32 v{R}, v{R+2}\nv_permlane32_swap_b32 v{R+1}, v{R+3}")
        for R in Rs: A(f"v_add_f32 v{R}, v{R}, v{R+2}\nv_add_f32 v{R+1}, v{R+1}, v{R+3}")
        for R in Rs: A(f"v_permlane16_swap_b32 v{R}, v{R+1}")
        for R in Rs: A(f"v_add_f32 v{R}, v{R}, v{R+1}")
        for R in Rs: A(f"v_add_f32_dpp v{R}, v{R}, v{R} row_ror:8 row_mask:0xf bank_mask:0xf")

    def flag_add(self, vaddr, vone, off):
        self.A(f"s_mov_b64 exec, 1\nds_add_u32 v{vaddr}, v{vone} offset:{off}\ns_mov_b64 exec, -1")

    def flagged(self, vfl, vt, off, val, reads=(), slp=0):
        A = self.A
        lp, out = self.lab("fl"), self.lab("flok")
        A("s_mov_b32 s7, 0")
        A(f"{lp}:")
        A(f"ds_read_b32 v{vt}, v{vfl} offset:{off}")
        for r in reads: A(r)
        A(f"s_add_u32 s7, s7, 1\ns_cmp_gt_u32 s7, {SPIN_MAX*8}\ns_cbranch_scc1 {out}")
        A(f"s_waitcnt lgkmcnt({len(reads)})")
        A(f"v_cmp_le_u32 vcc, {val}, v{vt}")
        A(f"s_cbranch_vccnz {out}")
        if reads: A("s_waitcnt lgkmcnt(0)")
        if slp: A(f"s_sleep {slp}")
        A(f"s_branch {lp}")
        A(f"{out}:")
        if not reads: A("s_waitcnt lgkmcnt(0)")

    def spin_guard(self, out):
        self.A(f"s_add_u32 s7, s7, 1\ns_cmp_gt_u32 s7, {SPIN_MAX}\ns_cbranch_scc1 {out}")

    def store_alt(self, stores, sflag):
        a, b = self.lab("sa"), self.lab("sb")
        self.A(f"s_cmp_lg_u32 {sflag}, 0\ns_cbranch_scc1 {a}")
        for x in stores: self.A(x + " sc1")
        self.A(f"s_branch {b}\n{a}:")
        for x in stores: self.A(x)
        self.A(f"{b}:")

    def reload(self, bases, ld):
        A = self.A
        for t, base in enumerate(bases):
            sk = self.lab("rs")
            A(f"v_cmp_u_f32 vcc, v{base}, v{base+1}\nv_cmp_u_f32 s[78:79], v{base+2}, v{base+3}")
            A("s_or_b64 exec, vcc, s[78:79]")
            A(f"s_cbranch_execz {sk}")
            ld(t)
            A(f"{sk}:")
            A("s_mov_b64 exec, -1")

    def cnt_wait(self, soff, voff):
        A = self.A
        lp, out = self.lab("cpoll"), self.lab("cok")
        A("s_mov_b32 s7, 0")
        A(f"{lp}:")
        A(f"buffer_load_dword v4, {voff}, s[48:51], {soff} offen sc1")
        self.spin_guard(out)
        A("s_waitcnt vmcnt(0)")
        A("v_and_b32 v5, 0xff, v4\nv_cmp_gt_u32 vcc, 32, v5")
        A(f"s_cbranch_vccz {out}")
        A(f"s_sleep {self.slp}")
        A(f"s_branch {lp}")
        A(f"{out}:")
        A("s_waitcnt vmcnt(0)")

    def ln_scalars(self, mean, var, t):
        A = self.A
        A(f"v_cvt_pk_bf16_f32 v{t}, v{mean}, v{var}")
        A(f"v_lshlrev_b32 v{mean}, 16, v{t}\nv_and_b32 v{var}, s60, v{t}")
        A(f"v_add_f32 v{var}, {EPS}, v{var}")
        A(f"v_cvt_pk_bf16_f32 v{t}, v{var}, v{var}\nv_and_b32 v{var}, s60, v{t}")
        A(f"v_sqrt_f32 v{var}, v{var}")
        A(f"v_cvt_pk_bf16_f32 v{t}, v{var}, v{var}\nv_and_b32 v{var}, s60, v{t}")
        A(f"v_rcp_f32 v{var}, v{var}")

    def entry(self):
        A = self.A
        A("s_load_dwordx2 s[8:9], s[0:1], 8           ; K")
        A("s_load_dwordx2 s[12:13], s[0:1], 16        ; V")
        A("s_load_dwordx2 s[16:17], s[0:1], 88        ; ws")
        A("s_cmp_ge_u32 s2, 256")
        A("s_cbranch_scc1 L_end")
        if "perm" in self.dbg:
            A("s_and_b32 s4, s2, 7\ns_lshr_b32 s5, s2, 3\ns_lshl_b32 s4, s4, 5\ns_or_b32 s2, s4, s5")
        if "perm2" in self.dbg:
            A("s_xor_b32 s4, s2, 1\ns_and_b32 s5, s2, 0xfe\ns_cmp_eq_u32 s5, 0x48\ns_cselect_b32 s2, s4, s2")
        A("v_readfirstlane_b32 s3, v0")
        A("s_and_b32 s4, s2, 7                        ; g")
        A("s_lshr_b32 s5, s2, 3                       ; s")
        A("v_and_b32 v0, 63, v0")
        A("s_lshr_b32 s3, s3, 6                       ; wave")
        A("s_lshl_b32 s100, s4, 3\ns_add_u32 s100, s100, s5\ns_cmp_lt_u32 s5, 8\ns_cselect_b32 s100, s100, 63")
        A(f"s_mov_b32 s18, {0x200000 if self.stamps else WS_SIZE}")
        A("s_mov_b32 s19, 0x20000")
        A("s_cmp_ge_u32 s3, 4")
        A("s_cbranch_scc1 L_helper")

    def streamer(self):
        A = self.A
        A("s_mov_b32 s10, 0x4000000\ns_mov_b32 s11, 0x20000\ns_mov_b32 s14, 0x4000000\ns_mov_b32 s15, 0x20000")
        A("v_bfe_u32 v1, v0, 2, 2\nv_lshlrev_b32 v1, 8, v1\nv_and_b32 v3, 3, v0\nv_lshl_add_u32 v1, v3, 4, v1")
        A("v_lshrrev_b32 v3, 4, v0\nv_lshl_add_u32 v1, v3, 6, v1\nv_lshlrev_b32 v2, 4, v0")
        A("s_lshl_b32 s56, s4, 23\ns_lshl_b32 s57, s3, 10\ns_add_u32 s56, s56, s57")
        NG_, NW, NP = self.NTG, self.NTW, self.NTP
        A(f"s_min_u32 s6, s5, 8\ns_mul_i32 s57, s6, {NG_*4096}\ns_add_u32 s56, s56, s57")
        A(f"s_sub_u32 s7, s5, s6\ns_min_u32 s6, s7, 16\ns_mul_i32 s57, s6, {NW*4096}\ns_add_u32 s56, s56, s57")
        A(f"s_sub_u32 s7, s7, s6\ns_mul_i32 s57, s7, {NP*4096}\ns_add_u32 s56, s56, s57")
        kinds = [(self.DN, NW), (self.DG, NG_), (self.DP, NP)]
        uniq = list(dict.fromkeys(kinds))
        if kinds[1] != kinds[0]: A(f"s_cmp_lt_u32 s5, 8\ns_cbranch_scc1 L_stream_{uniq.index(kinds[1])}")
        if kinds[2] != kinds[0]: A(f"s_cmp_ge_u32 s5, 24\ns_cbranch_scc1 L_stream_{uniq.index(kinds[2])}")
        for i, (d, nt) in enumerate(uniq):
            A(f"L_stream_{i}:")
            self.stream_body(d, nt, i == len(uniq) - 1)
        self.stream_tail()

    def stream_body(self, sched, NT, islast):
        A = self.A
        RING = self.RING
        R0 = 256 - 4 * RING
        assert R0 >= 64
        NB = -(-NT // 4)
        rem = NT % 4
        NL = 2 * NT
        S0, VFL, VONE, VFG, D0, X0, X1, VM, VL, VF, VT, VT2, VRD, M4 = 8, 25, 26, 27, 28, 44, 45, 46, 47, 48, 49, 50, 51, 52
        ACC0, ACC1 = 56, 60
        AB, TLO, THI = 28, 36, 37
        assert NB <= 17
        slot = lambda n: R0 + 4 * (n % RING)
        A("s_mov_b32 s57, s56")
        A("s_waitcnt lgkmcnt(0)")

        def depth(n):
            d = sched[0][1]
            for n0, dd in sched:
                if n >= (n0 if n0 >= 0 else NL + n0):
                    d = dd
            return d
        st = {"landed": -1}
        self.stamp(0, True)

        def load(n):
            d = depth(n)
            if n - d > st["landed"]:
                A(f"s_waitcnt vmcnt({d-1})")
                st["landed"] = n - d
            t = n % NT
            va, srd, so = ("v1", "s[8:11]", "s56") if n < NT else ("v2", "s[12:15]", "s57")
            A(f"buffer_load_dwordx4 {vr(slot(n),4)}, {va}, {srd}, {so} offen {self.pol}")
            if t + 1 < NT: A(f"s_add_u32 {so}, {so}, 4096")
            if n == depth(0) - 1:
                A(f"v_mov_b32 v{VFL}, {FL}\nv_mov_b32 v{VONE}, 1")
                A(f"s_mov_b32 s58, {SCALE}\ns_mov_b32 s59, {LOG2E}\ns_mov_b32 s60, {HIMASK}")
                A(f"v_and_b32 v3, 3, v0\nv_lshlrev_b32 v3, 8, v3\nv_bfe_u32 v4, v0, 2, 2\nv_lshl_add_u32 v3, v4, 4, v3")
                A(f"v_lshrrev_b32 v4, 4, v0\nv_lshl_add_u32 v3, v4, 6, v3\nv_add_u32 v3, {QV}, v3")
                A("s_barrier")
            if n == self.n_early:
                self.flag_add(VFL, VONE, F_EARLY)
            if n == NL - self.mid_back:
                self.flag_add(VFL, VONE, F_MID)
            if n == NL - self.a_back:
                self.flag_add(VFL, VONE, F_A)
            if n == NL - self.p_back:
                self.flag_add(VFL, VONE, F_P)

        def qsync():
            A("; q (four heads) as B operand, and whether the group shares a die")
            self.flagged(VFL, VFG, F_Q, 1, ["ds_read_b128 v[4:7], v3", f"ds_read_b32 v{VT}, v{VFL} offset:{F_LOC}"])
            A(f"s_waitcnt lgkmcnt(0)\nv_readfirstlane_b32 s63, v{VT}")

        def qk(i):
            nt = rem if (rem and i == NB - 1) else 4
            for j in range(nt):
                A(f"v_mfma_f32_16x16x32_bf16 {vr(D0+4*j,4)}, {vr(slot(4*i+j),4)}, v[4:7], 0")
            d = lambda j, b: D0 + 4 * j + b
            dp = lambda dst, s0, s1, ror, bm: A(f"v_add_f32_dpp v{dst}, v{s0}, v{s1} row_ror:{ror} row_mask:0xf bank_mask:{bm:#x}")
            dp(X0, d(0, 1), d(0, 0), 12, 1)
            dp(X1, d(2, 1), d(2, 0), 12, 1)
            dp(X0, d(1, 0), d(1, 1), 4, 2)
            dp(X1, d(3, 0), d(3, 1), 4, 2)
            dp(X0, d(0, 3), d(0, 2), 12, 4)
            dp(X1, d(2, 3), d(2, 2), 12, 4)
            dp(X0, d(1, 2), d(1, 3), 4, 8)
            dp(X1, d(3, 2), d(3, 3), 4, 8)
            dp(S0 + i, X0, X0, 8, 3)
            dp(S0 + i, X1, X1, 8, 12)
            if nt < 4:
                A(f"v_mov_b32 v{VT}, 0xff800000")
                A(f"v_mov_b32_dpp v{S0+i}, v{VT} quad_perm:[0,1,2,3] row_mask:0xf bank_mask:{(0xf << nt) & 0xf:#x}")

        def rnd(i):
            a, b = S0 + i, S0 + min(i + 1, NB - 1)
            A(f"v_cvt_pk_bf16_f32 v{VT}, v{a}, v{b}")
            if a != b: A(f"v_lshlrev_b32 v{a}, 16, v{VT}")
            A(f"v_and_b32 v{b}, s60, v{VT}")
            if a != b: A(f"v_mul_f32 v{a}, s58, v{a}")
            A(f"v_mul_f32 v{b}, s58, v{b}")
            A(f"v_cvt_pk_bf16_f32 v{VT}, v{a}, v{b}")
            if a != b: A(f"v_lshlrev_b32 v{a}, 16, v{VT}")
            A(f"v_and_b32 v{b}, s60, v{VT}")
            if i == 0:
                A(f"v_max_f32 v{VM}, v{a}, v{b}")
            else:
                A(f"v_max3_f32 v{VM}, v{VM}, v{a}, v{b}")

        def sm_max():
            A("; maximum over this wave's keys")
            self.allred("v_max_f32", [VM], [VT], rors=(4, 8))
            A(f"v_mul_f32 v{VT2}, s59, v{VM}")

        def sm_exp(lo, hi):
            for i in range(lo, hi):
                A(f"v_fma_f32 v{S0+i}, v{S0+i}, s59, -v{VT2}")
            for i in range(lo, hi):
                A(f"v_exp_f32 v{S0+i}, v{S0+i}")
            for i in range(lo, hi):
                if i == 1:
                    A(f"v_add_f32 v{VL}, v{S0}, v{S0+1}")
                elif i > 1:
                    A(f"v_add_f32 v{VL}, v{VL}, v{S0+i}")

        def sm_sum():
            self.allred("v_add_f32", [VL], [VT], rors=(4, 8))
            A(f"v_and_b32 v3, 3, v0\nv_lshlrev_b32 v3, 4, v3\nv_add_u32 v3, {STL}, v3")
            A(f"s_lshl_b32 s6, s3, 2\nv_add_u32 v4, s6, v3")
            A("s_mov_b64 exec, 15")
            A(f"ds_write_b32 v4, v{VM}\nds_write_b32 v4, v{VL} offset:64")
            self.flag_add(VFL, VONE, F_ST)

        def pv_setup():
            for r in list(range(AB, AB + 8)) + list(range(ACC0, ACC0 + 8)):
                A(f"v_mov_b32 v{r}, 0")
            A(f"s_lshl_b32 s6, s3, 10\ns_add_u32 s6, s6, {ACC}\nv_add_u32 v{VRD}, s6, v2")
            A(f"s_lshl_b32 s61, s4, 16\ns_lshl_b32 s7, s5, 11\ns_add_u32 s61, s61, s7\ns_lshl_b32 s7, s3, 10\ns_add_u32 s61, s61, s7\ns_add_u32 s61, s61, {OP_OFF}")

        def msync():
            A("; rescale this wave's exponentials to the maximum of the workgroup")
            self.flagged(VFL, VFG, F_ST, 4, [f"ds_read_b128 {vr(M4,4)}, v3"])
            A("s_waitcnt lgkmcnt(0)")
            A(f"v_max3_f32 v{VF}, v{M4}, v{M4+1}, v{M4+2}\nv_max_f32 v{VF}, v{VF}, v{M4+3}")
            A(f"v_sub_f32 v{VF}, v{VM}, v{VF}\nv_mul_f32 v{VF}, s59, v{VF}\nv_exp_f32 v{VF}, v{VF}")
            A(f"s_lshl_b32 s6, s3, 11\ns_add_u32 s6, s6, {ACC}\nv_add_u32 v3, s6, v2")

        def tcalc(i):
            A(f"v_mul_f32 v{VT}, v{S0+i}, v{VF}")
            A(f"v_cvt_pk_bf16_f32 v{TLO}, v{VT}, 0\nv_cvt_pk_bf16_f32 v{THI}, 0, v{VT}")

        def mv(dst, src, dbank, j):
            rot = 4 * ((dbank - j) & 3)
            ctl = f"row_ror:{rot}" if rot else "quad_perm:[0,1,2,3]"
            A(f"v_mov_b32_dpp v{dst}, v{src} {ctl} row_mask:0xf bank_mask:{1<<dbank:#x}")

        abuf = lambda t: AB + 2 * (t % 4)

        def prep(ts):
            for t in ts:
                mv(abuf(t), TLO, 0, t % 4)
                mv(abuf(t) + 1, TLO, 2, t % 4)
            for t in ts:
                mv(abuf(t), THI, 1, t % 4)
                mv(abuf(t) + 1, THI, 3, t % 4)

        def pv(t):
            s = slot(NT + t)
            A(f"v_mfma_f32_16x16x16_bf16 {vr(ACC0,4)}, {vr(abuf(t),2)}, {vr(s,2)}, {vr(ACC0,4)}")
            A(f"v_mfma_f32_16x16x16_bf16 {vr(ACC1,4)}, {vr(abuf(t),2)}, {vr(s+2,2)}, {vr(ACC1,4)}")

        KB = float(self.kbudget)
        items = [(RING - 1 - depth(RING - 1), qsync, 0.5, -1, 0)]
        for i in range(NB):
            lt = min(4 * i + 3, NT - 1)
            items.append((lt, (lambda i=i: qk(i)), 2, lt, 0))
            if i % 2 == 1 or i == NB - 1:
                items.append((-1, (lambda i=i: rnd(i - (i % 2))), 0.5, -1, 0))
        h = NB // 2
        items += [(-1, sm_max, 1.5, -1, 0), (-1, lambda: sm_exp(0, h), 2, -1, 0), (-1, lambda: sm_exp(h, NB), 2, -1, 0),
                  (-1, sm_sum, 2, -1, 0), (-1, pv_setup, 2, -1, 0), (-1, msync, 1, -1, self.stdelay)]
        for i in range(NB):
            items.append((-1, (lambda i=i: tcalc(i)), 0, -1, 0))
            for u in (2 * i, 2 * i + 1):
                ts = [t for t in (2 * u, 2 * u + 1) if t < NT]
                if not ts: continue
                items.append((-1, (lambda ts=ts: prep(ts)), 0, -1, 0))
                for t in ts:
                    items.append((NT + t, (lambda t=t: pv(t)), KB / self.pvrate, NT + t, 0))
        pos, freed, lastn = 0, -1, 0
        for n in range(NL):
            while n - RING > freed:
                need, emit, cost, fr, dl = items[pos]
                assert need <= st["landed"], (n, need)
                emit(); pos += 1; freed = max(freed, fr); lastn = n
            load(n)
            budget = KB
            while pos < len(items) and items[pos][0] <= st["landed"] and (budget > 0 or items[pos][2] == 0) and n >= lastn + items[pos][4]:
                need, emit, cost, fr, dl = items[pos]
                emit(); pos += 1; budget -= cost; freed = max(freed, fr); lastn = n
        while pos < len(items):
            need, emit, cost, fr, dl = items[pos]
            if need > st["landed"]:
                A(f"s_waitcnt vmcnt({NL-1-need})")
                st["landed"] = need
            emit(); pos += 1
        A("s_cmp_ge_u32 s3, 2")
        A(f"ds_write_b128 v3, {vr(ACC0,4)}\nds_write_b128 v3, {vr(ACC1,4)} offset:1024")
        self.flag_add(VFL, VONE, F_ACC)
        if not islast:
            A("s_branch L_stail")

    def stream_tail(self):
        A = self.A
        VFL, VONE, VRD = 25, 26, 51
        ex = "L_sexit"
        A("L_stail:")
        A("s_cbranch_scc1 L_noop")
        self.flagged(VFL, 27, F_ACC, 4, [f"ds_read_b128 {vr(8+4*sw,4)}, v{VRD} offset:{sw*2048}" for sw in range(4)])
        A("s_waitcnt lgkmcnt(2)")
        A("v_pk_add_f32 v[8:9], v[8:9], v[12:13]\nv_pk_add_f32 v[10:11], v[10:11], v[14:15]")
        A("s_waitcnt lgkmcnt(0)")
        A("v_pk_add_f32 v[16:17], v[16:17], v[20:21]\nv_pk_add_f32 v[18:19], v[18:19], v[22:23]")
        A("v_pk_add_f32 v[8:9], v[8:9], v[16:17]\nv_pk_add_f32 v[10:11], v[10:11], v[18:19]")
        self.store_alt(["buffer_store_dwordx4 v[8:11], v2, s[16:19], s61 offen"], "s63")
        self.flag_add(VFL, VONE, F_OPS)
        A("L_noop:")
        self.stamp(6, True)
        A(f"s_cmp_ge_u32 s100, 56\ns_cbranch_scc1 {ex}")
        SEL, XR, P2, vH2, vHVw, vH3, vFo, vFh = 40, 28, 64, 32, 33, 34, 35, 36
        A("s_load_dwordx2 s[20:21], s[0:1], 0\ns_load_dwordx2 s[44:45], s[0:1], 72")
        A("s_mov_b32 s22, 1024\ns_mov_b32 s23, 0x20000\ns_mov_b32 s46, 1024\ns_mov_b32 s47, 0x20000")
        A("v_lshrrev_b32 v12, 4, v0\nv_and_b32 v5, 15, v0\ns_lshl_b32 s6, s3, 8")
        A(f"v_lshlrev_b32 v6, 10, v12\nv_lshl_add_u32 v{vH2}, v5, 4, v6")
        A(f"v_and_b32 v6, 1, v12\nv_lshlrev_b32 v6, 3, v6\nv_lshl_add_u32 v6, v5, 4, v6\nv_add_u32 v13, s6, v6\nv_add_u32 v{vHVw}, {HV}, v13")
        A(f"s_add_u32 s64, s6, {Y_OFF}")
        for t in range(1, 8):
            A(f"s_add_u32 s{64+t}, s64, {t*4096}")
        A("v_and_b32 v6, 1, v5\nv_lshlrev_b32 v6, 4, v6\nv_mov_b32 v7, 0x3f80\nv_lshlrev_b32 v6, v6, v7\nv_lshrrev_b32 v7, 1, v5")
        for q in range(4):
            A(f"v_cmp_eq_u32 vcc, {q}, v7\nv_cndmask_b32 v{SEL+q}, 0, v6, vcc")
        A(f"v_lshrrev_b32 v6, 3, v0\nv_lshlrev_b32 v6, 11, v6\nv_and_b32 v7, 7, v0\nv_lshl_add_u32 v{vH3}, v7, 4, v6")
        A("s_mul_i32 s101, s4, 3\ns_add_u32 s101, s101, s5\ns_cmp_lt_u32 s5, 3\ns_cselect_b32 s101, s101, 63")
        A("s_and_b32 s72, s101, 15")
        A(f"s_lshl_b32 s6, s72, 6\nv_lshlrev_b32 v6, 3, v7\nv_lshl_add_u32 v6, v12, 1, v6\nv_add_u32 v{vFo}, s6, v6\nv_add_u32 v{vFh}, {HV}, v{vFo}")
        A(f"s_lshl_b32 s72, s72, 7\ns_add_u32 s72, s72, {Z_OFF}")
        A("s_waitcnt lgkmcnt(0)")
        A("buffer_load_dwordx2 v[8:9], v13, s[20:23], 0 offen")
        A("buffer_load_dword v10, v13, s[44:47], 0 offen")
        self.flagged(VFL, 4, {"gl": F_GL, "g2": F_G2}[self.h2on], 4, slp=1)
        if self.d2: A(f"s_sleep {self.d2}")
        h2load = lambda t: A(f"buffer_load_dwordx4 {vr(P2+4*t,4)}, v{vH2}, s[16:19], s{64+t} offen sc1")
        for t in range(8):
            h2load(t)
        A("s_waitcnt vmcnt(8)")
        A(f"v_lshlrev_b32 v{XR}, 16, v8\nv_and_b32 v{XR+1}, s60, v8\nv_lshlrev_b32 v{XR+2}, 16, v9\nv_and_b32 v{XR+3}, s60, v9")
        lp, out = self.lab("h2"), self.lab("h2ok")
        A("s_mov_b32 s7, 0")
        A(f"{lp}:")
        A("s_waitcnt vmcnt(0)")
        for t in range(8):
            A(f"v_mfma_f32_16x16x32_bf16 v[8:11], {vr(SEL,4)}, {vr(P2+4*t,4)}, {'0' if t == 0 else 'v[8:11]'}")
        A("v_cmp_u_f32 vcc, v8, v9\nv_cmp_u_f32 s[78:79], v10, v11")
        A("s_or_b64 vcc, vcc, s[78:79]")
        A(f"s_cbranch_scc0 {out}")
        self.spin_guard(out)
        if self.b2: A(f"s_sleep {self.b2}")
        self.reload([P2 + 4 * t for t in range(8)], h2load)
        A(f"s_branch {lp}")
        A(f"{out}:")
        if self.stamps == 1: A("s_mov_b32 s84, s7")
        self.stamp(1)
        A(f"v_pk_add_f32 v[8:9], v[8:9], {vr(XR,2)}\nv_pk_add_f32 v[10:11], v[10:11], {vr(XR+2,2)}")
        A("v_cvt_pk_bf16_f32 v4, v8, v9\nv_cvt_pk_bf16_f32 v5, v10, v11")
        A("s_mov_b64 exec, 0xffffffff")
        A(f"ds_write_b64 v{vHVw}, v[4:5]")
        A("s_mov_b64 exec, -1")
        A("s_waitcnt lgkmcnt(0)")
        A("s_barrier")
        A(f"s_cmp_ge_u32 s101, 16\ns_cbranch_scc1 {ex}\ns_cmp_lg_u32 s3, {self.fw}\ns_cbranch_scc1 {ex}")
        A(f"ds_read_u16 v12, v{vFh}")
        for t in range(1, 7):
            A(f"s_add_u32 s{64+t}, s72, {t*16384}")
        A("s_mov_b32 s64, s72")
        A("s_waitcnt lgkmcnt(0)")
        A("v_lshlrev_b32 v12, 16, v12")
        A("s_barrier")
        if self.d3: A(f"s_sleep {self.d3}")
        h3load = lambda t: A(f"buffer_load_dwordx4 {vr(P2+4*t,4)}, v{vH3}, s[16:19], s{64+t} offen sc1")
        for t in range(7):
            h3load(t)
        lp, out = self.lab("h3"), self.lab("h3ok")
        A("s_mov_b32 s7, 0")
        A(f"{lp}:")
        A("s_waitcnt vmcnt(0)")
        for dst, a, b in ((4, P2, P2 + 4), (8, P2 + 8, P2 + 12), (16, P2 + 16, P2 + 20), (4, 4, P2 + 24), (8, 8, 16), (4, 4, 8)):
            for k in (0, 2):
                A(f"v_pk_add_f32 {vr(dst+k,2)}, {vr(a+k,2)}, {vr(b+k,2)}")
        A("v_cmp_u_f32 vcc, v4, v5\nv_cmp_u_f32 s[78:79], v6, v7")
        A("s_or_b64 vcc, vcc, s[78:79]")
        A(f"s_cbranch_scc0 {out}")
        self.spin_guard(out)
        if self.b3: A(f"s_sleep {self.b3}")
        self.reload([P2 + 4 * t for t in range(7)], h3load)
        A(f"s_branch {lp}")
        A(f"{out}:")
        if self.stamps == 1: A("s_mov_b32 s85, s7")
        self.stamp(2)
        self.lane_sum4([4])
        A("v_add_f32 v4, v12, v4\nv_cvt_pk_bf16_f32 v4, v4, v4")
        A("s_mov_b32 exec_lo, 0x00ff00ff\ns_mov_b32 exec_hi, 0x00ff00ff")
        A(f"buffer_store_short v4, v{vFo}, s[44:47], 0 offen")
        if self.stamps:
            A("s_mov_b64 exec, -1")
            self.stamp(3, True)
        A(f"{ex}:")
        if self.stamps:
            A(f"s_cmp_lg_u32 s3, {self.fw}\ns_cbranch_scc1 L_end")
            self.stamp_store(0, 7)
        A("s_endpgm")

    VFL = 245

    def helper(self):
        A = self.A
        A("L_helper:")
        A("s_load_dwordx2 s[20:21], s[0:1], 0         ; x")
        A("s_load_dwordx2 s[24:25], s[0:1], 24        ; wq")
        A("s_load_dwordx2 s[48:49], s[0:1], 80        ; debug")
        A("s_load_dwordx2 s[28:29], s[0:1], 32        ; wo")
        A("s_sub_u32 s3, s3, 4")
        A("s_mov_b32 s22, 1024\ns_mov_b32 s23, 0x20000\ns_mov_b32 s26, 0x400000\ns_mov_b32 s27, 0x20000")
        A("s_mov_b32 s50, 256\ns_mov_b32 s51, 0x20000\ns_mov_b32 s30, 0x400000\ns_mov_b32 s31, 0x20000")
        A("v_lshlrev_b32 v2, 4, v0")
        A(f"s_mov_b32 s59, {LOG2E}\ns_mov_b32 s60, {HIMASK}")
        A("s_lshr_b32 s62, s5, 3\ns_and_b32 s63, s5, 7")
        A("s_waitcnt lgkmcnt(0)")
        A("s_load_dwordx2 s[32:33], s[0:1], 48        ; w_gate")
        A("s_load_dwordx2 s[36:37], s[0:1], 56        ; w_up")
        A("s_load_dwordx2 s[40:41], s[0:1], 64        ; w_down")
        A("s_mov_b32 s34, 0x1c0000\ns_mov_b32 s35, 0x20000\ns_mov_b32 s38, 0x1c0000\ns_mov_b32 s39, 0x20000")
        A("s_mov_b32 s42, 0x1c0000\ns_mov_b32 s43, 0x20000")
        A(f"s_lshl_b32 s6, s4, 5\ns_add_u32 s6, s6, s5\ns_lshl_b32 s64, s6, 5\ns_add_u32 s64, s64, {ST_OFF}")
        A(f"s_lshl_b32 s66, s6, 11\ns_add_u32 s66, s66, {OP_OFF}")
        A(f"s_lshl_b32 s7, s4, 2\ns_add_u32 s7, s7, s62\ns_lshl_b32 s7, s7, 11\ns_lshl_b32 s6, s63, 8\ns_add_u32 s58, s7, s6")
        A(f"s_add_u32 s58, s58, {QP_OFF}\ns_lshl_b32 s65, s4, 5")
        A(f"s_sub_u32 s12, s5, 8\ns_lshl_b32 s13, s4, 4\ns_add_u32 s13, s13, s12\ns_lshl_b32 s13, s13, 8\ns_add_u32 s13, s13, {Y_OFF}")
        A("s_getreg_b32 s6, hwreg(HW_REG_XCC_ID, 0, 4)")
        A("s_mul_i32 s7, s6, s6\ns_lshl_b32 s7, s7, 18\ns_lshl_b32 s6, s6, 8\ns_or_b32 s6, s6, s7\ns_or_b32 s14, s6, 1")
        A(f"v_mov_b32 v{self.VFL}, {FL}")
        A("s_cmp_lg_u32 s3, 0")
        A("s_cbranch_scc1 L_h123")
        self.h0()
        A("s_branch L_hjoin")
        self.h123()
        A("L_hjoin:")
        self.flagged(self.VFL, 4, F_W, 1, slp=4)
        A("v_lshrrev_b32 v12, 4, v0\nv_bfe_u32 v13, v0, 2, 2\nv_and_b32 v14, 3, v0\nv_lshl_add_u32 v15, v12, 3, v13\nv_mov_b32 v240, 1")
        A("s_cmp_lt_u32 s5, 8\ns_cbranch_scc1 L_gpath\ns_cmp_ge_u32 s5, 24\ns_cbranch_scc1 L_ppath")
        self.wpath()
        self.ppath()
        self.gpath()

    def h0(self):
        A = self.A
        self.stamp(0)
        A("buffer_load_dwordx4 v[4:7], v2, s[20:23], 0 offen")
        A("v_lshrrev_b32 v3, 3, v0\nv_lshlrev_b32 v3, 13, v3\nv_and_b32 v1, 7, v0\nv_lshl_add_u32 v3, v1, 4, v3")
        A("s_lshl_b32 s6, s62, 20\ns_lshl_b32 s7, s4, 10\ns_add_u32 s6, s6, s7\ns_lshl_b32 s7, s63, 7\ns_add_u32 s6, s6, s7")
        for t in range(16):
            A(f"s_mov_b32 m0, {WQ + t*1024}")
            A(f"buffer_load_dwordx4 v3, s[24:27], s6 offen {self.wpol} lds")
            if t < 15:
                A("s_add_u32 s6, s6, 0x10000")
            if t == 3:
                A("s_barrier")
        A("s_waitcnt vmcnt(16)")
        for k in range(4):
            A(f"v_lshlrev_b32 v{12+2*k}, 16, v{4+k}\nv_and_b32 v{13+2*k}, s60, v{4+k}")
        A("v_add_f32 v20, v12, v13\nv_add_f32 v21, v14, v15\nv_add_f32 v22, v16, v17\nv_add_f32 v23, v18, v19")
        A("v_add_f32 v20, v20, v21\nv_add_f32 v22, v22, v23\nv_add_f32 v20, v20, v22")
        self.allred("v_add_f32", [20], [21])
        A(f"v_mul_f32 v20, {INV512}, v20")
        for k in range(8):
            A(f"v_sub_f32 v{24+k}, v{12+k}, v20")
        A("v_mul_f32 v22, v24, v24")
        for k in range(1, 8):
            A(f"v_fmac_f32 v22, v{24+k}, v{24+k}")
        self.allred("v_add_f32", [22], [21])
        A(f"v_mul_f32 v22, {INV512}, v22")
        self.ln_scalars(20, 22, 21)
        for k in range(4):
            a, b = 12 + 2 * k, 13 + 2 * k
            A(f"v_sub_f32 v{a}, v{a}, v20\nv_sub_f32 v{b}, v{b}, v20")
            A(f"v_cvt_pk_bf16_f32 v21, v{a}, v{b}")
            A(f"v_lshlrev_b32 v{a}, 16, v21\nv_and_b32 v{b}, s60, v21")
            A(f"v_mul_f32 v{a}, v{a}, v22\nv_mul_f32 v{b}, v{b}, v22")
            A(f"v_cvt_pk_bf16_f32 v{4+k}, v{a}, v{b}")
        A(f"v_add_u32 v1, {XN}, v2")
        A("ds_write_b128 v1, v[4:7]")
        A("v_lshrrev_b32 v12, 4, v0\nv_bfe_u32 v13, v0, 2, 2\nv_and_b32 v14, 3, v0")
        A("v_lshl_add_u32 v15, v12, 3, v13\nv_lshlrev_b32 v15, 7, v15\nv_lshl_add_u32 v15, v14, 3, v15")
        A(f"s_lshl_b32 s6, s62, 8\ns_add_u32 s6, s6, {XN}\nv_lshlrev_b32 v17, 4, v12\nv_add_u32 v16, s6, v17")
        A("s_waitcnt lgkmcnt(0)")
        for m in range(4):
            A(f"ds_read_b128 {vr(128+4*m,4)}, v16 offset:{m*64}")
        A("v_mov_b32 v1, 0")
        A("s_waitcnt vmcnt(0)")
        for m in range(4):
            base = 64 + 16 * m
            for ct in range(4):
                A(f"ds_read_b64_tr_b16 {vr(base+4*ct,2)}, v15 offset:{WQ + m*4096 + ct*32}")
                A(f"ds_read_b64_tr_b16 {vr(base+4*ct+2,2)}, v15 offset:{WQ + m*4096 + ct*32 + 512}")
            A("s_waitcnt lgkmcnt(0)")
            for ct in range(4):
                c = "0" if m == 0 else vr(32 + 4 * ct, 4)
                A(f"v_mfma_f32_16x16x32_bf16 {vr(32+4*ct,4)}, {vr(base+4*ct,4)}, {vr(128+4*m,4)}, {c}")
        self.flagged(self.VFL, 4, F_EARLY, 1, slp=2)
        self.cnt_wait("s65", "v1")
        self.stamp(3)
        A("v_readfirstlane_b32 s6, v4\ns_lshl_b32 s7, s14, 5\ns_cmp_eq_u32 s6, s7\ns_cselect_b32 s15, 1, 0")
        if not self.local: A("s_mov_b32 s15, 0")
        A(f"v_mov_b32 v5, s15\nds_write_b32 v{self.VFL}, v5 offset:{F_LOC}")
        A("s_mov_b32 exec_lo, 0x00010001\ns_mov_b32 exec_hi, 0x00010001")
        self.store_alt([f"buffer_store_dwordx4 {vr(32+4*ct,4)}, v17, s[16:19], s58 offen offset:{ct*64}" for ct in range(4)], "s15")
        A("s_mov_b64 exec, -1")
        if self.dq: A(f"s_sleep {self.dq}")
        A(f"s_lshl_b32 s6, s4, 13\ns_add_u32 s6, s6, {QP_OFF}\ns_add_u32 s66, s6, 4096")
        lp, out = self.lab("qpoll"), self.lab("qok")
        A("s_mov_b32 s7, 0")
        A(f"{lp}:")
        for rb in range(4):
            for hf in range(2):
                A(f"buffer_load_dwordx4 {vr(64+8*rb+4*hf,4)}, v2, s[16:19], {'s6' if rb < 2 else 's66'} offen offset:{(rb&1)*2048+hf*1024} sc1")
        self.spin_guard(out)
        A("s_waitcnt vmcnt(0)")
        for k in range(0, 8, 2):
            A(f"v_pk_add_f32 {vr(64+k,2)}, {vr(64+k,2)}, {vr(72+k,2)}\nv_pk_add_f32 {vr(80+k,2)}, {vr(80+k,2)}, {vr(88+k,2)}")
        for k in range(0, 8, 2):
            A(f"v_pk_add_f32 {vr(64+k,2)}, {vr(64+k,2)}, {vr(80+k,2)}")
        A("v_cmp_u_f32 vcc, v64, v65\nv_cmp_u_f32 s[68:69], v66, v67\nv_cmp_u_f32 s[70:71], v68, v69\nv_cmp_u_f32 s[72:73], v70, v71")
        A("s_or_b64 vcc, vcc, s[68:69]\ns_or_b64 s[70:71], s[70:71], s[72:73]\ns_or_b64 vcc, vcc, s[70:71]")
        A(f"s_cbranch_scc0 {out}")
        A(f"s_sleep {self.slp}")
        A(f"s_branch {lp}")
        A(f"{out}:")
        A("s_waitcnt vmcnt(0)")
        A("v_cvt_pk_bf16_f32 v4, v64, v65\nv_cvt_pk_bf16_f32 v5, v66, v67\nv_cvt_pk_bf16_f32 v6, v68, v69\nv_cvt_pk_bf16_f32 v7, v70, v71")
        A(f"v_lshlrev_b32 v1, 3, v0\nv_add_u32 v1, {QV}, v1\nv_mov_b32 v8, 1")
        A("ds_write_b64 v1, v[4:5]\nds_write_b64 v1, v[6:7] offset:512")
        self.flag_add(self.VFL, 8, F_Q)
        self.stamp(13)
        A(f"v_and_b32 v1, 3, v0\nv_lshlrev_b32 v5, 4, v1\nv_add_u32 v5, {STL}, v5\nv_lshlrev_b32 v1, 3, v1")
        self.flagged(self.VFL, 4, F_ST, 4, slp=4)
        A("ds_read_b128 v[8:11], v5\nds_read_b128 v[12:15], v5 offset:64")
        A("s_waitcnt lgkmcnt(0)")
        A("v_max3_f32 v16, v8, v9, v10\nv_max_f32 v16, v16, v11")
        for k in range(4):
            A(f"v_sub_f32 v{8+k}, v{8+k}, v16")
        for k in range(4):
            A(f"v_mul_f32 v{8+k}, s59, v{8+k}")
        for k in range(4):
            A(f"v_exp_f32 v{8+k}, v{8+k}")
        A("v_mul_f32 v17, v8, v12\nv_fmac_f32 v17, v9, v13\nv_fmac_f32 v17, v10, v14\nv_fmac_f32 v17, v11, v15")
        A("s_mov_b64 exec, 15")
        self.store_alt(["buffer_store_dwordx2 v[16:17], v1, s[16:19], s64 offen"], "s15")
        A("s_mov_b64 exec, -1")
        self.flagged(self.VFL, 4, F_MID, 1, slp=4)
        A("v_and_b32 v1, 7, v0\nv_lshlrev_b32 v1, 5, v1")
        self.cnt_wait("0", "v1")
        sk = self.lab("now")
        A(f"v_mov_b32 v6, 1\ns_cmp_ge_u32 s12, 16\ns_cbranch_scc1 {sk}")
        A(f"s_lshl_b32 s6, s4, 10\ns_add_u32 s6, s6, {ST_OFF}")
        lp, out = self.lab("spoll"), self.lab("sok")
        A("s_mov_b32 s7, 0")
        A(f"{lp}:")
        A("buffer_load_dwordx4 v[8:11], v2, s[16:19], s6 offen sc1")
        self.spin_guard(out)
        A("s_waitcnt vmcnt(0)")
        A("v_cmp_u_f32 vcc, v8, v9\nv_cmp_u_f32 s[78:79], v10, v11")
        A("s_or_b64 vcc, vcc, s[78:79]")
        A(f"s_cbranch_scc0 {out}")
        A(f"s_sleep {self.slp}")
        A(f"s_branch {lp}")
        A(f"{out}:")
        A("s_waitcnt vmcnt(0)")
        A("v_mov_b32 v4, v8\nv_mov_b32 v5, v10")
        self.allred("v_max_f32", [4, 5], [12, 13], rors=("x2", 4, 8))
        A("v_sub_f32 v8, v8, v4\nv_sub_f32 v10, v10, v5\nv_mul_f32 v8, s59, v8\nv_mul_f32 v10, s59, v10")
        A("v_exp_f32 v8, v8\nv_exp_f32 v10, v10")
        A("v_mul_f32 v9, v8, v9\nv_mul_f32 v11, v10, v11")
        self.allred("v_add_f32", [9, 11], [12, 13], rors=("x2", 4, 8))
        A("v_rcp_f32 v9, v9\nv_rcp_f32 v11, v11")
        A(f"v_lshlrev_b32 v5, 3, v0\nv_add_u32 v5, {WT}, v5")
        A("v_mul_f32 v8, v8, v9\nv_mul_f32 v9, v10, v11")
        A("ds_write_b64 v5, v[8:9]")
        A(f"{sk}:")
        self.flag_add(self.VFL, 6, F_W)
        self.stamp(6)

    def h123(self):
        A = self.A
        A("L_h123:")
        l2, l3, dn = self.lab("h2"), self.lab("h3"), self.lab("hd")
        A("v_mov_b32 v4, 0\nv_mov_b32 v5, 0\nv_mov_b32 v6, 0\nv_mov_b32 v7, 0")
        A(f"s_cmp_eq_u32 s3, 2\ns_cbranch_scc1 {l2}\ns_cmp_eq_u32 s3, 3\ns_cbranch_scc1 {l3}")
        A("v_mov_b32 v8, -1\nv_mov_b32 v9, -1\nv_mov_b32 v10, -1\nv_mov_b32 v11, -1")
        A("buffer_store_dwordx4 v[8:11], v2, s[16:19], s66 offen sc1")
        A("buffer_store_dwordx4 v[8:11], v2, s[16:19], s66 offen offset:1024 sc1")
        A("s_mov_b64 exec, 3")
        A("buffer_store_dwordx4 v[8:11], v2, s[16:19], s64 offen sc1")
        A("s_mov_b64 exec, 0xffff")
        A("buffer_store_dwordx4 v[8:11], v2, s[16:19], s58 offen sc1")
        a, b = self.lab("cz"), self.lab("cd")
        A(f"s_cmp_lt_u32 s5, 8\ns_cbranch_scc1 {a}")
        A(f"s_cmp_ge_u32 s5, 24\ns_cbranch_scc1 {b}")
        A(f"buffer_store_dwordx4 v[8:11], v2, s[16:19], s13 offen sc1\ns_branch {b}")
        A(f"{a}:\ns_cmp_ge_u32 s100, 56\ns_cbranch_scc1 {b}")
        A(f"s_mov_b64 exec, -1\ns_lshl_b32 s7, s100, 11\ns_add_u32 s7, s7, {Z_OFF}")
        A("buffer_store_dwordx4 v[8:11], v2, s[16:19], s7 offen sc1")
        A("buffer_store_dwordx4 v[8:11], v2, s[16:19], s7 offen offset:1024 sc1")
        A(f"{b}:")
        A("s_mov_b64 exec, -1\nv_mov_b32 v6, s14")
        A("s_barrier")
        A("s_waitcnt vmcnt(0)")
        A("s_mov_b64 exec, 1")
        A("buffer_atomic_add v6, v4, s[48:51], s65 offen sc1")
        A("s_mov_b64 exec, -1")
        A(f"s_branch {dn}")
        A(f"{l2}:")
        for o in (0, 16, 32, 48):
            A(f"ds_write_b128 v{self.VFL}, v[4:7] offset:{o}")
        A("s_waitcnt lgkmcnt(0)")
        A("s_barrier")
        A("s_getpc_b64 s[6:7]")
        A("L_pc_anchor:")
        A(f"s_sub_u32 s6, s6, L_pc_anchor-{KN}\ns_subb_u32 s7, s7, 0")
        A("s_lshl_b32 s68, s5, 10\nv_lshl_add_u32 v1, v0, 6, s68")
        A(f"v_min_u32 v4, L_code_end-{KN}-4, v1")
        A("s_mov_b64 exec, 0xffff")
        A("global_load_dword v8, v4, s[6:7]")
        A("s_mov_b64 exec, -1")
        A(f"s_branch {dn}")
        A(f"{l3}:")
        A(f"v_add_u32 v1, {ZR}, v2")
        A("ds_write_b128 v1, v[4:7]\nds_write_b128 v1, v[4:7] offset:512")
        self.touch_at = len(self.L)
        A(f"v_mov_b32 v8, 0x3f803f80\nv_mov_b32 v9, v8\nv_mov_b32 v10, v8\nv_mov_b32 v11, v8\nv_add_u32 v1, {ONES}, v2\nds_write_b128 v1, v[8:11]")
        A("s_barrier")
        if self.touch:
            A("; address translations of the weights that are first read at the end of the stream (values unused)")
            self.flagged(self.VFL, 12, F_EARLY if self.touch is True else F_ST, 1, slp=8)
            A("s_lshl_b32 s6, s4, 19\ns_mov_b64 exec, 1")
            A("buffer_load_dword v8, v4, s[28:31], s6 offen nt")
            A("buffer_load_dword v9, v4, s[32:35], 0 offen nt\nbuffer_load_dword v10, v4, s[36:39], 0 offen nt\nbuffer_load_dword v11, v4, s[40:43], 0 offen nt")
            A("s_mov_b64 exec, -1")
        A(f"{dn}:")
        A("s_waitcnt vmcnt(0) lgkmcnt(0)")

    def wpath(self):
        A = self.A
        VFL, vONE = self.VFL, 240
        WOA, PA, WTR, SA, DD = 16, 48, 64, 80, 96
        vH1, vYw, vYr, vYs, vPF, vWa, vWb = range(84, 91)
        TR = 128
        A(f"v_lshrrev_b32 v4, 3, v0\nv_lshlrev_b32 v6, 11, v4\nv_and_b32 v5, 7, v0\nv_lshl_add_u32 v{vH1}, v5, 4, v6")
        A(f"v_lshlrev_b32 v6, 4, v4\nv_add_u32 v6, {WT}, v6")
        for t in range(4):
            A(f"ds_read_b128 {vr(WTR+4*t,4)}, v6 offset:{t*128}")
        A("s_and_b32 s8, s12, 12\ns_add_u32 s8, s8, s3\ns_and_b32 s9, s12, 3")
        A(f"s_lshl_b32 s6, s4, 16\ns_add_u32 s6, s6, {OP_OFF}\ns_lshl_b32 s64, s8, 7\ns_add_u32 s64, s64, s6")
        for t in range(1, 4):
            A(f"s_add_u32 s{64+t}, s64, {t*0x4000}")
        A("s_lshl_b32 s72, s4, 19\ns_lshl_b32 s6, s9, 8\ns_add_u32 s72, s72, s6")
        A("s_and_b32 s6, s8, 1\ns_lshl_b32 s6, s6, 16\ns_add_u32 s72, s72, s6\ns_lshr_b32 s6, s8, 2\ns_lshl_b32 s6, s6, 11\ns_add_u32 s72, s72, s6")
        A("s_bfe_u32 s6, s8, 0x10001\ns_lshl_b32 s6, s6, 10\ns_add_u32 s72, s72, s6")
        A(f"v_and_b32 v5, 15, v0\nv_lshlrev_b32 v6, 4, v5\nv_lshlrev_b32 v7, 5, v12\nv_xor_b32 v6, v6, v7\nv_lshl_add_u32 v{vWa}, v12, 13, v6\nv_xor_b32 v{vWb}, 0x80, v{vWa}")
        A(f"s_lshl_b32 s74, s3, 13")
        A(f"v_and_b32 v6, 1, v12\nv_lshl_add_u32 v6, v6, 2, v13\nv_lshlrev_b32 v6, 5, v6\nv_lshl_add_u32 v6, v15, 8, v6\nv_lshl_add_u32 v6, v14, 3, v6\nv_add_u32 v{TR}, s74, v6")
        for ct in range(1, 8):
            A(f"v_xor_b32 v{TR+ct}, {ct*32}, v{TR}")
        A(f"s_lshl_b32 s6, s3, 9\ns_add_u32 s6, s6, {YL}")
        A(f"v_lshlrev_b32 v4, 4, v12\nv_add_u32 v{vYw}, s6, v4\nv_add_u32 v{vYr}, {YL}, v2\nv_lshlrev_b32 v{vYs}, 3, v0")
        if self.wil:
            A(f"v_and_b32 v4, 1, v0\nv_lshl_add_u32 v{vYw}, v4, 6, v{vYw}\ns_mov_b32 s22, 0xaaaaaaaa\ns_mov_b32 s23, 0xaaaaaaaa")
        A(f"v_lshlrev_b32 v{vPF}, 7, v0\ns_lshl_b32 s20, s4, 18\ns_lshl_b32 s6, s12, 14\ns_add_u32 s20, s20, s6\ns_lshl_b32 s6, s3, 12\ns_add_u32 s20, s20, s6")

        def h1load(t):
            A(f"buffer_load_dwordx4 {vr(PA+4*t,4)}, v{vH1}, s[16:19], s{64+t} offen sc1")

        self.flagged(VFL, 4, F_A, self.acnt, slp=1)
        self.stamp(7)
        for t in range(8):
            A(f"s_add_u32 m0, s74, {WO + t*1024}\ns_add_u32 s6, s72, {(t>>1)*131072 + (t&1)*32768}")
            A(f"buffer_load_dwordx4 v{vWb if t & 2 else vWa}, s[28:31], s6 offen {self.wpol} lds")

        def wotr():
            for ct in range(8):
                if ct in (5, 7): A("s_waitcnt lgkmcnt(8)")
                A(f"ds_read_b64_tr_b16 {vr(WOA+4*ct,2)}, v{TR+ct} offset:{WO}")
                A(f"ds_read_b64_tr_b16 {vr(WOA+4*ct+2,2)}, v{TR+ct} offset:{WO+1024}")
        if self.a_back > 4:
            A("s_waitcnt vmcnt(0)")
            self.stamp(5)
            wotr()
        self.flagged(VFL, 4, F_ACC, 4, slp=1)
        self.stamp(8)
        if self.d1: A(f"s_sleep {self.d1}")
        for t in range(4): h1load(t)
        if self.a_back <= 4:
            A("s_waitcnt vmcnt(4)")
            self.stamp(5)
            wotr()
        lp, out = self.lab("h1"), self.lab("h1ok")
        A("s_mov_b32 s7, 0")
        A(f"{lp}:")
        A("s_waitcnt vmcnt(0)")
        for t in range(4):
            for k in (0, 2):
                if t == 0:
                    A(f"v_pk_mul_f32 {vr(SA+k,2)}, {vr(PA+k,2)}, {vr(WTR+k,2)}")
                else:
                    A(f"v_pk_fma_f32 {vr(SA+k,2)}, {vr(PA+4*t+k,2)}, {vr(WTR+4*t+k,2)}, {vr(SA+k,2)}")
        A(f"v_cmp_u_f32 vcc, v{SA}, v{SA+1}\nv_cmp_u_f32 s[78:79], v{SA+2}, v{SA+3}")
        A("s_or_b64 vcc, vcc, s[78:79]")
        A(f"s_cbranch_scc0 {out}")
        self.spin_guard(out)
        if self.b1: A(f"s_sleep {self.b1}")
        self.reload([PA + 4 * t for t in range(4)], h1load)
        A(f"s_branch {lp}")
        A(f"{out}:")
        if self.stamps: A("s_mov_b32 s81, s7")
        self.stamp(9)
        self.lane_sum4([SA])
        A(f"v_mov_b32_dpp v{SA+1}, v{SA} row_ror:15 row_mask:0xf bank_mask:0xf")
        A(f"v_cvt_pk_bf16_f32 v{SA}, v{SA}, v{SA+1}")
        for k in range(4):
            A(f"v_mov_b32_dpp v{4+k}, v{SA} row_newbcast:{2*k} row_mask:0xf bank_mask:0xf")
        A("s_waitcnt lgkmcnt(0)")
        if self.wil:
            for k in range(4):
                A(f"v_cndmask_b32 v{8+k}, 0, v{4+k}, s[22:23]")
            for k in range(4):
                A(f"v_cndmask_b32 v{4+k}, v{4+k}, 0, s[22:23]")
            for ct in range(4):
                A(f"v_mfma_f32_16x16x32_bf16 {vr(DD+4*ct,4)}, {vr(WOA+8*ct+4,4)}, v[8:11], 0")
            for ct in range(4):
                A(f"v_mfma_f32_16x16x32_bf16 {vr(DD+4*ct,4)}, {vr(WOA+8*ct,4)}, v[4:7], {vr(DD+4*ct,4)}")
            A("s_mov_b32 exec_lo, 0x00030003\ns_mov_b32 exec_hi, 0x00030003")
            for ct in range(4):
                A(f"ds_write_b128 v{vYw}, {vr(DD+4*ct,4)} offset:{ct*128}")
        else:
            for ct in range(8):
                A(f"v_mfma_f32_16x16x32_bf16 {vr(DD+4*ct,4)}, {vr(WOA+4*ct,4)}, v[4:7], 0")
            A("s_mov_b32 exec_lo, 0x00010001\ns_mov_b32 exec_hi, 0x00010001")
            for ct in range(8):
                A(f"ds_write_b128 v{vYw}, {vr(DD+4*ct,4)} offset:{ct*64}")
        A(f"s_mov_b64 exec, 1\nds_add_u32 v{VFL}, v{vONE} offset:{F_Y}")
        A("s_cmp_lg_u32 s3, 0")
        A("s_cbranch_scc1 L_noy")
        A("s_mov_b64 exec, 0xffffffff")
        self.flagged(VFL, 8, F_Y, 4, [f"ds_read_b128 {vr(PA+4*k,4)}, v{vYr} offset:{k*512}" for k in range(4)])
        A("s_waitcnt lgkmcnt(2)")
        A(f"v_pk_add_f32 {vr(PA,2)}, {vr(PA,2)}, {vr(PA+4,2)}\nv_pk_add_f32 {vr(PA+2,2)}, {vr(PA+2,2)}, {vr(PA+6,2)}")
        A("s_waitcnt lgkmcnt(0)")
        A(f"v_pk_add_f32 {vr(PA+8,2)}, {vr(PA+8,2)}, {vr(PA+12,2)}\nv_pk_add_f32 {vr(PA+10,2)}, {vr(PA+10,2)}, {vr(PA+14,2)}")
        A(f"v_pk_add_f32 {vr(PA,2)}, {vr(PA,2)}, {vr(PA+8,2)}\nv_pk_add_f32 {vr(PA+2,2)}, {vr(PA+2,2)}, {vr(PA+10,2)}")
        A(f"v_cvt_pk_bf16_f32 v4, v{PA}, v{PA+1}\nv_cvt_pk_bf16_f32 v5, v{PA+2}, v{PA+3}")
        A(f"buffer_store_dwordx2 v[4:5], v{vYs}, s[16:19], s13 offen sc1")
        A("L_noy:")
        self.stamp(10)
        if self.wdpf:
            sk = self.lab("wp")
            A(f"s_cmp_eq_u32 s4, 7\ns_cbranch_scc1 {sk}\ns_mov_b64 exec, 0xffffffff")
            A(f"buffer_load_dword v254, v{vPF}, s[40:43], s20 offen {self.ppol}\n{sk}:")
        if self.stamps:
            A("s_mov_b64 exec, -1\ns_cmp_lg_u32 s3, 0\ns_cbranch_scc1 L_end")
            self.stamp_store(1, 16)
        A("s_endpgm")

    def ppath(self):
        A = self.A
        A("L_ppath:")
        dn = self.lab("pe")
        A(f"s_cmp_eq_u32 s4, 7\ns_cbranch_scc1 {dn}")
        A("s_movk_i32 s6, 3584\nv_lshrrev_b32 v6, 2, v0\nv_mul_lo_u32 v6, v6, s6\nv_lshl_add_u32 v6, v14, 7, v6\nv_lshlrev_b32 v7, 7, v0")
        A(f"s_sub_u32 s6, s5, 24\ns_lshl_b32 s6, s6, 2\ns_add_u32 s6, s6, s3\ns_mul_i32 s20, s6, {16*3584}\ns_lshl_b32 s7, s4, 9\ns_add_u32 s20, s20, s7")
        A("s_lshl_b32 s21, s4, 18\ns_lshl_b32 s6, s6, 13\ns_add_u32 s21, s21, s6")
        if self.psplit:
            self.flagged(self.VFL, 4, F_A, self.acnt, slp=1)
            if self.psplit < 64: A(f"s_lshr_b64 exec, -1, {64 - self.psplit}")
            A(f"buffer_load_dword v8, v6, s[32:35], s20 offen {self.ppol}")
            A("s_mov_b64 exec, -1")
        self.flagged(self.VFL, 4, *((F_P, self.acnt) if self.p_back else (F_OPS, 2)), slp=1)
        self.stamp(7)
        if self.psplit < 64:
            if self.psplit: A(f"s_lshl_b64 exec, -1, {self.psplit}")
            A(f"buffer_load_dword v8, v6, s[32:35], s20 offen {self.ppol}")
            A("s_mov_b64 exec, -1")
        A(f"buffer_load_dword v9, v6, s[36:39], s20 offen {self.ppol}")
        if not self.wdpf: A(f"buffer_load_dword v10, v7, s[40:43], s21 offen {self.ppol}")
        if self.stamps:
            A("s_waitcnt vmcnt(0)")
            self.stamp(14)
        A(f"{dn}:")
        if self.stamps:
            A("s_cmp_lg_u32 s3, 0\ns_cbranch_scc1 L_end")
            self.stamp_store(1, 16)
        A("s_endpgm")

    def gpath(self):
        A = self.A
        VFL, vONE = self.VFL, 240
        GB, WDA, P2, P1, T = 32, 96, 128, 192, 192
        vHVr, vHVs, vHHw, vHHr, vZs, vB1, vGg, vGu, vGT, vDT, vDv, vDw = range(228, 240)
        A("L_gpath:")
        if self.stamps:
            sk = self.lab("g7")
            A(f"s_cmp_lt_u32 s100, 56\ns_cbranch_scc1 {sk}\ns_cmp_lg_u32 s3, 0\ns_cbranch_scc1 L_end")
            self.stamp_store(1, 16)
            A(f"s_endpgm\n{sk}:")
        else:
            A("s_cmp_ge_u32 s100, 56\ns_cbranch_scc1 L_end")
        A("v_lshlrev_b32 v4, 4, v12\nv_and_b32 v5, 15, v0")
        A(f"v_add_u32 v7, {HV}, v4\nv_add_u32 v6, {ONES}, v4\nv_cmp_eq_u32 vcc, 1, v5\nv_cndmask_b32 v{vHVr}, v7, v6, vcc\nv_add_u32 v{vHVs}, {HV}, v2")
        A(f"s_lshl_b32 s6, s3, 4\ns_add_u32 s6, s6, {HH}\nv_lshl_add_u32 v{vHHw}, v5, 1, s6")
        A(f"v_lshl_add_u32 v{vZs}, v5, 6, v4")
        A(f"v_add_u32 v6, {ZR+64}, v{vZs}\nv_cmp_gt_u32 vcc, 8, v5\nv_mov_b32 v7, {ZR+16*64}\nv_cndmask_b32 v{vHHr}, v7, v6, vcc")
        A(f"s_lshl_b32 s76, s100, 11\ns_lshl_b32 s6, s3, 9\ns_add_u32 s76, s76, s6\ns_add_u32 s76, s76, {Z_OFF}")
        A(f"v_mov_b32 v{vB1}, 0x3f803f80")
        A("s_movk_i32 s6, 3584\nv_lshrrev_b32 v6, 2, v0\nv_mul_lo_u32 v6, v6, s6")
        A(f"v_lshrrev_b32 v7, 5, v0\nv_xor_b32 v7, v7, v14\nv_lshl_add_u32 v{vGg}, v7, 4, v6\nv_xor_b32 v7, 2, v7\nv_lshl_add_u32 v{vGu}, v7, 4, v6")
        A(f"s_mul_i32 s21, s3, {128*3584}\ns_lshl_b32 s6, s100, 6\ns_add_u32 s21, s21, s6")
        A(f"s_lshl_b32 s22, s100, 15\ns_lshl_b32 s6, s3, 8\ns_add_u32 s22, s22, s6\ns_lshl_b32 s6, s3, 13\ns_add_u32 s23, s6, {WG}")
        A(f"v_lshlrev_b32 v6, 4, v5\nv_lshlrev_b32 v7, 5, v12\nv_xor_b32 v6, v6, v7\nv_lshl_add_u32 v{vDv}, v12, 10, v6\nv_xor_b32 v{vDw}, 0x80, v{vDv}")
        A(f"v_and_b32 v6, 1, v12\nv_and_b32 v7, 2, v14\nv_or_b32 v6, v6, v7\nv_xor_b32 v6, s3, v6\nv_lshlrev_b32 v6, 4, v6")
        A(f"v_lshl_add_u32 v6, v15, 6, v6\nv_and_b32 v8, 1, v14\nv_lshl_add_u32 v6, v8, 3, v6\nv_lshl_add_u32 v6, v7, 14, v6\nv_add_u32 v{vGT}, {WG}, v6")
        A(f"v_and_b32 v6, 1, v12\nv_lshl_add_u32 v6, v6, 2, v13\nv_lshlrev_b32 v6, 5, v6\nv_lshl_add_u32 v6, v15, 8, v6\nv_lshl_add_u32 v6, v14, 3, v6")
        A(f"s_lshl_b32 s6, s3, 13\ns_add_u32 s6, s6, {WD}\nv_add_u32 v{vDT}, s6, v6")
        if self.ghead: self.flagged(VFL, 4, F_A, self.acnt, slp=1)
        for t in range(8):
            if t == self.ghead:
                self.flagged(VFL, 4, F_OPS, 2, slp=1)
                self.stamp(8)
                if self.dg: A(f"s_sleep {self.dg}")
            A(f"s_add_u32 m0, s23, {t*1024}\ns_add_u32 s6, s21, {t*16*3584}")
            A(f"buffer_load_dwordx4 v{vGg}, s[32:35], s6 offen {self.gpol} lds")
            A(f"s_add_u32 m0, s23, {WU-WG+t*1024}")
            A(f"buffer_load_dwordx4 v{vGu}, s[36:39], s6 offen {self.gpol} lds")
        for t in range(8):
            A(f"s_add_u32 m0, s23, {WD-WG+t*1024}\ns_add_u32 s6, s22, {t*4096}")
            A(f"buffer_load_dwordx4 v{vDw if t & 2 else vDv}, s[40:43], s6 offen {self.gpol} lds")
        A("s_waitcnt vmcnt(8)")
        self.flag_add(VFL, vONE, F_GL)
        self.flagged(VFL, 4, F_GL, 4)
        self.stamp(9)
        for m in range(16):
            if m >= 7 and m % 2 == 1: A("s_waitcnt lgkmcnt(8)")
            A(f"ds_read_b64_tr_b16 {vr(GB+4*m,2)}, v{vGT} offset:{m*2048}")
            A(f"ds_read_b64_tr_b16 {vr(GB+4*m+2,2)}, v{vGT} offset:{m*2048 + 256}")
        wdr = []
        for c8 in range(8):
            va = vDT if c8 == 0 else 208 + c8
            if c8: A(f"v_xor_b32 v{va}, {c8*32}, v{vDT}")
            wdr += [f"ds_read_b64_tr_b16 {vr(WDA+4*c8,2)}, v{va}", f"ds_read_b64_tr_b16 {vr(WDA+4*c8+2,2)}, v{va} offset:1024"]
        if not self.wdlate:
            A("s_waitcnt vmcnt(0) lgkmcnt(0)")
            if self.h2on == "g2": self.flag_add(VFL, vONE, F_G2)
            for k, x in enumerate(wdr):
                if k in (10, 14): A("s_waitcnt lgkmcnt(8)")
                A(x)
        A("s_waitcnt lgkmcnt(0)")
        self.stamp(15)
        A("s_barrier")
        self.stamp(11)
        A(f"ds_read_b128 v[4:7], v{vHVs}")
        for m in range(14):
            A(f"ds_read_b128 {vr(P2+4*m,4)}, v{vHVr} offset:{m*64}")
        save = self.L
        self.L = []
        for k in range(4):
            A(f"v_dot2_f32_bf16 v{T+8}, v{4+k}, v{vB1}, {'0' if k == 0 else f'v{T+8}'}")
            A(f"v_dot2_f32_bf16 v{T+9}, v{4+k}, v{4+k}, {'0' if k == 0 else f'v{T+9}'}")
        self.allred("v_add_f32", [T + 8, T + 9], [T + 10, T + 11])
        A(f"v_mul_f32 v{T+8}, {INV512}, v{T+8}\nv_mul_f32 v{T+9}, {INV512}, v{T+9}")
        A(f"v_fma_f32 v{T+9}, -v{T+8}, v{T+8}, v{T+9}\nv_max_f32 v{T+9}, 0, v{T+9}")
        self.ln_scalars(T + 8, T + 9, T + 10)
        st = [x.strip() for x in self.L]
        self.L = save
        per = -(-len(st) // 15)
        for m in range(16):
            if m == 0:
                A("s_waitcnt lgkmcnt(13)")
            elif m % 2 == 1:
                A(f"s_waitcnt lgkmcnt({max(14-m, 0)})")
            A(f"v_mfma_f32_16x16x32_bf16 v[8:11], {vr(P2+4*m,4)}, {vr(GB+4*m,4)}, {'0' if m == 0 else 'v[8:11]'}")
            if m == 0:
                for m2 in (14, 15):
                    A(f"ds_read_b128 {vr(P2+4*m2,4)}, v{vHVr} offset:{m2*64}")
            for x in st[m * per:(m + 1) * per]:
                A(x)
        if self.wdlate:
            A("s_waitcnt vmcnt(0)")
            for k, x in enumerate(wdr[:14]): A(x)
        A(f"v_fma_f32 v4, -v{T+8}, v9, v8\nv_mul_f32 v4, v4, v{T+9}")
        A("v_mul_f32 v5, s59, v4\nv_exp_f32 v5, -v5")
        A("v_mov_b32_dpp v6, v4 row_ror:8 row_mask:0xf bank_mask:0xf")
        A("v_add_f32 v5, 1.0, v5\nv_rcp_f32 v5, v5")
        if self.wdlate:
            A("s_waitcnt lgkmcnt(10)")
            for x in wdr[14:]: A(x)
        A("v_mul_f32 v5, v5, v6\nv_cvt_pk_bf16_f32 v5, v5, v5")
        A("s_mov_b64 exec, 0xff")
        A(f"ds_write_b16 v{vHHw}, v5")
        A("s_mov_b64 exec, -1")
        A("s_waitcnt lgkmcnt(0)")
        A("s_barrier")
        for c8 in range(8):
            A(f"ds_read_b128 {vr(P1+4*c8,4)}, v{vHHr} offset:{(7-c8)*64}")
        for c8 in range(8):
            A(f"s_waitcnt lgkmcnt({7-c8})")
            A(f"v_mfma_f32_16x16x32_bf16 v[8:11], {vr(WDA+4*c8,4)}, {vr(P1+4*c8,4)}, {'0' if c8 == 0 else 'v[8:11]'}")
        A("s_mov_b32 exec_lo, 0x00ff00ff\ns_mov_b32 exec_hi, 0x00ff00ff")
        A(f"buffer_store_dwordx4 v[8:11], v{vZs}, s[16:19], s76 offen sc1")
        if self.stamps:
            A("s_mov_b64 exec, -1")
            self.stamp(12)
            A("s_cmp_lg_u32 s3, 0\ns_cbranch_scc1 L_end")
            self.stamp_store(1, 16)

    def build(self):
        self.entry()
        self.streamer()
        self.helper()
        self.A("L_end:\ns_endpgm\nL_code_end:")
        body, nn = hazard.fix(self.L)
        head = open("cdna_kernels/" + KN[:-7] + ".s.ref").read().split("; Override launch")[0]
        out = head
        out += f"; @launch grid=(256,1,1) block=(512,1,1) lds={LDS_SIZE}\n"
        out += HEADER
        out += '.amdgcn_target "amdgcn-amd-amdhsa--gfx950"\n.text\n'
        out += f".globl {KN}\n.p2align 8\n.type {KN},@function\n{KN}:\n"
        out += "\n".join(body) + "\n"
        out += f""".section .rodata,"a"
.p2align 6
.amdhsa_kernel {KN}
  .amdhsa_next_free_vgpr 256
  .amdhsa_next_free_sgpr 102
  .amdhsa_accum_offset 256
  .amdhsa_group_segment_fixed_size 0
  .amdhsa_kernarg_size 96
  .amdhsa_user_sgpr_count 2
  .amdhsa_user_sgpr_kernarg_segment_ptr 1
  .amdhsa_system_sgpr_workgroup_id_x 1
.end_amdhsa_kernel
"""
        return out


def gen(**kw):
    return Gen(**kw).build()


if __name__ == "__main__":
    kw = eval("dict(" + (sys.argv[2] if len(sys.argv) > 2 else "") + ")")
    open(sys.argv[1], "w").write(gen(**kw))
```

```python
import sys
import hazard

KN = "sequential_preLN__gqa_block_cached__glu_gated_glu__decode_kernel"

ST_OFF = 0x2000
Y_OFF = 0x10000
Z_OFF = 0x20000
OP_OFF = 0x40000
GF_OFF = 0x4000
QP_OFF = 0xC0000
WS_SIZE = 0xD0000
STAMP_OFF = 0x100000
OOB = 0x400000
NG = 56
WQ = 0
WO = 0
WG = 32768
WU = 65536
WD = 98304
ACC = 131072
XN = ACC + 8192
QV = XN + 1024
HV = QV + 1024
ZR = HV + 1024
HH = ZR + 8 * 64
STL = ZR + 1536
FL = STL + 128
F_Q, F_ST, F_W, F_EARLY, F_MID, F_A, F_LOC, F_ACC, F_OPS, F_Y, F_GL, F_G2, F_P, F_RK = range(0, 56, 4)
WT = FL + 64
YL = WT + 512
ONES = YL + 2048
LDS_SIZE = ONES + 1024

LOG2E = "0x3fb8aa3b"
SCALE = "0x3db504f3"
EPS = "0x3727c5ac"
INV512 = "0x3b000000"
HIMASK = "0xffff0000"
SPIN_MAX = 100000

HEADER = """; One persistent launch: 256 workgroups (one per CU), 8 waves each.  g = id & 7 is the kv head, s = id >> 3 the split.
"""


def vr(a, n=1):
    return f"v{a}" if n == 1 else f"v[{a}:{a+n-1}]"


class Gen:
    def __init__(self, DN=((0, 5), (-12, 12)), DG=None, DP=None, RING=48, NTW=64, NTG=65, NTP=63, pol="nt", wpol="nt", gpol="nt", ppol="",
                 stamps=0, pvrate=3, kbudget=3, dbg=(), slp=8, n_early=18, dq=16, mid_back=26, stdelay=3,
                 d1=3, d2=0, d3=17, b1=0, b2=0, b3=0, dg=0, local=True, fw=2, h2on="gl", acnt=4, a_back=1, p_back=0, wdpf=True, touch=True, wil=True, wdlate=0, psplit=32, ghead=0, gate=0, gslp=4, gwho=24, rank=(-12,-8,-8,-4,-4,0,0,0, 0,0,4,8,12,16,24,32), rdelay=8, rcls=False, wdfirst=False):
        self.__dict__.update(locals())
        assert 2 * NTW + NTG + NTP == 256
        self.DN = tuple(DN)
        self.DG = tuple(DG) if DG else self.DN
        self.DP = tuple(DP) if DP else self.DN
        self.L = []
        self.uid = 0

    def A(self, s):
        for l in s.split("\n"):
            l = l.strip()
            if not l:
                continue
            self.L.append(l if l.endswith(":") else "    " + l)

    def lab(self, p):
        self.uid += 1
        return f"L_{p}_{self.uid}"

    def stamp(self, k, keep=False):
        if self.stamps and (self.stamps != 4 or keep):
            self.A(f"s_memrealtime s[98:99]\ns_waitcnt lgkmcnt(0)\ns_mov_b32 s{80+k}, s98")

    def stamp_store(self, role, n):
        A = self.A
        A("s_mov_b64 exec, 1")
        A(f"s_lshl_b32 s6, s2, 9\ns_add_u32 s6, s6, {STAMP_OFF + role*64}")
        A("v_mov_b32 v1, 0")
        for k in range(n):
            A(f"v_mov_b32 v3, s{80+k}")
            A(f"buffer_store_dword v3, v1, s[16:19], s6 offen offset:{4*k}")
        A("s_mov_b64 exec, -1")

    def allred(self, op, regs, tmps, rors=(8, 4, 2, 1)):
        A = self.A
        for n in rors:
            for r in regs:
                ctl = "quad_perm:[2,3,0,1]" if n == "x2" else f"row_ror:{n}"
                A(f"{op}_dpp v{r}, v{r}, v{r} {ctl} row_mask:0xf bank_mask:0xf")
        for sw in ("v_permlane16_swap_b32", "v_permlane32_swap_b32"):
            for r, t in zip(regs, tmps):
                A(f"v_mov_b32 v{t}, v{r}")
            for r, t in zip(regs, tmps):
                A(f"{sw} v{r}, v{t}")
            for r, t in zip(regs, tmps):
                A(f"{op} v{r}, v{r}, v{t}")

    def lane_sum4(self, Rs):
        A = self.A
        for R in Rs: A(f"v_permlane32_swap_b32 v{R}, v{R+2}\nv_permlane32_swap_b32 v{R+1}, v{R+3}")
        for R in Rs: A(f"v_add_f32 v{R}, v{R}, v{R+2}\nv_add_f32 v{R+1}, v{R+1}, v{R+3}")
        for R in Rs: A(f"v_permlane16_swap_b32 v{R}, v{R+1}")
        for R in Rs: A(f"v_add_f32 v{R}, v{R}, v{R+1}")
        for R in Rs: A(f"v_add_f32_dpp v{R}, v{R}, v{R} row_ror:8 row_mask:0xf bank_mask:0xf")

    def flag_add(self, vaddr, vone, off):
        self.A(f"s_mov_b64 exec, 1\nds_add_u32 v{vaddr}, v{vone} offset:{off}\ns_mov_b64 exec, -1")

    def flagged(self, vfl, vt, off, val, reads=(), slp=0):
        A = self.A
        lp, out = self.lab("fl"), self.lab("flok")
        A("s_mov_b32 s7, 0")
        A(f"{lp}:")
        A(f"ds_read_b32 v{vt}, v{vfl} offset:{off}")
        for r in reads: A(r)
        A(f"s_add_u32 s7, s7, 1\ns_cmp_gt_u32 s7, {SPIN_MAX*8}\ns_cbranch_scc1 {out}")
        A(f"s_waitcnt lgkmcnt({len(reads)})")
        A(f"v_cmp_le_u32 vcc, {val}, v{vt}")
        A(f"s_cbranch_vccnz {out}")
        if reads: A("s_waitcnt lgkmcnt(0)")
        if slp: A(f"s_sleep {slp}")
        A(f"s_branch {lp}")
        A(f"{out}:")
        if not reads: A("s_waitcnt lgkmcnt(0)")

    def spin_guard(self, out):
        self.A(f"s_add_u32 s7, s7, 1\ns_cmp_gt_u32 s7, {SPIN_MAX}\ns_cbranch_scc1 {out}")

    def store_alt(self, stores, sflag):
        a, b = self.lab("sa"), self.lab("sb")
        self.A(f"s_cmp_lg_u32 {sflag}, 0\ns_cbranch_scc1 {a}")
        for x in stores: self.A(x + " sc1")
        self.A(f"s_branch {b}\n{a}:")
        for x in stores: self.A(x)
        self.A(f"{b}:")

    def reload(self, bases, ld):
        A = self.A
        for t, base in enumerate(bases):
            sk = self.lab("rs")
            A(f"v_cmp_u_f32 vcc, v{base}, v{base+1}\nv_cmp_u_f32 s[78:79], v{base+2}, v{base+3}")
            A("s_or_b64 exec, vcc, s[78:79]")
            A(f"s_cbranch_execz {sk}")
            ld(t)
            A(f"{sk}:")
            A("s_mov_b64 exec, -1")

    def gate_wait(self):
        if not self.gate: return
        A = self.A
        lp, out = self.lab("gw"), self.lab("gwok")
        A(f"v_and_b32 v10, 7, v0\nv_lshlrev_b32 v10, 2, v10\ns_mov_b32 s6, {GF_OFF}\ns_mov_b32 s7, 0\ns_mov_b64 exec, 0xff")
        A(f"{lp}:")
        A("buffer_load_dword v11, v10, s[16:19], s6 offen sc1")
        self.spin_guard(out)
        A("s_waitcnt vmcnt(0)\nv_cmp_ne_u32 vcc, -1, v11\ns_bcnt1_i32_b64 s9, vcc")
        A(f"s_cmp_ge_u32 s9, {self.gate}\ns_cbranch_scc1 {out}\ns_sleep {self.gslp}\ns_branch {lp}")
        A(f"{out}:\ns_mov_b64 exec, -1")

    def cnt_wait(self, soff, voff):
        A = self.A
        lp, out = self.lab("cpoll"), self.lab("cok")
        A("s_mov_b32 s7, 0")
        A(f"{lp}:")
        A(f"buffer_load_dword v4, {voff}, s[48:51], {soff} offen sc1")
        self.spin_guard(out)
        A("s_waitcnt vmcnt(0)")
        A("v_and_b32 v5, 0xff, v4\nv_cmp_gt_u32 vcc, 32, v5")
        A(f"s_cbranch_vccz {out}")
        A(f"s_sleep {self.slp}")
        A(f"s_branch {lp}")
        A(f"{out}:")
        A("s_waitcnt vmcnt(0)")

    def ln_scalars(self, mean, var, t):
        A = self.A
        A(f"v_cvt_pk_bf16_f32 v{t}, v{mean}, v{var}")
        A(f"v_lshlrev_b32 v{mean}, 16, v{t}\nv_and_b32 v{var}, s60, v{t}")
        A(f"v_add_f32 v{var}, {EPS}, v{var}")
        A(f"v_cvt_pk_bf16_f32 v{t}, v{var}, v{var}\nv_and_b32 v{var}, s60, v{t}")
        A(f"v_sqrt_f32 v{var}, v{var}")
        A(f"v_cvt_pk_bf16_f32 v{t}, v{var}, v{var}\nv_and_b32 v{var}, s60, v{t}")
        A(f"v_rcp_f32 v{var}, v{var}")

    def entry(self):
        A = self.A
        A("s_load_dwordx2 s[8:9], s[0:1], 8           ; K")
        A("s_load_dwordx2 s[12:13], s[0:1], 16        ; V")
        A("s_load_dwordx2 s[16:17], s[0:1], 88        ; ws")
        A("s_cmp_ge_u32 s2, 256")
        A("s_cbranch_scc1 L_end")
        if "perm" in self.dbg:
            A("s_and_b32 s4, s2, 7\ns_lshr_b32 s5, s2, 3\ns_lshl_b32 s4, s4, 5\ns_or_b32 s2, s4, s5")
        if "perm2" in self.dbg:
            A("s_xor_b32 s4, s2, 1\ns_and_b32 s5, s2, 0xfe\ns_cmp_eq_u32 s5, 0x48\ns_cselect_b32 s2, s4, s2")
        A("v_readfirstlane_b32 s3, v0")
        A("s_and_b32 s4, s2, 7                        ; g")
        A("s_lshr_b32 s5, s2, 3                       ; s")
        A("v_and_b32 v0, 63, v0")
        A("s_lshr_b32 s3, s3, 6                       ; wave")
        A("s_lshl_b32 s100, s4, 3\ns_add_u32 s100, s100, s5\ns_cmp_lt_u32 s5, 8\ns_cselect_b32 s100, s100, 63")
        A(f"s_mov_b32 s18, {0x200000 if self.stamps else WS_SIZE}")
        A("s_mov_b32 s19, 0x20000")
        A("s_cmp_ge_u32 s3, 4")
        A("s_cbranch_scc1 L_helper")

    def streamer(self):
        A = self.A
        A("s_mov_b32 s10, 0x4000000\ns_mov_b32 s11, 0x20000\ns_mov_b32 s14, 0x4000000\ns_mov_b32 s15, 0x20000")
        A("v_bfe_u32 v1, v0, 2, 2\nv_lshlrev_b32 v1, 8, v1\nv_and_b32 v3, 3, v0\nv_lshl_add_u32 v1, v3, 4, v1")
        A("v_lshrrev_b32 v3, 4, v0\nv_lshl_add_u32 v1, v3, 6, v1\nv_lshlrev_b32 v2, 4, v0")
        A("s_lshl_b32 s56, s4, 23\ns_lshl_b32 s57, s3, 10\ns_add_u32 s56, s56, s57")
        NG_, NW, NP = self.NTG, self.NTW, self.NTP
        A(f"s_min_u32 s6, s5, 8\ns_mul_i32 s57, s6, {NG_*4096}\ns_add_u32 s56, s56, s57")
        A(f"s_sub_u32 s7, s5, s6\ns_min_u32 s6, s7, 16\ns_mul_i32 s57, s6, {NW*4096}\ns_add_u32 s56, s56, s57")
        A(f"s_sub_u32 s7, s7, s6\ns_mul_i32 s57, s7, {NP*4096}\ns_add_u32 s56, s56, s57")
        kinds = [(self.DN, NW), (self.DG, NG_), (self.DP, NP)]
        uniq = list(dict.fromkeys(kinds))
        if kinds[1] != kinds[0]: A(f"s_cmp_lt_u32 s5, 8\ns_cbranch_scc1 L_stream_{uniq.index(kinds[1])}")
        if kinds[2] != kinds[0]: A(f"s_cmp_ge_u32 s5, 24\ns_cbranch_scc1 L_stream_{uniq.index(kinds[2])}")
        for i, (d, nt) in enumerate(uniq):
            A(f"L_stream_{i}:")
            self.stream_body(d, nt, i == len(uniq) - 1)
        self.stream_tail()

    def stream_body(self, sched, NT, islast):
        A = self.A
        RING = self.RING
        R0 = 256 - 4 * RING
        assert R0 >= 64
        NB = -(-NT // 4)
        rem = NT % 4
        NL = 2 * NT
        S0, VFL, VONE, VFG, D0, X0, X1, VM, VL, VF, VT, VT2, VRD, M4 = 8, 25, 26, 27, 28, 44, 45, 46, 47, 48, 49, 50, 51, 52
        ACC0, ACC1 = 56, 60
        AB, TLO, THI = 28, 36, 37
        assert NB <= 17
        slot = lambda n: R0 + 4 * (n % RING)
        A("s_mov_b32 s57, s56")
        A("s_waitcnt lgkmcnt(0)")

        def depth(n):
            d = sched[0][1]
            for n0, dd in sched:
                if n >= (n0 if n0 >= 0 else NL + n0):
                    d = dd
            return d
        st = {"landed": -1}
        self.stamp(0, True)

        def load(n):
            st["cur"] = n
            if st.get("rk_at") == n:
                A(f"ds_read_b32 v{VFG}, v{VFL} offset:{F_RK}\ns_waitcnt lgkmcnt(0)\nv_readfirstlane_b32 s76, v{VFG}\ns_lshr_b32 s77, s76, 8\ns_and_b32 s76, s76, 0xff")
                st["nb0"] = n
            d = depth(n)
            nb0 = st.get("nb0")
            if nb0 is not None and d == depth(nb0) and n < nb0 + max(map(abs, self.rank)):
                a, b = self.lab("bo"), self.lab("th")
                k = n - nb0
                if k < max(self.rank): A(f"s_cmp_gt_u32 s76, {k}\ns_cbranch_scc1 {a}")
                if k < -min(self.rank): A(f"s_cmp_le_u32 s77, {k}\ns_cbranch_scc1 {b}\ns_waitcnt vmcnt({d-2})\n{b}:")
                A(f"s_waitcnt vmcnt({d-1})\n{a}:\ns_waitcnt vmcnt({d})")
                st["landed"] = max(st["landed"], n - d - 1)
            elif n - d > st["landed"]:
                A(f"s_waitcnt vmcnt({d-1})")
                st["landed"] = n - d
            t = n % NT
            va, srd, so = ("v1", "s[8:11]", "s56") if n < NT else ("v2", "s[12:15]", "s57")
            A(f"buffer_load_dwordx4 {vr(slot(n),4)}, {va}, {srd}, {so} offen {self.pol}")
            if t + 1 < NT: A(f"s_add_u32 {so}, {so}, 4096")
            if n == depth(0) - 1:
                A(f"v_mov_b32 v{VFL}, {FL}\nv_mov_b32 v{VONE}, 1")
                A(f"s_mov_b32 s58, {SCALE}\ns_mov_b32 s59, {LOG2E}\ns_mov_b32 s60, {HIMASK}")
                A(f"v_and_b32 v3, 3, v0\nv_lshlrev_b32 v3, 8, v3\nv_bfe_u32 v4, v0, 2, 2\nv_lshl_add_u32 v3, v4, 4, v3")
                A(f"v_lshrrev_b32 v4, 4, v0\nv_lshl_add_u32 v3, v4, 6, v3\nv_add_u32 v3, {QV}, v3")
                A("s_barrier")
            if n == self.n_early:
                self.flag_add(VFL, VONE, F_EARLY)
            if n == NL - self.mid_back:
                self.flag_add(VFL, VONE, F_MID)
            if n == NL - self.a_back:
                self.flag_add(VFL, VONE, F_A)
            if n == NL - self.p_back:
                self.flag_add(VFL, VONE, F_P)

        def qsync():
            A("; q (four heads) as B operand, and whether the group shares a die")
            self.flagged(VFL, VFG, F_Q, 1, ["ds_read_b128 v[4:7], v3", f"ds_read_b32 v{VT}, v{VFL} offset:{F_LOC}"])
            A(f"s_waitcnt lgkmcnt(0)\nv_readfirstlane_b32 s63, v{VT}")

        def qk(i):
            nt = rem if (rem and i == NB - 1) else 4
            for j in range(nt):
                A(f"v_mfma_f32_16x16x32_bf16 {vr(D0+4*j,4)}, {vr(slot(4*i+j),4)}, v[4:7], 0")
            d = lambda j, b: D0 + 4 * j + b
            dp = lambda dst, s0, s1, ror, bm: A(f"v_add_f32_dpp v{dst}, v{s0}, v{s1} row_ror:{ror} row_mask:0xf bank_mask:{bm:#x}")
            dp(X0, d(0, 1), d(0, 0), 12, 1)
            dp(X1, d(2, 1), d(2, 0), 12, 1)
            dp(X0, d(1, 0), d(1, 1), 4, 2)
            dp(X1, d(3, 0), d(3, 1), 4, 2)
            dp(X0, d(0, 3), d(0, 2), 12, 4)
            dp(X1, d(2, 3), d(2, 2), 12, 4)
            dp(X0, d(1, 2), d(1, 3), 4, 8)
            dp(X1, d(3, 2), d(3, 3), 4, 8)
            dp(S0 + i, X0, X0, 8, 3)
            dp(S0 + i, X1, X1, 8, 12)
            if nt < 4:
                A(f"v_mov_b32 v{VT}, 0xff800000")
                A(f"v_mov_b32_dpp v{S0+i}, v{VT} quad_perm:[0,1,2,3] row_mask:0xf bank_mask:{(0xf << nt) & 0xf:#x}")

        def rnd(i):
            a, b = S0 + i, S0 + min(i + 1, NB - 1)
            A(f"v_cvt_pk_bf16_f32 v{VT}, v{a}, v{b}")
            if a != b: A(f"v_lshlrev_b32 v{a}, 16, v{VT}")
            A(f"v_and_b32 v{b}, s60, v{VT}")
            if a != b: A(f"v_mul_f32 v{a}, s58, v{a}")
            A(f"v_mul_f32 v{b}, s58, v{b}")
            A(f"v_cvt_pk_bf16_f32 v{VT}, v{a}, v{b}")
            if a != b: A(f"v_lshlrev_b32 v{a}, 16, v{VT}")
            A(f"v_and_b32 v{b}, s60, v{VT}")
            if i == 0:
                A(f"v_max_f32 v{VM}, v{a}, v{b}")
            else:
                A(f"v_max3_f32 v{VM}, v{VM}, v{a}, v{b}")

        def sm_max():
            A("; maximum over this wave's keys")
            self.allred("v_max_f32", [VM], [VT], rors=(4, 8))
            A(f"v_mul_f32 v{VT2}, s59, v{VM}")

        def sm_exp(lo, hi):
            for i in range(lo, hi):
                A(f"v_fma_f32 v{S0+i}, v{S0+i}, s59, -v{VT2}")
            for i in range(lo, hi):
                A(f"v_exp_f32 v{S0+i}, v{S0+i}")
            for i in range(lo, hi):
                if i == 1:
                    A(f"v_add_f32 v{VL}, v{S0}, v{S0+1}")
                elif i > 1:
                    A(f"v_add_f32 v{VL}, v{VL}, v{S0+i}")

        def sm_sum():
            self.allred("v_add_f32", [VL], [VT], rors=(4, 8))
            A(f"v_and_b32 v3, 3, v0\nv_lshlrev_b32 v3, 4, v3\nv_add_u32 v3, {STL}, v3")
            A(f"s_lshl_b32 s6, s3, 2\nv_add_u32 v4, s6, v3")
            A("s_mov_b64 exec, 15")
            A(f"ds_write_b32 v4, v{VM}\nds_write_b32 v4, v{VL} offset:64")
            self.flag_add(VFL, VONE, F_ST)

        def pv_setup():
            for r in list(range(AB, AB + 8)) + list(range(ACC0, ACC0 + 8)):
                A(f"v_mov_b32 v{r}, 0")
            A(f"s_lshl_b32 s6, s3, 10\ns_add_u32 s6, s6, {ACC}\nv_add_u32 v{VRD}, s6, v2")
            A(f"s_lshl_b32 s61, s4, 16\ns_lshl_b32 s7, s5, 11\ns_add_u32 s61, s61, s7\ns_lshl_b32 s7, s3, 10\ns_add_u32 s61, s61, s7\ns_add_u32 s61, s61, {OP_OFF}")

        def msync():
            if self.rank: st["rk_at"] = st["cur"] + self.rdelay
            self.flagged(VFL, VFG, F_ST, 4, [f"ds_read_b128 {vr(M4,4)}, v3"])
            A("s_waitcnt lgkmcnt(0)")
            A(f"v_max3_f32 v{VF}, v{M4}, v{M4+1}, v{M4+2}\nv_max_f32 v{VF}, v{VF}, v{M4+3}")
            A(f"v_sub_f32 v{VF}, v{VM}, v{VF}\nv_mul_f32 v{VF}, s59, v{VF}\nv_exp_f32 v{VF}, v{VF}")
            A(f"s_lshl_b32 s6, s3, 11\ns_add_u32 s6, s6, {ACC}\nv_add_u32 v3, s6, v2")

        def tcalc(i):
            A(f"v_mul_f32 v{VT}, v{S0+i}, v{VF}")
            A(f"v_cvt_pk_bf16_f32 v{TLO}, v{VT}, 0\nv_cvt_pk_bf16_f32 v{THI}, 0, v{VT}")

        def mv(dst, src, dbank, j):
            rot = 4 * ((dbank - j) & 3)
            ctl = f"row_ror:{rot}" if rot else "quad_perm:[0,1,2,3]"
            A(f"v_mov_b32_dpp v{dst}, v{src} {ctl} row_mask:0xf bank_mask:{1<<dbank:#x}")

        abuf = lambda t: AB + 2 * (t % 4)

        def prep(ts):
            for t in ts:
                mv(abuf(t), TLO, 0, t % 4)
                mv(abuf(t) + 1, TLO, 2, t % 4)
            for t in ts:
                mv(abuf(t), THI, 1, t % 4)
                mv(abuf(t) + 1, THI, 3, t % 4)

        def pv(t):
            s = slot(NT + t)
            A(f"v_mfma_f32_16x16x16_bf16 {vr(ACC0,4)}, {vr(abuf(t),2)}, {vr(s,2)}, {vr(ACC0,4)}")
            A(f"v_mfma_f32_16x16x16_bf16 {vr(ACC1,4)}, {vr(abuf(t),2)}, {vr(s+2,2)}, {vr(ACC1,4)}")

        KB = float(self.kbudget)
        items = [(RING - 1 - depth(RING - 1), qsync, 0.5, -1, 0)]
        for i in range(NB):
            lt = min(4 * i + 3, NT - 1)
            items.append((lt, (lambda i=i: qk(i)), 2, lt, 0))
            if i % 2 == 1 or i == NB - 1:
                items.append((-1, (lambda i=i: rnd(i - (i % 2))), 0.5, -1, 0))
        h = NB // 2
        items += [(-1, sm_max, 1.5, -1, 0), (-1, lambda: sm_exp(0, h), 2, -1, 0), (-1, lambda: sm_exp(h, NB), 2, -1, 0),
                  (-1, sm_sum, 2, -1, 0), (-1, pv_setup, 2, -1, 0), (-1, msync, 1, -1, self.stdelay)]
        for i in range(NB):
            items.append((-1, (lambda i=i: tcalc(i)), 0, -1, 0))
            for u in (2 * i, 2 * i + 1):
                ts = [t for t in (2 * u, 2 * u + 1) if t < NT]
                if not ts: continue
                items.append((-1, (lambda ts=ts: prep(ts)), 0, -1, 0))
                for t in ts:
                    items.append((NT + t, (lambda t=t: pv(t)), KB / self.pvrate, NT + t, 0))
        pos, freed, lastn = 0, -1, 0
        for n in range(NL):
            while n - RING > freed:
                need, emit, cost, fr, dl = items[pos]
                assert need <= st["landed"], (n, need)
                emit(); pos += 1; freed = max(freed, fr); lastn = n
            load(n)
            budget = KB
            while pos < len(items) and items[pos][0] <= st["landed"] and (budget > 0 or items[pos][2] == 0) and n >= lastn + items[pos][4]:
                need, emit, cost, fr, dl = items[pos]
                emit(); pos += 1; budget -= cost; freed = max(freed, fr); lastn = n
        while pos < len(items):
            need, emit, cost, fr, dl = items[pos]
            if need > st["landed"]:
                A(f"s_waitcnt vmcnt({NL-1-need})")
                st["landed"] = need
            emit(); pos += 1
        A("s_cmp_ge_u32 s3, 2")
        A(f"ds_write_b128 v3, {vr(ACC0,4)}\nds_write_b128 v3, {vr(ACC1,4)} offset:1024")
        self.flag_add(VFL, VONE, F_ACC)
        if not islast:
            A("s_branch L_stail")

    def stream_tail(self):
        A = self.A
        VFL, VONE, VRD = 25, 26, 51
        ex = "L_sexit"
        A("L_stail:")
        A("s_cbranch_scc1 L_noop")
        self.flagged(VFL, 27, F_ACC, 4, [f"ds_read_b128 {vr(8+4*sw,4)}, v{VRD} offset:{sw*2048}" for sw in range(4)])
        A("s_waitcnt lgkmcnt(2)")
        A("v_pk_add_f32 v[8:9], v[8:9], v[12:13]\nv_pk_add_f32 v[10:11], v[10:11], v[14:15]")
        A("s_waitcnt lgkmcnt(0)")
        A("v_pk_add_f32 v[16:17], v[16:17], v[20:21]\nv_pk_add_f32 v[18:19], v[18:19], v[22:23]")
        A("v_pk_add_f32 v[8:9], v[8:9], v[16:17]\nv_pk_add_f32 v[10:11], v[10:11], v[18:19]")
        self.store_alt(["buffer_store_dwordx4 v[8:11], v2, s[16:19], s61 offen"], "s63")
        self.flag_add(VFL, VONE, F_OPS)
        A("L_noop:")
        self.stamp(6, True)
        A(f"s_cmp_ge_u32 s100, 56\ns_cbranch_scc1 {ex}")
        SEL, XR, P2, vH2, vHVw, vH3, vFo, vFh = 40, 28, 64, 32, 33, 34, 35, 36
        A("s_load_dwordx2 s[20:21], s[0:1], 0\ns_load_dwordx2 s[44:45], s[0:1], 72")
        A("s_mov_b32 s22, 1024\ns_mov_b32 s23, 0x20000\ns_mov_b32 s46, 1024\ns_mov_b32 s47, 0x20000")
        A("v_lshrrev_b32 v12, 4, v0\nv_and_b32 v5, 15, v0\ns_lshl_b32 s6, s3, 8")
        A(f"v_lshlrev_b32 v6, 10, v12\nv_lshl_add_u32 v{vH2}, v5, 4, v6")
        A(f"v_and_b32 v6, 1, v12\nv_lshlrev_b32 v6, 3, v6\nv_lshl_add_u32 v6, v5, 4, v6\nv_add_u32 v13, s6, v6\nv_add_u32 v{vHVw}, {HV}, v13")
        A(f"s_add_u32 s64, s6, {Y_OFF}")
        for t in range(1, 8):
            A(f"s_add_u32 s{64+t}, s64, {t*4096}")
        A("v_and_b32 v6, 1, v5\nv_lshlrev_b32 v6, 4, v6\nv_mov_b32 v7, 0x3f80\nv_lshlrev_b32 v6, v6, v7\nv_lshrrev_b32 v7, 1, v5")
        for q in range(4):
            A(f"v_cmp_eq_u32 vcc, {q}, v7\nv_cndmask_b32 v{SEL+q}, 0, v6, vcc")
        A(f"v_lshrrev_b32 v6, 3, v0\nv_lshlrev_b32 v6, 11, v6\nv_and_b32 v7, 7, v0\nv_lshl_add_u32 v{vH3}, v7, 4, v6")
        A("s_mul_i32 s101, s4, 3\ns_add_u32 s101, s101, s5\ns_cmp_lt_u32 s5, 3\ns_cselect_b32 s101, s101, 63")
        A("s_and_b32 s72, s101, 15")
        A(f"s_lshl_b32 s6, s72, 6\nv_lshlrev_b32 v6, 3, v7\nv_lshl_add_u32 v6, v12, 1, v6\nv_add_u32 v{vFo}, s6, v6\nv_add_u32 v{vFh}, {HV}, v{vFo}")
        A(f"s_lshl_b32 s72, s72, 7\ns_add_u32 s72, s72, {Z_OFF}")
        A("s_waitcnt lgkmcnt(0)")
        A("buffer_load_dwordx2 v[8:9], v13, s[20:23], 0 offen")
        A("buffer_load_dword v10, v13, s[44:47], 0 offen")
        self.flagged(VFL, 4, {"gl": F_GL, "g2": F_G2}[self.h2on], 4, slp=1)
        if self.d2: A(f"s_sleep {self.d2}")
        h2load = lambda t: A(f"buffer_load_dwordx4 {vr(P2+4*t,4)}, v{vH2}, s[16:19], s{64+t} offen sc1")
        for t in range(8):
            h2load(t)
        A("s_waitcnt vmcnt(8)")
        A(f"v_lshlrev_b32 v{XR}, 16, v8\nv_and_b32 v{XR+1}, s60, v8\nv_lshlrev_b32 v{XR+2}, 16, v9\nv_and_b32 v{XR+3}, s60, v9")
        lp, out = self.lab("h2"), self.lab("h2ok")
        A("s_mov_b32 s7, 0")
        A(f"{lp}:")
        A("s_waitcnt vmcnt(0)")
        for t in range(8):
            A(f"v_mfma_f32_16x16x32_bf16 v[8:11], {vr(SEL,4)}, {vr(P2+4*t,4)}, {'0' if t == 0 else 'v[8:11]'}")
        A("v_cmp_u_f32 vcc, v8, v9\nv_cmp_u_f32 s[78:79], v10, v11")
        A("s_or_b64 vcc, vcc, s[78:79]")
        A(f"s_cbranch_scc0 {out}")
        self.spin_guard(out)
        if self.b2: A(f"s_sleep {self.b2}")
        self.reload([P2 + 4 * t for t in range(8)], h2load)
        A(f"s_branch {lp}")
        A(f"{out}:")
        if self.stamps == 1: A("s_mov_b32 s84, s7")
        self.stamp(1)
        A(f"v_pk_add_f32 v[8:9], v[8:9], {vr(XR,2)}\nv_pk_add_f32 v[10:11], v[10:11], {vr(XR+2,2)}")
        A("v_cvt_pk_bf16_f32 v4, v8, v9\nv_cvt_pk_bf16_f32 v5, v10, v11")
        A("s_mov_b64 exec, 0xffffffff")
        A(f"ds_write_b64 v{vHVw}, v[4:5]")
        A("s_mov_b64 exec, -1")
        A("s_waitcnt lgkmcnt(0)")
        A("s_barrier")
        A(f"s_cmp_ge_u32 s101, 16\ns_cbranch_scc1 {ex}\ns_cmp_lg_u32 s3, {self.fw}\ns_cbranch_scc1 {ex}")
        A(f"ds_read_u16 v12, v{vFh}")
        for t in range(1, 7):
            A(f"s_add_u32 s{64+t}, s72, {t*16384}")
        A("s_mov_b32 s64, s72")
        A("s_waitcnt lgkmcnt(0)")
        A("v_lshlrev_b32 v12, 16, v12")
        A("s_barrier")
        if self.d3: A(f"s_sleep {self.d3}")
        h3load = lambda t: A(f"buffer_load_dwordx4 {vr(P2+4*t,4)}, v{vH3}, s[16:19], s{64+t} offen sc1")
        for t in range(7):
            h3load(t)
        lp, out = self.lab("h3"), self.lab("h3ok")
        A("s_mov_b32 s7, 0")
        A(f"{lp}:")
        A("s_waitcnt vmcnt(0)")
        for dst, a, b in ((4, P2, P2 + 4), (8, P2 + 8, P2 + 12), (16, P2 + 16, P2 + 20), (4, 4, P2 + 24), (8, 8, 16), (4, 4, 8)):
            for k in (0, 2):
                A(f"v_pk_add_f32 {vr(dst+k,2)}, {vr(a+k,2)}, {vr(b+k,2)}")
        A("v_cmp_u_f32 vcc, v4, v5\nv_cmp_u_f32 s[78:79], v6, v7")
        A("s_or_b64 vcc, vcc, s[78:79]")
        A(f"s_cbranch_scc0 {out}")
        self.spin_guard(out)
        if self.b3: A(f"s_sleep {self.b3}")
        self.reload([P2 + 4 * t for t in range(7)], h3load)
        A(f"s_branch {lp}")
        A(f"{out}:")
        if self.stamps == 1: A("s_mov_b32 s85, s7")
        self.stamp(2)
        self.lane_sum4([4])
        A("v_add_f32 v4, v12, v4\nv_cvt_pk_bf16_f32 v4, v4, v4")
        A("s_mov_b32 exec_lo, 0x00ff00ff\ns_mov_b32 exec_hi, 0x00ff00ff")
        A(f"buffer_store_short v4, v{vFo}, s[44:47], 0 offen")
        if self.stamps:
            A("s_mov_b64 exec, -1")
            self.stamp(3, True)
        A(f"{ex}:")
        if self.stamps:
            A(f"s_cmp_lg_u32 s3, {self.fw}\ns_cbranch_scc1 L_end")
            self.stamp_store(0, 7)
        A("s_endpgm")

    VFL = 245

    def helper(self):
        A = self.A
        A("L_helper:")
        A("s_load_dwordx2 s[20:21], s[0:1], 0         ; x")
        A("s_load_dwordx2 s[24:25], s[0:1], 24        ; wq")
        A("s_load_dwordx2 s[48:49], s[0:1], 80        ; debug")
        A("s_load_dwordx2 s[28:29], s[0:1], 32        ; wo")
        A("s_sub_u32 s3, s3, 4")
        A("s_mov_b32 s22, 1024\ns_mov_b32 s23, 0x20000\ns_mov_b32 s26, 0x400000\ns_mov_b32 s27, 0x20000")
        A("s_mov_b32 s50, 256\ns_mov_b32 s51, 0x20000\ns_mov_b32 s30, 0x400000\ns_mov_b32 s31, 0x20000")
        A("v_lshlrev_b32 v2, 4, v0")
        A(f"s_mov_b32 s59, {LOG2E}\ns_mov_b32 s60, {HIMASK}")
        A("s_lshr_b32 s62, s5, 3\ns_and_b32 s63, s5, 7")
        A("s_waitcnt lgkmcnt(0)")
        A("s_load_dwordx2 s[32:33], s[0:1], 48        ; w_gate")
        A("s_load_dwordx2 s[36:37], s[0:1], 56        ; w_up")
        A("s_load_dwordx2 s[40:41], s[0:1], 64        ; w_down")
        A("s_mov_b32 s34, 0x1c0000\ns_mov_b32 s35, 0x20000\ns_mov_b32 s38, 0x1c0000\ns_mov_b32 s39, 0x20000")
        A("s_mov_b32 s42, 0x1c0000\ns_mov_b32 s43, 0x20000")
        A(f"s_lshl_b32 s6, s4, 5\ns_add_u32 s6, s6, s5\ns_lshl_b32 s64, s6, 5\ns_add_u32 s64, s64, {ST_OFF}")
        A(f"s_lshl_b32 s66, s6, 11\ns_add_u32 s66, s66, {OP_OFF}")
        A(f"s_lshl_b32 s7, s4, 2\ns_add_u32 s7, s7, s62\ns_lshl_b32 s7, s7, 11\ns_lshl_b32 s6, s63, 8\ns_add_u32 s58, s7, s6")
        A(f"s_add_u32 s58, s58, {QP_OFF}\ns_lshl_b32 s65, s4, 5")
        A(f"s_sub_u32 s12, s5, 8\ns_lshl_b32 s13, s4, 4\ns_add_u32 s13, s13, s12\ns_lshl_b32 s13, s13, 8\ns_add_u32 s13, s13, {Y_OFF}")
        A("s_getreg_b32 s6, hwreg(HW_REG_XCC_ID, 0, 4)")
        A("s_mul_i32 s7, s6, s6\ns_lshl_b32 s7, s7, 18\ns_lshl_b32 s6, s6, 8\ns_or_b32 s6, s6, s7\ns_or_b32 s14, s6, 1")
        A(f"v_mov_b32 v{self.VFL}, {FL}")
        A("s_cmp_lg_u32 s3, 0")
        A("s_cbranch_scc1 L_h123")
        self.h0()
        A("s_branch L_hjoin")
        self.h123()
        A("L_hjoin:")
        self.flagged(self.VFL, 4, F_W, 1, slp=4)
        A("v_lshrrev_b32 v12, 4, v0\nv_bfe_u32 v13, v0, 2, 2\nv_and_b32 v14, 3, v0\nv_lshl_add_u32 v15, v12, 3, v13\nv_mov_b32 v240, 1")
        A("s_cmp_lt_u32 s5, 8\ns_cbranch_scc1 L_gpath\ns_cmp_ge_u32 s5, 24\ns_cbranch_scc1 L_ppath")
        self.wpath()
        self.ppath()
        self.gpath()

    def h0(self):
        A = self.A
        self.stamp(0)
        A("buffer_load_dwordx4 v[4:7], v2, s[20:23], 0 offen")
        A("v_lshrrev_b32 v3, 3, v0\nv_lshlrev_b32 v3, 13, v3\nv_and_b32 v1, 7, v0\nv_lshl_add_u32 v3, v1, 4, v3")
        A("s_lshl_b32 s6, s62, 20\ns_lshl_b32 s7, s4, 10\ns_add_u32 s6, s6, s7\ns_lshl_b32 s7, s63, 7\ns_add_u32 s6, s6, s7")
        for t in range(16):
            A(f"s_mov_b32 m0, {WQ + t*1024}")
            A(f"buffer_load_dwordx4 v3, s[24:27], s6 offen {self.wpol} lds")
            if t < 15:
                A("s_add_u32 s6, s6, 0x10000")
            if t == 3:
                A("s_barrier")
        A("s_waitcnt vmcnt(16)")
        for k in range(4):
            A(f"v_lshlrev_b32 v{12+2*k}, 16, v{4+k}\nv_and_b32 v{13+2*k}, s60, v{4+k}")
        A("v_add_f32 v20, v12, v13\nv_add_f32 v21, v14, v15\nv_add_f32 v22, v16, v17\nv_add_f32 v23, v18, v19")
        A("v_add_f32 v20, v20, v21\nv_add_f32 v22, v22, v23\nv_add_f32 v20, v20, v22")
        self.allred("v_add_f32", [20], [21])
        A(f"v_mul_f32 v20, {INV512}, v20")
        for k in range(8):
            A(f"v_sub_f32 v{24+k}, v{12+k}, v20")
        A("v_mul_f32 v22, v24, v24")
        for k in range(1, 8):
            A(f"v_fmac_f32 v22, v{24+k}, v{24+k}")
        self.allred("v_add_f32", [22], [21])
        A(f"v_mul_f32 v22, {INV512}, v22")
        self.ln_scalars(20, 22, 21)
        for k in range(4):
            a, b = 12 + 2 * k, 13 + 2 * k
            A(f"v_sub_f32 v{a}, v{a}, v20\nv_sub_f32 v{b}, v{b}, v20")
            A(f"v_cvt_pk_bf16_f32 v21, v{a}, v{b}")
            A(f"v_lshlrev_b32 v{a}, 16, v21\nv_and_b32 v{b}, s60, v21")
            A(f"v_mul_f32 v{a}, v{a}, v22\nv_mul_f32 v{b}, v{b}, v22")
            A(f"v_cvt_pk_bf16_f32 v{4+k}, v{a}, v{b}")
        A(f"v_add_u32 v1, {XN}, v2")
        A("ds_write_b128 v1, v[4:7]")
        A("v_lshrrev_b32 v12, 4, v0\nv_bfe_u32 v13, v0, 2, 2\nv_and_b32 v14, 3, v0")
        A("v_lshl_add_u32 v15, v12, 3, v13\nv_lshlrev_b32 v15, 7, v15\nv_lshl_add_u32 v15, v14, 3, v15")
        A(f"s_lshl_b32 s6, s62, 8\ns_add_u32 s6, s6, {XN}\nv_lshlrev_b32 v17, 4, v12\nv_add_u32 v16, s6, v17")
        A("s_waitcnt lgkmcnt(0)")
        for m in range(4):
            A(f"ds_read_b128 {vr(128+4*m,4)}, v16 offset:{m*64}")
        A("v_mov_b32 v1, 0")
        A("s_waitcnt vmcnt(0)")
        for m in range(4):
            base = 64 + 16 * m
            for ct in range(4):
                A(f"ds_read_b64_tr_b16 {vr(base+4*ct,2)}, v15 offset:{WQ + m*4096 + ct*32}")
                A(f"ds_read_b64_tr_b16 {vr(base+4*ct+2,2)}, v15 offset:{WQ + m*4096 + ct*32 + 512}")
            A("s_waitcnt lgkmcnt(0)")
            for ct in range(4):
                c = "0" if m == 0 else vr(32 + 4 * ct, 4)
                A(f"v_mfma_f32_16x16x32_bf16 {vr(32+4*ct,4)}, {vr(base+4*ct,4)}, {vr(128+4*m,4)}, {c}")
        self.flagged(self.VFL, 4, F_EARLY, 1, slp=2)
        if "nocnt" in self.dbg: A("v_mov_b32 v4, s14\nv_lshlrev_b32 v4, 5, v4")
        else: self.cnt_wait("s65", "v1")
        self.stamp(3)
        A("v_readfirstlane_b32 s6, v4\ns_lshl_b32 s7, s14, 5\ns_cmp_eq_u32 s6, s7\ns_cselect_b32 s15, 1, 0")
        if not self.local: A("s_mov_b32 s15, 0")
        A(f"v_mov_b32 v5, s15\nds_write_b32 v{self.VFL}, v5 offset:{F_LOC}")
        A("s_mov_b32 exec_lo, 0x00010001\ns_mov_b32 exec_hi, 0x00010001")
        self.store_alt([f"buffer_store_dwordx4 {vr(32+4*ct,4)}, v17, s[16:19], s58 offen offset:{ct*64}" for ct in range(4)], "s15")
        A("s_mov_b64 exec, -1")
        if self.dq: A(f"s_sleep {self.dq}")
        A(f"s_lshl_b32 s6, s4, 13\ns_add_u32 s6, s6, {QP_OFF}\ns_add_u32 s66, s6, 4096")
        lp, out = self.lab("qpoll"), self.lab("qok")
        A("s_mov_b32 s7, 0")
        A(f"{lp}:")
        for rb in range(4):
            for hf in range(2):
                if "noqp" not in self.dbg: A(f"buffer_load_dwordx4 {vr(64+8*rb+4*hf,4)}, v2, s[16:19], {'s6' if rb < 2 else 's66'} offen offset:{(rb&1)*2048+hf*1024} sc1")
        self.spin_guard(out)
        A("s_waitcnt vmcnt(0)")
        for k in range(0, 8, 2):
            A(f"v_pk_add_f32 {vr(64+k,2)}, {vr(64+k,2)}, {vr(72+k,2)}\nv_pk_add_f32 {vr(80+k,2)}, {vr(80+k,2)}, {vr(88+k,2)}")
        for k in range(0, 8, 2):
            A(f"v_pk_add_f32 {vr(64+k,2)}, {vr(64+k,2)}, {vr(80+k,2)}")
        A("v_cmp_u_f32 vcc, v64, v65\nv_cmp_u_f32 s[68:69], v66, v67\nv_cmp_u_f32 s[70:71], v68, v69\nv_cmp_u_f32 s[72:73], v70, v71")
        A("s_or_b64 vcc, vcc, s[68:69]\ns_or_b64 s[70:71], s[70:71], s[72:73]\ns_or_b64 vcc, vcc, s[70:71]")
        if "noqp" in self.dbg:
            for k in range(8): A(f"v_mov_b32 v{64+k}, 0")
            A(f"s_branch {out}")
        A(f"s_cbranch_scc0 {out}")
        A(f"s_sleep {self.slp}")
        A(f"s_branch {lp}")
        A(f"{out}:")
        A("s_waitcnt vmcnt(0)")
        A("v_cvt_pk_bf16_f32 v4, v64, v65\nv_cvt_pk_bf16_f32 v5, v66, v67\nv_cvt_pk_bf16_f32 v6, v68, v69\nv_cvt_pk_bf16_f32 v7, v70, v71")
        A(f"v_lshlrev_b32 v1, 3, v0\nv_add_u32 v1, {QV}, v1\nv_mov_b32 v8, 1")
        A("ds_write_b64 v1, v[4:5]\nds_write_b64 v1, v[6:7] offset:512")
        self.flag_add(self.VFL, 8, F_Q)
        self.stamp(13)
        A(f"v_and_b32 v1, 3, v0\nv_lshlrev_b32 v5, 4, v1\nv_add_u32 v5, {STL}, v5\nv_lshlrev_b32 v1, 3, v1")
        self.flagged(self.VFL, 4, F_ST, 4, slp=4)
        A("ds_read_b128 v[8:11], v5\nds_read_b128 v[12:15], v5 offset:64")
        A("s_waitcnt lgkmcnt(0)")
        A("v_max3_f32 v16, v8, v9, v10\nv_max_f32 v16, v16, v11")
        for k in range(4):
            A(f"v_sub_f32 v{8+k}, v{8+k}, v16")
        for k in range(4):
            A(f"v_mul_f32 v{8+k}, s59, v{8+k}")
        for k in range(4):
            A(f"v_exp_f32 v{8+k}, v{8+k}")
        A("v_mul_f32 v17, v8, v12\nv_fmac_f32 v17, v9, v13\nv_fmac_f32 v17, v10, v14\nv_fmac_f32 v17, v11, v15")
        A("s_mov_b64 exec, 15")
        self.store_alt(["buffer_store_dwordx2 v[16:17], v1, s[16:19], s64 offen"], "s15")
        A("s_mov_b64 exec, -1")
        if self.rank:
            sk = self.lab("rk")
            A(f"s_cmp_eq_u32 s15, 0\ns_cbranch_scc1 {sk}")
            A(f"s_lshl_b32 s6, s4, 10\ns_add_u32 s6, s6, {ST_OFF}")
            A("buffer_load_dword v4, v2, s[16:19], s6 offen sc1")
            A("s_waitcnt vmcnt(0)")
            tab = [sum((abs(b) // 4) << (4 * i) for i, b in enumerate(self.rank[k:k+8])) for k in (0, 8)]
            assert all(b <= 0 for b in self.rank[:8]) and all(b >= 0 for b in self.rank[8:])
            A("v_cmp_o_f32 vcc, v4, v4")
            if self.rcls:
                A("s_mov_b32 s70, 0xffff0000\ns_mov_b32 s71, 0xffff\ns_mov_b32 s7, 1\ns_cmp_lt_u32 s5, 8\ns_cselect_b32 s70, 0xffff, s70\ns_cselect_b32 s71, 0, s71\ns_cselect_b32 s7, 2, s7")
                A("s_cmp_ge_u32 s5, 24\ns_cselect_b32 s70, 0, s70\ns_cselect_b32 s71, 0xffff0000, s71\ns_cselect_b32 s7, 2, s7")
                A("s_and_b64 vcc, vcc, s[70:71]\ns_bcnt1_i32_b64 s6, vcc\ns_sub_u32 s6, s6, 1\ns_max_i32 s6, s6, 0\ns_lshl_b32 s6, s6, s7")
            else:
                A("s_bcnt1_i32_b64 s6, vcc")
            A("s_min_u32 s6, s6, 63\ns_and_b32 s6, s6, 60")
            A(f"s_mov_b32 s70, {tab[0]:#x}\ns_mov_b32 s71, {tab[1]:#x}\ns_lshr_b64 s[70:71], s[70:71], s6\ns_and_b32 s70, s70, 15\ns_lshl_b32 s70, s70, 2")
            A("s_lshl_b32 s71, s70, 8\ns_cmp_lt_u32 s6, 32\ns_cselect_b32 s6, s71, s70")
            A(f"v_mov_b32 v4, s6\nds_write_b32 v{self.VFL}, v4 offset:{F_RK}")
            A(f"{sk}:")
        self.flagged(self.VFL, 4, F_MID, 1, slp=4)
        A("v_and_b32 v1, 7, v0\nv_lshlrev_b32 v1, 5, v1")
        self.cnt_wait("0", "v1")
        sk = self.lab("now")
        A(f"v_mov_b32 v6, 1\ns_cmp_ge_u32 s12, 16\ns_cbranch_scc1 {sk}")
        A(f"s_lshl_b32 s6, s4, 10\ns_add_u32 s6, s6, {ST_OFF}")
        lp, out = self.lab("spoll"), self.lab("sok")
        A("s_mov_b32 s7, 0")
        A(f"{lp}:")
        A("buffer_load_dwordx4 v[8:11], v2, s[16:19], s6 offen sc1")
        self.spin_guard(out)
        A("s_waitcnt vmcnt(0)")
        A("v_cmp_u_f32 vcc, v8, v9\nv_cmp_u_f32 s[78:79], v10, v11")
        A("s_or_b64 vcc, vcc, s[78:79]")
        A(f"s_cbranch_scc0 {out}")
        A(f"s_sleep {self.slp}")
        A(f"s_branch {lp}")
        A(f"{out}:")
        A("s_waitcnt vmcnt(0)")
        A("v_mov_b32 v4, v8\nv_mov_b32 v5, v10")
        self.allred("v_max_f32", [4, 5], [12, 13], rors=("x2", 4, 8))
        A("v_sub_f32 v8, v8, v4\nv_sub_f32 v10, v10, v5\nv_mul_f32 v8, s59, v8\nv_mul_f32 v10, s59, v10")
        A("v_exp_f32 v8, v8\nv_exp_f32 v10, v10")
        A("v_mul_f32 v9, v8, v9\nv_mul_f32 v11, v10, v11")
        self.allred("v_add_f32", [9, 11], [12, 13], rors=("x2", 4, 8))
        A("v_rcp_f32 v9, v9\nv_rcp_f32 v11, v11")
        A(f"v_lshlrev_b32 v5, 3, v0\nv_add_u32 v5, {WT}, v5")
        A("v_mul_f32 v8, v8, v9\nv_mul_f32 v9, v10, v11")
        A("ds_write_b64 v5, v[8:9]")
        A(f"{sk}:")
        self.flag_add(self.VFL, 6, F_W)
        self.stamp(6)

    def h123(self):
        A = self.A
        A("L_h123:")
        l2, l3, dn = self.lab("h2"), self.lab("h3"), self.lab("hd")
        A("v_mov_b32 v4, 0\nv_mov_b32 v5, 0\nv_mov_b32 v6, 0\nv_mov_b32 v7, 0")
        A(f"s_cmp_eq_u32 s3, 2\ns_cbranch_scc1 {l2}\ns_cmp_eq_u32 s3, 3\ns_cbranch_scc1 {l3}")
        A("v_mov_b32 v8, -1\nv_mov_b32 v9, -1\nv_mov_b32 v10, -1\nv_mov_b32 v11, -1")
        cp = "" if "plainclr" in self.dbg else "sc1"
        A(f"buffer_store_dwordx4 v[8:11], v2, s[16:19], s66 offen {cp}")
        A(f"buffer_store_dwordx4 v[8:11], v2, s[16:19], s66 offen offset:1024 {cp}")
        A("s_mov_b64 exec, 3")
        A(f"buffer_store_dwordx4 v[8:11], v2, s[16:19], s64 offen {cp}")
        A("s_mov_b64 exec, 0xffff")
        A(f"buffer_store_dwordx4 v[8:11], v2, s[16:19], s58 offen {cp}")
        if self.gate:
            sk = self.lab("cg")
            A(f"s_cmp_lg_u32 s5, {self.gwho}\ns_cbranch_scc1 {sk}\ns_mov_b64 exec, 1\ns_lshl_b32 s7, s4, 2\ns_add_u32 s7, s7, {GF_OFF}")
            A(f"buffer_store_dword v8, v2, s[16:19], s7 offen sc1\ns_mov_b64 exec, 0xffff\n{sk}:")
        a, b = self.lab("cz"), self.lab("cd")
        A(f"s_cmp_lt_u32 s5, 8\ns_cbranch_scc1 {a}")
        A(f"s_cmp_ge_u32 s5, 24\ns_cbranch_scc1 {b}")
        A(f"buffer_store_dwordx4 v[8:11], v2, s[16:19], s13 offen sc1\ns_branch {b}")
        A(f"{a}:\ns_cmp_ge_u32 s100, 56\ns_cbranch_scc1 {b}")
        A(f"s_mov_b64 exec, -1\ns_lshl_b32 s7, s100, 11\ns_add_u32 s7, s7, {Z_OFF}")
        A("buffer_store_dwordx4 v[8:11], v2, s[16:19], s7 offen sc1")
        A("buffer_store_dwordx4 v[8:11], v2, s[16:19], s7 offen offset:1024 sc1")
        A(f"{b}:")
        A("s_mov_b64 exec, -1\nv_mov_b32 v6, s14")
        A("s_barrier")
        A("s_waitcnt vmcnt(0)")
        A("s_mov_b64 exec, 1")
        A("buffer_atomic_add v6, v4, s[48:51], s65 offen sc1")
        A("s_mov_b64 exec, -1")
        A(f"s_branch {dn}")
        A(f"{l2}:")
        for o in (0, 16, 32, 48):
            A(f"ds_write_b128 v{self.VFL}, v[4:7] offset:{o}")
        A("s_waitcnt lgkmcnt(0)")
        A("s_barrier")
        A("s_getpc_b64 s[6:7]")
        A("L_pc_anchor:")
        A(f"s_sub_u32 s6, s6, L_pc_anchor-{KN}\ns_subb_u32 s7, s7, 0")
        A("s_lshl_b32 s68, s5, 10\nv_lshl_add_u32 v1, v0, 6, s68")
        A(f"v_min_u32 v4, L_code_end-{KN}-4, v1")
        A("s_mov_b64 exec, 0xffff")
        A("global_load_dword v8, v4, s[6:7]")
        A("s_mov_b64 exec, -1")
        A(f"s_branch {dn}")
        A(f"{l3}:")
        A(f"v_add_u32 v1, {ZR}, v2")
        A("ds_write_b128 v1, v[4:7]\nds_write_b128 v1, v[4:7] offset:512")
        self.touch_at = len(self.L)
        A(f"v_mov_b32 v8, 0x3f803f80\nv_mov_b32 v9, v8\nv_mov_b32 v10, v8\nv_mov_b32 v11, v8\nv_add_u32 v1, {ONES}, v2\nds_write_b128 v1, v[8:11]")
        A("s_barrier")
        if self.touch:
            A("; address translations of the weights that are first read at the end of the stream (values unused)")
            self.flagged(self.VFL, 12, F_EARLY if self.touch is True else F_ST, 1, slp=8)
            A("s_lshl_b32 s6, s4, 19\ns_mov_b64 exec, 1")
            A("buffer_load_dword v8, v4, s[28:31], s6 offen nt")
            A("buffer_load_dword v9, v4, s[32:35], 0 offen nt\nbuffer_load_dword v10, v4, s[36:39], 0 offen nt\nbuffer_load_dword v11, v4, s[40:43], 0 offen nt")
            A("s_mov_b64 exec, -1")
        A(f"{dn}:")
        A("s_waitcnt vmcnt(0) lgkmcnt(0)")

    def wpath(self):
        A = self.A
        VFL, vONE = self.VFL, 240
        WOA, PA, WTR, SA, DD = 16, 48, 64, 80, 96
        vH1, vYw, vYr, vYs, vPF, vWa, vWb = range(84, 91)
        TR = 128
        A(f"v_lshrrev_b32 v4, 3, v0\nv_lshlrev_b32 v6, 11, v4\nv_and_b32 v5, 7, v0\nv_lshl_add_u32 v{vH1}, v5, 4, v6")
        A(f"v_lshlrev_b32 v6, 4, v4\nv_add_u32 v6, {WT}, v6")
        for t in range(4):
            A(f"ds_read_b128 {vr(WTR+4*t,4)}, v6 offset:{t*128}")
        A("s_and_b32 s8, s12, 12\ns_add_u32 s8, s8, s3\ns_and_b32 s9, s12, 3")
        A(f"s_lshl_b32 s6, s4, 16\ns_add_u32 s6, s6, {OP_OFF}\ns_lshl_b32 s64, s8, 7\ns_add_u32 s64, s64, s6")
        for t in range(1, 4):
            A(f"s_add_u32 s{64+t}, s64, {t*0x4000}")
        A("s_lshl_b32 s72, s4, 19\ns_lshl_b32 s6, s9, 8\ns_add_u32 s72, s72, s6")
        A("s_and_b32 s6, s8, 1\ns_lshl_b32 s6, s6, 16\ns_add_u32 s72, s72, s6\ns_lshr_b32 s6, s8, 2\ns_lshl_b32 s6, s6, 11\ns_add_u32 s72, s72, s6")
        A("s_bfe_u32 s6, s8, 0x10001\ns_lshl_b32 s6, s6, 10\ns_add_u32 s72, s72, s6")
        A(f"v_and_b32 v5, 15, v0\nv_lshlrev_b32 v6, 4, v5\nv_lshlrev_b32 v7, 5, v12\nv_xor_b32 v6, v6, v7\nv_lshl_add_u32 v{vWa}, v12, 13, v6\nv_xor_b32 v{vWb}, 0x80, v{vWa}")
        A(f"s_lshl_b32 s74, s3, 13")
        A(f"v_and_b32 v6, 1, v12\nv_lshl_add_u32 v6, v6, 2, v13\nv_lshlrev_b32 v6, 5, v6\nv_lshl_add_u32 v6, v15, 8, v6\nv_lshl_add_u32 v6, v14, 3, v6\nv_add_u32 v{TR}, s74, v6")
        for ct in range(1, 8):
            A(f"v_xor_b32 v{TR+ct}, {ct*32}, v{TR}")
        A(f"s_lshl_b32 s6, s3, 9\ns_add_u32 s6, s6, {YL}")
        A(f"v_lshlrev_b32 v4, 4, v12\nv_add_u32 v{vYw}, s6, v4\nv_add_u32 v{vYr}, {YL}, v2\nv_lshlrev_b32 v{vYs}, 3, v0")
        if self.wil:
            A(f"v_and_b32 v4, 1, v0\nv_lshl_add_u32 v{vYw}, v4, 6, v{vYw}\ns_mov_b32 s22, 0xaaaaaaaa\ns_mov_b32 s23, 0xaaaaaaaa")
        A(f"v_lshlrev_b32 v{vPF}, 7, v0\ns_lshl_b32 s20, s4, 18\ns_lshl_b32 s6, s12, 14\ns_add_u32 s20, s20, s6\ns_lshl_b32 s6, s3, 12\ns_add_u32 s20, s20, s6")

        def h1load(t):
            A(f"buffer_load_dwordx4 {vr(PA+4*t,4)}, v{vH1}, s[16:19], s{64+t} offen sc1")

        self.flagged(VFL, 4, F_A, self.acnt, slp=1)
        self.stamp(7)
        for t in range(8):
            A(f"s_add_u32 m0, s74, {WO + t*1024}\ns_add_u32 s6, s72, {(t>>1)*131072 + (t&1)*32768}")
            A(f"buffer_load_dwordx4 v{vWb if t & 2 else vWa}, s[28:31], s6 offen {self.wpol} lds")

        def wotr():
            for ct in range(8):
                if ct in (5, 7): A("s_waitcnt lgkmcnt(8)")
                A(f"ds_read_b64_tr_b16 {vr(WOA+4*ct,2)}, v{TR+ct} offset:{WO}")
                A(f"ds_read_b64_tr_b16 {vr(WOA+4*ct+2,2)}, v{TR+ct} offset:{WO+1024}")
        if self.a_back > 4:
            A("s_waitcnt vmcnt(0)")
            self.stamp(5)
            wotr()
        self.flagged(VFL, 4, F_ACC, 4, slp=1)
        self.stamp(8)
        if self.d1: A(f"s_sleep {self.d1}")
        for t in range(4): h1load(t)
        if self.a_back <= 4:
            A("s_waitcnt vmcnt(4)")
            self.stamp(5)
            wotr()
        lp, out = self.lab("h1"), self.lab("h1ok")
        A("s_mov_b32 s7, 0")
        A(f"{lp}:")
        A("s_waitcnt vmcnt(0)")
        for t in range(4):
            for k in (0, 2):
                if t == 0:
                    A(f"v_pk_mul_f32 {vr(SA+k,2)}, {vr(PA+k,2)}, {vr(WTR+k,2)}")
                else:
                    A(f"v_pk_fma_f32 {vr(SA+k,2)}, {vr(PA+4*t+k,2)}, {vr(WTR+4*t+k,2)}, {vr(SA+k,2)}")
        A(f"v_cmp_u_f32 vcc, v{SA}, v{SA+1}\nv_cmp_u_f32 s[78:79], v{SA+2}, v{SA+3}")
        A("s_or_b64 vcc, vcc, s[78:79]")
        A(f"s_cbranch_scc0 {out}")
        self.spin_guard(out)
        if self.b1: A(f"s_sleep {self.b1}")
        self.reload([PA + 4 * t for t in range(4)], h1load)
        A(f"s_branch {lp}")
        A(f"{out}:")
        if self.stamps: A("s_mov_b32 s81, s7")
        self.stamp(9)
        self.lane_sum4([SA])
        A(f"v_mov_b32_dpp v{SA+1}, v{SA} row_ror:15 row_mask:0xf bank_mask:0xf")
        A(f"v_cvt_pk_bf16_f32 v{SA}, v{SA}, v{SA+1}")
        for k in range(4):
            A(f"v_mov_b32_dpp v{4+k}, v{SA} row_newbcast:{2*k} row_mask:0xf bank_mask:0xf")
        A("s_waitcnt lgkmcnt(0)")
        if self.wil:
            for k in range(4):
                A(f"v_cndmask_b32 v{8+k}, 0, v{4+k}, s[22:23]")
            for k in range(4):
                A(f"v_cndmask_b32 v{4+k}, v{4+k}, 0, s[22:23]")
            for ct in range(4):
                A(f"v_mfma_f32_16x16x32_bf16 {vr(DD+4*ct,4)}, {vr(WOA+8*ct+4,4)}, v[8:11], 0")
            for ct in range(4):
                A(f"v_mfma_f32_16x16x32_bf16 {vr(DD+4*ct,4)}, {vr(WOA+8*ct,4)}, v[4:7], {vr(DD+4*ct,4)}")
            A("s_mov_b32 exec_lo, 0x00030003\ns_mov_b32 exec_hi, 0x00030003")
            for ct in range(4):
                A(f"ds_write_b128 v{vYw}, {vr(DD+4*ct,4)} offset:{ct*128}")
        else:
            for ct in range(8):
                A(f"v_mfma_f32_16x16x32_bf16 {vr(DD+4*ct,4)}, {vr(WOA+4*ct,4)}, v[4:7], 0")
            A("s_mov_b32 exec_lo, 0x00010001\ns_mov_b32 exec_hi, 0x00010001")
            for ct in range(8):
                A(f"ds_write_b128 v{vYw}, {vr(DD+4*ct,4)} offset:{ct*64}")
        A(f"s_mov_b64 exec, 1\nds_add_u32 v{VFL}, v{vONE} offset:{F_Y}")
        A("s_cmp_lg_u32 s3, 0")
        A("s_cbranch_scc1 L_noy")
        A("s_mov_b64 exec, 0xffffffff")
        self.flagged(VFL, 8, F_Y, 4, [f"ds_read_b128 {vr(PA+4*k,4)}, v{vYr} offset:{k*512}" for k in range(4)])
        A("s_waitcnt lgkmcnt(2)")
        A(f"v_pk_add_f32 {vr(PA,2)}, {vr(PA,2)}, {vr(PA+4,2)}\nv_pk_add_f32 {vr(PA+2,2)}, {vr(PA+2,2)}, {vr(PA+6,2)}")
        A("s_waitcnt lgkmcnt(0)")
        A(f"v_pk_add_f32 {vr(PA+8,2)}, {vr(PA+8,2)}, {vr(PA+12,2)}\nv_pk_add_f32 {vr(PA+10,2)}, {vr(PA+10,2)}, {vr(PA+14,2)}")
        A(f"v_pk_add_f32 {vr(PA,2)}, {vr(PA,2)}, {vr(PA+8,2)}\nv_pk_add_f32 {vr(PA+2,2)}, {vr(PA+2,2)}, {vr(PA+10,2)}")
        A(f"v_cvt_pk_bf16_f32 v4, v{PA}, v{PA+1}\nv_cvt_pk_bf16_f32 v5, v{PA+2}, v{PA+3}")
        A(f"buffer_store_dwordx2 v[4:5], v{vYs}, s[16:19], s13 offen sc1")
        A("L_noy:")
        self.stamp(10)
        if self.wdpf and not self.wdfirst:
            sk = self.lab("wp")
            A(f"s_cmp_eq_u32 s4, 7\ns_cbranch_scc1 {sk}\ns_mov_b64 exec, 0xffffffff")
            A(f"buffer_load_dword v254, v{vPF}, s[40:43], s20 offen {self.ppol}\n{sk}:")
        if self.stamps:
            A("s_mov_b64 exec, -1\ns_cmp_lg_u32 s3, 0\ns_cbranch_scc1 L_end")
            self.stamp_store(1, 16)
        A("s_endpgm")

    def ppath(self):
        A = self.A
        A("L_ppath:")
        dn = self.lab("pe")
        if self.gate:
            sk = self.lab("gs")
            A(f"s_sub_u32 s6, s5, {self.gwho}\ns_or_b32 s6, s6, s3\ns_cmp_lg_u32 s6, 0\ns_cbranch_scc1 {sk}")
            self.flagged(self.VFL, 4, F_A, self.acnt, slp=1)
            A(f"s_lshl_b32 s7, s4, 2\ns_add_u32 s7, s7, {GF_OFF}\ns_mov_b64 exec, 1")
            A(f"buffer_store_dword v240, v2, s[16:19], s7 offen sc1\ns_mov_b64 exec, -1\n{sk}:")
        A(f"s_cmp_eq_u32 s4, 7\ns_cbranch_scc1 {dn}")
        A("s_movk_i32 s6, 3584\nv_lshrrev_b32 v6, 2, v0\nv_mul_lo_u32 v6, v6, s6\nv_lshl_add_u32 v6, v14, 7, v6\nv_lshlrev_b32 v7, 7, v0")
        A(f"s_sub_u32 s6, s5, 24\ns_lshl_b32 s6, s6, 2\ns_add_u32 s6, s6, s3\ns_mul_i32 s20, s6, {16*3584}\ns_lshl_b32 s7, s4, 9\ns_add_u32 s20, s20, s7")
        A("s_lshl_b32 s21, s4, 18\ns_lshl_b32 s6, s6, 13\ns_add_u32 s21, s21, s6")
        if self.psplit:
            self.flagged(self.VFL, 4, F_A, self.acnt, slp=1)
            if self.psplit < 64: A(f"s_lshr_b64 exec, -1, {64 - self.psplit}")
            A(f"buffer_load_dword v8, v6, s[32:35], s20 offen {self.ppol}")
            A("s_mov_b64 exec, -1")
        self.flagged(self.VFL, 4, *((F_P, self.acnt) if self.p_back else (F_OPS, 2)), slp=1)
        self.gate_wait()
        self.stamp(7)
        if self.psplit < 64:
            if self.psplit: A(f"s_lshl_b64 exec, -1, {self.psplit}")
            A(f"buffer_load_dword v8, v6, s[32:35], s20 offen {self.ppol}")
            A("s_mov_b64 exec, -1")
        A(f"buffer_load_dword v9, v6, s[36:39], s20 offen {self.ppol}")
        if not self.wdpf and not self.wdfirst: A(f"buffer_load_dword v10, v7, s[40:43], s21 offen {self.ppol}")
        if self.stamps:
            A("s_waitcnt vmcnt(0)")
            self.stamp(14)
        A(f"{dn}:")
        if self.stamps:
            A("s_cmp_lg_u32 s3, 0\ns_cbranch_scc1 L_end")
            self.stamp_store(1, 16)
        A("s_endpgm")

    def gpath(self):
        A = self.A
        VFL, vONE = self.VFL, 240
        GB, WDA, P2, P1, T = 32, 96, 128, 192, 192
        vHVr, vHVs, vHHw, vHHr, vZs, vB1, vGg, vGu, vGT, vDT, vDv, vDw = range(228, 240)
        A("L_gpath:")
        if self.stamps:
            sk = self.lab("g7")
            A(f"s_cmp_lt_u32 s100, 56\ns_cbranch_scc1 {sk}\ns_cmp_lg_u32 s3, 0\ns_cbranch_scc1 L_end")
            self.stamp_store(1, 16)
            A(f"s_endpgm\n{sk}:")
        else:
            A("s_cmp_ge_u32 s100, 56\ns_cbranch_scc1 L_end")
        A("v_lshlrev_b32 v4, 4, v12\nv_and_b32 v5, 15, v0")
        A(f"v_add_u32 v7, {HV}, v4\nv_add_u32 v6, {ONES}, v4\nv_cmp_eq_u32 vcc, 1, v5\nv_cndmask_b32 v{vHVr}, v7, v6, vcc\nv_add_u32 v{vHVs}, {HV}, v2")
        A(f"s_lshl_b32 s6, s3, 4\ns_add_u32 s6, s6, {HH}\nv_lshl_add_u32 v{vHHw}, v5, 1, s6")
        A(f"v_lshl_add_u32 v{vZs}, v5, 6, v4")
        A(f"v_add_u32 v6, {ZR+64}, v{vZs}\nv_cmp_gt_u32 vcc, 8, v5\nv_mov_b32 v7, {ZR+16*64}\nv_cndmask_b32 v{vHHr}, v7, v6, vcc")
        A(f"s_lshl_b32 s76, s100, 11\ns_lshl_b32 s6, s3, 9\ns_add_u32 s76, s76, s6\ns_add_u32 s76, s76, {Z_OFF}")
        A(f"v_mov_b32 v{vB1}, 0x3f803f80")
        A("s_movk_i32 s6, 3584\nv_lshrrev_b32 v6, 2, v0\nv_mul_lo_u32 v6, v6, s6")
        A(f"v_lshrrev_b32 v7, 5, v0\nv_xor_b32 v7, v7, v14\nv_lshl_add_u32 v{vGg}, v7, 4, v6\nv_xor_b32 v7, 2, v7\nv_lshl_add_u32 v{vGu}, v7, 4, v6")
        A(f"s_mul_i32 s21, s3, {128*3584}\ns_lshl_b32 s6, s100, 6\ns_add_u32 s21, s21, s6")
        A(f"s_lshl_b32 s22, s100, 15\ns_lshl_b32 s6, s3, 8\ns_add_u32 s22, s22, s6\ns_lshl_b32 s6, s3, 13\ns_add_u32 s23, s6, {WG}")
        A(f"v_lshlrev_b32 v6, 4, v5\nv_lshlrev_b32 v7, 5, v12\nv_xor_b32 v6, v6, v7\nv_lshl_add_u32 v{vDv}, v12, 10, v6\nv_xor_b32 v{vDw}, 0x80, v{vDv}")
        A(f"v_and_b32 v6, 1, v12\nv_and_b32 v7, 2, v14\nv_or_b32 v6, v6, v7\nv_xor_b32 v6, s3, v6\nv_lshlrev_b32 v6, 4, v6")
        A(f"v_lshl_add_u32 v6, v15, 6, v6\nv_and_b32 v8, 1, v14\nv_lshl_add_u32 v6, v8, 3, v6\nv_lshl_add_u32 v6, v7, 14, v6\nv_add_u32 v{vGT}, {WG}, v6")
        A(f"v_and_b32 v6, 1, v12\nv_lshl_add_u32 v6, v6, 2, v13\nv_lshlrev_b32 v6, 5, v6\nv_lshl_add_u32 v6, v15, 8, v6\nv_lshl_add_u32 v6, v14, 3, v6")
        A(f"s_lshl_b32 s6, s3, 13\ns_add_u32 s6, s6, {WD}\nv_add_u32 v{vDT}, s6, v6")
        def wdload(ts):
            for t in ts:
                A(f"s_add_u32 m0, s23, {WD-WG+t*1024}\ns_add_u32 s6, s22, {t*4096}")
                A(f"buffer_load_dwordx4 v{vDw if t & 2 else vDv}, s[40:43], s6 offen {self.gpol} lds")

        def guload(ts):
            for t in ts:
                A(f"s_add_u32 m0, s23, {t*1024}\ns_add_u32 s6, s21, {t*16*3584}")
                A(f"buffer_load_dwordx4 v{vGg}, s[32:35], s6 offen {self.gpol} lds")
                A(f"s_add_u32 m0, s23, {WU-WG+t*1024}")
                A(f"buffer_load_dwordx4 v{vGu}, s[36:39], s6 offen {self.gpol} lds")
        first, second = (wdload, guload) if self.wdfirst else (guload, wdload)
        if self.ghead:
            self.flagged(VFL, 4, F_A, self.acnt, slp=1)
            first(range(self.ghead))
        self.flagged(VFL, 4, F_OPS, 2, slp=1)
        self.gate_wait()
        self.stamp(8)
        first(range(self.ghead, 8))
        if self.dg: A(f"s_sleep {self.dg}")
        second(range(8))
        wdr = []
        for c8 in range(8):
            va = vDT if c8 == 0 else 208 + c8
            if c8: A(f"v_xor_b32 v{va}, {c8*32}, v{vDT}")
            wdr += [f"ds_read_b64_tr_b16 {vr(WDA+4*c8,2)}, v{va}", f"ds_read_b64_tr_b16 {vr(WDA+4*c8+2,2)}, v{va} offset:1024"]
        if self.wdfirst:
            A("s_waitcnt vmcnt(16)")
            for k, x in enumerate(wdr):
                if k in (10, 14): A("s_waitcnt lgkmcnt(8)")
                A(x)
            A("s_waitcnt vmcnt(0)")
        else:
            A("s_waitcnt vmcnt(8)")
        self.flag_add(VFL, vONE, F_GL)
        self.flagged(VFL, 4, F_GL, 4)
        self.stamp(9)
        for m in range(16):
            if m >= 7 and m % 2 == 1: A("s_waitcnt lgkmcnt(8)")
            A(f"ds_read_b64_tr_b16 {vr(GB+4*m,2)}, v{vGT} offset:{m*2048}")
            A(f"ds_read_b64_tr_b16 {vr(GB+4*m+2,2)}, v{vGT} offset:{m*2048 + 256}")
        if not self.wdlate and not self.wdfirst:
            A("s_waitcnt vmcnt(0) lgkmcnt(0)")
            if self.h2on == "g2": self.flag_add(VFL, vONE, F_G2)
            for k, x in enumerate(wdr):
                if k in (10, 14): A("s_waitcnt lgkmcnt(8)")
                A(x)
        A("s_waitcnt lgkmcnt(0)")
        self.stamp(15)
        A("s_barrier")
        self.stamp(11)
        A(f"ds_read_b128 v[4:7], v{vHVs}")
        for m in range(14):
            A(f"ds_read_b128 {vr(P2+4*m,4)}, v{vHVr} offset:{m*64}")
        save = self.L
        self.L = []
        for k in range(4):
            A(f"v_dot2_f32_bf16 v{T+8}, v{4+k}, v{vB1}, {'0' if k == 0 else f'v{T+8}'}")
            A(f"v_dot2_f32_bf16 v{T+9}, v{4+k}, v{4+k}, {'0' if k == 0 else f'v{T+9}'}")
        self.allred("v_add_f32", [T + 8, T + 9], [T + 10, T + 11])
        A(f"v_mul_f32 v{T+8}, {INV512}, v{T+8}\nv_mul_f32 v{T+9}, {INV512}, v{T+9}")
        A(f"v_fma_f32 v{T+9}, -v{T+8}, v{T+8}, v{T+9}\nv_max_f32 v{T+9}, 0, v{T+9}")
        self.ln_scalars(T + 8, T + 9, T + 10)
        st = [x.strip() for x in self.L]
        self.L = save
        per = -(-len(st) // 15)
        for m in range(16):
            if m == 0:
                A("s_waitcnt lgkmcnt(13)")
            elif m % 2 == 1:
                A(f"s_waitcnt lgkmcnt({max(14-m, 0)})")
            A(f"v_mfma_f32_16x16x32_bf16 v[8:11], {vr(P2+4*m,4)}, {vr(GB+4*m,4)}, {'0' if m == 0 else 'v[8:11]'}")
            if m == 0:
                for m2 in (14, 15):
                    A(f"ds_read_b128 {vr(P2+4*m2,4)}, v{vHVr} offset:{m2*64}")
            for x in st[m * per:(m + 1) * per]:
                A(x)
        if self.wdlate:
            A("s_waitcnt vmcnt(0)")
            for k, x in enumerate(wdr[:14]): A(x)
        A(f"v_fma_f32 v4, -v{T+8}, v9, v8\nv_mul_f32 v4, v4, v{T+9}")
        A("v_mul_f32 v5, s59, v4\nv_exp_f32 v5, -v5")
        A("v_mov_b32_dpp v6, v4 row_ror:8 row_mask:0xf bank_mask:0xf")
        A("v_add_f32 v5, 1.0, v5\nv_rcp_f32 v5, v5")
        if self.wdlate:
            A("s_waitcnt lgkmcnt(10)")
            for x in wdr[14:]: A(x)
        A("v_mul_f32 v5, v5, v6\nv_cvt_pk_bf16_f32 v5, v5, v5")
        A("s_mov_b64 exec, 0xff")
        A(f"ds_write_b16 v{vHHw}, v5")
        A("s_mov_b64 exec, -1")
        A("s_waitcnt lgkmcnt(0)")
        A("s_barrier")
        for c8 in range(8):
            A(f"ds_read_b128 {vr(P1+4*c8,4)}, v{vHHr} offset:{(7-c8)*64}")
        for c8 in range(8):
            A(f"s_waitcnt lgkmcnt({7-c8})")
            A(f"v_mfma_f32_16x16x32_bf16 v[8:11], {vr(WDA+4*c8,4)}, {vr(P1+4*c8,4)}, {'0' if c8 == 0 else 'v[8:11]'}")
        A("s_mov_b32 exec_lo, 0x00ff00ff\ns_mov_b32 exec_hi, 0x00ff00ff")
        A(f"buffer_store_dwordx4 v[8:11], v{vZs}, s[16:19], s76 offen sc1")
        if self.stamps:
            A("s_mov_b64 exec, -1")
            self.stamp(12)
            A("s_cmp_lg_u32 s3, 0\ns_cbranch_scc1 L_end")
            self.stamp_store(1, 16)

    def build(self):
        self.entry()
        self.streamer()
        self.helper()
        self.A("L_end:\ns_endpgm\nL_code_end:")
        body, nn = hazard.fix(self.L)
        head = open("cdna_kernels/" + KN[:-7] + ".s.ref").read().split("; Override launch")[0]
        out = head
        out += f"; @launch grid=(256,1,1) block=(512,1,1) lds={LDS_SIZE}\n"
        out += HEADER
        out += '.amdgcn_target "amdgcn-amd-amdhsa--gfx950"\n.text\n'
        out += f".globl {KN}\n.p2align 8\n.type {KN},@function\n{KN}:\n"
        out += "\n".join(body) + "\n"
        out += f""".section .rodata,"a"
.p2align 6
.amdhsa_kernel {KN}
  .amdhsa_next_free_vgpr 256
  .amdhsa_next_free_sgpr 102
  .amdhsa_accum_offset 256
  .amdhsa_group_segment_fixed_size 0
  .amdhsa_kernarg_size 96
  .amdhsa_user_sgpr_count 2
  .amdhsa_user_sgpr_kernarg_segment_ptr 1
  .amdhsa_system_sgpr_workgroup_id_x 1
.end_amdhsa_kernel
"""
        return out


def gen(**kw):
    return Gen(**kw).build()


if __name__ == "__main__":
    kw = eval("dict(" + (sys.argv[2] if len(sys.argv) > 2 else "") + ")")
    open(sys.argv[1], "w").write(gen(**kw))
```

```python
import sys
import hazard

KN = "sequential_preLN__gqa_block_cached__glu_gated_glu__decode_kernel"

ST_OFF = 0x2000
Y_OFF = 0x10000
Z_OFF = 0x20000
OP_OFF = 0x40000
GF_OFF = 0x4000
QP_OFF = 0xC0000
WS_SIZE = 0xD0000
STAMP_OFF = 0x100000
OOB = 0x400000
NG = 56
WQ = 0
WO = 0
WG = 32768
WU = 65536
WD = 98304
ACC = 131072
XN = ACC + 8192
QV = XN + 1024
HV = QV + 1024
ZR = HV + 1024
HH = ZR + 8 * 64
STL = ZR + 1536
FL = STL + 128
F_Q, F_ST, F_W, F_EARLY, F_MID, F_A, F_LOC, F_ACC, F_OPS, F_Y, F_GL, F_G2, F_P, F_RK = range(0, 56, 4)
WT = FL + 64
YL = WT + 512
ONES = YL + 2048
LDS_SIZE = ONES + 1024

LOG2E = "0x3fb8aa3b"
SCALE = "0x3db504f3"
EPS = "0x3727c5ac"
INV512 = "0x3b000000"
HIMASK = "0xffff0000"
SPIN_MAX = 100000
LDS_SPIN_MAX = 0x2000000

HEADER = """; One persistent launch: 256 workgroups (one per CU), 8 waves each.  g = id & 7 is the kv head, s = id >> 3 the split.
"""


def vr(a, n=1):
    return f"v{a}" if n == 1 else f"v[{a}:{a+n-1}]"


class Gen:
    def __init__(self, DN=((0, 5), (-12, 12)), DG=None, DP=None, RING=48, NTW=64, NTG=65, NTP=63, pol="nt", wpol="nt", gpol="nt", ppol="",
                 stamps=0, pvrate=3, kbudget=3, dbg=(), slp=8, n_early=18, dq=16, mid_back=26, stdelay=3,
                 d1=3, d2=0, d3=18, b1=0, b2=0, b3=0, dg=0, local=True, fw=2, h2on="gl", acnt=4, a_back=1, p_back=0, wdpf=True, touch=True, wil=True, wdlate=0, psplit=32, ghead=0, gate=0, gslp=4, gwho=24, rank=(-12,-8,-8,-4,-4,0,0,0, 0,0,4,8,12,16,24,32), rdelay=8, rcls=False, wdfirst=False, probe=None, pticks=1000, cpf=2):
        self.__dict__.update(locals())
        assert 2 * NTW + NTG + NTP == 256
        self.DN = tuple(DN)
        self.DG = tuple(DG) if DG else self.DN
        self.DP = tuple(DP) if DP else self.DN
        self.L = []
        self.uid = 0

    def A(self, s):
        for l in s.split("\n"):
            l = l.strip()
            if not l:
                continue
            self.L.append(l if l.endswith(":") else "    " + l)

    def lab(self, p):
        self.uid += 1
        return f"L_{p}_{self.uid}"

    def stamp(self, k, keep=False):
        if self.stamps and (self.stamps != 4 or keep):
            self.A(f"s_memrealtime s[98:99]\ns_waitcnt lgkmcnt(0)\ns_mov_b32 s{80+k}, s98")

    def stamp_store(self, role, n):
        A = self.A
        A("s_mov_b64 exec, 1")
        A(f"s_lshl_b32 s6, s2, 9\ns_add_u32 s6, s6, {STAMP_OFF + role*64}")
        A("v_mov_b32 v1, 0")
        for k in range(n):
            A(f"v_mov_b32 v3, s{80+k}")
            A(f"buffer_store_dword v3, v1, s[16:19], s6 offen offset:{4*k}")
        A("s_mov_b64 exec, -1")

    def allred(self, op, regs, tmps, rors=(8, 4, 2, 1)):
        A = self.A
        for n in rors:
            for r in regs:
                ctl = "quad_perm:[2,3,0,1]" if n == "x2" else f"row_ror:{n}"
                A(f"{op}_dpp v{r}, v{r}, v{r} {ctl} row_mask:0xf bank_mask:0xf")
        for sw in ("v_permlane16_swap_b32", "v_permlane32_swap_b32"):
            for r, t in zip(regs, tmps):
                A(f"v_mov_b32 v{t}, v{r}")
            for r, t in zip(regs, tmps):
                A(f"{sw} v{r}, v{t}")
            for r, t in zip(regs, tmps):
                A(f"{op} v{r}, v{r}, v{t}")

    def lane_sum4(self, Rs):
        A = self.A
        for R in Rs: A(f"v_permlane32_swap_b32 v{R}, v{R+2}\nv_permlane32_swap_b32 v{R+1}, v{R+3}")
        for R in Rs: A(f"v_add_f32 v{R}, v{R}, v{R+2}\nv_add_f32 v{R+1}, v{R+1}, v{R+3}")
        for R in Rs: A(f"v_permlane16_swap_b32 v{R}, v{R+1}")
        for R in Rs: A(f"v_add_f32 v{R}, v{R}, v{R+1}")
        for R in Rs: A(f"v_add_f32_dpp v{R}, v{R}, v{R} row_ror:8 row_mask:0xf bank_mask:0xf")

    def flag_add(self, vaddr, vone, off):
        self.A(f"s_mov_b64 exec, 1\nds_add_u32 v{vaddr}, v{vone} offset:{off}\ns_mov_b64 exec, -1")

    def flagged(self, vfl, vt, off, val, reads=(), slp=0):
        A = self.A
        lp, out = self.lab("fl"), self.lab("flok")
        A("s_mov_b32 s7, 0")
        A(f"{lp}:")
        A(f"ds_read_b32 v{vt}, v{vfl} offset:{off}")
        for r in reads: A(r)
        A(f"s_add_u32 s7, s7, 1\ns_cmp_gt_u32 s7, {LDS_SPIN_MAX}\ns_cbranch_scc1 {self.tmo(out)}")
        A(f"s_waitcnt lgkmcnt({len(reads)})")
        A(f"v_cmp_le_u32 vcc, {val}, v{vt}")
        A(f"s_cbranch_vccnz {out}")
        if reads: A("s_waitcnt lgkmcnt(0)")
        if slp: A(f"s_sleep {slp}")
        A(f"s_branch {lp}")
        A(f"{out}:")
        if not reads: A("s_waitcnt lgkmcnt(0)")

    def probe_mark(self, name, wave):
        if not self.probe: return
        base, _, mode = self.probe.partition(":")
        if name != "t0" and name != base: return
        A = self.A
        sk = self.lab("pm")
        if name == "t0": A(f"s_cmp_lg_u32 s5, 0\ns_cbranch_scc1 {sk}\ns_not_b32 s96, s94")
        else:
            A(f"s_cmp_lg_u32 s3, {wave}\ns_cbranch_scc1 {sk}\ns_memrealtime s[96:97]\ns_waitcnt lgkmcnt(0)")
            if mode == "mean": A("s_sub_u32 s96, s96, s94")
        A(f"s_mov_b64 s[90:91], exec\ns_mov_b64 exec, 1\nv_mov_b32 v250, s96\nv_mov_b32 v251, 0")
        A(f"buffer_atomic_{'add' if (name != 't0' and mode == 'mean') else 'umax'} v250, v251, s[48:51], 0 offen offset:{4 if name == 't0' else 8} sc1")
        A(f"s_mov_b64 exec, s[90:91]\n{sk}:")

    def tmo(self, out):
        if "tmo" not in self.dbg: return out
        self.tmos = getattr(self, "tmos", [])
        l = self.lab("tmo")
        self.tmos.append((l, out))
        return l

    def spin_guard(self, out):
        self.A(f"s_add_u32 s7, s7, 1\ns_cmp_gt_u32 s7, {SPIN_MAX}\ns_cbranch_scc1 {self.tmo(out)}")

    def store_alt(self, stores, sflag):
        a, b = self.lab("sa"), self.lab("sb")
        self.A(f"s_cmp_lg_u32 {sflag}, 0\ns_cbranch_scc1 {a}")
        for x in stores: self.A(x + " sc1")
        self.A(f"s_branch {b}\n{a}:")
        for x in stores: self.A(x)
        self.A(f"{b}:")

    def reload(self, bases, ld):
        A = self.A
        for t, base in enumerate(bases):
            sk = self.lab("rs")
            A(f"v_cmp_u_f32 vcc, v{base}, v{base+1}\nv_cmp_u_f32 s[78:79], v{base+2}, v{base+3}")
            A("s_or_b64 exec, vcc, s[78:79]")
            A(f"s_cbranch_execz {sk}")
            ld(t)
            A(f"{sk}:")
            A("s_mov_b64 exec, -1")

    def gate_wait(self):
        if not self.gate: return
        A = self.A
        lp, out = self.lab("gw"), self.lab("gwok")
        A(f"v_and_b32 v10, 7, v0\nv_lshlrev_b32 v10, 2, v10\ns_mov_b32 s6, {GF_OFF}\ns_mov_b32 s7, 0\ns_mov_b64 exec, 0xff")
        A(f"{lp}:")
        A("buffer_load_dword v11, v10, s[16:19], s6 offen sc1")
        self.spin_guard(out)
        A("s_waitcnt vmcnt(0)\nv_cmp_ne_u32 vcc, -1, v11\ns_bcnt1_i32_b64 s9, vcc")
        A(f"s_cmp_ge_u32 s9, {self.gate}\ns_cbranch_scc1 {out}\ns_sleep {self.gslp}\ns_branch {lp}")
        A(f"{out}:\ns_mov_b64 exec, -1")

    def cnt_wait(self, soff, voff):
        A = self.A
        lp, out = self.lab("cpoll"), self.lab("cok")
        A("s_mov_b32 s7, 0")
        A(f"{lp}:")
        A(f"buffer_load_dword v4, {voff}, s[48:51], {soff} offen sc1")
        self.spin_guard(out)
        A("s_waitcnt vmcnt(0)")
        A("v_and_b32 v5, 0xff, v4\nv_cmp_gt_u32 vcc, 32, v5")
        A(f"s_cbranch_vccz {out}")
        A(f"s_sleep {self.slp}")
        A(f"s_branch {lp}")
        A(f"{out}:")
        A("s_waitcnt vmcnt(0)")

    def ln_scalars(self, mean, var, t):
        A = self.A
        A(f"v_cvt_pk_bf16_f32 v{t}, v{mean}, v{var}")
        A(f"v_lshlrev_b32 v{mean}, 16, v{t}\nv_and_b32 v{var}, s60, v{t}")
        A(f"v_add_f32 v{var}, {EPS}, v{var}")
        A(f"v_cvt_pk_bf16_f32 v{t}, v{var}, v{var}\nv_and_b32 v{var}, s60, v{t}")
        A(f"v_sqrt_f32 v{var}, v{var}")
        A(f"v_cvt_pk_bf16_f32 v{t}, v{var}, v{var}\nv_and_b32 v{var}, s60, v{t}")
        A(f"v_rcp_f32 v{var}, v{var}")

    def entry(self):
        A = self.A
        if self.probe: A("s_memrealtime s[94:95]\ns_load_dwordx2 s[48:49], s[0:1], 80\ns_mov_b32 s50, 256\ns_mov_b32 s51, 0x20000")
        A("s_load_dwordx2 s[8:9], s[0:1], 8           ; K")
        A("s_load_dwordx2 s[12:13], s[0:1], 16        ; V")
        A("s_load_dwordx2 s[16:17], s[0:1], 88        ; ws")
        A("s_cmp_ge_u32 s2, 256")
        A("s_cbranch_scc1 L_end")
        if "perm" in self.dbg:
            A("s_and_b32 s4, s2, 7\ns_lshr_b32 s5, s2, 3\ns_lshl_b32 s4, s4, 5\ns_or_b32 s2, s4, s5")
        if "perm2" in self.dbg:
            A("s_xor_b32 s4, s2, 1\ns_and_b32 s5, s2, 0xfe\ns_cmp_eq_u32 s5, 0x48\ns_cselect_b32 s2, s4, s2")
        A("v_readfirstlane_b32 s3, v0")
        A("s_and_b32 s4, s2, 7                        ; g")
        A("s_lshr_b32 s5, s2, 3                       ; s")
        A("v_and_b32 v0, 63, v0")
        A("s_lshr_b32 s3, s3, 6                       ; wave")
        A("s_lshl_b32 s100, s4, 3\ns_add_u32 s100, s100, s5\ns_cmp_lt_u32 s5, 8\ns_cselect_b32 s100, s100, 63")
        A(f"s_mov_b32 s18, {0x200000 if self.stamps else WS_SIZE}")
        A("s_mov_b32 s19, 0x20000")
        A("s_cmp_ge_u32 s3, 4")
        A("s_cbranch_scc1 L_helper")

    def streamer(self):
        A = self.A
        A("s_mov_b32 s10, 0x4000000\ns_mov_b32 s11, 0x20000\ns_mov_b32 s14, 0x4000000\ns_mov_b32 s15, 0x20000")
        A("v_bfe_u32 v1, v0, 2, 2\nv_lshlrev_b32 v1, 8, v1\nv_and_b32 v3, 3, v0\nv_lshl_add_u32 v1, v3, 4, v1")
        A("v_lshrrev_b32 v3, 4, v0\nv_lshl_add_u32 v1, v3, 6, v1\nv_lshlrev_b32 v2, 4, v0")
        A("s_lshl_b32 s56, s4, 23\ns_lshl_b32 s57, s3, 10\ns_add_u32 s56, s56, s57")
        NG_, NW, NP = self.NTG, self.NTW, self.NTP
        A(f"s_min_u32 s6, s5, 8\ns_mul_i32 s57, s6, {NG_*4096}\ns_add_u32 s56, s56, s57")
        A(f"s_sub_u32 s7, s5, s6\ns_min_u32 s6, s7, 16\ns_mul_i32 s57, s6, {NW*4096}\ns_add_u32 s56, s56, s57")
        A(f"s_sub_u32 s7, s7, s6\ns_mul_i32 s57, s7, {NP*4096}\ns_add_u32 s56, s56, s57")
        kinds = [(self.DN, NW), (self.DG, NG_), (self.DP, NP)]
        uniq = list(dict.fromkeys(kinds))
        if kinds[1] != kinds[0]: A(f"s_cmp_lt_u32 s5, 8\ns_cbranch_scc1 L_stream_{uniq.index(kinds[1])}")
        if kinds[2] != kinds[0]: A(f"s_cmp_ge_u32 s5, 24\ns_cbranch_scc1 L_stream_{uniq.index(kinds[2])}")
        for i, (d, nt) in enumerate(uniq):
            A(f"L_stream_{i}:")
            self.stream_body(d, nt, i == len(uniq) - 1)
        self.stream_tail()

    def stream_body(self, sched, NT, islast):
        A = self.A
        RING = self.RING
        R0 = 256 - 4 * RING
        assert R0 >= 64
        NB = -(-NT // 4)
        rem = NT % 4
        NL = 2 * NT
        S0, VFL, VONE, VFG, D0, X0, X1, VM, VL, VF, VT, VT2, VRD, M4 = 8, 25, 26, 27, 28, 44, 45, 46, 47, 48, 49, 50, 51, 52
        ACC0, ACC1 = 56, 60
        AB, TLO, THI = 28, 36, 37
        assert NB <= 17
        slot = lambda n: R0 + 4 * (n % RING)
        A("s_mov_b32 s57, s56")
        A("s_waitcnt lgkmcnt(0)")

        def depth(n):
            d = sched[0][1]
            for n0, dd in sched:
                if n >= (n0 if n0 >= 0 else NL + n0):
                    d = dd
            if d != int(d): d = int(d) + (1 if (n * (d - int(d))) % 1 < (d - int(d)) - 1e-9 else 0)
            return d
        st = {"landed": -1}
        self.stamp(0, True)

        def load(n):
            st["cur"] = n
            if st.get("rk_at") == n:
                A(f"ds_read_b32 v{VFG}, v{VFL} offset:{F_RK}\ns_waitcnt lgkmcnt(0)\nv_readfirstlane_b32 s76, v{VFG}\ns_lshr_b32 s77, s76, 8\ns_and_b32 s76, s76, 0xff")
                st["nb0"] = n
            d = depth(n)
            nb0 = st.get("nb0")
            if nb0 is not None and d <= depth(nb0) + 1 and n < nb0 + max(map(abs, self.rank)):
                a, b = self.lab("bo"), self.lab("th")
                k = n - nb0
                if k < max(self.rank): A(f"s_cmp_gt_u32 s76, {k}\ns_cbranch_scc1 {a}")
                if k < -min(self.rank): A(f"s_cmp_le_u32 s77, {k}\ns_cbranch_scc1 {b}\ns_waitcnt vmcnt({d-2})\n{b}:")
                A(f"s_waitcnt vmcnt({d-1})\n{a}:\ns_waitcnt vmcnt({d})")
                st["landed"] = max(st["landed"], n - d - 1)
            elif n - d > st["landed"]:
                A(f"s_waitcnt vmcnt({d-1})")
                st["landed"] = n - d
            t = n % NT
            va, srd, so = ("v1", "s[8:11]", "s56") if n < NT else ("v2", "s[12:15]", "s57")
            A(f"buffer_load_dwordx4 {vr(slot(n),4)}, {va}, {srd}, {so} offen {self.pol}")
            if t + 1 < NT: A(f"s_add_u32 {so}, {so}, 4096")
            if n == depth(0) - 1:
                A(f"v_mov_b32 v{VFL}, {FL}\nv_mov_b32 v{VONE}, 1")
                A(f"s_mov_b32 s58, {SCALE}\ns_mov_b32 s59, {LOG2E}\ns_mov_b32 s60, {HIMASK}")
                A(f"v_and_b32 v3, 3, v0\nv_lshlrev_b32 v3, 8, v3\nv_bfe_u32 v4, v0, 2, 2\nv_lshl_add_u32 v3, v4, 4, v3")
                A(f"v_lshrrev_b32 v4, 4, v0\nv_lshl_add_u32 v3, v4, 6, v3\nv_add_u32 v3, {QV}, v3")
                A("s_barrier")
            if n == self.n_early:
                self.flag_add(VFL, VONE, F_EARLY)
            if n == NL - self.mid_back:
                self.flag_add(VFL, VONE, F_MID)
            if n == NL - self.a_back:
                self.flag_add(VFL, VONE, F_A)
            if n == NL - self.p_back:
                self.flag_add(VFL, VONE, F_P)

        def qsync():
            A("; q (four heads) as B operand, and whether the group shares a die")
            self.flagged(VFL, VFG, F_Q, 1, ["ds_read_b128 v[4:7], v3", f"ds_read_b32 v{VT}, v{VFL} offset:{F_LOC}"])
            A(f"s_waitcnt lgkmcnt(0)\nv_readfirstlane_b32 s63, v{VT}")

        def qk(i):
            nt = rem if (rem and i == NB - 1) else 4
            for j in range(nt):
                A(f"v_mfma_f32_16x16x32_bf16 {vr(D0+4*j,4)}, {vr(slot(4*i+j),4)}, v[4:7], 0")
            d = lambda j, b: D0 + 4 * j + b
            dp = lambda dst, s0, s1, ror, bm: A(f"v_add_f32_dpp v{dst}, v{s0}, v{s1} row_ror:{ror} row_mask:0xf bank_mask:{bm:#x}")
            dp(X0, d(0, 1), d(0, 0), 12, 1)
            dp(X1, d(2, 1), d(2, 0), 12, 1)
            dp(X0, d(1, 0), d(1, 1), 4, 2)
            dp(X1, d(3, 0), d(3, 1), 4, 2)
            dp(X0, d(0, 3), d(0, 2), 12, 4)
            dp(X1, d(2, 3), d(2, 2), 12, 4)
            dp(X0, d(1, 2), d(1, 3), 4, 8)
            dp(X1, d(3, 2), d(3, 3), 4, 8)
            dp(S0 + i, X0, X0, 8, 3)
            dp(S0 + i, X1, X1, 8, 12)
            if nt < 4:
                A(f"v_mov_b32 v{VT}, 0xff800000")
                A(f"v_mov_b32_dpp v{S0+i}, v{VT} quad_perm:[0,1,2,3] row_mask:0xf bank_mask:{(0xf << nt) & 0xf:#x}")

        def rnd(i):
            a, b = S0 + i, S0 + min(i + 1, NB - 1)
            A(f"v_cvt_pk_bf16_f32 v{VT}, v{a}, v{b}")
            if a != b: A(f"v_lshlrev_b32 v{a}, 16, v{VT}")
            A(f"v_and_b32 v{b}, s60, v{VT}")
            if a != b: A(f"v_mul_f32 v{a}, s58, v{a}")
            A(f"v_mul_f32 v{b}, s58, v{b}")
            A(f"v_cvt_pk_bf16_f32 v{VT}, v{a}, v{b}")
            if a != b: A(f"v_lshlrev_b32 v{a}, 16, v{VT}")
            A(f"v_and_b32 v{b}, s60, v{VT}")
            if i == 0:
                A(f"v_max_f32 v{VM}, v{a}, v{b}")
            else:
                A(f"v_max3_f32 v{VM}, v{VM}, v{a}, v{b}")

        def sm_max():
            A("; maximum over this wave's keys")
            self.allred("v_max_f32", [VM], [VT], rors=(4, 8))
            A(f"v_mul_f32 v{VT2}, s59, v{VM}")

        def sm_exp(lo, hi):
            for i in range(lo, hi):
                A(f"v_fma_f32 v{S0+i}, v{S0+i}, s59, -v{VT2}")
            for i in range(lo, hi):
                A(f"v_exp_f32 v{S0+i}, v{S0+i}")
            for i in range(lo, hi):
                if i == 1:
                    A(f"v_add_f32 v{VL}, v{S0}, v{S0+1}")
                elif i > 1:
                    A(f"v_add_f32 v{VL}, v{VL}, v{S0+i}")

        def sm_sum():
            self.allred("v_add_f32", [VL], [VT], rors=(4, 8))
            A(f"v_and_b32 v3, 3, v0\nv_lshlrev_b32 v3, 4, v3\nv_add_u32 v3, {STL}, v3")
            A(f"s_lshl_b32 s6, s3, 2\nv_add_u32 v4, s6, v3")
            A("s_mov_b64 exec, 15")
            A(f"ds_write_b32 v4, v{VM}\nds_write_b32 v4, v{VL} offset:64")
            self.flag_add(VFL, VONE, F_ST)

        def pv_setup():
            for r in list(range(AB, AB + 8)) + list(range(ACC0, ACC0 + 8)):
                A(f"v_mov_b32 v{r}, 0")
            A(f"s_lshl_b32 s6, s3, 10\ns_add_u32 s6, s6, {ACC}\nv_add_u32 v{VRD}, s6, v2")
            A(f"s_lshl_b32 s61, s4, 16\ns_lshl_b32 s7, s5, 11\ns_add_u32 s61, s61, s7\ns_lshl_b32 s7, s3, 10\ns_add_u32 s61, s61, s7\ns_add_u32 s61, s61, {OP_OFF}")

        def msync():
            if self.rank: st["rk_at"] = st["cur"] + self.rdelay
            self.flagged(VFL, VFG, F_ST, 4, [f"ds_read_b128 {vr(M4,4)}, v3"])
            A("s_waitcnt lgkmcnt(0)")
            A(f"v_max3_f32 v{VF}, v{M4}, v{M4+1}, v{M4+2}\nv_max_f32 v{VF}, v{VF}, v{M4+3}")
            A(f"v_sub_f32 v{VF}, v{VM}, v{VF}\nv_mul_f32 v{VF}, s59, v{VF}\nv_exp_f32 v{VF}, v{VF}")
            A(f"s_lshl_b32 s6, s3, 11\ns_add_u32 s6, s6, {ACC}\nv_add_u32 v3, s6, v2")

        def tcalc(i):
            A(f"v_mul_f32 v{VT}, v{S0+i}, v{VF}")
            A(f"v_cvt_pk_bf16_f32 v{TLO}, v{VT}, 0\nv_cvt_pk_bf16_f32 v{THI}, 0, v{VT}")

        def mv(dst, src, dbank, j):
            rot = 4 * ((dbank - j) & 3)
            ctl = f"row_ror:{rot}" if rot else "quad_perm:[0,1,2,3]"
            A(f"v_mov_b32_dpp v{dst}, v{src} {ctl} row_mask:0xf bank_mask:{1<<dbank:#x}")

        abuf = lambda t: AB + 2 * (t % 4)

        def prep(ts):
            for t in ts:
                mv(abuf(t), TLO, 0, t % 4)
                mv(abuf(t) + 1, TLO, 2, t % 4)
            for t in ts:
                mv(abuf(t), THI, 1, t % 4)
                mv(abuf(t) + 1, THI, 3, t % 4)

        def pv(t):
            s = slot(NT + t)
            A(f"v_mfma_f32_16x16x16_bf16 {vr(ACC0,4)}, {vr(abuf(t),2)}, {vr(s,2)}, {vr(ACC0,4)}")
            A(f"v_mfma_f32_16x16x16_bf16 {vr(ACC1,4)}, {vr(abuf(t),2)}, {vr(s+2,2)}, {vr(ACC1,4)}")

        KB = float(self.kbudget)
        items = [(RING - 1 - depth(RING - 1), qsync, 0.5, -1, 0)]
        for i in range(NB):
            lt = min(4 * i + 3, NT - 1)
            items.append((lt, (lambda i=i: qk(i)), 2, lt, 0))
            if i % 2 == 1 or i == NB - 1:
                items.append((-1, (lambda i=i: rnd(i - (i % 2))), 0.5, -1, 0))
        h = NB // 2
        items += [(-1, sm_max, 1.5, -1, 0), (-1, lambda: sm_exp(0, h), 2, -1, 0), (-1, lambda: sm_exp(h, NB), 2, -1, 0),
                  (-1, sm_sum, 2, -1, 0), (-1, pv_setup, 2, -1, 0), (-1, msync, 1, -1, self.stdelay)]
        for i in range(NB):
            items.append((-1, (lambda i=i: tcalc(i)), 0, -1, 0))
            for u in (2 * i, 2 * i + 1):
                ts = [t for t in (2 * u, 2 * u + 1) if t < NT]
                if not ts: continue
                items.append((-1, (lambda ts=ts: prep(ts)), 0, -1, 0))
                for t in ts:
                    items.append((NT + t, (lambda t=t: pv(t)), KB / self.pvrate, NT + t, 0))
        pos, freed, lastn = 0, -1, 0
        for n in range(NL):
            while n - RING > freed:
                need, emit, cost, fr, dl = items[pos]
                assert need <= st["landed"], (n, need)
                emit(); pos += 1; freed = max(freed, fr); lastn = n
            load(n)
            budget = KB
            while pos < len(items) and items[pos][0] <= st["landed"] and (budget > 0 or items[pos][2] == 0) and n >= lastn + items[pos][4]:
                need, emit, cost, fr, dl = items[pos]
                emit(); pos += 1; budget -= cost; freed = max(freed, fr); lastn = n
        while pos < len(items):
            need, emit, cost, fr, dl = items[pos]
            if need > st["landed"]:
                A(f"s_waitcnt vmcnt({NL-1-need})")
                st["landed"] = need
            emit(); pos += 1
        A("s_cmp_ge_u32 s3, 2")
        A(f"ds_write_b128 v3, {vr(ACC0,4)}\nds_write_b128 v3, {vr(ACC1,4)} offset:1024")
        self.flag_add(VFL, VONE, F_ACC)
        if not islast:
            A("s_branch L_stail")

    def stream_tail(self):
        A = self.A
        VFL, VONE, VRD = 25, 26, 51
        ex = "L_sexit"
        A("L_stail:")
        A("s_cbranch_scc1 L_noop")
        self.flagged(VFL, 27, F_ACC, 4, [f"ds_read_b128 {vr(8+4*sw,4)}, v{VRD} offset:{sw*2048}" for sw in range(4)])
        A("s_waitcnt lgkmcnt(2)")
        A("v_pk_add_f32 v[8:9], v[8:9], v[12:13]\nv_pk_add_f32 v[10:11], v[10:11], v[14:15]")
        A("s_waitcnt lgkmcnt(0)")
        A("v_pk_add_f32 v[16:17], v[16:17], v[20:21]\nv_pk_add_f32 v[18:19], v[18:19], v[22:23]")
        A("v_pk_add_f32 v[8:9], v[8:9], v[16:17]\nv_pk_add_f32 v[10:11], v[10:11], v[18:19]")
        self.store_alt(["buffer_store_dwordx4 v[8:11], v2, s[16:19], s61 offen"], "s63")
        self.flag_add(VFL, VONE, F_OPS)
        A("L_noop:")
        self.probe_mark("b3", 0)
        self.stamp(6, True)
        A(f"s_cmp_ge_u32 s100, 56\ns_cbranch_scc1 {ex}")
        SEL, XR, P2, vH2, vHVw, vH3, vFo, vFh = 40, 28, 64, 32, 33, 34, 35, 36
        A("s_load_dwordx2 s[20:21], s[0:1], 0\ns_load_dwordx2 s[44:45], s[0:1], 72")
        A("s_mov_b32 s22, 1024\ns_mov_b32 s23, 0x20000\ns_mov_b32 s46, 1024\ns_mov_b32 s47, 0x20000")
        A("v_lshrrev_b32 v12, 4, v0\nv_and_b32 v5, 15, v0\ns_lshl_b32 s6, s3, 8")
        A(f"v_lshlrev_b32 v6, 10, v12\nv_lshl_add_u32 v{vH2}, v5, 4, v6")
        A(f"v_and_b32 v6, 1, v12\nv_lshlrev_b32 v6, 3, v6\nv_lshl_add_u32 v6, v5, 4, v6\nv_add_u32 v13, s6, v6\nv_add_u32 v{vHVw}, {HV}, v13")
        A(f"s_add_u32 s64, s6, {Y_OFF}")
        for t in range(1, 8):
            A(f"s_add_u32 s{64+t}, s64, {t*4096}")
        A("v_and_b32 v6, 1, v5\nv_lshlrev_b32 v6, 4, v6\nv_mov_b32 v7, 0x3f80\nv_lshlrev_b32 v6, v6, v7\nv_lshrrev_b32 v7, 1, v5")
        for q in range(4):
            A(f"v_cmp_eq_u32 vcc, {q}, v7\nv_cndmask_b32 v{SEL+q}, 0, v6, vcc")
        A(f"v_lshrrev_b32 v6, 3, v0\nv_lshlrev_b32 v6, 11, v6\nv_and_b32 v7, 7, v0\nv_lshl_add_u32 v{vH3}, v7, 4, v6")
        A("s_mul_i32 s101, s4, 3\ns_add_u32 s101, s101, s5\ns_cmp_lt_u32 s5, 3\ns_cselect_b32 s101, s101, 63")
        A("s_and_b32 s72, s101, 15")
        A(f"s_lshl_b32 s6, s72, 6\nv_lshlrev_b32 v6, 3, v7\nv_lshl_add_u32 v6, v12, 1, v6\nv_add_u32 v{vFo}, s6, v6\nv_add_u32 v{vFh}, {HV}, v{vFo}")
        A(f"s_lshl_b32 s72, s72, 7\ns_add_u32 s72, s72, {Z_OFF}")
        A("s_waitcnt lgkmcnt(0)")
        A("buffer_load_dwordx2 v[8:9], v13, s[20:23], 0 offen")
        A("buffer_load_dword v10, v13, s[44:47], 0 offen")
        self.flagged(VFL, 4, {"gl": F_GL, "g2": F_G2}[self.h2on], 4, slp=1)
        if self.d2: A(f"s_sleep {self.d2}")
        h2load = lambda t: A(f"buffer_load_dwordx4 {vr(P2+4*t,4)}, v{vH2}, s[16:19], s{64+t} offen sc1")
        for t in range(8):
            h2load(t)
        A("s_waitcnt vmcnt(8)")
        A(f"v_lshlrev_b32 v{XR}, 16, v8\nv_and_b32 v{XR+1}, s60, v8\nv_lshlrev_b32 v{XR+2}, 16, v9\nv_and_b32 v{XR+3}, s60, v9")
        lp, out = self.lab("h2"), self.lab("h2ok")
        A("s_mov_b32 s7, 0")
        A(f"{lp}:")
        A("s_waitcnt vmcnt(0)")
        for t in range(8):
            A(f"v_mfma_f32_16x16x32_bf16 v[8:11], {vr(SEL,4)}, {vr(P2+4*t,4)}, {'0' if t == 0 else 'v[8:11]'}")
        A("v_cmp_u_f32 vcc, v8, v9\nv_cmp_u_f32 s[78:79], v10, v11")
        A("s_or_b64 vcc, vcc, s[78:79]")
        A(f"s_cbranch_scc0 {out}")
        self.spin_guard(out)
        if self.b2: A(f"s_sleep {self.b2}")
        self.reload([P2 + 4 * t for t in range(8)], h2load)
        A(f"s_branch {lp}")
        A(f"{out}:")
        self.probe_mark("h2", 2)
        if self.stamps == 1: A("s_mov_b32 s84, s7")
        self.stamp(1)
        A(f"v_pk_add_f32 v[8:9], v[8:9], {vr(XR,2)}\nv_pk_add_f32 v[10:11], v[10:11], {vr(XR+2,2)}")
        A("v_cvt_pk_bf16_f32 v4, v8, v9\nv_cvt_pk_bf16_f32 v5, v10, v11")
        A("s_mov_b64 exec, 0xffffffff")
        A(f"ds_write_b64 v{vHVw}, v[4:5]")
        A("s_mov_b64 exec, -1")
        A("s_waitcnt lgkmcnt(0)")
        A("s_barrier")
        A(f"s_cmp_ge_u32 s101, 16\ns_cbranch_scc1 {ex}\ns_cmp_lg_u32 s3, {self.fw}\ns_cbranch_scc1 {ex}")
        A(f"ds_read_u16 v12, v{vFh}")
        for t in range(1, 7):
            A(f"s_add_u32 s{64+t}, s72, {t*16384}")
        A("s_mov_b32 s64, s72")
        A("s_waitcnt lgkmcnt(0)")
        A("v_lshlrev_b32 v12, 16, v12")
        A("s_barrier")
        if self.d3: A(f"s_sleep {self.d3}")
        h3load = lambda t: A(f"buffer_load_dwordx4 {vr(P2+4*t,4)}, v{vH3}, s[16:19], s{64+t} offen sc1")
        for t in range(7):
            h3load(t)
        lp, out = self.lab("h3"), self.lab("h3ok")
        A("s_mov_b32 s7, 0")
        A(f"{lp}:")
        A("s_waitcnt vmcnt(0)")
        for dst, a, b in ((4, P2, P2 + 4), (8, P2 + 8, P2 + 12), (16, P2 + 16, P2 + 20), (4, 4, P2 + 24), (8, 8, 16), (4, 4, 8)):
            for k in (0, 2):
                A(f"v_pk_add_f32 {vr(dst+k,2)}, {vr(a+k,2)}, {vr(b+k,2)}")
        A("v_cmp_u_f32 vcc, v4, v5\nv_cmp_u_f32 s[78:79], v6, v7")
        A("s_or_b64 vcc, vcc, s[78:79]")
        A(f"s_cbranch_scc0 {out}")
        self.spin_guard(out)
        if self.b3: A(f"s_sleep {self.b3}")
        self.reload([P2 + 4 * t for t in range(7)], h3load)
        A(f"s_branch {lp}")
        A(f"{out}:")
        self.probe_mark("h3", 2)
        if self.stamps == 1: A("s_mov_b32 s85, s7")
        self.stamp(2)
        self.lane_sum4([4])
        A("v_add_f32 v4, v12, v4\nv_cvt_pk_bf16_f32 v4, v4, v4")
        if self.probe:
            lp = self.lab("pr")
            A("s_sleep 20\nv_mov_b32 v251, 0")
            A("buffer_load_dwordx2 v[248:249], v251, s[48:51], 0 offen offset:4 sc1\ns_waitcnt vmcnt(0)")
            A("v_readfirstlane_b32 s92, v248\nv_readfirstlane_b32 s93, v249\ns_not_b32 s92, s92")
            if self.probe == "t0": A("s_mov_b32 s93, s92")
            if self.probe.endswith(":mean"): A("s_lshr_b32 s93, s93, 8\ns_add_u32 s93, s93, s92")
            A(f"s_add_u32 s93, s93, {self.pticks}\ns_mov_b32 s7, 0")
            A(f"{lp}:\ns_memrealtime s[96:97]\ns_add_u32 s7, s7, 1\ns_cmp_gt_u32 s7, 100000\ns_cbranch_scc1 {lp}x\ns_waitcnt lgkmcnt(0)\ns_sub_u32 s6, s96, s93\ns_cmp_lt_i32 s6, 0\ns_cbranch_scc1 {lp}\n{lp}x:\ns_waitcnt lgkmcnt(0)")
        A("s_mov_b32 exec_lo, 0x00ff00ff\ns_mov_b32 exec_hi, 0x00ff00ff")
        A(f"buffer_store_short v4, v{vFo}, s[44:47], 0 offen")
        if self.stamps:
            A("s_mov_b64 exec, -1")
            self.stamp(3, True)
        A(f"{ex}:")
        if self.stamps:
            A(f"s_cmp_lg_u32 s3, {self.fw}\ns_cbranch_scc1 L_end")
            self.stamp_store(0, 7)
        A("s_endpgm")

    VFL = 245

    def helper(self):
        A = self.A
        A("L_helper:")
        A("s_load_dwordx2 s[20:21], s[0:1], 0         ; x")
        A("s_load_dwordx2 s[24:25], s[0:1], 24        ; wq")
        A("s_load_dwordx2 s[48:49], s[0:1], 80        ; debug")
        A("s_load_dwordx2 s[28:29], s[0:1], 32        ; wo")
        A("s_sub_u32 s3, s3, 4")
        A("s_mov_b32 s22, 1024\ns_mov_b32 s23, 0x20000\ns_mov_b32 s26, 0x400000\ns_mov_b32 s27, 0x20000")
        A("s_mov_b32 s50, 256\ns_mov_b32 s51, 0x20000\ns_mov_b32 s30, 0x400000\ns_mov_b32 s31, 0x20000")
        A("v_lshlrev_b32 v2, 4, v0")
        A(f"s_mov_b32 s59, {LOG2E}\ns_mov_b32 s60, {HIMASK}")
        A("s_lshr_b32 s62, s5, 3\ns_and_b32 s63, s5, 7")
        A("s_waitcnt lgkmcnt(0)")
        A("s_load_dwordx2 s[32:33], s[0:1], 48        ; w_gate")
        A("s_load_dwordx2 s[36:37], s[0:1], 56        ; w_up")
        A("s_load_dwordx2 s[40:41], s[0:1], 64        ; w_down")
        A("s_mov_b32 s34, 0x1c0000\ns_mov_b32 s35, 0x20000\ns_mov_b32 s38, 0x1c0000\ns_mov_b32 s39, 0x20000")
        A("s_mov_b32 s42, 0x1c0000\ns_mov_b32 s43, 0x20000")
        A(f"s_lshl_b32 s6, s4, 5\ns_add_u32 s6, s6, s5\ns_lshl_b32 s64, s6, 5\ns_add_u32 s64, s64, {ST_OFF}")
        A(f"s_lshl_b32 s66, s6, 11\ns_add_u32 s66, s66, {OP_OFF}")
        A(f"s_lshl_b32 s7, s4, 2\ns_add_u32 s7, s7, s62\ns_lshl_b32 s7, s7, 11\ns_lshl_b32 s6, s63, 8\ns_add_u32 s58, s7, s6")
        A(f"s_add_u32 s58, s58, {QP_OFF}\ns_lshl_b32 s65, s4, 5")
        A(f"s_sub_u32 s12, s5, 8\ns_lshl_b32 s13, s4, 4\ns_add_u32 s13, s13, s12\ns_lshl_b32 s13, s13, 8\ns_add_u32 s13, s13, {Y_OFF}")
        A("s_getreg_b32 s6, hwreg(HW_REG_XCC_ID, 0, 4)")
        A("s_mul_i32 s7, s6, s6\ns_lshl_b32 s7, s7, 18\ns_lshl_b32 s6, s6, 8\ns_or_b32 s6, s6, s7\ns_or_b32 s14, s6, 1")
        A(f"v_mov_b32 v{self.VFL}, {FL}")
        A("s_cmp_lg_u32 s3, 0")
        A("s_cbranch_scc1 L_h123")
        self.h0()
        A("s_branch L_hjoin")
        self.h123()
        A("L_hjoin:")
        self.flagged(self.VFL, 4, F_W, 1, slp=4)
        A("v_lshrrev_b32 v12, 4, v0\nv_bfe_u32 v13, v0, 2, 2\nv_and_b32 v14, 3, v0\nv_lshl_add_u32 v15, v12, 3, v13\nv_mov_b32 v240, 1")
        A("s_cmp_lt_u32 s5, 8\ns_cbranch_scc1 L_gpath\ns_cmp_ge_u32 s5, 24\ns_cbranch_scc1 L_ppath")
        self.wpath()
        self.ppath()
        self.gpath()

    def h0(self):
        A = self.A
        self.stamp(0)
        A("buffer_load_dwordx4 v[4:7], v2, s[20:23], 0 offen")
        A("v_lshrrev_b32 v3, 3, v0\nv_lshlrev_b32 v3, 13, v3\nv_and_b32 v1, 7, v0\nv_lshl_add_u32 v3, v1, 4, v3")
        A("s_lshl_b32 s6, s62, 20\ns_lshl_b32 s7, s4, 10\ns_add_u32 s6, s6, s7\ns_lshl_b32 s7, s63, 7\ns_add_u32 s6, s6, s7")
        for t in range(16):
            A(f"s_mov_b32 m0, {WQ + t*1024}")
            A(f"buffer_load_dwordx4 v3, s[24:27], s6 offen {self.wpol} lds")
            if t < 15:
                A("s_add_u32 s6, s6, 0x10000")
            if t == 3:
                A("s_barrier")
        A("s_waitcnt vmcnt(16)")
        for k in range(4):
            A(f"v_lshlrev_b32 v{12+2*k}, 16, v{4+k}\nv_and_b32 v{13+2*k}, s60, v{4+k}")
        A("v_add_f32 v20, v12, v13\nv_add_f32 v21, v14, v15\nv_add_f32 v22, v16, v17\nv_add_f32 v23, v18, v19")
        A("v_add_f32 v20, v20, v21\nv_add_f32 v22, v22, v23\nv_add_f32 v20, v20, v22")
        self.allred("v_add_f32", [20], [21])
        A(f"v_mul_f32 v20, {INV512}, v20")
        for k in range(8):
            A(f"v_sub_f32 v{24+k}, v{12+k}, v20")
        A("v_mul_f32 v22, v24, v24")
        for k in range(1, 8):
            A(f"v_fmac_f32 v22, v{24+k}, v{24+k}")
        self.allred("v_add_f32", [22], [21])
        A(f"v_mul_f32 v22, {INV512}, v22")
        self.ln_scalars(20, 22, 21)
        for k in range(4):
            a, b = 12 + 2 * k, 13 + 2 * k
            A(f"v_sub_f32 v{a}, v{a}, v20\nv_sub_f32 v{b}, v{b}, v20")
            A(f"v_cvt_pk_bf16_f32 v21, v{a}, v{b}")
            A(f"v_lshlrev_b32 v{a}, 16, v21\nv_and_b32 v{b}, s60, v21")
            A(f"v_mul_f32 v{a}, v{a}, v22\nv_mul_f32 v{b}, v{b}, v22")
            A(f"v_cvt_pk_bf16_f32 v{4+k}, v{a}, v{b}")
        A(f"v_add_u32 v1, {XN}, v2")
        A("ds_write_b128 v1, v[4:7]")
        A("v_lshrrev_b32 v12, 4, v0\nv_bfe_u32 v13, v0, 2, 2\nv_and_b32 v14, 3, v0")
        A("v_lshl_add_u32 v15, v12, 3, v13\nv_lshlrev_b32 v15, 7, v15\nv_lshl_add_u32 v15, v14, 3, v15")
        A(f"s_lshl_b32 s6, s62, 8\ns_add_u32 s6, s6, {XN}\nv_lshlrev_b32 v17, 4, v12\nv_add_u32 v16, s6, v17")
        A("s_waitcnt lgkmcnt(0)")
        for m in range(4):
            A(f"ds_read_b128 {vr(128+4*m,4)}, v16 offset:{m*64}")
        A("v_mov_b32 v1, 0")
        A("s_waitcnt vmcnt(0)")
        for m in range(4):
            base = 64 + 16 * m
            for ct in range(4):
                A(f"ds_read_b64_tr_b16 {vr(base+4*ct,2)}, v15 offset:{WQ + m*4096 + ct*32}")
                A(f"ds_read_b64_tr_b16 {vr(base+4*ct+2,2)}, v15 offset:{WQ + m*4096 + ct*32 + 512}")
            A("s_waitcnt lgkmcnt(0)")
            for ct in range(4):
                c = "0" if m == 0 else vr(32 + 4 * ct, 4)
                A(f"v_mfma_f32_16x16x32_bf16 {vr(32+4*ct,4)}, {vr(base+4*ct,4)}, {vr(128+4*m,4)}, {c}")
        self.flagged(self.VFL, 4, F_EARLY, 1, slp=2)
        if "nocnt" in self.dbg: A("v_mov_b32 v4, s14\nv_lshlrev_b32 v4, 5, v4")
        else: self.cnt_wait("s65", "v1")
        self.stamp(3)
        A("v_readfirstlane_b32 s6, v4\ns_lshl_b32 s7, s14, 5\ns_cmp_eq_u32 s6, s7\ns_cselect_b32 s15, 1, 0")
        if not self.local: A("s_mov_b32 s15, 0")
        A(f"v_mov_b32 v5, s15\nds_write_b32 v{self.VFL}, v5 offset:{F_LOC}")
        A("s_mov_b32 exec_lo, 0x00010001\ns_mov_b32 exec_hi, 0x00010001")
        self.store_alt([f"buffer_store_dwordx4 {vr(32+4*ct,4)}, v17, s[16:19], s58 offen offset:{ct*64}" for ct in range(4)], "s15")
        A("s_mov_b64 exec, -1")
        if self.dq: A(f"s_sleep {self.dq}")
        A(f"s_lshl_b32 s6, s4, 13\ns_add_u32 s6, s6, {QP_OFF}\ns_add_u32 s66, s6, 4096")
        lp, out = self.lab("qpoll"), self.lab("qok")
        A("s_mov_b32 s7, 0")
        A(f"{lp}:")
        for rb in range(4):
            for hf in range(2):
                if "noqp" not in self.dbg: A(f"buffer_load_dwordx4 {vr(64+8*rb+4*hf,4)}, v2, s[16:19], {'s6' if rb < 2 else 's66'} offen offset:{(rb&1)*2048+hf*1024} sc1")
        self.spin_guard(out)
        A("s_waitcnt vmcnt(0)")
        for k in range(0, 8, 2):
            A(f"v_pk_add_f32 {vr(64+k,2)}, {vr(64+k,2)}, {vr(72+k,2)}\nv_pk_add_f32 {vr(80+k,2)}, {vr(80+k,2)}, {vr(88+k,2)}")
        for k in range(0, 8, 2):
            A(f"v_pk_add_f32 {vr(64+k,2)}, {vr(64+k,2)}, {vr(80+k,2)}")
        A("v_cmp_u_f32 vcc, v64, v65\nv_cmp_u_f32 s[68:69], v66, v67\nv_cmp_u_f32 s[70:71], v68, v69\nv_cmp_u_f32 s[72:73], v70, v71")
        A("s_or_b64 vcc, vcc, s[68:69]\ns_or_b64 s[70:71], s[70:71], s[72:73]\ns_or_b64 vcc, vcc, s[70:71]")
        if "noqp" in self.dbg:
            for k in range(8): A(f"v_mov_b32 v{64+k}, 0")
            A(f"s_branch {out}")
        A(f"s_cbranch_scc0 {out}")
        A(f"s_sleep {self.slp}")
        A(f"s_branch {lp}")
        A(f"{out}:")
        A("s_waitcnt vmcnt(0)")
        A("v_cvt_pk_bf16_f32 v4, v64, v65\nv_cvt_pk_bf16_f32 v5, v66, v67\nv_cvt_pk_bf16_f32 v6, v68, v69\nv_cvt_pk_bf16_f32 v7, v70, v71")
        A(f"v_lshlrev_b32 v1, 3, v0\nv_add_u32 v1, {QV}, v1\nv_mov_b32 v8, 1")
        A("ds_write_b64 v1, v[4:5]\nds_write_b64 v1, v[6:7] offset:512")
        self.flag_add(self.VFL, 8, F_Q)
        self.probe_mark("q", 0)
        self.stamp(13)
        A(f"v_and_b32 v1, 3, v0\nv_lshlrev_b32 v5, 4, v1\nv_add_u32 v5, {STL}, v5\nv_lshlrev_b32 v1, 3, v1")
        self.flagged(self.VFL, 4, F_ST, 4, slp=4)
        A("ds_read_b128 v[8:11], v5\nds_read_b128 v[12:15], v5 offset:64")
        A("s_waitcnt lgkmcnt(0)")
        A("v_max3_f32 v16, v8, v9, v10\nv_max_f32 v16, v16, v11")
        for k in range(4):
            A(f"v_sub_f32 v{8+k}, v{8+k}, v16")
        for k in range(4):
            A(f"v_mul_f32 v{8+k}, s59, v{8+k}")
        for k in range(4):
            A(f"v_exp_f32 v{8+k}, v{8+k}")
        A("v_mul_f32 v17, v8, v12\nv_fmac_f32 v17, v9, v13\nv_fmac_f32 v17, v10, v14\nv_fmac_f32 v17, v11, v15")
        A("s_mov_b64 exec, 15")
        self.store_alt(["buffer_store_dwordx2 v[16:17], v1, s[16:19], s64 offen"], "s15")
        A("s_mov_b64 exec, -1")
        if self.rank:
            sk = self.lab("rk")
            A(f"s_cmp_eq_u32 s15, 0\ns_cbranch_scc1 {sk}")
            A(f"s_lshl_b32 s6, s4, 10\ns_add_u32 s6, s6, {ST_OFF}")
            A("buffer_load_dword v4, v2, s[16:19], s6 offen sc1")
            A("s_waitcnt vmcnt(0)")
            tab = [sum((abs(b) // 4) << (4 * i) for i, b in enumerate(self.rank[k:k+8])) for k in (0, 8)]
            assert all(b <= 0 for b in self.rank[:8]) and all(b >= 0 for b in self.rank[8:])
            A("v_cmp_o_f32 vcc, v4, v4")
            if self.rcls:
                A("s_mov_b32 s70, 0xffff0000\ns_mov_b32 s71, 0xffff\ns_mov_b32 s7, 1\ns_cmp_lt_u32 s5, 8\ns_cselect_b32 s70, 0xffff, s70\ns_cselect_b32 s71, 0, s71\ns_cselect_b32 s7, 2, s7")
                A("s_cmp_ge_u32 s5, 24\ns_cselect_b32 s70, 0, s70\ns_cselect_b32 s71, 0xffff0000, s71\ns_cselect_b32 s7, 2, s7")
                A("s_and_b64 vcc, vcc, s[70:71]\ns_bcnt1_i32_b64 s6, vcc\ns_sub_u32 s6, s6, 1\ns_max_i32 s6, s6, 0\ns_lshl_b32 s6, s6, s7")
            else:
                A("s_bcnt1_i32_b64 s6, vcc")
            A("s_min_u32 s6, s6, 63\ns_and_b32 s6, s6, 60")
            A(f"s_mov_b32 s70, {tab[0]:#x}\ns_mov_b32 s71, {tab[1]:#x}\ns_lshr_b64 s[70:71], s[70:71], s6\ns_and_b32 s70, s70, 15\ns_lshl_b32 s70, s70, 2")
            A("s_lshl_b32 s71, s70, 8\ns_cmp_lt_u32 s6, 32\ns_cselect_b32 s6, s71, s70")
            A(f"v_mov_b32 v4, s6\nds_write_b32 v{self.VFL}, v4 offset:{F_RK}")
            A(f"{sk}:")
        self.flagged(self.VFL, 4, F_MID, 1, slp=4)
        A("v_and_b32 v1, 7, v0\nv_lshlrev_b32 v1, 5, v1")
        self.cnt_wait("0", "v1")
        sk = self.lab("now")
        A(f"v_mov_b32 v6, 1\ns_cmp_ge_u32 s12, 16\ns_cbranch_scc1 {sk}")
        A(f"s_lshl_b32 s6, s4, 10\ns_add_u32 s6, s6, {ST_OFF}")
        lp, out = self.lab("spoll"), self.lab("sok")
        A("s_mov_b32 s7, 0")
        A(f"{lp}:")
        A("buffer_load_dwordx4 v[8:11], v2, s[16:19], s6 offen sc1")
        self.spin_guard(out)
        A("s_waitcnt vmcnt(0)")
        A("v_cmp_u_f32 vcc, v8, v9\nv_cmp_u_f32 s[78:79], v10, v11")
        A("s_or_b64 vcc, vcc, s[78:79]")
        A(f"s_cbranch_scc0 {out}")
        A(f"s_sleep {self.slp}")
        A(f"s_branch {lp}")
        A(f"{out}:")
        A("s_waitcnt vmcnt(0)")
        A("v_mov_b32 v4, v8\nv_mov_b32 v5, v10")
        self.allred("v_max_f32", [4, 5], [12, 13], rors=("x2", 4, 8))
        A("v_sub_f32 v8, v8, v4\nv_sub_f32 v10, v10, v5\nv_mul_f32 v8, s59, v8\nv_mul_f32 v10, s59, v10")
        A("v_exp_f32 v8, v8\nv_exp_f32 v10, v10")
        A("v_mul_f32 v9, v8, v9\nv_mul_f32 v11, v10, v11")
        self.allred("v_add_f32", [9, 11], [12, 13], rors=("x2", 4, 8))
        A("v_rcp_f32 v9, v9\nv_rcp_f32 v11, v11")
        A(f"v_lshlrev_b32 v5, 3, v0\nv_add_u32 v5, {WT}, v5")
        A("v_mul_f32 v8, v8, v9\nv_mul_f32 v9, v10, v11")
        A("ds_write_b64 v5, v[8:9]")
        A(f"{sk}:")
        self.flag_add(self.VFL, 6, F_W)
        self.stamp(6)

    def h123(self):
        A = self.A
        A("L_h123:")
        l2, l3, dn = self.lab("h2"), self.lab("h3"), self.lab("hd")
        A("v_mov_b32 v4, 0\nv_mov_b32 v5, 0\nv_mov_b32 v6, 0\nv_mov_b32 v7, 0")
        A(f"s_cmp_eq_u32 s3, 2\ns_cbranch_scc1 {l2}\ns_cmp_eq_u32 s3, 3\ns_cbranch_scc1 {l3}")
        self.probe_mark("t0", 1)
        A("v_mov_b32 v8, -1\nv_mov_b32 v9, -1\nv_mov_b32 v10, -1\nv_mov_b32 v11, -1")
        cp = "" if "plainclr" in self.dbg else "sc1"
        A(f"buffer_store_dwordx4 v[8:11], v2, s[16:19], s66 offen {cp}")
        A(f"buffer_store_dwordx4 v[8:11], v2, s[16:19], s66 offen offset:1024 {cp}")
        A("s_mov_b64 exec, 3")
        A(f"buffer_store_dwordx4 v[8:11], v2, s[16:19], s64 offen {cp}")
        A("s_mov_b64 exec, 0xffff")
        A(f"buffer_store_dwordx4 v[8:11], v2, s[16:19], s58 offen {cp}")
        if self.gate:
            sk = self.lab("cg")
            A(f"s_cmp_lg_u32 s5, {self.gwho}\ns_cbranch_scc1 {sk}\ns_mov_b64 exec, 1\ns_lshl_b32 s7, s4, 2\ns_add_u32 s7, s7, {GF_OFF}")
            A(f"buffer_store_dword v8, v2, s[16:19], s7 offen sc1\ns_mov_b64 exec, 0xffff\n{sk}:")
        a, b = self.lab("cz"), self.lab("cd")
        A(f"s_cmp_lt_u32 s5, 8\ns_cbranch_scc1 {a}")
        A(f"s_cmp_ge_u32 s5, 24\ns_cbranch_scc1 {b}")
        A(f"buffer_store_dwordx4 v[8:11], v2, s[16:19], s13 offen sc1\ns_branch {b}")
        A(f"{a}:\ns_cmp_ge_u32 s100, 56\ns_cbranch_scc1 {b}")
        A(f"s_mov_b64 exec, -1\ns_lshl_b32 s7, s100, 11\ns_add_u32 s7, s7, {Z_OFF}")
        A("buffer_store_dwordx4 v[8:11], v2, s[16:19], s7 offen sc1")
        A("buffer_store_dwordx4 v[8:11], v2, s[16:19], s7 offen offset:1024 sc1")
        A(f"{b}:")
        A("s_mov_b64 exec, -1\nv_mov_b32 v6, s14")
        A("s_barrier")
        A("s_waitcnt vmcnt(0)")
        A("s_mov_b64 exec, 1")
        A("buffer_atomic_add v6, v4, s[48:51], s65 offen sc1")
        A("s_mov_b64 exec, -1")
        A(f"s_branch {dn}")
        A(f"{l2}:")
        for o in (0, 16, 32, 48):
            A(f"ds_write_b128 v{self.VFL}, v[4:7] offset:{o}")
        A("s_waitcnt lgkmcnt(0)")
        A("s_barrier")
        A("s_getpc_b64 s[6:7]")
        A("L_pc_anchor:")
        A(f"s_sub_u32 s6, s6, L_pc_anchor-{KN}\ns_subb_u32 s7, s7, 0")
        A(f"s_lshl_b32 s68, s5, {9+self.cpf}\nv_lshl_add_u32 v1, v0, {5+self.cpf}, s68")
        A(f"v_min_u32 v4, L_code_end-{KN}-4, v1")
        A("s_mov_b64 exec, 0xffff")
        A("global_load_dword v8, v4, s[6:7]")
        A("s_mov_b64 exec, -1")
        A(f"s_branch {dn}")
        A(f"{l3}:")
        A(f"v_add_u32 v1, {ZR}, v2")
        A("ds_write_b128 v1, v[4:7]\nds_write_b128 v1, v[4:7] offset:512")
        self.touch_at = len(self.L)
        A(f"v_mov_b32 v8, 0x3f803f80\nv_mov_b32 v9, v8\nv_mov_b32 v10, v8\nv_mov_b32 v11, v8\nv_add_u32 v1, {ONES}, v2\nds_write_b128 v1, v[8:11]")
        A("s_barrier")
        if self.touch:
            A("; address translations of the weights that are first read at the end of the stream (values unused)")
            self.flagged(self.VFL, 12, F_EARLY if self.touch is True else F_ST, 1, slp=8)
            A("s_lshl_b32 s6, s4, 19\ns_mov_b64 exec, 1")
            A("buffer_load_dword v8, v4, s[28:31], s6 offen nt")
            A("buffer_load_dword v9, v4, s[32:35], 0 offen nt\nbuffer_load_dword v10, v4, s[36:39], 0 offen nt\nbuffer_load_dword v11, v4, s[40:43], 0 offen nt")
            A("s_mov_b64 exec, -1")
        A(f"{dn}:")
        A("s_waitcnt vmcnt(0) lgkmcnt(0)")

    def wpath(self):
        A = self.A
        VFL, vONE = self.VFL, 240
        WOA, PA, WTR, SA, DD = 16, 48, 64, 80, 96
        vH1, vYw, vYr, vYs, vPF, vWa, vWb = range(84, 91)
        TR = 128
        A(f"v_lshrrev_b32 v4, 3, v0\nv_lshlrev_b32 v6, 11, v4\nv_and_b32 v5, 7, v0\nv_lshl_add_u32 v{vH1}, v5, 4, v6")
        A(f"v_lshlrev_b32 v6, 4, v4\nv_add_u32 v6, {WT}, v6")
        for t in range(4):
            A(f"ds_read_b128 {vr(WTR+4*t,4)}, v6 offset:{t*128}")
        A("s_and_b32 s8, s12, 12\ns_add_u32 s8, s8, s3\ns_and_b32 s9, s12, 3")
        A(f"s_lshl_b32 s6, s4, 16\ns_add_u32 s6, s6, {OP_OFF}\ns_lshl_b32 s64, s8, 7\ns_add_u32 s64, s64, s6")
        for t in range(1, 4):
            A(f"s_add_u32 s{64+t}, s64, {t*0x4000}")
        A("s_lshl_b32 s72, s4, 19\ns_lshl_b32 s6, s9, 8\ns_add_u32 s72, s72, s6")
        A("s_and_b32 s6, s8, 1\ns_lshl_b32 s6, s6, 16\ns_add_u32 s72, s72, s6\ns_lshr_b32 s6, s8, 2\ns_lshl_b32 s6, s6, 11\ns_add_u32 s72, s72, s6")
        A("s_bfe_u32 s6, s8, 0x10001\ns_lshl_b32 s6, s6, 10\ns_add_u32 s72, s72, s6")
        A(f"v_and_b32 v5, 15, v0\nv_lshlrev_b32 v6, 4, v5\nv_lshlrev_b32 v7, 5, v12\nv_xor_b32 v6, v6, v7\nv_lshl_add_u32 v{vWa}, v12, 13, v6\nv_xor_b32 v{vWb}, 0x80, v{vWa}")
        A(f"s_lshl_b32 s74, s3, 13")
        A(f"v_and_b32 v6, 1, v12\nv_lshl_add_u32 v6, v6, 2, v13\nv_lshlrev_b32 v6, 5, v6\nv_lshl_add_u32 v6, v15, 8, v6\nv_lshl_add_u32 v6, v14, 3, v6\nv_add_u32 v{TR}, s74, v6")
        for ct in range(1, 8):
            A(f"v_xor_b32 v{TR+ct}, {ct*32}, v{TR}")
        A(f"s_lshl_b32 s6, s3, 9\ns_add_u32 s6, s6, {YL}")
        A(f"v_lshlrev_b32 v4, 4, v12\nv_add_u32 v{vYw}, s6, v4\nv_add_u32 v{vYr}, {YL}, v2\nv_lshlrev_b32 v{vYs}, 3, v0")
        if self.wil:
            A(f"v_and_b32 v4, 1, v0\nv_lshl_add_u32 v{vYw}, v4, 6, v{vYw}\ns_mov_b32 s22, 0xaaaaaaaa\ns_mov_b32 s23, 0xaaaaaaaa")
        A(f"v_lshlrev_b32 v{vPF}, 7, v0\ns_lshl_b32 s20, s4, 18\ns_lshl_b32 s6, s12, 14\ns_add_u32 s20, s20, s6\ns_lshl_b32 s6, s3, 12\ns_add_u32 s20, s20, s6")

        def h1load(t):
            A(f"buffer_load_dwordx4 {vr(PA+4*t,4)}, v{vH1}, s[16:19], s{64+t} offen sc1")

        self.flagged(VFL, 4, F_A, self.acnt, slp=1)
        self.stamp(7)
        for t in range(8):
            A(f"s_add_u32 m0, s74, {WO + t*1024}\ns_add_u32 s6, s72, {(t>>1)*131072 + (t&1)*32768}")
            A(f"buffer_load_dwordx4 v{vWb if t & 2 else vWa}, s[28:31], s6 offen {self.wpol} lds")

        def wotr():
            for ct in range(8):
                if ct in (5, 7): A("s_waitcnt lgkmcnt(8)")
                A(f"ds_read_b64_tr_b16 {vr(WOA+4*ct,2)}, v{TR+ct} offset:{WO}")
                A(f"ds_read_b64_tr_b16 {vr(WOA+4*ct+2,2)}, v{TR+ct} offset:{WO+1024}")
        if self.a_back > 4:
            A("s_waitcnt vmcnt(0)")
            self.stamp(5)
            wotr()
        self.flagged(VFL, 4, F_ACC, 4, slp=1)
        self.stamp(8)
        if self.d1: A(f"s_sleep {self.d1}")
        for t in range(4): h1load(t)
        if self.a_back <= 4:
            A("s_waitcnt vmcnt(4)")
            self.stamp(5)
            wotr()
        lp, out = self.lab("h1"), self.lab("h1ok")
        A("s_mov_b32 s7, 0")
        A(f"{lp}:")
        A("s_waitcnt vmcnt(0)")
        for t in range(4):
            for k in (0, 2):
                if t == 0:
                    A(f"v_pk_mul_f32 {vr(SA+k,2)}, {vr(PA+k,2)}, {vr(WTR+k,2)}")
                else:
                    A(f"v_pk_fma_f32 {vr(SA+k,2)}, {vr(PA+4*t+k,2)}, {vr(WTR+4*t+k,2)}, {vr(SA+k,2)}")
        A(f"v_cmp_u_f32 vcc, v{SA}, v{SA+1}\nv_cmp_u_f32 s[78:79], v{SA+2}, v{SA+3}")
        A("s_or_b64 vcc, vcc, s[78:79]")
        A(f"s_cbranch_scc0 {out}")
        self.spin_guard(out)
        if self.b1: A(f"s_sleep {self.b1}")
        self.reload([PA + 4 * t for t in range(4)], h1load)
        A(f"s_branch {lp}")
        A(f"{out}:")
        if self.stamps: A("s_mov_b32 s81, s7")
        self.stamp(9)
        self.lane_sum4([SA])
        A(f"v_mov_b32_dpp v{SA+1}, v{SA} row_ror:15 row_mask:0xf bank_mask:0xf")
        A(f"v_cvt_pk_bf16_f32 v{SA}, v{SA}, v{SA+1}")
        for k in range(4):
            A(f"v_mov_b32_dpp v{4+k}, v{SA} row_newbcast:{2*k} row_mask:0xf bank_mask:0xf")
        A("s_waitcnt lgkmcnt(0)")
        if self.wil:
            for k in range(4):
                A(f"v_cndmask_b32 v{8+k}, 0, v{4+k}, s[22:23]")
            for k in range(4):
                A(f"v_cndmask_b32 v{4+k}, v{4+k}, 0, s[22:23]")
            for ct in range(4):
                A(f"v_mfma_f32_16x16x32_bf16 {vr(DD+4*ct,4)}, {vr(WOA+8*ct+4,4)}, v[8:11], 0")
            for ct in range(4):
                A(f"v_mfma_f32_16x16x32_bf16 {vr(DD+4*ct,4)}, {vr(WOA+8*ct,4)}, v[4:7], {vr(DD+4*ct,4)}")
            A("s_mov_b32 exec_lo, 0x00030003\ns_mov_b32 exec_hi, 0x00030003")
            for ct in range(4):
                A(f"ds_write_b128 v{vYw}, {vr(DD+4*ct,4)} offset:{ct*128}")
        else:
            for ct in range(8):
                A(f"v_mfma_f32_16x16x32_bf16 {vr(DD+4*ct,4)}, {vr(WOA+4*ct,4)}, v[4:7], 0")
            A("s_mov_b32 exec_lo, 0x00010001\ns_mov_b32 exec_hi, 0x00010001")
            for ct in range(8):
                A(f"ds_write_b128 v{vYw}, {vr(DD+4*ct,4)} offset:{ct*64}")
        A(f"s_mov_b64 exec, 1\nds_add_u32 v{VFL}, v{vONE} offset:{F_Y}")
        A("s_cmp_lg_u32 s3, 0")
        A("s_cbranch_scc1 L_noy")
        A("s_mov_b64 exec, 0xffffffff")
        self.flagged(VFL, 8, F_Y, 4, [f"ds_read_b128 {vr(PA+4*k,4)}, v{vYr} offset:{k*512}" for k in range(4)])
        A("s_waitcnt lgkmcnt(2)")
        A(f"v_pk_add_f32 {vr(PA,2)}, {vr(PA,2)}, {vr(PA+4,2)}\nv_pk_add_f32 {vr(PA+2,2)}, {vr(PA+2,2)}, {vr(PA+6,2)}")
        A("s_waitcnt lgkmcnt(0)")
        A(f"v_pk_add_f32 {vr(PA+8,2)}, {vr(PA+8,2)}, {vr(PA+12,2)}\nv_pk_add_f32 {vr(PA+10,2)}, {vr(PA+10,2)}, {vr(PA+14,2)}")
        A(f"v_pk_add_f32 {vr(PA,2)}, {vr(PA,2)}, {vr(PA+8,2)}\nv_pk_add_f32 {vr(PA+2,2)}, {vr(PA+2,2)}, {vr(PA+10,2)}")
        A(f"v_cvt_pk_bf16_f32 v4, v{PA}, v{PA+1}\nv_cvt_pk_bf16_f32 v5, v{PA+2}, v{PA+3}")
        A(f"buffer_store_dwordx2 v[4:5], v{vYs}, s[16:19], s13 offen sc1")
        A("L_noy:")
        self.probe_mark("y", 0)
        self.stamp(10)
        if self.wdpf and not self.wdfirst:
            sk = self.lab("wp")
            A(f"s_cmp_eq_u32 s4, 7\ns_cbranch_scc1 {sk}\ns_mov_b64 exec, 0xffffffff")
            A(f"buffer_load_dword v254, v{vPF}, s[40:43], s20 offen {self.ppol}\n{sk}:")
        if self.stamps:
            A("s_mov_b64 exec, -1\ns_cmp_lg_u32 s3, 0\ns_cbranch_scc1 L_end")
            self.stamp_store(1, 16)
        A("s_endpgm")

    def ppath(self):
        A = self.A
        A("L_ppath:")
        dn = self.lab("pe")
        if self.gate:
            sk = self.lab("gs")
            A(f"s_sub_u32 s6, s5, {self.gwho}\ns_or_b32 s6, s6, s3\ns_cmp_lg_u32 s6, 0\ns_cbranch_scc1 {sk}")
            self.flagged(self.VFL, 4, F_A, self.acnt, slp=1)
            A(f"s_lshl_b32 s7, s4, 2\ns_add_u32 s7, s7, {GF_OFF}\ns_mov_b64 exec, 1")
            A(f"buffer_store_dword v240, v2, s[16:19], s7 offen sc1\ns_mov_b64 exec, -1\n{sk}:")
        A(f"s_cmp_eq_u32 s4, 7\ns_cbranch_scc1 {dn}")
        A("s_movk_i32 s6, 3584\nv_lshrrev_b32 v6, 2, v0\nv_mul_lo_u32 v6, v6, s6\nv_lshl_add_u32 v6, v14, 7, v6\nv_lshlrev_b32 v7, 7, v0")
        A(f"s_sub_u32 s6, s5, 24\ns_lshl_b32 s6, s6, 2\ns_add_u32 s6, s6, s3\ns_mul_i32 s20, s6, {16*3584}\ns_lshl_b32 s7, s4, 9\ns_add_u32 s20, s20, s7")
        A("s_lshl_b32 s21, s4, 18\ns_lshl_b32 s6, s6, 13\ns_add_u32 s21, s21, s6")
        if self.psplit:
            self.flagged(self.VFL, 4, F_A, self.acnt, slp=1)
            if self.psplit < 64: A(f"s_lshr_b64 exec, -1, {64 - self.psplit}")
            A(f"buffer_load_dword v8, v6, s[32:35], s20 offen {self.ppol}")
            A("s_mov_b64 exec, -1")
        self.flagged(self.VFL, 4, *((F_P, self.acnt) if self.p_back else (F_OPS, 2)), slp=1)
        self.gate_wait()
        self.stamp(7)
        if self.psplit < 64:
            if self.psplit: A(f"s_lshl_b64 exec, -1, {self.psplit}")
            A(f"buffer_load_dword v8, v6, s[32:35], s20 offen {self.ppol}")
            A("s_mov_b64 exec, -1")
        A(f"buffer_load_dword v9, v6, s[36:39], s20 offen {self.ppol}")
        if not self.wdpf and not self.wdfirst: A(f"buffer_load_dword v10, v7, s[40:43], s21 offen {self.ppol}")
        if self.stamps:
            A("s_waitcnt vmcnt(0)")
            self.stamp(14)
        A(f"{dn}:")
        if self.stamps:
            A("s_cmp_lg_u32 s3, 0\ns_cbranch_scc1 L_end")
            self.stamp_store(1, 16)
        A("s_endpgm")

    def gpath(self):
        A = self.A
        VFL, vONE = self.VFL, 240
        GB, WDA, P2, P1, T = 32, 96, 128, 192, 192
        vHVr, vHVs, vHHw, vHHr, vZs, vB1, vGg, vGu, vGT, vDT, vDv, vDw = range(228, 240)
        A("L_gpath:")
        if self.stamps:
            sk = self.lab("g7")
            A(f"s_cmp_lt_u32 s100, 56\ns_cbranch_scc1 {sk}\ns_cmp_lg_u32 s3, 0\ns_cbranch_scc1 L_end")
            self.stamp_store(1, 16)
            A(f"s_endpgm\n{sk}:")
        else:
            A("s_cmp_ge_u32 s100, 56\ns_cbranch_scc1 L_end")
        A("v_lshlrev_b32 v4, 4, v12\nv_and_b32 v5, 15, v0")
        A(f"v_add_u32 v7, {HV}, v4\nv_add_u32 v6, {ONES}, v4\nv_cmp_eq_u32 vcc, 1, v5\nv_cndmask_b32 v{vHVr}, v7, v6, vcc\nv_add_u32 v{vHVs}, {HV}, v2")
        A(f"s_lshl_b32 s6, s3, 4\ns_add_u32 s6, s6, {HH}\nv_lshl_add_u32 v{vHHw}, v5, 1, s6")
        A(f"v_lshl_add_u32 v{vZs}, v5, 6, v4")
        A(f"v_add_u32 v6, {ZR+64}, v{vZs}\nv_cmp_gt_u32 vcc, 8, v5\nv_mov_b32 v7, {ZR+16*64}\nv_cndmask_b32 v{vHHr}, v7, v6, vcc")
        A(f"s_lshl_b32 s76, s100, 11\ns_lshl_b32 s6, s3, 9\ns_add_u32 s76, s76, s6\ns_add_u32 s76, s76, {Z_OFF}")
        A(f"v_mov_b32 v{vB1}, 0x3f803f80")
        A("s_movk_i32 s6, 3584\nv_lshrrev_b32 v6, 2, v0\nv_mul_lo_u32 v6, v6, s6")
        A(f"v_lshrrev_b32 v7, 5, v0\nv_xor_b32 v7, v7, v14\nv_lshl_add_u32 v{vGg}, v7, 4, v6\nv_xor_b32 v7, 2, v7\nv_lshl_add_u32 v{vGu}, v7, 4, v6")
        A(f"s_mul_i32 s21, s3, {128*3584}\ns_lshl_b32 s6, s100, 6\ns_add_u32 s21, s21, s6")
        A(f"s_lshl_b32 s22, s100, 15\ns_lshl_b32 s6, s3, 8\ns_add_u32 s22, s22, s6\ns_lshl_b32 s6, s3, 13\ns_add_u32 s23, s6, {WG}")
        A(f"v_lshlrev_b32 v6, 4, v5\nv_lshlrev_b32 v7, 5, v12\nv_xor_b32 v6, v6, v7\nv_lshl_add_u32 v{vDv}, v12, 10, v6\nv_xor_b32 v{vDw}, 0x80, v{vDv}")
        A(f"v_and_b32 v6, 1, v12\nv_and_b32 v7, 2, v14\nv_or_b32 v6, v6, v7\nv_xor_b32 v6, s3, v6\nv_lshlrev_b32 v6, 4, v6")
        A(f"v_lshl_add_u32 v6, v15, 6, v6\nv_and_b32 v8, 1, v14\nv_lshl_add_u32 v6, v8, 3, v6\nv_lshl_add_u32 v6, v7, 14, v6\nv_add_u32 v{vGT}, {WG}, v6")
        A(f"v_and_b32 v6, 1, v12\nv_lshl_add_u32 v6, v6, 2, v13\nv_lshlrev_b32 v6, 5, v6\nv_lshl_add_u32 v6, v15, 8, v6\nv_lshl_add_u32 v6, v14, 3, v6")
        A(f"s_lshl_b32 s6, s3, 13\ns_add_u32 s6, s6, {WD}\nv_add_u32 v{vDT}, s6, v6")
        def wdload(ts):
            for t in ts:
                A(f"s_add_u32 m0, s23, {WD-WG+t*1024}\ns_add_u32 s6, s22, {t*4096}")
                A(f"buffer_load_dwordx4 v{vDw if t & 2 else vDv}, s[40:43], s6 offen {self.gpol} lds")

        def guload(ts):
            for t in ts:
                A(f"s_add_u32 m0, s23, {t*1024}\ns_add_u32 s6, s21, {t*16*3584}")
                A(f"buffer_load_dwordx4 v{vGg}, s[32:35], s6 offen {self.gpol} lds")
                A(f"s_add_u32 m0, s23, {WU-WG+t*1024}")
                A(f"buffer_load_dwordx4 v{vGu}, s[36:39], s6 offen {self.gpol} lds")
        first, second = (wdload, guload) if self.wdfirst else (guload, wdload)
        if self.ghead:
            self.flagged(VFL, 4, F_A, self.acnt, slp=1)
            first(range(self.ghead))
        self.flagged(VFL, 4, F_OPS, 2, slp=1)
        self.gate_wait()
        self.stamp(8)
        first(range(self.ghead, 8))
        if self.dg: A(f"s_sleep {self.dg}")
        second(range(8))
        wdr = []
        for c8 in range(8):
            va = vDT if c8 == 0 else 208 + c8
            if c8: A(f"v_xor_b32 v{va}, {c8*32}, v{vDT}")
            wdr += [f"ds_read_b64_tr_b16 {vr(WDA+4*c8,2)}, v{va}", f"ds_read_b64_tr_b16 {vr(WDA+4*c8+2,2)}, v{va} offset:1024"]
        if self.wdfirst:
            A("s_waitcnt vmcnt(16)")
            for k, x in enumerate(wdr):
                if k in (10, 14): A("s_waitcnt lgkmcnt(8)")
                A(x)
            A("s_waitcnt vmcnt(0)")
        else:
            A("s_waitcnt vmcnt(8)")
        self.flag_add(VFL, vONE, F_GL)
        self.flagged(VFL, 4, F_GL, 4)
        self.stamp(9)
        for m in range(16):
            if m >= 7 and m % 2 == 1: A("s_waitcnt lgkmcnt(8)")
            A(f"ds_read_b64_tr_b16 {vr(GB+4*m,2)}, v{vGT} offset:{m*2048}")
            A(f"ds_read_b64_tr_b16 {vr(GB+4*m+2,2)}, v{vGT} offset:{m*2048 + 256}")
        if not self.wdlate and not self.wdfirst:
            A("s_waitcnt vmcnt(0) lgkmcnt(0)")
            if self.h2on == "g2": self.flag_add(VFL, vONE, F_G2)
            for k, x in enumerate(wdr):
                if k in (10, 14): A("s_waitcnt lgkmcnt(8)")
                A(x)
        A("s_waitcnt lgkmcnt(0)")
        self.probe_mark("grdy", 0)
        self.stamp(15)
        A("s_barrier")
        self.stamp(11)
        A(f"ds_read_b128 v[4:7], v{vHVs}")
        for m in range(14):
            A(f"ds_read_b128 {vr(P2+4*m,4)}, v{vHVr} offset:{m*64}")
        save = self.L
        self.L = []
        for k in range(4):
            A(f"v_dot2_f32_bf16 v{T+8}, v{4+k}, v{vB1}, {'0' if k == 0 else f'v{T+8}'}")
            A(f"v_dot2_f32_bf16 v{T+9}, v{4+k}, v{4+k}, {'0' if k == 0 else f'v{T+9}'}")
        self.allred("v_add_f32", [T + 8, T + 9], [T + 10, T + 11])
        A(f"v_mul_f32 v{T+8}, {INV512}, v{T+8}\nv_mul_f32 v{T+9}, {INV512}, v{T+9}")
        A(f"v_fma_f32 v{T+9}, -v{T+8}, v{T+8}, v{T+9}\nv_max_f32 v{T+9}, 0, v{T+9}")
        self.ln_scalars(T + 8, T + 9, T + 10)
        st = [x.strip() for x in self.L]
        self.L = save
        per = -(-len(st) // 15)
        for m in range(16):
            if m == 0:
                A("s_waitcnt lgkmcnt(13)")
            elif m % 2 == 1:
                A(f"s_waitcnt lgkmcnt({max(14-m, 0)})")
            A(f"v_mfma_f32_16x16x32_bf16 v[8:11], {vr(P2+4*m,4)}, {vr(GB+4*m,4)}, {'0' if m == 0 else 'v[8:11]'}")
            if m == 0:
                for m2 in (14, 15):
                    A(f"ds_read_b128 {vr(P2+4*m2,4)}, v{vHVr} offset:{m2*64}")
            for x in st[m * per:(m + 1) * per]:
                A(x)
        if self.wdlate:
            A("s_waitcnt vmcnt(0)")
            for k, x in enumerate(wdr[:14]): A(x)
        A(f"v_fma_f32 v4, -v{T+8}, v9, v8\nv_mul_f32 v4, v4, v{T+9}")
        A("v_mul_f32 v5, s59, v4\nv_exp_f32 v5, -v5")
        A("v_mov_b32_dpp v6, v4 row_ror:8 row_mask:0xf bank_mask:0xf")
        A("v_add_f32 v5, 1.0, v5\nv_rcp_f32 v5, v5")
        if self.wdlate:
            A("s_waitcnt lgkmcnt(10)")
            for x in wdr[14:]: A(x)
        A("v_mul_f32 v5, v5, v6\nv_cvt_pk_bf16_f32 v5, v5, v5")
        A("s_mov_b64 exec, 0xff")
        A(f"ds_write_b16 v{vHHw}, v5")
        A("s_mov_b64 exec, -1")
        A("s_waitcnt lgkmcnt(0)")
        A("s_barrier")
        for c8 in range(8):
            A(f"ds_read_b128 {vr(P1+4*c8,4)}, v{vHHr} offset:{(7-c8)*64}")
        for c8 in range(8):
            A(f"s_waitcnt lgkmcnt({7-c8})")
            A(f"v_mfma_f32_16x16x32_bf16 v[8:11], {vr(WDA+4*c8,4)}, {vr(P1+4*c8,4)}, {'0' if c8 == 0 else 'v[8:11]'}")
        A("s_mov_b32 exec_lo, 0x00ff00ff\ns_mov_b32 exec_hi, 0x00ff00ff")
        A(f"buffer_store_dwordx4 v[8:11], v{vZs}, s[16:19], s76 offen sc1")
        if self.stamps:
            A("s_mov_b64 exec, -1")
            self.stamp(12)
            A("s_cmp_lg_u32 s3, 0\ns_cbranch_scc1 L_end")
            self.stamp_store(1, 16)

    def build(self):
        self.entry()
        self.streamer()
        self.helper()
        self.A("L_end:\ns_endpgm")
        for i, (l, out) in enumerate(getattr(self, "tmos", [])):
            self.A(f"{l}:\ns_mov_b64 s[96:97], exec\ns_mov_b64 exec, 1\ns_lshl_b32 s95, s2, 8\ns_or_b32 s95, s95, {i+1}\nv_mov_b32 v62, s95\nv_mov_b32 v63, {0x6000 + 4*i}")
            self.A(f"buffer_store_dword v62, v63, s[16:19], 0 offen sc1\ns_waitcnt vmcnt(0)\ns_mov_b64 exec, s[96:97]\ns_branch {out}")
        if "tmo" in self.dbg: print([(i, o) for i, (l, o) in enumerate(self.tmos)])
        self.A("L_code_end:")
        body, nn = hazard.fix(self.L)
        head = open("cdna_kernels/" + KN[:-7] + ".s.ref").read().split("; Override launch")[0]
        out = head
        out += f"; @launch grid=(256,1,1) block=(512,1,1) lds={LDS_SIZE}\n"
        out += HEADER
        out += '.amdgcn_target "amdgcn-amd-amdhsa--gfx950"\n.text\n'
        out += f".globl {KN}\n.p2align 8\n.type {KN},@function\n{KN}:\n"
        out += "\n".join(body) + "\n"
        out += f""".section .rodata,"a"
.p2align 6
.amdhsa_kernel {KN}
  .amdhsa_next_free_vgpr 256
  .amdhsa_next_free_sgpr 102
  .amdhsa_accum_offset 256
  .amdhsa_group_segment_fixed_size 0
  .amdhsa_kernarg_size 96
  .amdhsa_user_sgpr_count 2
  .amdhsa_user_sgpr_kernarg_segment_ptr 1
  .amdhsa_system_sgpr_workgroup_id_x 1
.end_amdhsa_kernel
"""
        return out


def gen(**kw):
    return Gen(**kw).build()


if __name__ == "__main__":
    kw = eval("dict(" + (sys.argv[2] if len(sys.argv) > 2 else "") + ")")
    open(sys.argv[1], "w").write(gen(**kw))
```
